```python
import torch

def _softmax(x, axis=-1):
    return torch.softmax(x, dim=axis)
def _gelu(x):
    return torch.nn.functional.gelu(x, approximate="tanh")
def _silu(x):
    return torch.nn.functional.silu(x)
def _sigmoid(x):
    return torch.sigmoid(x)
def _layernorm(x, axis=-1, eps=1e-5):
    m = x.mean(dim=axis, keepdim=True)
    v = x.var(dim=axis, keepdim=True, unbiased=False)
    return (x - m) / torch.sqrt(v + eps)
def _scatter_add(tgt, idx, src, axis=0):
    return tgt.clone().index_add_(axis, idx, src)
def _segment_sum(src, seg, n):
    out = torch.zeros((n,) + src.shape[1:], dtype=src.dtype)
    return out.index_add_(0, seg, src)
def _pad(x, pw):
    flat = tuple(v for pair in reversed(pw) for v in pair)
    return torch.nn.functional.pad(x, flat)

kernel_name = 'sequential_preLN__spectral_fnet__moe_arch_mod__prompt'

def setup_inputs():

    _w = (lambda a: (lambda t: t.to(torch.bfloat16) if t.is_floating_point() else t)(torch.as_tensor(a)))
    def _A_setup():
        B, S, D = 1, 2048, 448
        ns = torch.arange(S)[:, None] * torch.arange(S)[None, :]
        nd = torch.arange(D)[:, None] * torch.arange(D)[None, :]
        Ws_re = torch.cos(-2.0 * torch.pi * ns / S).to(float)
        Ws_im = torch.sin(-2.0 * torch.pi * ns / S).to(float)
        Wd_re = torch.cos(-2.0 * torch.pi * nd / D).to(float)
        Wd_im = torch.sin(-2.0 * torch.pi * nd / D).to(float)
        return {
            "x": _w((lambda *s: torch.randn(*s, dtype=torch.bfloat16) * 0.05)(B, S, D)),
            "dft_seq_re": _w(Ws_re),
            "dft_seq_im": _w(Ws_im),
            "dft_hid_re": _w(Wd_re),
            "dft_hid_im": _w(Wd_im),
        }
    _A_in = _A_setup()

    def _B_setup():
        B, S, D, F, C = 1, 2048, 448, 1792, 8
        return {
            "x": _w((lambda *s: torch.randn(*s, dtype=torch.bfloat16) * 0.05)(B, S, D)),
            "w_r": _w((lambda *s: torch.randn(*s, dtype=torch.bfloat16) * 1.6)(D)),
            "w_gate": _w((lambda *s: torch.randn(*s, dtype=torch.bfloat16) * 0.4)(D, F)),
            "w_up": _w((lambda *s: torch.randn(*s, dtype=torch.bfloat16) * 0.4)(D, F)),
            "w_down": _w((lambda *s: torch.randn(*s, dtype=torch.bfloat16) * 0.4)(F, D)),
        }
    _B_in = _B_setup()

    return {
        "A_x": _A_in["x"],
        "A_dft_seq_re": _A_in["dft_seq_re"],
        "A_dft_seq_im": _A_in["dft_seq_im"],
        "A_dft_hid_re": _A_in["dft_hid_re"],
        "A_dft_hid_im": _A_in["dft_hid_im"],
        "B_x": _B_in["x"],
        "B_w_r": _B_in["w_r"],
        "B_w_gate": _B_in["w_gate"],
        "B_w_up": _B_in["w_up"],
        "B_w_down": _B_in["w_down"],
    }

def reference(A_x, A_dft_seq_re, A_dft_seq_im, A_dft_hid_re, A_dft_hid_im, B_x, B_w_r, B_w_gate, B_w_up, B_w_down):
    def _A_ref(x, dft_seq_re, dft_seq_im, dft_hid_re, dft_hid_im):
        a = torch.einsum("bsd,ed->bse", x, dft_hid_re)
        b = torch.einsum("bsd,ed->bse", x, dft_hid_im)
        y = torch.einsum("ts,bse->bte", dft_seq_re, a) - torch.einsum("ts,bse->bte", dft_seq_im, b)
        return y

    def _B_ref(x, w_r, w_gate, w_up, w_down):
        B, S, D = x.shape
        C = 8
        r = x @ w_r
        idx = torch.argsort(-r, axis=-1)[:, :C]
        idx_e = (lambda x, n, axis: torch.repeat_interleave(x, n, dim=axis))(idx.reshape(B, C, 1), D, axis=2)
        x_sel = (lambda x, i, axis: torch.take_along_dim(x, i, dim=axis))(x, idx_e, axis=1)
        g = _silu(x_sel @ w_gate)
        u = x_sel @ w_up
        y = (g * u) @ w_down
        r_sel = _sigmoid((lambda x, i, axis: torch.take_along_dim(x, i, dim=axis))(r, idx, axis=1))
        y = y * r_sel.reshape(B, C, 1)
        b_off = (torch.arange(B) * S).reshape(B, 1)
        flat_idx = (idx + b_off).reshape(B * C)
        zero = (x * 0.0).reshape(B * S, D)
        upd = _scatter_add(zero, flat_idx, y.reshape(B * C, D), axis=0)
        return x + upd.reshape(B, S, D)

    x = A_x
    h = x + _A_ref(_layernorm(x, axis=-1), A_dft_seq_re, A_dft_seq_im, A_dft_hid_re, A_dft_hid_im)
    h2 = h + _B_ref(_layernorm(h, axis=-1), B_w_r, B_w_gate, B_w_up, B_w_down)
    return h2
```

```python
import struct, sys

NAME = "sequential_preLN__spectral_fnet__moe_arch_mod__prompt"

def fbits(x):
    return "0x%08x" % struct.unpack("<I", struct.pack("<f", x))[0]

class E:
    def __init__(self):
        self.l = []
    def __call__(self, s=""):
        for line in s.split("\n"):
            line = line.strip()
            if line.endswith(":") or line.startswith("."):
                self.l.append(line)
            elif line:
                self.l.append("    " + line)
    def text(self):
        return "\n".join(self.l) + "\n"

WS_V    = 0x000000
WS_HN   = 0x200000
WS_KEY  = 0x400000
WS_PART = 0x500000
WS_META = 0x600000
WS_SIZE = 0x10000000
XBYTES  = 2048*896

def vr(a, n):
    return "v[%d:%d]" % (a, a+n-1)
def ar(a, n):
    return "a[%d:%d]" % (a, a+n-1)

def srd(e, d, b, size):
    e(f"s_mov_b32 s{d}, s{b}")
    e(f"s_mov_b32 s{d+1}, s{b+1}")
    e(f"s_mov_b32 s{d+2}, {size:#x}")
    e(f"s_mov_b32 s{d+3}, 0x20000")

def header(e, name):
    e(f".globl {name}")
    e(".p2align 8")
    e(f".type {name},@function")
    e(f"{name}:")

def k1(e):
    header(e, "fnet_k1_kernel")
    X, ACC, CUR, PRV, PK, RF = 64, 32, 16, 24, 48, 56
    LDS_Z, LDS_CS = 57344, 57344 + 8192
    e("s_cmp_ge_u32 s2, 224")
    e("s_cbranch_scc1 L_k1_end")
    e("s_load_dwordx2 s[4:5], s[0:1], 0")
    e("s_load_dwordx2 s[6:7], s[0:1], 96")
    e("v_lshrrev_b32 v1, 6, v0")
    e("v_and_b32 v2, 15, v0")
    e("v_readfirstlane_b32 s16, v1")
    e("v_bfe_u32 v3, v0, 4, 2")
    e("v_and_b32 v1, 63, v0")
    e("s_and_b32 s17, s2, 7")
    e("s_bfe_u32 s18, s2, 0x20003")
    e("s_lshr_b32 s19, s2, 5")
    e("s_lshl_b32 s20, s17, 2")
    e("s_add_u32 s20, s20, s18")
    e("v_lshrrev_b32 v4, 2, v2")
    e("v_and_b32 v5, 3, v2")
    e("v_lshl_add_u32 v6, v4, 3, v5")
    e("v_mul_u32_u24 v6, 28672, v6")
    e("v_lshl_add_u32 v6, v3, 4, v6")
    e("s_lshr_b32 s21, s16, 1")
    e("s_and_b32 s22, s16, 1")
    e("s_lshl_b32 s23, s21, 10")
    e("s_lshl_b32 s24, s22, 7")
    e("s_add_u32 s23, s23, s24")
    e("s_add_u32 s23, s23, s20")
    e("s_mul_i32 s23, s23, 896")
    e("s_lshl_b32 s24, s19, 6")
    e("s_lshl_b32 s25, s16, 2")
    e("s_add_u32 s24, s24, s25")
    e("v_lshl_add_u32 v7, v4, 4, v5")
    e("v_add_u32 v7, s24, v7")
    e("v_mov_b32 v9, 224")
    e("v_cmp_eq_u32 vcc, 0, v7")
    e("v_subrev_u32 v8, 224, v7")
    e("v_cmp_le_u32 s[26:27], v9, v7")
    e("v_cndmask_b32 v7, v7, v9, vcc")
    e("v_mov_b32 v10, 0x3e800000")
    e("v_cndmask_b32 v7, v7, v8, s[26:27]")
    e("v_cndmask_b32 v10, 0, v10, s[26:27]")
    e("v_cvt_f32_u32 v7, v7")
    e(f"v_mul_f32 v7, {fbits(1.0/448)}, v7")
    e("v_lshlrev_b32 v8, 3, v3")
    e("v_cvt_f32_u32 v8, v8")
    e("v_fma_f32 v8, v8, v7, v10")
    e("v_mul_f32 v9, 0x42000000, v7")
    e("v_cos_f32 v52, v9")
    for j in range(8):
        e(f"v_cos_f32 v{CUR+j}, v8")
        e(f"v_sub_f32 v11, v8, v9")
        if j < 7:
            e(f"v_add_f32 v8, v8, v7")
        e(f"v_cos_f32 v{PRV+j}, v11")
    e("v_add_f32 v52, v52, v52")
    e("s_mov_b32 s28, 0x3f803f80")
    e("v_mov_b32 v54, 0")
    e("s_mul_i32 s24, s16, 14336")
    e("v_lshl_add_u32 v55, v1, 4, s24")
    e("v_mov_b32 v53, v52")
    e("s_waitcnt lgkmcnt(0)")
    srd(e, 8, 4, XBYTES)
    for k in range(14):
        e(f"buffer_load_dwordx4 {vr(X+4*k,4)}, v6, s[8:11], s23 offen offset:{64*k}")
    srd(e, 12, 6, WS_SIZE)
    e("s_mov_b32 s29, 0")
    e("L_k1_fgen:")
    for (A, B, off) in ((CUR, PRV, 0), (PRV, CUR, 1024)):
        for j in range(4):
            e(f"v_cvt_pk_bf16_f32 v{PK+j}, v{A+2*j}, v{A+2*j+1}")
        for j in range(4):
            e(f"v_pk_fma_f32 {vr(B+2*j,2)}, v[52:53], {vr(A+2*j,2)}, {vr(B+2*j,2)} neg_lo:[0,0,1] neg_hi:[0,0,1]")
        e(f"ds_write_b128 v55, {vr(PK,4)} offset:{off}")
        for j in range(4):
            e(f"v_dot2c_f32_bf16 v54, s28, v{PK+j}")
    e("v_add_u32 v55, 2048, v55")
    e("s_add_u32 s29, s29, 1")
    e("s_cmp_lt_u32 s29, 7")
    e("s_cbranch_scc1 L_k1_fgen")
    e("v_mov_b32 v9, 1.0")
    e("s_nop 2")
    e("v_mfma_f32_16x16x4_f32 v[12:15], v9, v54, 0")
    e("s_lshl_b32 s24, s22, 4")
    e("v_add_u32 v7, s24, v2")
    e("s_mul_i32 s25, s21, 0x3e800000")
    e("v_mov_b32 v10, s25")
    e("s_cmp_eq_u32 s16, 2")
    e("s_cselect_b32 s24, 0, -1")
    e("v_cmp_eq_u32 vcc, s24, v7")
    e("v_mov_b32 v11, 32")
    e("v_lshlrev_b32 v8, 3, v3")
    e("v_cndmask_b32 v7, v7, v11, vcc")
    e("v_cndmask_b32 v10, v10, 0, vcc")
    e("v_cvt_f32_u32 v7, v7")
    e("v_cvt_f32_u32 v8, v8")
    e(f"v_mul_f32 v7, {fbits(1.0/64)}, v7")
    e("s_lshl_b32 s24, s16, 6")
    e(f"s_add_u32 s24, s24, {LDS_CS}")
    e("v_lshl_add_u32 v11, v2, 2, s24")
    e("ds_write_b32 v11, v12")
    e("v_fma_f32 v8, v8, v7, v10")
    e("v_mul_f32 v10, 0x42000000, v7")
    for j in range(8):
        e(f"v_cos_f32 v{CUR+j}, v8")
        e(f"v_add_f32 v11, v8, v10")
        if j < 7:
            e(f"v_add_f32 v8, v8, v7")
        e(f"v_cos_f32 v{PRV+j}, v11")
    e("s_waitcnt lgkmcnt(0)")
    e("s_barrier")
    e("v_lshlrev_b32 v11, 4, v1")
    for k in range(14):
        for n in range(4):
            e(f"ds_read_b128 {ar((k*4+n)*4,4)}, v11 offset:{(n*14+k)*1024}")
        if k == 0:
            for j in range(4):
                e(f"v_cvt_pk_bf16_f32 v{RF+j}, v{CUR+2*j}, v{CUR+2*j+1}")
                e(f"v_cvt_pk_bf16_f32 v{RF+4+j}, v{PRV+2*j}, v{PRV+2*j+1}")
    e(f"v_lshlrev_b32 v10, 2, v2")
    e(f"v_add_u32 v10, {LDS_CS}, v10")
    for n in range(4):
        e(f"ds_read_b32 v{48+n}, v10 offset:{64*n}")
    e("s_lshl_b32 s24, s21, 10")
    e("s_lshl_b32 s25, s22, 3")
    e("s_add_u32 s24, s24, s25")
    e(f"s_add_u32 s24, s24, {LDS_Z}")
    e("v_add_u32 v55, s24, v11")
    e(f"v_add_u32 v54, {LDS_Z}, v11")
    e("v_mul_u32_u24 v53, 57344, v2")
    e("v_lshl_add_u32 v53, v3, 10, v53")
    e("s_mul_i32 s24, s22, 917504")
    e("s_mul_i32 s25, s21, 28672")
    e("s_add_u32 s24, s24, s25")
    e("s_lshl_b32 s25, s19, 12")
    e("s_add_u32 s24, s24, s25")
    e("s_lshr_b32 s25, s17, 2")
    e("s_lshl_b32 s25, s25, 4")
    e("s_and_b32 s26, s17, 1")
    e("s_lshl_b32 s26, s26, 3")
    e("s_add_u32 s25, s25, s26")
    e("s_and_b32 s26, s17, 2")
    e("s_lshl_b32 s26, s26, 1")
    e("s_add_u32 s25, s25, s26")
    e("s_add_u32 s25, s25, s18")
    e("s_lshl_b32 s25, s25, 5")
    e("s_add_u32 s30, s24, s25")
    for r in (4, 5, 6, 7):
        e(f"v_mov_b32 v{r}, 0")
    e("s_waitcnt lgkmcnt(0)")
    def mf(k, n):
        c = "0" if k == 0 else vr(ACC+4*n, 4)
        e(f"v_mfma_f32_16x16x32_bf16 {vr(ACC+4*n,4)}, {vr(X+4*k,4)}, {ar((k*4+n)*4,4)}, {c}")
    LAG = 1
    for k in range(14):
        e(f"s_waitcnt vmcnt({13-k})")
        for j in range(4):
            e(f"v_dot2c_f32_bf16 v{4+(j&1)}, s28, v{X+4*k+j}")
            e(f"v_dot2c_f32_bf16 v{6+(j&1)}, v{X+4*k+j}, v{X+4*k+j}")
            if k >= LAG:
                mf(k-LAG, j)
    e("s_nop 1")
    e("v_add_f32 v4, v4, v5")
    e("v_add_f32 v6, v6, v7")
    e("s_nop 1")
    e("v_mfma_f32_16x16x4_f32 v[16:19], v4, v9, 0")
    e("v_mfma_f32_16x16x4_f32 v[20:23], v6, v9, 0")
    for k in range(14-LAG, 14):
        for n in range(4):
            mf(k, n)
    e("s_nop 5")
    inv = fbits(1.0/448)
    e(f"s_mov_b32 s24, {inv}")
    e(f"s_mov_b32 s25, {inv}")
    e(f"s_mov_b32 s26, {fbits(1e-5)}")
    e(f"s_mov_b32 s27, 0xffff0000")
    e("v_pk_mul_f32 v[16:17], v[16:17], s[24:25]")
    e("v_pk_mul_f32 v[18:19], v[18:19], s[24:25]")
    e("v_pk_mul_f32 v[20:21], v[20:21], s[24:25]")
    e("v_pk_mul_f32 v[22:23], v[22:23], s[24:25]")
    e("v_pk_fma_f32 v[20:21], v[16:17], v[16:17], v[20:21] neg_lo:[1,0,0] neg_hi:[1,0,0]")
    e("v_pk_fma_f32 v[22:23], v[18:19], v[18:19], v[22:23] neg_lo:[1,0,0] neg_hi:[1,0,0]")
    def round4():
        e("v_cvt_pk_bf16_f32 v24, v20, v21")
        e("v_cvt_pk_bf16_f32 v25, v22, v23")
        e("v_lshlrev_b32 v20, 16, v24")
        e("v_and_b32 v21, s27, v24")
        e("v_lshlrev_b32 v22, 16, v25")
        e("v_and_b32 v23, s27, v25")
    for r in range(4):
        e(f"v_max_f32 v{20+r}, 0, v{20+r}")
    round4()
    for r in range(4):
        e(f"v_add_f32 v{20+r}, s26, v{20+r}")
    round4()
    for r in range(4):
        e(f"v_sqrt_f32 v{20+r}, v{20+r}")
    e("s_nop 0")
    round4()
    for r in range(4):
        e(f"v_rcp_f32 v{20+r}, v{20+r}")
    e("s_nop 0")
    e("v_pk_mul_f32 v[16:17], v[16:17], v[20:21]")
    e("v_pk_mul_f32 v[18:19], v[18:19], v[22:23]")
    for n in range(4):
        a = ACC + 4*n
        e(f"v_pk_mul_f32 {vr(a,2)}, {vr(a,2)}, v[20:21]")
        e(f"v_pk_mul_f32 {vr(a+2,2)}, {vr(a+2,2)}, v[22:23]")
        for r in range(4):
            e(f"v_fma_f32 v{a+r}, -v{16+r}, v{48+n}, v{a+r}")
        e(f"v_cvt_pk_bf16_f32 v{24+2*n}, v{a}, v{a+1}")
        e(f"v_cvt_pk_bf16_f32 v{25+2*n}, v{a+2}, v{a+3}")
        e(f"ds_write_b64 v55, {vr(24+2*n,2)} offset:{n*2048}")
    e("s_waitcnt lgkmcnt(0)")
    e("s_barrier")
    for n in range(4):
        for k2 in range(2):
            e(f"ds_read_b128 {vr(X+(n*2+k2)*4,4)}, v54 offset:{(n*2+k2)*1024}")
    for n in range(4):
        e(f"s_waitcnt lgkmcnt({6-2*n})")
        e(f"v_mfma_f32_16x16x32_bf16 {vr(ACC+4*n,4)}, {vr(X+(n*2)*4,4)}, {vr(RF,4)}, 0")
        e(f"v_mfma_f32_16x16x32_bf16 {vr(ACC+4*n,4)}, {vr(X+(n*2+1)*4,4)}, {vr(RF+4,4)}, {vr(ACC+4*n,4)}")
    e("s_nop 1")
    for n in range(4):
        if n == 3:
            e("s_nop 1")
        e(f"v_cvt_pk_bf16_f32 v{16+2*n}, v{ACC+4*n}, v{ACC+4*n+1}")
        e(f"v_cvt_pk_bf16_f32 v{17+2*n}, v{ACC+4*n+2}, v{ACC+4*n+3}")
    e("buffer_store_dwordx4 v[16:19], v53, s[12:15], s30 offen")
    e("buffer_store_dwordx4 v[20:23], v53, s[12:15], s30 offen offset:16")
    e("L_k1_end:")
    e("s_endpgm")
    return dict(name="fnet_k1_kernel", vgpr=128+224, accum=128, sgpr=40, grid=224, block=256, lds=57344+8192+256)

def dpp_reduce(e, op, regs, first=True):
    steps = ["row_shr:1", "row_shr:2", "row_shr:4", "row_shr:8", "row_bcast:15 row_mask:0xa", "row_bcast:31 row_mask:0xc"]
    for s in steps:
        m = s if "row_mask" in s else s + " row_mask:0xf"
        for r in regs:
            e(f"{op}_dpp v{r}, v{r}, v{r} {m} bank_mask:0xf")
        if len(regs) == 1:
            e("s_nop 1")
        elif len(regs) == 2:
            e("s_nop 0")

def k2(e):
    header(e, "fnet_k2_kernel")
    YB = 57344
    RS = 1808
    C, S, F1, F2, F3 = 16, 20, 24, 28, 32
    A = 64
    ACC = 36
    AD = 44
    XR, WR = 52, 56
    e("s_cmp_ge_u32 s2, 256")
    e("s_cbranch_scc1 L_k2_end")
    e("s_load_dwordx2 s[10:11], s[0:1], 96")
    e("s_load_dwordx2 s[4:5], s[0:1], 0")
    e("s_load_dwordx2 s[6:7], s[0:1], 48")
    e("s_load_dwordx2 s[8:9], s[0:1], 80")
    e("v_lshrrev_b32 v1, 6, v0")
    e("v_and_b32 v2, 15, v0")
    e("v_readfirstlane_b32 s28, v1")
    e("v_bfe_u32 v3, v0, 4, 2")
    e("v_and_b32 v1, 63, v0")
    e("s_and_b32 s29, s2, 31")
    e("s_bfe_u32 s30, s2, 0x20005")
    e("s_lshr_b32 s31, s2, 7")
    e("s_sub_u32 s32, 64, s29")
    e("s_cmp_eq_u32 s29, 0")
    e("s_cselect_b32 s32, 32, s32")
    e("s_cmp_eq_u32 s31, 0")
    e("s_cselect_b32 s32, s29, s32")
    e("s_lshl_b32 s33, s30, 9")
    e("s_add_u32 s33, s33, s32")
    e("s_lshl_b32 s34, s28, 6")
    e("s_add_u32 s34, s34, s33")
    e("s_mul_i32 s35, s34, 896")
    e("v_lshlrev_b32 v4, 4, v1")
    e("v_cmp_gt_u32 vcc, 56, v1")
    e("v_mov_b32 v5, 0x7ff00000")
    e("s_mul_i32 s36, s29, 57344")
    e("s_lshl_b32 s37, s28, 11")
    e("v_cndmask_b32 v5, v5, v4, vcc")
    e("s_add_u32 s36, s36, s37")
    e("s_lshl_b32 s37, s28, 13")
    e("s_waitcnt lgkmcnt(0)")
    srd(e, 24, 10, WS_SIZE)
    e("s_cmp_eq_u32 s28, 7")
    e("s_cbranch_scc1 L_k2_w7")
    for blk in range(4):
        half, kind = blk >> 1, blk & 1
        e(f"s_add_u32 m0, s37, {blk*2048}")
        e(f"s_add_u32 s38, s36, {half*28672 + kind*14336}")
        e(f"buffer_load_dwordx4 v4, s[24:27], s38 offen lds")
        e(f"buffer_load_dwordx4 v4, s[24:27], s38 offen offset:1024 lds")
    e("L_k2_w7:")
    srd(e, 12, 4, XBYTES)
    srd(e, 16, 6, 896)
    e(f"buffer_load_dwordx4 {vr(XR,4)}, v5, s[12:15], s35 offen")
    e(f"buffer_load_dwordx4 {vr(WR,4)}, v4, s[16:19], 0 offen")
    srd(e, 20, 8, XBYTES)
    e("s_cmp_eq_u32 s28, 7")
    e("s_cbranch_scc0 L_k2_gemm")
    e(f"v_mul_u32_u24 v6, {RS}, v1")
    e("v_mov_b32 v7, 0")
    e("v_cmp_gt_u32 vcc, 8, v1")
    e("s_and_saveexec_b64 s[38:39], vcc")
    e(f"ds_write_b32 v6, v7 offset:{YB}")
    e("s_mov_b64 exec, s[38:39]")
    e("s_branch L_k2_join")
    e("L_k2_gemm:")
    e("v_and_b32 v6, 7, v2")
    e("v_lshl_add_u32 v7, v6, 6, s33")
    e("v_cvt_f32_u32 v7, v7")
    e(f"v_mul_f32 v7, {fbits(1.0/2048)}, v7")
    e("v_lshlrev_b32 v8, 3, v3")
    e("v_cvt_f32_u32 v8, v8")
    e("v_mul_f32 v8, v8, v7")
    for j in range(8):
        e(f"v_cos_f32 v{A+j}, v8")
        e(f"v_sin_f32 v{A+8+j}, v8")
        if j < 7:
            e("v_add_f32 v8, v8, v7")
    e("v_cmp_gt_u32 s[40:41], 8, v2")
    e("s_mov_b32 s38, 0x80008000")
    e("v_mov_b32 v9, s38")
    for j in range(4):
        e(f"v_cvt_pk_bf16_f32 v{C+j}, v{A+2*j}, v{A+2*j+1}")
        e(f"v_cvt_pk_bf16_f32 v{S+j}, v{A+8+2*j}, v{A+8+2*j+1}")
    e("v_cndmask_b32 v10, v9, 0, s[40:41]")
    e("s_cmp_gt_u32 s32, 32")
    e("s_cselect_b32 s39, s38, 0")
    e("s_xor_b32 s42, s39, s38")
    e("v_xor_b32 v11, s42, v10")
    for j in range(4):
        e(f"v_xor_b32 v{F1+j}, s39, v{S+j}")
        e(f"v_xor_b32 v{F2+j}, v10, v{S+j}")
        e(f"v_xor_b32 v{F3+j}, v11, v{C+j}")
    e("s_cmp_lg_u32 s29, 0")
    e("s_cbranch_scc1 L_k2_nospecial")
    e("s_cmp_eq_u32 s32, 0")
    e("s_cbranch_scc1 L_k2_t0")
    for j in range(4):
        e(f"v_mov_b32 v{F1+j}, v{C+j}")
        e(f"v_mov_b32 v{F3+j}, v{F2+j}")
        e(f"v_mov_b32 v{C+j}, 0")
        e(f"v_mov_b32 v{F2+j}, 0")
    e("s_branch L_k2_nospecial")
    e("L_k2_t0:")
    for j in range(4):
        e(f"v_mov_b32 v{F1+j}, 0")
        e(f"v_mov_b32 v{F3+j}, 0")
    e("L_k2_nospecial:")
    e("v_lshrrev_b32 v12, 1, v3")
    e("v_lshlrev_b32 v12, 4, v12")
    e("v_and_b32 v13, 1, v3")
    e("v_lshl_add_u32 v12, v13, 2, v12")
    e("v_lshrrev_b32 v13, 2, v2")
    e("v_add_u32 v12, v12, v13")
    e("v_lshlrev_b32 v12, 5, v12")
    e("v_and_b32 v13, 3, v2")
    e("v_lshl_add_u32 v12, v13, 3, v12")
    e("v_add_u32 v12, s37, v12")
    e("s_lshl_b32 s42, s28, 7")
    e("v_lshl_add_u32 v13, v3, 4, s42")
    e("v_sub_u32 v14, 1792, v13")
    e("v_cndmask_b32 v13, v14, v13, s[40:41]")
    e(f"v_mul_u32_u24 v14, {RS}, v6")
    e(f"v_add3_u32 v{AD}, v13, v14, 0")
    e(f"v_add_u32 v{AD}, {YB}, v{AD}")
    e("v_cndmask_b32 v13, -4, 4, s[40:41]")
    for r in range(1, 4):
        e(f"v_add_u32 v{AD+r}, v{AD+r-1}, v13")
    e("v_lshlrev_b32 v13, 4, v13")
    for r in range(4):
        e(f"v_add_u32 v{AD+4+r}, v{AD+r}, v13")
    e("v_cmp_gt_u32 vcc, 8, v0")
    e(f"v_add_u32 v13, 896, v{AD}")
    e("s_nop 0")
    e(f"v_cndmask_b32 v{AD}, v{AD}, v13, vcc")
    e("s_waitcnt vmcnt(2)")
    for mm in range(2):
        for blk in range(4):
            for io in range(2):
                e(f"ds_read_b64_tr_b16 {vr(A+(mm*4+blk)*4+2*io,2)}, v12 offset:{blk*2048+mm*1024+io*256}")
    fr = {0: C, 1: F2, 2: F1, 3: F3}
    for mm in range(2):
        for blk in range(4):
            e(f"s_waitcnt lgkmcnt({14-2*(mm*4+blk)})")
            c = "0" if blk == 0 else vr(ACC+4*mm, 4)
            e(f"v_mfma_f32_16x16x32_bf16 {vr(ACC+4*mm,4)}, {vr(A+(mm*4+blk)*4,4)}, {vr(fr[blk],4)}, {c}")
    e("s_nop 3")
    for r in range(4):
        e(f"ds_write_b32 v{AD+r}, v{ACC+r}")
    for r in range(4):
        e(f"ds_write_b32 v{AD+4+r}, v{ACC+4+r}")
    e("L_k2_join:")
    Y = 64
    for j in range(8):
        e(f"v_mov_b32 v{Y+j}, 0")
    e(f"s_mul_i32 s38, s28, {RS}")
    e(f"s_add_u32 s38, s38, {YB}")
    e("v_lshl_add_u32 v6, v1, 5, s38")
    e("s_mov_b32 s43, 0xffff0000")
    e("s_mov_b32 s44, 0x3f803f80")
    e("s_sub_u32 s45, 0xfff, s34")
    e("v_mov_b32 v15, s45")
    e("v_mov_b32 v8, 0")
    e("v_mov_b32 v9, 0")
    e("v_mov_b32 v10, 0")
    e("s_waitcnt vmcnt(0)")
    for j in range(4):
        e(f"v_lshlrev_b32 v{16+2*j}, 16, v{XR+j}")
        e(f"v_and_b32 v{17+2*j}, s43, v{XR+j}")
    e("s_mov_b32 s40, -1")
    e("s_mov_b32 s41, 0x00ffffff")
    e("s_waitcnt lgkmcnt(0)")
    e("s_barrier")
    e("s_mov_b64 exec, s[40:41]")
    e(f"ds_read_b128 {vr(Y,4)}, v6")
    e(f"ds_read_b128 {vr(Y+4,4)}, v6 offset:16")
    e("s_mov_b64 exec, -1")
    e("s_waitcnt lgkmcnt(0)")
    for j in range(4):
        e(f"v_pk_add_f32 {vr(Y+2*j,2)}, {vr(Y+2*j,2)}, {vr(16+2*j,2)}")
    for j in range(4):
        e(f"v_cvt_pk_bf16_f32 v{24+j}, v{Y+2*j}, v{Y+2*j+1}")
    for j in range(4):
        e(f"v_dot2c_f32_bf16 v8, s44, v{24+j}")
        e(f"v_dot2c_f32_bf16 v9, v{24+j}, v{24+j}")
    for j in range(4):
        e(f"v_lshlrev_b32 v{Y+2*j}, 16, v{24+j}")
        e(f"v_and_b32 v{Y+2*j+1}, s43, v{24+j}")
    dpp_reduce(e, "v_add_f32", [8, 9])
    e("v_readlane_b32 s46, v8, 63")
    e("v_readlane_b32 s47, v9, 63")
    e(f"v_mov_b32 v11, {fbits(1.0/448)}")
    e("s_nop 0")
    e("v_mul_f32 v8, s46, v11")
    e("v_mul_f32 v9, s47, v11")
    e("v_fma_f32 v9, -v8, v8, v9")
    e("v_max_f32 v9, 0, v9")
    e("v_cvt_pk_bf16_f32 v8, v9, v8")
    e("v_lshlrev_b32 v9, 16, v8")
    e(f"v_add_f32 v9, {fbits(1e-5)}, v9")
    e("v_cvt_pk_bf16_f32 v9, v9, v9")
    e("v_and_b32 v9, s43, v9")
    e("v_sqrt_f32 v9, v9")
    e("v_and_b32 v8, s43, v8")
    e("v_cvt_pk_bf16_f32 v9, v9, v9")
    e("v_and_b32 v9, s43, v9")
    e("v_rcp_f32 v12, v9")
    e("v_mov_b32 v9, v8")
    e("v_mov_b32 v13, v12")
    for j in range(4):
        e(f"v_pk_add_f32 {vr(16+2*j,2)}, {vr(Y+2*j,2)}, v[8:9] neg_lo:[0,1] neg_hi:[0,1]")
    for j in range(4):
        e(f"v_pk_mul_f32 {vr(16+2*j,2)}, {vr(16+2*j,2)}, v[12:13]")
    for j in range(4):
        e(f"v_cvt_pk_bf16_f32 v{28+j}, v{16+2*j}, v{17+2*j}")
    for j in range(4):
        e(f"v_dot2c_f32_bf16 v10, v{28+j}, v{WR+j}")
    e(f"s_add_u32 s38, s35, {WS_HN}")
    e(f"buffer_store_dwordx4 v[28:31], v5, s[24:27], s38 offen")
    for j in range(4):
        e(f"v_lshlrev_b32 v{16+2*j}, 16, v{28+j}")
        e(f"v_and_b32 v{17+2*j}, s43, v{28+j}")
    steps = ["row_shr:1 row_mask:0xf", "row_shr:2 row_mask:0xf", "row_shr:4 row_mask:0xf", "row_shr:8 row_mask:0xf",
             "row_bcast:15 row_mask:0xa", "row_bcast:31 row_mask:0xc"]
    fill = [f"v_pk_add_f32 {vr(16+2*j,2)}, {vr(16+2*j,2)}, {vr(Y+2*j,2)}" for j in range(4)] + \
           [f"v_cvt_pk_bf16_f32 v{24+j}, v{16+2*j}, v{17+2*j}" for j in range(4)] + \
           ["buffer_store_dwordx4 v[24:27], v5, s[20:23], s35 offen", "s_nop 0", "s_nop 0", "s_nop 0"]
    for si, s in enumerate(steps):
        e(f"v_add_f32_dpp v10, v10, v10 {s} bank_mask:0xf")
        e(fill[2*si]); e(fill[2*si+1])
    e("v_cvt_pk_bf16_f32 v10, v10, v10")
    e("v_ashrrev_i32 v11, 31, v10")
    e("v_or_b32 v11, 0x80000000, v11")
    e("v_xor_b32 v10, v10, v11")
    e("v_and_or_b32 v10, v10, s43, v15")
    e("s_lshl_b32 s38, s34, 2")
    e(f"s_add_u32 s38, s38, {WS_KEY}")
    e("s_mov_b32 exec_lo, 0")
    e("s_mov_b32 exec_hi, 0x80000000")
    e("buffer_store_dword v10, off, s[24:27], s38")
    e("L_k2_end:")
    e("s_endpgm")
    return dict(name="fnet_k2_kernel", vgpr=96, accum=96, sgpr=56, grid=256, block=512, lds=57344+8*1808)


def k3(e):
    header(e, "fnet_k3_kernel")
    ACT, IDX, GB = 0, 1024, 2048
    DB = GB + 57344
    B, A, AD_, ACC = 64, 128, 184, 32
    K = 64
    e("s_cmp_ge_u32 s2, 56")
    e("s_cbranch_scc1 L_k3_end")
    e("s_load_dwordx2 s[4:5], s[0:1], 96")
    e("s_load_dwordx4 s[8:11], s[0:1], 56")
    e("s_load_dwordx4 s[12:15], s[0:1], 72")
    e("v_lshrrev_b32 v1, 6, v0")
    e("v_and_b32 v2, 15, v0")
    e("v_readfirstlane_b32 s36, v1")
    e("v_bfe_u32 v3, v0, 4, 2")
    e("v_and_b32 v1, 63, v0")
    e("s_and_b32 s37, s2, 7")
    e("s_lshr_b32 s38, s2, 3")
    e("s_mul_i32 s39, s37, 7")
    e("s_add_u32 s39, s39, s38")
    e("v_lshlrev_b32 v4, 4, v1")
    e("s_cmp_eq_u32 s36, 0")
    e("s_cbranch_scc1 L_k3_top8")
    e("v_lshrrev_b32 v5, 2, v1")
    e("v_and_b32 v6, 3, v1")
    e("v_lshrrev_b32 v7, 4, v1")
    e("v_and_b32 v7, 2, v7")
    e("v_xor_b32 v6, v6, v7")
    e("s_cmp_eq_u32 s36, 2")
    e("s_cselect_b32 s40, 1, 0")
    e("v_xor_b32 v6, s40, v6")
    e("s_cmp_eq_u32 s36, 3")
    e("s_movk_i32 s41, 896")
    e("s_cselect_b32 s41, s41, 3584")
    e("s_cselect_b32 s42, 64, 114688")
    e("s_cselect_b32 s43, 28672, 64")
    e("v_mul_u32_u24 v5, s41, v5")
    e("v_lshl_add_u32 v5, v6, 4, v5")
    e("s_lshl_b32 s44, s41, 4")
    e("v_add_u32 v6, s44, v5")
    e("s_mul_i32 s43, s43, s39")
    e("s_sub_u32 s44, s36, 1")
    e("s_mul_i32 s44, s44, 28672")
    e(f"s_add_u32 s44, s44, {GB}")
    e("s_waitcnt lgkmcnt(0)")
    e("s_cmp_eq_u32 s36, 2")
    e("s_cselect_b32 s20, s10, s8")
    e("s_cselect_b32 s21, s11, s9")
    e("s_cmp_eq_u32 s36, 3")
    e("s_cselect_b32 s20, s12, s20")
    e("s_cselect_b32 s21, s13, s21")
    e(f"s_mov_b32 s22, {448*1792*2:#x}")
    e("s_mov_b32 s23, 0x20000")
    e("s_add_u32 s45, s44, 28672")
    e("L_k3_dma:")
    e("s_mov_b32 m0, s44")
    e("s_add_u32 s44, s44, 2048")
    e("buffer_load_dwordx4 v5, s[20:23], s43 offen lds")
    e("s_add_u32 m0, m0, 1024")
    e("s_nop 0")
    e("buffer_load_dwordx4 v6, s[20:23], s43 offen lds")
    e("s_add_u32 s43, s43, s42")
    e("s_cmp_lt_u32 s44, s45")
    e("s_cbranch_scc1 L_k3_dma")
    srd(e, 16, 4, WS_SIZE)
    e("s_branch L_k3_joinA")
    e("L_k3_top8:")
    e("s_setprio 3")
    e(f"s_mov_b32 s40, {WS_KEY:#x}")
    e(f"s_mov_b32 s41, {WS_KEY+4096:#x}")
    e("s_waitcnt lgkmcnt(0)")
    srd(e, 16, 4, WS_SIZE)
    for i in range(8):
        e(f"buffer_load_dwordx4 {vr(K+4*i,4)}, v4, s[16:19], s{40+(i>>2)} offen offset:{(i&3)*1024}")
    e("s_mov_b32 m0, 0")
    e("s_waitcnt vmcnt(7)")
    e(f"v_max3_u32 v8, v{K}, v{K+1}, v{K+2}")
    e(f"v_med3_u32 v9, v{K}, v{K+1}, v{K+2}")
    e(f"v_min3_u32 v10, v{K}, v{K+1}, v{K+2}")
    for i in range(3, 32):
        if i % 4 == 0:
            e(f"s_waitcnt vmcnt({7 - i//4})")
        e(f"v_med3_u32 v10, v9, v10, v{K+i}")
        e(f"v_med3_u32 v9, v8, v9, v{K+i}")
        e(f"v_max_u32 v8, v8, v{K+i}")
    e("s_nop 1")
    e("L_k3_round:")
    e("v_max_u32_dpp v11, v8, v8 row_shr:1 row_mask:0xf bank_mask:0xf bound_ctrl:0")
    for st in ["row_shr:2 row_mask:0xf", "row_shr:4 row_mask:0xf", "row_shr:8 row_mask:0xf", "row_bcast:15 row_mask:0xa", "row_bcast:31 row_mask:0xc"]:
        e("s_nop 1")
        e(f"v_max_u32_dpp v11, v11, v11 {st} bank_mask:0xf")
    e("s_nop 0")
    e("v_readlane_b32 s42, v11, 63")
    e("s_nop 1")
    e("v_cmp_eq_u32 vcc, s42, v8")
    e("v_writelane_b32 v12, s42, m0")
    e("s_add_u32 m0, m0, 1")
    e("v_cndmask_b32 v8, v8, v9, vcc")
    e("v_cndmask_b32 v9, v9, v10, vcc")
    e("v_cndmask_b32 v10, v10, 0, vcc")
    e("s_cmp_lt_u32 m0, 8")
    e("s_cbranch_scc1 L_k3_round")
    e("v_cmp_eq_u32 vcc, 0, v8")
    e("s_cbranch_vccz L_k3_topdone")
    e("s_mov_b32 m0, 0")
    e("s_mov_b32 s42, -1")
    e("L_k3_slow:")
    e(f"v_sub_u32 v8, s42, v{K}")
    e(f"v_sub_u32 v9, s42, v{K+1}")
    e("v_min_u32 v8, v8, v9")
    for i in range(2, 32, 2):
        e(f"v_sub_u32 v9, s42, v{K+i}")
        e(f"v_sub_u32 v10, s42, v{K+i+1}")
        e("v_min3_u32 v8, v8, v9, v10")
    for st in ["row_shr:1 row_mask:0xf", "row_shr:2 row_mask:0xf", "row_shr:4 row_mask:0xf", "row_shr:8 row_mask:0xf", "row_bcast:15 row_mask:0xa", "row_bcast:31 row_mask:0xc"]:
        e("s_nop 1")
        e(f"v_min_u32_dpp v8, v8, v8 {st} bank_mask:0xf")
    e("s_nop 0")
    e("v_readlane_b32 s43, v8, 63")
    e("s_nop 3")
    e("s_sub_u32 s42, s42, s43")
    e("v_writelane_b32 v12, s42, m0")
    e("s_sub_u32 s42, s42, 1")
    e("s_add_u32 m0, m0, 1")
    e("s_cmp_lt_u32 m0, 8")
    e("s_cbranch_scc1 L_k3_slow")
    e("L_k3_topdone:")
    e("v_lshlrev_b32 v5, 2, v1")
    e(f"ds_write_b32 v5, v12 offset:{IDX}")
    e("s_waitcnt lgkmcnt(0)")
    e("L_k3_joinA:")
    e("v_and_b32 v5, 7, v1")
    e("v_lshlrev_b32 v5, 2, v5")
    e("s_movk_i32 s40, 896")
    e(f"s_mov_b32 s41, {WS_HN:#x}")
    e("v_lshlrev_b32 v7, 4, v3")
    e("s_barrier")
    e(f"ds_read_b32 v12, v5 offset:{IDX}")
    e("v_lshrrev_b32 v8, 2, v2")
    e("v_lshl_add_u32 v8, v3, 3, v8")
    e("v_bfe_u32 v9, v2, 1, 1")
    e("v_and_b32 v10, 1, v3")
    e("v_lshl_add_u32 v11, v10, 1, v9")
    e("v_xor_b32 v11, s36, v11")
    e("v_and_b32 v13, 1, v2")
    e("v_lshlrev_b32 v13, 3, v13")
    e("s_waitcnt lgkmcnt(0)")
    e("v_not_b32 v6, v12")
    e("v_and_b32 v6, 0x7ff, v6")
    e("v_mad_u32_u24 v7, v6, s40, v7")
    for k in range(14):
        e(f"buffer_load_dwordx4 {vr(B+4*k,4)}, v7, s[16:19], s41 offen offset:{64*k}")
    e("v_lshl_add_u32 v14, v8, 6, v13")
    e("v_lshl_add_u32 v14, v11, 4, v14")
    e("v_mul_u32_u24 v11, 28672, v9")
    e(f"s_movk_i32 s42, {GB}")
    e("v_add3_u32 v14, v14, v11, s42")
    e("v_lshrrev_b32 v8, 2, v2")
    e("v_lshl_add_u32 v8, v10, 3, v8")
    e("v_lshl_add_u32 v15, v8, 6, v13")
    e("s_and_b32 s42, s36, 1")
    e("v_xor_b32 v10, s42, v10")
    e("v_lshl_add_u32 v10, v10, 1, v9")
    e("v_lshl_add_u32 v15, v10, 4, v15")
    e("v_lshrrev_b32 v10, 1, v3")
    e("v_lshl_add_u32 v15, v10, 10, v15")
    e("s_lshr_b32 s42, s36, 1")
    e("s_lshl_b32 s42, s42, 11")
    e(f"s_add_u32 s42, s42, {DB}")
    e("v_add_u32 v15, s42, v15")
    e("s_cmp_lg_u32 s36, 0")
    e("s_cbranch_scc1 L_k3_nometa")
    e("v_readlane_b32 s42, v6, s37")
    e("v_readlane_b32 s43, v12, s37")
    srd(e, 32, 14, XBYTES)
    e("s_mul_i32 s42, s42, 896")
    e("s_lshl_b32 s44, s38, 7")
    e("s_add_u32 s42, s42, s44")
    e("v_lshlrev_b32 v16, 1, v1")
    e("buffer_load_ushort v17, v16, s[32:35], s42 offen")
    e("s_lshr_b32 s44, s43, 31")
    e("s_sub_u32 s44, s44, 1")
    e("s_or_b32 s44, s44, 0x80000000")
    e("s_xor_b32 s43, s43, s44")
    e("s_and_b32 s43, s43, 0xffff0000")
    e(f"v_mov_b32 v18, {fbits(-1.4426950408889634)}")
    e("v_mul_f32 v18, s43, v18")
    e("v_exp_f32 v18, v18")
    e("v_mov_b32 v19, s42")
    e("v_add_f32 v18, 1.0, v18")
    e("v_rcp_f32 v18, v18")
    e("s_lshl_b32 s44, s39, 9")
    e("v_cvt_pk_bf16_f32 v18, v18, v18")
    e("v_and_b32 v18, 0xffff0000, v18")
    e(f"s_add_u32 s44, s44, {WS_META}")
    e("buffer_store_dwordx2 v[18:19], off, s[16:19], s44 offset:256")
    e("s_branch L_k3_joinB")
    e("L_k3_nometa:")
    e("s_waitcnt vmcnt(14)")
    e("L_k3_joinB:")
    e("s_barrier")
    for k in range(14):
        for io in range(2):
            e(f"ds_read_b64_tr_b16 {vr(A+4*k+2*io,2)}, v14 offset:{k*2048+io*256}")
    for i in range(7):
        for io in range(2):
            e(f"ds_read_b64_tr_b16 {vr(AD_+4*i+2*io,2)}, v15 offset:{i*4096+io*256}")
    e("s_lshl_b32 s42, s36, 8")
    e(f"s_add_u32 s42, s42, {ACT}")
    e("v_lshl_add_u32 v5, v2, 4, s42")
    e("v_lshl_add_u32 v5, v3, 3, v5")
    e("v_mul_u32_u24 v6, 1792, v2")
    e("v_lshl_add_u32 v6, v3, 4, v6")
    e("v_cmp_gt_u32 vcc, 8, v2")
    e("v_mov_b32 v7, 0x7ff00000")
    e("s_mul_i32 s43, s39, 14336")
    e("s_lshl_b32 s42, s36, 6")
    e("v_cndmask_b32 v6, v7, v6, vcc")
    e("s_add_u32 s43, s43, s42")
    e(f"s_add_u32 s43, s43, {WS_PART}")
    e(f"s_mov_b32 s42, {fbits(-1.4426950408889634)}")
    e("s_waitcnt vmcnt(0) lgkmcnt(0)")
    for k in range(14):
        c = "0" if k == 0 else vr(ACC, 4)
        e(f"v_mfma_f32_16x16x32_bf16 {vr(ACC,4)}, {vr(A+4*k,4)}, {vr(B+4*k,4)}, {c}")
    e("s_cmp_lg_u32 s36, 0")
    e("s_cbranch_scc1 L_k3_nometa2")
    e("v_lshlrev_b32 v20, 2, v1")
    e("v_lshlrev_b32 v21, 16, v17")
    e("buffer_store_dword v21, v20, s[16:19], s44 offen")
    e("L_k3_nometa2:")
    e("s_nop 5")
    for r in range(4):
        e(f"v_permlane32_swap_b32 v{ACC+r}, v{ACC+4+r}")
    for r in range(4):
        e(f"v_mul_f32 v{16+r}, s42, v{ACC+r}")
    for r in range(4):
        e(f"v_exp_f32 v{16+r}, v{16+r}")
    for r in range(4):
        e(f"v_mul_f32 v{ACC+r}, v{ACC+r}, v{ACC+4+r}")
    for r in range(4):
        e(f"v_add_f32 v{16+r}, 1.0, v{16+r}")
    for r in range(4):
        e(f"v_rcp_f32 v{16+r}, v{16+r}")
    e("s_mov_b32 exec_hi, 0")
    for r in range(4):
        e(f"v_mul_f32 v{ACC+r}, v{ACC+r}, v{16+r}")
    e(f"v_cvt_pk_bf16_f32 v16, v{ACC}, v{ACC+1}")
    e(f"v_cvt_pk_bf16_f32 v17, v{ACC+2}, v{ACC+3}")
    e("ds_write_b64 v5, v[16:17]")
    e("s_mov_b32 exec_hi, -1")
    e("s_waitcnt lgkmcnt(0)")
    e("s_barrier")
    e(f"ds_read_b128 v[16:19], v4 offset:{ACT}")
    e("s_waitcnt lgkmcnt(0)")
    for i in range(7):
        e(f"v_mfma_f32_16x16x32_bf16 {vr(B+4*i,4)}, {vr(AD_+4*i,4)}, v[16:19], 0")
    e("s_nop 1")
    for i in range(7):
        e(f"buffer_store_dwordx4 {vr(B+4*i,4)}, v6, s[16:19], s43 offen offset:{256*i}")
    e("L_k3_end:")
    e("s_endpgm")
    return dict(name="fnet_k3_kernel", vgpr=216, accum=216, sgpr=56, grid=56, block=256, lds=2048+86016)

def k4(e):
    header(e, "fnet_k4_kernel")
    P = 16
    e("s_cmp_ge_u32 s2, 56")
    e("s_cbranch_scc1 L_k4_end")
    e("s_load_dwordx2 s[4:5], s[0:1], 96")
    e("s_load_dwordx2 s[6:7], s[0:1], 80")
    e("v_and_b32 v1, 15, v0")
    e("v_lshrrev_b32 v2, 4, v0")
    e("v_mul_u32_u24 v2, 14336, v2")
    e("v_lshlrev_b32 v3, 4, v1")
    e("v_add_u32 v2, v2, v3")
    e("s_lshl_b32 s16, s2, 8")
    e(f"s_add_u32 s16, s16, {WS_PART}")
    e("s_lshl_b32 s17, s2, 9")
    e(f"s_add_u32 s17, s17, {WS_META}")
    e("v_mov_b32 v10, 1.0")
    e("s_waitcnt lgkmcnt(0)")
    srd(e, 8, 4, WS_SIZE)
    for i in range(14):
        e(f"buffer_load_dwordx4 {vr(P+4*i,4)}, v2, s[8:11], s16 offen")
        if i < 13:
            e("s_add_u32 s16, s16, 57344")
    e("buffer_load_dwordx4 v[4:7], v3, s[8:11], s17 offen")
    e("buffer_load_dwordx2 v[8:9], off, s[8:11], s17 offset:256")
    srd(e, 12, 6, XBYTES)
    e("s_mov_b32 s18, 0xffff0000")
    for i in range(1, 14):
        e(f"s_waitcnt vmcnt({15-i})")
        e(f"v_pk_add_f32 {vr(P,2)}, {vr(P,2)}, {vr(P+4*i,2)}")
        e(f"v_pk_add_f32 {vr(P+2,2)}, {vr(P+2,2)}, {vr(P+4*i+2,2)}")
    e("s_nop 1")
    for r in range(4):
        e(f"v_mfma_f32_16x16x4_f32 {vr(32+4*r,4)}, v10, v{P+r}, 0")
    e("s_waitcnt vmcnt(0)")
    e("v_lshl_add_u32 v9, v1, 3, v9")
    e("v_cmp_gt_u32 vcc, 16, v0")
    e("s_nop 7")
    e("v_cvt_pk_bf16_f32 v16, v32, v36")
    e("v_cvt_pk_bf16_f32 v17, v40, v44")
    e("v_lshlrev_b32 v20, 16, v16")
    e("v_and_b32 v21, s18, v16")
    e("v_lshlrev_b32 v22, 16, v17")
    e("v_and_b32 v23, s18, v17")
    for r in range(4):
        e(f"v_mul_f32 v{20+r}, v{20+r}, v8")
    e("v_cvt_pk_bf16_f32 v16, v20, v21")
    e("v_cvt_pk_bf16_f32 v17, v22, v23")
    e("v_lshlrev_b32 v20, 16, v16")
    e("v_and_b32 v21, s18, v16")
    e("v_lshlrev_b32 v22, 16, v17")
    e("v_and_b32 v23, s18, v17")
    for r in range(4):
        e(f"v_add_f32 v{20+r}, v{20+r}, v{4+r}")
    e("v_cvt_pk_bf16_f32 v16, v20, v21")
    e("v_cvt_pk_bf16_f32 v17, v22, v23")
    e("s_mov_b64 exec, vcc")
    e("buffer_store_dwordx2 v[16:17], v9, s[12:15], 0 offen")
    e("L_k4_end:")
    e("s_endpgm")
    return dict(name="fnet_k4_kernel", vgpr=72, accum=72, sgpr=24, grid=56, block=64, lds=0)

def build(kernels, path):
    e = E()
    infos = []
    body = E()
    for k in kernels:
        infos.append(k(body))
    hdr = open("cdna_kernels/%s.s.ref" % NAME).read().split("\n")
    top = [l for l in hdr if l.startswith(";") and "@launch" not in l and "Override launch" not in l and "grid=ceil" not in l][:15]
    out = "\n".join(top) + "\n"
    for i in infos:
        out += f"; @launch kernel={i['name']} grid=({i['grid']},1,1) block=({i['block']},1,1) lds={i['lds']}\n"
    out += '.amdgcn_target "amdgcn-amd-amdhsa--gfx950"\n.text\n'
    out += body.text()
    out += '.section .rodata,"a"\n'
    seen = set()
    for i in infos:
        if i['name'] in seen: continue
        seen.add(i['name'])
        out += f""".p2align 6
.amdhsa_kernel {i['name']}
  .amdhsa_next_free_vgpr {i['vgpr']}
  .amdhsa_next_free_sgpr {i['sgpr']}
  .amdhsa_accum_offset {i['accum']}
  .amdhsa_group_segment_fixed_size 0
  .amdhsa_kernarg_size 104
  .amdhsa_user_sgpr_count 2
  .amdhsa_user_sgpr_kernarg_segment_ptr 1
  .amdhsa_system_sgpr_workgroup_id_x 1
.end_amdhsa_kernel
"""
    open(path, "w").write(out)

if __name__ == "__main__":
    build([k1, k2, k3, k4], sys.argv[1] if len(sys.argv) > 1 else "k.s")
```

```python
import struct, sys

NAME = "sequential_preLN__spectral_fnet__moe_arch_mod__prompt"

def fbits(x):
    return "0x%08x" % struct.unpack("<I", struct.pack("<f", x))[0]

class E:
    def __init__(self):
        self.l = []
    def __call__(self, s=""):
        for line in s.split("\n"):
            line = line.strip()
            if line.endswith(":") or line.startswith("."):
                self.l.append(line)
            elif line:
                self.l.append("    " + line)
    def text(self):
        return "\n".join(self.l) + "\n"

WS_V    = 0x000000
WS_HN   = 0x200000
WS_KEY  = 0x400000
WS_PART = 0x500000
WS_META = 0x600000
WS_SIZE = 0x10000000
XBYTES  = 2048*896

def vr(a, n):
    return "v[%d:%d]" % (a, a+n-1)
def ar(a, n):
    return "a[%d:%d]" % (a, a+n-1)

def srd(e, d, b, size):
    e(f"s_mov_b32 s{d}, s{b}")
    e(f"s_mov_b32 s{d+1}, s{b+1}")
    e(f"s_mov_b32 s{d+2}, {size:#x}")
    e(f"s_mov_b32 s{d+3}, 0x20000")

DIAG = False
WS_DIAG = 0x800000
def stamp(e, i):
    if DIAG:
        e(f"s_memrealtime s[{64+2*i}:{65+2*i}]")
        e("s_waitcnt lgkmcnt(0)")
def stamp_flush(e, kid, srdreg, nst, wavereg):
    if DIAG:
        e("s_mov_b64 exec, -1")
        e(f"s_memrealtime s[{64+2*nst}:{65+2*nst}]")
        e("s_waitcnt lgkmcnt(0)")
        for i in range(nst+1):
            e(f"v_writelane_b32 v0, s{64+2*i}, {i}")
        e(f"s_lshl_b32 s60, s2, 3")
        if wavereg: e(f"s_add_u32 s60, s60, s{wavereg}")
        e(f"s_lshl_b32 s60, s60, 6")
        e(f"s_add_u32 s60, s60, {WS_DIAG + kid*0x40000}")
        e("v_mbcnt_lo_u32_b32 v1, -1, 0")
        e("v_lshlrev_b32 v1, 2, v1")
        e("s_mov_b32 exec_lo, 0xffff")
        e("s_mov_b32 exec_hi, 0")
        e(f"buffer_store_dword v0, v1, s[{srdreg}:{srdreg+3}], s60 offen")
        dbg_flush(e, kid, nst, wavereg)

DBGSEL = None
def dbg_flush(e, kid, nst, wavereg):
    if DIAG and DBGSEL:
        e("s_cmp_lg_u32 s2, 0")
        e(f"s_cbranch_scc1 L_dbg_skip{kid}")
        if wavereg:
            e(f"s_cmp_lg_u32 s{wavereg}, 0")
            e(f"s_cbranch_scc1 L_dbg_skip{kid}")
        e("s_load_dwordx2 s[56:57], s[0:1], 88")
        e("s_waitcnt lgkmcnt(0)")
        e(f"s_sub_u32 s56, s56, {512*kid}")
        e("s_subb_u32 s57, s57, 0")
        e("s_mov_b32 s58, 256")
        e("s_mov_b32 s59, 0x20000")
        for j, i in enumerate(DBGSEL[kid]):
            e(f"v_writelane_b32 v0, s{64+2*i}, {j}")
        e("s_mov_b32 exec_lo, 0xf")
        e(f"buffer_store_dword v0, v1, s[56:59], 0 offen offset:{16*kid}")
        e(f"L_dbg_skip{kid}:")

def header(e, name):
    e(f".globl {name}")
    e(".p2align 8")
    e(f".type {name},@function")
    e(f"{name}:")

def k1(e):
    header(e, "fnet_k1_kernel")
    X, ACC, CUR, PRV, PK, RF = 64, 32, 16, 24, 48, 56
    LDS_Z, LDS_CS = 57344, 57344 + 8192
    e("s_cmp_ge_u32 s2, 224")
    e("s_cbranch_scc1 L_k1_end")
    stamp(e, 0)
    e("s_load_dwordx2 s[4:5], s[0:1], 0")
    e("s_load_dwordx2 s[6:7], s[0:1], 96")
    e("v_lshrrev_b32 v1, 6, v0")
    e("v_and_b32 v2, 15, v0")
    e("v_readfirstlane_b32 s16, v1")
    e("v_bfe_u32 v3, v0, 4, 2")
    e("v_and_b32 v1, 63, v0")
    e("s_and_b32 s17, s2, 7")
    e("s_bfe_u32 s18, s2, 0x20003")
    e("s_lshr_b32 s19, s2, 5")
    e("s_lshl_b32 s20, s17, 2")
    e("s_add_u32 s20, s20, s18")
    e("v_lshrrev_b32 v4, 2, v2")
    e("v_and_b32 v5, 3, v2")
    e("v_lshl_add_u32 v6, v4, 3, v5")
    e("v_mul_u32_u24 v6, 28672, v6")
    e("v_lshl_add_u32 v6, v3, 4, v6")
    e("s_lshr_b32 s21, s16, 1")
    e("s_and_b32 s22, s16, 1")
    e("s_lshl_b32 s23, s21, 10")
    e("s_lshl_b32 s24, s22, 7")
    e("s_add_u32 s23, s23, s24")
    e("s_add_u32 s23, s23, s20")
    e("s_mul_i32 s23, s23, 896")
    e("s_lshl_b32 s24, s19, 6")
    e("s_lshl_b32 s25, s16, 2")
    e("s_add_u32 s24, s24, s25")
    e("v_lshl_add_u32 v7, v4, 4, v5")
    e("v_add_u32 v7, s24, v7")
    e("v_mov_b32 v9, 224")
    e("v_cmp_eq_u32 vcc, 0, v7")
    e("v_subrev_u32 v8, 224, v7")
    e("v_cmp_le_u32 s[26:27], v9, v7")
    e("v_cndmask_b32 v7, v7, v9, vcc")
    e("v_mov_b32 v10, 0x3e800000")
    e("v_cndmask_b32 v7, v7, v8, s[26:27]")
    e("v_cndmask_b32 v10, 0, v10, s[26:27]")
    e("v_cvt_f32_u32 v7, v7")
    e(f"v_mul_f32 v7, {fbits(1.0/448)}, v7")
    e("v_lshlrev_b32 v8, 3, v3")
    e("v_cvt_f32_u32 v8, v8")
    e("v_fma_f32 v8, v8, v7, v10")
    e("v_mul_f32 v9, 0x42000000, v7")
    e("v_cos_f32 v52, v9")
    for j in range(8):
        e(f"v_cos_f32 v{CUR+j}, v8")
        e(f"v_sub_f32 v11, v8, v9")
        if j < 7:
            e(f"v_add_f32 v8, v8, v7")
        e(f"v_cos_f32 v{PRV+j}, v11")
    e("v_add_f32 v52, v52, v52")
    e("s_mov_b32 s28, 0x3f803f80")
    e("v_mov_b32 v54, 0")
    e("s_mul_i32 s24, s16, 14336")
    e("v_lshl_add_u32 v55, v1, 4, s24")
    e("v_mov_b32 v53, v52")
    e("s_waitcnt lgkmcnt(0)")
    stamp(e, 1)
    srd(e, 8, 4, XBYTES)
    for k in range(14):
        e(f"buffer_load_dwordx4 {vr(X+4*k,4)}, v6, s[8:11], s23 offen offset:{64*k}")
    srd(e, 12, 6, WS_SIZE)
    e("s_mov_b32 s29, 0")
    e("L_k1_fgen:")
    for (A, B, off) in ((CUR, PRV, 0), (PRV, CUR, 1024)):
        for j in range(4):
            e(f"v_cvt_pk_bf16_f32 v{PK+j}, v{A+2*j}, v{A+2*j+1}")
        for j in range(4):
            e(f"v_pk_fma_f32 {vr(B+2*j,2)}, v[52:53], {vr(A+2*j,2)}, {vr(B+2*j,2)} neg_lo:[0,0,1] neg_hi:[0,0,1]")
        e(f"ds_write_b128 v55, {vr(PK,4)} offset:{off}")
        for j in range(4):
            e(f"v_dot2c_f32_bf16 v54, s28, v{PK+j}")
    e("v_add_u32 v55, 2048, v55")
    e("s_add_u32 s29, s29, 1")
    e("s_cmp_lt_u32 s29, 7")
    e("s_cbranch_scc1 L_k1_fgen")
    stamp(e, 2)
    e("v_mov_b32 v9, 1.0")
    e("s_nop 2")
    e("v_mfma_f32_16x16x4_f32 v[12:15], v9, v54, 0")
    e("s_lshl_b32 s24, s22, 4")
    e("v_add_u32 v7, s24, v2")
    e("s_mul_i32 s25, s21, 0x3e800000")
    e("v_mov_b32 v10, s25")
    e("s_cmp_eq_u32 s16, 2")
    e("s_cselect_b32 s24, 0, -1")
    e("v_cmp_eq_u32 vcc, s24, v7")
    e("v_mov_b32 v11, 32")
    e("v_lshlrev_b32 v8, 3, v3")
    e("v_cndmask_b32 v7, v7, v11, vcc")
    e("v_cndmask_b32 v10, v10, 0, vcc")
    e("v_cvt_f32_u32 v7, v7")
    e("v_cvt_f32_u32 v8, v8")
    e(f"v_mul_f32 v7, {fbits(1.0/64)}, v7")
    e("s_lshl_b32 s24, s16, 6")
    e(f"s_add_u32 s24, s24, {LDS_CS}")
    e("v_lshl_add_u32 v11, v2, 2, s24")
    e("ds_write_b32 v11, v12")
    e("v_fma_f32 v8, v8, v7, v10")
    e("v_mul_f32 v10, 0x42000000, v7")
    for j in range(8):
        e(f"v_cos_f32 v{CUR+j}, v8")
        e(f"v_add_f32 v11, v8, v10")
        if j < 7:
            e(f"v_add_f32 v8, v8, v7")
        e(f"v_cos_f32 v{PRV+j}, v11")
    e("s_waitcnt lgkmcnt(0)")
    e("s_barrier")
    e("v_lshlrev_b32 v11, 4, v1")
    for k in range(14):
        for n in range(4):
            e(f"ds_read_b128 {ar((k*4+n)*4,4)}, v11 offset:{(n*14+k)*1024}")
        if k == 0:
            for j in range(4):
                e(f"v_cvt_pk_bf16_f32 v{RF+j}, v{CUR+2*j}, v{CUR+2*j+1}")
                e(f"v_cvt_pk_bf16_f32 v{RF+4+j}, v{PRV+2*j}, v{PRV+2*j+1}")
    e(f"v_lshlrev_b32 v10, 2, v2")
    e(f"v_add_u32 v10, {LDS_CS}, v10")
    for n in range(4):
        e(f"ds_read_b32 v{48+n}, v10 offset:{64*n}")
    e("s_lshl_b32 s24, s21, 10")
    e("s_lshl_b32 s25, s22, 3")
    e("s_add_u32 s24, s24, s25")
    e(f"s_add_u32 s24, s24, {LDS_Z}")
    e("v_add_u32 v55, s24, v11")
    e(f"v_add_u32 v54, {LDS_Z}, v11")
    e("v_mul_u32_u24 v53, 57344, v2")
    e("v_lshl_add_u32 v53, v3, 10, v53")
    e("s_mul_i32 s24, s22, 917504")
    e("s_mul_i32 s25, s21, 28672")
    e("s_add_u32 s24, s24, s25")
    e("s_lshl_b32 s25, s19, 12")
    e("s_add_u32 s24, s24, s25")
    e("s_lshr_b32 s25, s17, 2")
    e("s_lshl_b32 s25, s25, 4")
    e("s_and_b32 s26, s17, 1")
    e("s_lshl_b32 s26, s26, 3")
    e("s_add_u32 s25, s25, s26")
    e("s_and_b32 s26, s17, 2")
    e("s_lshl_b32 s26, s26, 1")
    e("s_add_u32 s25, s25, s26")
    e("s_add_u32 s25, s25, s18")
    e("s_lshl_b32 s25, s25, 5")
    e("s_add_u32 s30, s24, s25")
    for r in (4, 5, 6, 7):
        e(f"v_mov_b32 v{r}, 0")
    e("s_waitcnt lgkmcnt(0)")
    stamp(e, 3)
    if DIAG:
        e("s_waitcnt vmcnt(13)")
        stamp(e, 4)
        e("s_waitcnt vmcnt(0)")
        stamp(e, 5)
    def mf(k, n):
        c = "0" if k == 0 else vr(ACC+4*n, 4)
        e(f"v_mfma_f32_16x16x32_bf16 {vr(ACC+4*n,4)}, {vr(X+4*k,4)}, {ar((k*4+n)*4,4)}, {c}")
    LAG = 1
    for k in range(14):
        e(f"s_waitcnt vmcnt({13-k})")
        for j in range(4):
            e(f"v_dot2c_f32_bf16 v{4+(j&1)}, s28, v{X+4*k+j}")
            e(f"v_dot2c_f32_bf16 v{6+(j&1)}, v{X+4*k+j}, v{X+4*k+j}")
            if k >= LAG:
                mf(k-LAG, j)
    e("s_nop 1")
    e("v_add_f32 v4, v4, v5")
    e("v_add_f32 v6, v6, v7")
    e("s_nop 1")
    e("v_mfma_f32_16x16x4_f32 v[16:19], v4, v9, 0")
    e("v_mfma_f32_16x16x4_f32 v[20:23], v6, v9, 0")
    for k in range(14-LAG, 14):
        for n in range(4):
            mf(k, n)
    e("s_nop 5")
    stamp(e, 6)
    inv = fbits(1.0/448)
    e(f"s_mov_b32 s24, {inv}")
    e(f"s_mov_b32 s25, {inv}")
    e(f"s_mov_b32 s26, {fbits(1e-5)}")
    e(f"s_mov_b32 s27, 0xffff0000")
    e("v_pk_mul_f32 v[16:17], v[16:17], s[24:25]")
    e("v_pk_mul_f32 v[18:19], v[18:19], s[24:25]")
    e("v_pk_mul_f32 v[20:21], v[20:21], s[24:25]")
    e("v_pk_mul_f32 v[22:23], v[22:23], s[24:25]")
    e("v_pk_fma_f32 v[20:21], v[16:17], v[16:17], v[20:21] neg_lo:[1,0,0] neg_hi:[1,0,0]")
    e("v_pk_fma_f32 v[22:23], v[18:19], v[18:19], v[22:23] neg_lo:[1,0,0] neg_hi:[1,0,0]")
    def round4():
        e("v_cvt_pk_bf16_f32 v24, v20, v21")
        e("v_cvt_pk_bf16_f32 v25, v22, v23")
        e("v_lshlrev_b32 v20, 16, v24")
        e("v_and_b32 v21, s27, v24")
        e("v_lshlrev_b32 v22, 16, v25")
        e("v_and_b32 v23, s27, v25")
    for r in range(4):
        e(f"v_max_f32 v{20+r}, 0, v{20+r}")
    round4()
    for r in range(4):
        e(f"v_add_f32 v{20+r}, s26, v{20+r}")
    round4()
    for r in range(4):
        e(f"v_sqrt_f32 v{20+r}, v{20+r}")
    e("s_nop 0")
    round4()
    for r in range(4):
        e(f"v_rcp_f32 v{20+r}, v{20+r}")
    e("s_nop 0")
    e("v_pk_mul_f32 v[16:17], v[16:17], v[20:21]")
    e("v_pk_mul_f32 v[18:19], v[18:19], v[22:23]")
    for n in range(4):
        a = ACC + 4*n
        e(f"v_pk_mul_f32 {vr(a,2)}, {vr(a,2)}, v[20:21]")
        e(f"v_pk_mul_f32 {vr(a+2,2)}, {vr(a+2,2)}, v[22:23]")
        for r in range(4):
            e(f"v_fma_f32 v{a+r}, -v{16+r}, v{48+n}, v{a+r}")
        e(f"v_cvt_pk_bf16_f32 v{24+2*n}, v{a}, v{a+1}")
        e(f"v_cvt_pk_bf16_f32 v{25+2*n}, v{a+2}, v{a+3}")
        e(f"ds_write_b64 v55, {vr(24+2*n,2)} offset:{n*2048}")
    e("s_waitcnt lgkmcnt(0)")
    stamp(e, 7)
    e("s_barrier")
    for n in range(4):
        for k2 in range(2):
            e(f"ds_read_b128 {vr(X+(n*2+k2)*4,4)}, v54 offset:{(n*2+k2)*1024}")
    for n in range(4):
        e(f"s_waitcnt lgkmcnt({6-2*n})")
        e(f"v_mfma_f32_16x16x32_bf16 {vr(ACC+4*n,4)}, {vr(X+(n*2)*4,4)}, {vr(RF,4)}, 0")
        e(f"v_mfma_f32_16x16x32_bf16 {vr(ACC+4*n,4)}, {vr(X+(n*2+1)*4,4)}, {vr(RF+4,4)}, {vr(ACC+4*n,4)}")
    e("s_nop 1")
    for n in range(4):
        if n == 3:
            e("s_nop 1")
        e(f"v_cvt_pk_bf16_f32 v{16+2*n}, v{ACC+4*n}, v{ACC+4*n+1}")
        e(f"v_cvt_pk_bf16_f32 v{17+2*n}, v{ACC+4*n+2}, v{ACC+4*n+3}")
    e("buffer_store_dwordx4 v[16:19], v53, s[12:15], s30 offen")
    e("buffer_store_dwordx4 v[20:23], v53, s[12:15], s30 offen offset:16")
    stamp(e, 8)
    if DIAG: e("s_waitcnt vmcnt(0)")
    stamp_flush(e, 0, 12, 9, 16)
    e("L_k1_end:")
    e("s_endpgm")
    return dict(name="fnet_k1_kernel", vgpr=128+224, accum=128, sgpr=40, grid=224, block=256, lds=57344+8192+256)

def dpp_reduce(e, op, regs, first=True):
    steps = ["row_shr:1", "row_shr:2", "row_shr:4", "row_shr:8", "row_bcast:15 row_mask:0xa", "row_bcast:31 row_mask:0xc"]
    for s in steps:
        m = s if "row_mask" in s else s + " row_mask:0xf"
        for r in regs:
            e(f"{op}_dpp v{r}, v{r}, v{r} {m} bank_mask:0xf")
        if len(regs) == 1:
            e("s_nop 1")
        elif len(regs) == 2:
            e("s_nop 0")

def k2(e):
    header(e, "fnet_k2_kernel")
    YB = 57344
    RS = 1808
    C, S, F1, F2, F3 = 16, 20, 24, 28, 32
    A = 64
    ACC = 36
    AD = 44
    XR, WR = 52, 56
    e("s_cmp_ge_u32 s2, 256")
    e("s_cbranch_scc1 L_k2_end")
    stamp(e, 0)
    e("s_load_dwordx2 s[10:11], s[0:1], 96")
    e("s_load_dwordx2 s[4:5], s[0:1], 0")
    e("s_load_dwordx2 s[6:7], s[0:1], 48")
    e("s_load_dwordx2 s[8:9], s[0:1], 80")
    e("v_lshrrev_b32 v1, 6, v0")
    e("v_and_b32 v2, 15, v0")
    e("v_readfirstlane_b32 s28, v1")
    e("v_bfe_u32 v3, v0, 4, 2")
    e("v_and_b32 v1, 63, v0")
    e("s_and_b32 s29, s2, 31")
    e("s_bfe_u32 s30, s2, 0x20005")
    e("s_lshr_b32 s31, s2, 7")
    e("s_sub_u32 s32, 64, s29")
    e("s_cmp_eq_u32 s29, 0")
    e("s_cselect_b32 s32, 32, s32")
    e("s_cmp_eq_u32 s31, 0")
    e("s_cselect_b32 s32, s29, s32")
    e("s_lshl_b32 s33, s30, 9")
    e("s_add_u32 s33, s33, s32")
    e("s_lshl_b32 s34, s28, 6")
    e("s_add_u32 s34, s34, s33")
    e("s_mul_i32 s35, s34, 896")
    e("v_lshlrev_b32 v4, 4, v1")
    e("v_cmp_gt_u32 vcc, 56, v1")
    e("v_mov_b32 v5, 0x7ff00000")
    e("s_mul_i32 s36, s29, 57344")
    e("s_lshl_b32 s37, s28, 11")
    e("v_cndmask_b32 v5, v5, v4, vcc")
    e("s_add_u32 s36, s36, s37")
    e("s_lshl_b32 s37, s28, 13")
    e("s_waitcnt lgkmcnt(0)")
    stamp(e, 1)
    stamp(e, 2)
    stamp(e, 3)
    srd(e, 24, 10, WS_SIZE)
    e("s_cmp_eq_u32 s28, 7")
    e("s_cbranch_scc1 L_k2_w7")
    for blk in range(4):
        half, kind = blk >> 1, blk & 1
        e(f"s_add_u32 m0, s37, {blk*2048}")
        e(f"s_add_u32 s38, s36, {half*28672 + kind*14336}")
        e(f"buffer_load_dwordx4 v4, s[24:27], s38 offen lds")
        e(f"buffer_load_dwordx4 v4, s[24:27], s38 offen offset:1024 lds")
    e("L_k2_w7:")
    srd(e, 12, 4, XBYTES)
    srd(e, 16, 6, 896)
    e(f"buffer_load_dwordx4 {vr(XR,4)}, v5, s[12:15], s35 offen")
    e(f"buffer_load_dwordx4 {vr(WR,4)}, v4, s[16:19], 0 offen")
    srd(e, 20, 8, XBYTES)
    e("s_cmp_eq_u32 s28, 7")
    e("s_cbranch_scc0 L_k2_gemm")
    e(f"v_mul_u32_u24 v6, {RS}, v1")
    e("v_mov_b32 v7, 0")
    e("v_cmp_gt_u32 vcc, 8, v1")
    e("s_and_saveexec_b64 s[38:39], vcc")
    e(f"ds_write_b32 v6, v7 offset:{YB}")
    e("s_mov_b64 exec, s[38:39]")
    e("s_branch L_k2_join")
    e("L_k2_gemm:")
    e("v_and_b32 v6, 7, v2")
    e("v_lshl_add_u32 v7, v6, 6, s33")
    e("v_cvt_f32_u32 v7, v7")
    e(f"v_mul_f32 v7, {fbits(1.0/2048)}, v7")
    e("v_lshlrev_b32 v8, 3, v3")
    e("v_cvt_f32_u32 v8, v8")
    e("v_mul_f32 v8, v8, v7")
    for j in range(8):
        e(f"v_cos_f32 v{A+j}, v8")
        e(f"v_sin_f32 v{A+8+j}, v8")
        if j < 7:
            e("v_add_f32 v8, v8, v7")
    e("v_cmp_gt_u32 s[40:41], 8, v2")
    e("s_mov_b32 s38, 0x80008000")
    e("v_mov_b32 v9, s38")
    for j in range(4):
        e(f"v_cvt_pk_bf16_f32 v{C+j}, v{A+2*j}, v{A+2*j+1}")
        e(f"v_cvt_pk_bf16_f32 v{S+j}, v{A+8+2*j}, v{A+8+2*j+1}")
    e("v_cndmask_b32 v10, v9, 0, s[40:41]")
    e("s_cmp_gt_u32 s32, 32")
    e("s_cselect_b32 s39, s38, 0")
    e("s_xor_b32 s42, s39, s38")
    e("v_xor_b32 v11, s42, v10")
    for j in range(4):
        e(f"v_xor_b32 v{F1+j}, s39, v{S+j}")
        e(f"v_xor_b32 v{F2+j}, v10, v{S+j}")
        e(f"v_xor_b32 v{F3+j}, v11, v{C+j}")
    e("s_cmp_lg_u32 s29, 0")
    e("s_cbranch_scc1 L_k2_nospecial")
    e("s_cmp_eq_u32 s32, 0")
    e("s_cbranch_scc1 L_k2_t0")
    for j in range(4):
        e(f"v_mov_b32 v{F1+j}, v{C+j}")
        e(f"v_mov_b32 v{F3+j}, v{F2+j}")
        e(f"v_mov_b32 v{C+j}, 0")
        e(f"v_mov_b32 v{F2+j}, 0")
    e("s_branch L_k2_nospecial")
    e("L_k2_t0:")
    for j in range(4):
        e(f"v_mov_b32 v{F1+j}, 0")
        e(f"v_mov_b32 v{F3+j}, 0")
    e("L_k2_nospecial:")
    e("v_lshrrev_b32 v12, 1, v3")
    e("v_lshlrev_b32 v12, 4, v12")
    e("v_and_b32 v13, 1, v3")
    e("v_lshl_add_u32 v12, v13, 2, v12")
    e("v_lshrrev_b32 v13, 2, v2")
    e("v_add_u32 v12, v12, v13")
    e("v_lshlrev_b32 v12, 5, v12")
    e("v_and_b32 v13, 3, v2")
    e("v_lshl_add_u32 v12, v13, 3, v12")
    e("v_add_u32 v12, s37, v12")
    e("s_lshl_b32 s42, s28, 7")
    e("v_lshl_add_u32 v13, v3, 4, s42")
    e("v_sub_u32 v14, 1792, v13")
    e("v_cndmask_b32 v13, v14, v13, s[40:41]")
    e(f"v_mul_u32_u24 v14, {RS}, v6")
    e(f"v_add3_u32 v{AD}, v13, v14, 0")
    e(f"v_add_u32 v{AD}, {YB}, v{AD}")
    e("v_cndmask_b32 v13, -4, 4, s[40:41]")
    for r in range(1, 4):
        e(f"v_add_u32 v{AD+r}, v{AD+r-1}, v13")
    e("v_lshlrev_b32 v13, 4, v13")
    for r in range(4):
        e(f"v_add_u32 v{AD+4+r}, v{AD+r}, v13")
    e("v_cmp_gt_u32 vcc, 8, v0")
    e(f"v_add_u32 v13, 896, v{AD}")
    e("s_nop 0")
    e(f"v_cndmask_b32 v{AD}, v{AD}, v13, vcc")
    stamp(e, 2)
    e("s_waitcnt vmcnt(2)")
    stamp(e, 3)
    for mm in range(2):
        for blk in range(4):
            for io in range(2):
                e(f"ds_read_b64_tr_b16 {vr(A+(mm*4+blk)*4+2*io,2)}, v12 offset:{blk*2048+mm*1024+io*256}")
    fr = {0: C, 1: F2, 2: F1, 3: F3}
    for mm in range(2):
        for blk in range(4):
            e(f"s_waitcnt lgkmcnt({14-2*(mm*4+blk)})")
            c = "0" if blk == 0 else vr(ACC+4*mm, 4)
            e(f"v_mfma_f32_16x16x32_bf16 {vr(ACC+4*mm,4)}, {vr(A+(mm*4+blk)*4,4)}, {vr(fr[blk],4)}, {c}")
    e("s_nop 3")
    for r in range(4):
        e(f"ds_write_b32 v{AD+r}, v{ACC+r}")
    for r in range(4):
        e(f"ds_write_b32 v{AD+4+r}, v{ACC+4+r}")
    e("L_k2_join:")
    Y = 64
    for j in range(8):
        e(f"v_mov_b32 v{Y+j}, 0")
    e(f"s_mul_i32 s38, s28, {RS}")
    e(f"s_add_u32 s38, s38, {YB}")
    e("v_lshl_add_u32 v6, v1, 5, s38")
    e("s_mov_b32 s43, 0xffff0000")
    e("s_mov_b32 s44, 0x3f803f80")
    e("s_sub_u32 s45, 0xfff, s34")
    e("v_mov_b32 v15, s45")
    e("v_mov_b32 v8, 0")
    e("v_mov_b32 v9, 0")
    e("v_mov_b32 v10, 0")
    e("s_waitcnt vmcnt(0)")
    for j in range(4):
        e(f"v_lshlrev_b32 v{16+2*j}, 16, v{XR+j}")
        e(f"v_and_b32 v{17+2*j}, s43, v{XR+j}")
    e("s_mov_b32 s40, -1")
    e("s_mov_b32 s41, 0x00ffffff")
    e("s_waitcnt lgkmcnt(0)")
    stamp(e, 4)
    e("s_barrier")
    stamp(e, 5)
    e("s_mov_b64 exec, s[40:41]")
    e(f"ds_read_b128 {vr(Y,4)}, v6")
    e(f"ds_read_b128 {vr(Y+4,4)}, v6 offset:16")
    e("s_mov_b64 exec, -1")
    e("s_waitcnt lgkmcnt(0)")
    for j in range(4):
        e(f"v_pk_add_f32 {vr(Y+2*j,2)}, {vr(Y+2*j,2)}, {vr(16+2*j,2)}")
    for j in range(4):
        e(f"v_cvt_pk_bf16_f32 v{24+j}, v{Y+2*j}, v{Y+2*j+1}")
    for j in range(4):
        e(f"v_dot2c_f32_bf16 v8, s44, v{24+j}")
        e(f"v_dot2c_f32_bf16 v9, v{24+j}, v{24+j}")
    for j in range(4):
        e(f"v_lshlrev_b32 v{Y+2*j}, 16, v{24+j}")
        e(f"v_and_b32 v{Y+2*j+1}, s43, v{24+j}")
    dpp_reduce(e, "v_add_f32", [8, 9])
    e("v_readlane_b32 s46, v8, 63")
    e("v_readlane_b32 s47, v9, 63")
    e(f"v_mov_b32 v11, {fbits(1.0/448)}")
    e("s_nop 0")
    e("v_mul_f32 v8, s46, v11")
    e("v_mul_f32 v9, s47, v11")
    e("v_fma_f32 v9, -v8, v8, v9")
    e("v_max_f32 v9, 0, v9")
    e("v_cvt_pk_bf16_f32 v8, v9, v8")
    e("v_lshlrev_b32 v9, 16, v8")
    e(f"v_add_f32 v9, {fbits(1e-5)}, v9")
    e("v_cvt_pk_bf16_f32 v9, v9, v9")
    e("v_and_b32 v9, s43, v9")
    e("v_sqrt_f32 v9, v9")
    e("v_and_b32 v8, s43, v8")
    e("v_cvt_pk_bf16_f32 v9, v9, v9")
    e("v_and_b32 v9, s43, v9")
    e("v_rcp_f32 v12, v9")
    e("v_mov_b32 v9, v8")
    e("v_mov_b32 v13, v12")
    for j in range(4):
        e(f"v_pk_add_f32 {vr(16+2*j,2)}, {vr(Y+2*j,2)}, v[8:9] neg_lo:[0,1] neg_hi:[0,1]")
    for j in range(4):
        e(f"v_pk_mul_f32 {vr(16+2*j,2)}, {vr(16+2*j,2)}, v[12:13]")
    for j in range(4):
        e(f"v_cvt_pk_bf16_f32 v{28+j}, v{16+2*j}, v{17+2*j}")
    for j in range(4):
        e(f"v_dot2c_f32_bf16 v10, v{28+j}, v{WR+j}")
    e(f"s_add_u32 s38, s35, {WS_HN}")
    e(f"buffer_store_dwordx4 v[28:31], v5, s[24:27], s38 offen")
    for j in range(4):
        e(f"v_lshlrev_b32 v{16+2*j}, 16, v{28+j}")
        e(f"v_and_b32 v{17+2*j}, s43, v{28+j}")
    steps = ["row_shr:1 row_mask:0xf", "row_shr:2 row_mask:0xf", "row_shr:4 row_mask:0xf", "row_shr:8 row_mask:0xf",
             "row_bcast:15 row_mask:0xa", "row_bcast:31 row_mask:0xc"]
    fill = [f"v_pk_add_f32 {vr(16+2*j,2)}, {vr(16+2*j,2)}, {vr(Y+2*j,2)}" for j in range(4)] + \
           [f"v_cvt_pk_bf16_f32 v{24+j}, v{16+2*j}, v{17+2*j}" for j in range(4)] + \
           ["buffer_store_dwordx4 v[24:27], v5, s[20:23], s35 offen", "s_nop 0", "s_nop 0", "s_nop 0"]
    for si, s in enumerate(steps):
        e(f"v_add_f32_dpp v10, v10, v10 {s} bank_mask:0xf")
        e(fill[2*si]); e(fill[2*si+1])
    e("v_cvt_pk_bf16_f32 v10, v10, v10")
    e("v_ashrrev_i32 v11, 31, v10")
    e("v_or_b32 v11, 0x80000000, v11")
    e("v_xor_b32 v10, v10, v11")
    e("v_and_or_b32 v10, v10, s43, v15")
    e("s_lshl_b32 s38, s34, 2")
    e(f"s_add_u32 s38, s38, {WS_KEY}")
    e("s_mov_b32 exec_lo, 0")
    e("s_mov_b32 exec_hi, 0x80000000")
    e("buffer_store_dword v10, off, s[24:27], s38")
    stamp(e, 6)
    if DIAG: e("s_waitcnt vmcnt(0)")
    stamp_flush(e, 1, 24, 7, 28)
    e("L_k2_end:")
    e("s_endpgm")
    return dict(name="fnet_k2_kernel", vgpr=96, accum=96, sgpr=56, grid=256, block=512, lds=57344+8*1808)


def k3(e):
    header(e, "fnet_k3_kernel")
    ACT, IDX, GB = 0, 1024, 2048
    DB = GB + 57344
    B, A, AD_, ACC = 64, 128, 184, 32
    K = 64
    e("s_cmp_ge_u32 s2, 56")
    e("s_cbranch_scc1 L_k3_end")
    stamp(e, 0)
    e("s_load_dwordx2 s[4:5], s[0:1], 96")
    e("s_load_dwordx4 s[8:11], s[0:1], 56")
    e("s_load_dwordx4 s[12:15], s[0:1], 72")
    e("v_lshrrev_b32 v1, 6, v0")
    e("v_and_b32 v2, 15, v0")
    e("v_readfirstlane_b32 s36, v1")
    e("v_bfe_u32 v3, v0, 4, 2")
    e("v_and_b32 v1, 63, v0")
    e("s_and_b32 s37, s2, 7")
    e("s_lshr_b32 s38, s2, 3")
    e("s_mul_i32 s39, s37, 7")
    e("s_add_u32 s39, s39, s38")
    e("v_lshlrev_b32 v4, 4, v1")
    e("s_cmp_eq_u32 s36, 0")
    e("s_cbranch_scc1 L_k3_top8")
    e("v_lshrrev_b32 v5, 2, v1")
    e("v_and_b32 v6, 3, v1")
    e("v_lshrrev_b32 v7, 4, v1")
    e("v_and_b32 v7, 2, v7")
    e("v_xor_b32 v6, v6, v7")
    e("s_cmp_eq_u32 s36, 2")
    e("s_cselect_b32 s40, 1, 0")
    e("v_xor_b32 v6, s40, v6")
    e("s_cmp_eq_u32 s36, 3")
    e("s_movk_i32 s41, 896")
    e("s_cselect_b32 s41, s41, 3584")
    e("s_cselect_b32 s42, 64, 114688")
    e("s_cselect_b32 s43, 28672, 64")
    e("v_mul_u32_u24 v5, s41, v5")
    e("v_lshl_add_u32 v5, v6, 4, v5")
    e("s_lshl_b32 s44, s41, 4")
    e("v_add_u32 v6, s44, v5")
    e("s_mul_i32 s43, s43, s39")
    e("s_sub_u32 s44, s36, 1")
    e("s_mul_i32 s44, s44, 28672")
    e(f"s_add_u32 s44, s44, {GB}")
    e("s_waitcnt lgkmcnt(0)")
    stamp(e, 1)
    stamp(e, 2)
    e("s_cmp_eq_u32 s36, 2")
    e("s_cselect_b32 s20, s10, s8")
    e("s_cselect_b32 s21, s11, s9")
    e("s_cmp_eq_u32 s36, 3")
    e("s_cselect_b32 s20, s12, s20")
    e("s_cselect_b32 s21, s13, s21")
    e(f"s_mov_b32 s22, {448*1792*2:#x}")
    e("s_mov_b32 s23, 0x20000")
    e("s_add_u32 s45, s44, 28672")
    e("L_k3_dma:")
    e("s_mov_b32 m0, s44")
    e("s_add_u32 s44, s44, 2048")
    e("buffer_load_dwordx4 v5, s[20:23], s43 offen lds")
    e("s_add_u32 m0, m0, 1024")
    e("s_nop 0")
    e("buffer_load_dwordx4 v6, s[20:23], s43 offen lds")
    e("s_add_u32 s43, s43, s42")
    e("s_cmp_lt_u32 s44, s45")
    e("s_cbranch_scc1 L_k3_dma")
    srd(e, 16, 4, WS_SIZE)
    e("s_branch L_k3_joinA")
    e("L_k3_top8:")
    e("s_setprio 3")
    e(f"s_mov_b32 s40, {WS_KEY:#x}")
    e(f"s_mov_b32 s41, {WS_KEY+4096:#x}")
    e("s_waitcnt lgkmcnt(0)")
    stamp(e, 1)
    srd(e, 16, 4, WS_SIZE)
    for i in range(8):
        e(f"buffer_load_dwordx4 {vr(K+4*i,4)}, v4, s[16:19], s{40+(i>>2)} offen offset:{(i&3)*1024}")
    e("s_mov_b32 m0, 0")
    e("s_waitcnt vmcnt(7)")
    e(f"v_max3_u32 v8, v{K}, v{K+1}, v{K+2}")
    e(f"v_med3_u32 v9, v{K}, v{K+1}, v{K+2}")
    e(f"v_min3_u32 v10, v{K}, v{K+1}, v{K+2}")
    for i in range(3, 32):
        if i % 4 == 0:
            e(f"s_waitcnt vmcnt({7 - i//4})")
        e(f"v_med3_u32 v10, v9, v10, v{K+i}")
        e(f"v_med3_u32 v9, v8, v9, v{K+i}")
        e(f"v_max_u32 v8, v8, v{K+i}")
    stamp(e, 2)
    e("s_nop 1")
    e("L_k3_round:")
    e("v_max_u32_dpp v11, v8, v8 row_shr:1 row_mask:0xf bank_mask:0xf bound_ctrl:0")
    for st in ["row_shr:2 row_mask:0xf", "row_shr:4 row_mask:0xf", "row_shr:8 row_mask:0xf", "row_bcast:15 row_mask:0xa", "row_bcast:31 row_mask:0xc"]:
        e("s_nop 1")
        e(f"v_max_u32_dpp v11, v11, v11 {st} bank_mask:0xf")
    e("s_nop 0")
    e("v_readlane_b32 s42, v11, 63")
    e("s_nop 1")
    e("v_cmp_eq_u32 vcc, s42, v8")
    e("v_writelane_b32 v12, s42, m0")
    e("s_add_u32 m0, m0, 1")
    e("v_cndmask_b32 v8, v8, v9, vcc")
    e("v_cndmask_b32 v9, v9, v10, vcc")
    e("v_cndmask_b32 v10, v10, 0, vcc")
    e("s_cmp_lt_u32 m0, 8")
    e("s_cbranch_scc1 L_k3_round")
    e("v_cmp_eq_u32 vcc, 0, v8")
    e("s_cbranch_vccz L_k3_topdone")
    e("s_mov_b32 m0, 0")
    e("s_mov_b32 s42, -1")
    e("L_k3_slow:")
    e(f"v_sub_u32 v8, s42, v{K}")
    e(f"v_sub_u32 v9, s42, v{K+1}")
    e("v_min_u32 v8, v8, v9")
    for i in range(2, 32, 2):
        e(f"v_sub_u32 v9, s42, v{K+i}")
        e(f"v_sub_u32 v10, s42, v{K+i+1}")
        e("v_min3_u32 v8, v8, v9, v10")
    for st in ["row_shr:1 row_mask:0xf", "row_shr:2 row_mask:0xf", "row_shr:4 row_mask:0xf", "row_shr:8 row_mask:0xf", "row_bcast:15 row_mask:0xa", "row_bcast:31 row_mask:0xc"]:
        e("s_nop 1")
        e(f"v_min_u32_dpp v8, v8, v8 {st} bank_mask:0xf")
    e("s_nop 0")
    e("v_readlane_b32 s43, v8, 63")
    e("s_nop 3")
    e("s_sub_u32 s42, s42, s43")
    e("v_writelane_b32 v12, s42, m0")
    e("s_sub_u32 s42, s42, 1")
    e("s_add_u32 m0, m0, 1")
    e("s_cmp_lt_u32 m0, 8")
    e("s_cbranch_scc1 L_k3_slow")
    e("L_k3_topdone:")
    e("v_lshlrev_b32 v5, 2, v1")
    e(f"ds_write_b32 v5, v12 offset:{IDX}")
    e("s_waitcnt lgkmcnt(0)")
    e("L_k3_joinA:")
    e("v_and_b32 v5, 7, v1")
    e("v_lshlrev_b32 v5, 2, v5")
    e("s_movk_i32 s40, 896")
    e(f"s_mov_b32 s41, {WS_HN:#x}")
    e("v_lshlrev_b32 v7, 4, v3")
    stamp(e, 3)
    e("s_barrier")
    stamp(e, 4)
    e(f"ds_read_b32 v12, v5 offset:{IDX}")
    e("v_lshrrev_b32 v8, 2, v2")
    e("v_lshl_add_u32 v8, v3, 3, v8")
    e("v_bfe_u32 v9, v2, 1, 1")
    e("v_and_b32 v10, 1, v3")
    e("v_lshl_add_u32 v11, v10, 1, v9")
    e("v_xor_b32 v11, s36, v11")
    e("v_and_b32 v13, 1, v2")
    e("v_lshlrev_b32 v13, 3, v13")
    e("s_waitcnt lgkmcnt(0)")
    e("v_not_b32 v6, v12")
    e("v_and_b32 v6, 0x7ff, v6")
    e("v_mad_u32_u24 v7, v6, s40, v7")
    for k in range(14):
        e(f"buffer_load_dwordx4 {vr(B+4*k,4)}, v7, s[16:19], s41 offen offset:{64*k}")
    e("v_lshl_add_u32 v14, v8, 6, v13")
    e("v_lshl_add_u32 v14, v11, 4, v14")
    e("v_mul_u32_u24 v11, 28672, v9")
    e(f"s_movk_i32 s42, {GB}")
    e("v_add3_u32 v14, v14, v11, s42")
    e("v_lshrrev_b32 v8, 2, v2")
    e("v_lshl_add_u32 v8, v10, 3, v8")
    e("v_lshl_add_u32 v15, v8, 6, v13")
    e("s_and_b32 s42, s36, 1")
    e("v_xor_b32 v10, s42, v10")
    e("v_lshl_add_u32 v10, v10, 1, v9")
    e("v_lshl_add_u32 v15, v10, 4, v15")
    e("v_lshrrev_b32 v10, 1, v3")
    e("v_lshl_add_u32 v15, v10, 10, v15")
    e("s_lshr_b32 s42, s36, 1")
    e("s_lshl_b32 s42, s42, 11")
    e(f"s_add_u32 s42, s42, {DB}")
    e("v_add_u32 v15, s42, v15")
    e("s_cmp_lg_u32 s36, 0")
    e("s_cbranch_scc1 L_k3_nometa")
    e("v_readlane_b32 s42, v6, s37")
    e("v_readlane_b32 s43, v12, s37")
    srd(e, 32, 14, XBYTES)
    e("s_mul_i32 s42, s42, 896")
    e("s_lshl_b32 s44, s38, 7")
    e("s_add_u32 s42, s42, s44")
    e("v_lshlrev_b32 v16, 1, v1")
    e("buffer_load_ushort v17, v16, s[32:35], s42 offen")
    e("s_lshr_b32 s44, s43, 31")
    e("s_sub_u32 s44, s44, 1")
    e("s_or_b32 s44, s44, 0x80000000")
    e("s_xor_b32 s43, s43, s44")
    e("s_and_b32 s43, s43, 0xffff0000")
    e(f"v_mov_b32 v18, {fbits(-1.4426950408889634)}")
    e("v_mul_f32 v18, s43, v18")
    e("v_exp_f32 v18, v18")
    e("v_mov_b32 v19, s42")
    e("v_add_f32 v18, 1.0, v18")
    e("v_rcp_f32 v18, v18")
    e("s_lshl_b32 s44, s39, 9")
    e("v_cvt_pk_bf16_f32 v18, v18, v18")
    e("v_and_b32 v18, 0xffff0000, v18")
    e(f"s_add_u32 s44, s44, {WS_META}")
    e("buffer_store_dwordx2 v[18:19], off, s[16:19], s44 offset:256")
    e("s_branch L_k3_joinB")
    e("L_k3_nometa:")
    e("s_waitcnt vmcnt(14)")
    e("L_k3_joinB:")
    stamp(e, 5)
    e("s_barrier")
    stamp(e, 6)
    for k in range(14):
        for io in range(2):
            e(f"ds_read_b64_tr_b16 {vr(A+4*k+2*io,2)}, v14 offset:{k*2048+io*256}")
    for i in range(7):
        for io in range(2):
            e(f"ds_read_b64_tr_b16 {vr(AD_+4*i+2*io,2)}, v15 offset:{i*4096+io*256}")
    e("s_lshl_b32 s42, s36, 8")
    e(f"s_add_u32 s42, s42, {ACT}")
    e("v_lshl_add_u32 v5, v2, 4, s42")
    e("v_lshl_add_u32 v5, v3, 3, v5")
    e("v_mul_u32_u24 v6, 1792, v2")
    e("v_lshl_add_u32 v6, v3, 4, v6")
    e("v_cmp_gt_u32 vcc, 8, v2")
    e("v_mov_b32 v7, 0x7ff00000")
    e("s_mul_i32 s43, s39, 14336")
    e("s_lshl_b32 s42, s36, 6")
    e("v_cndmask_b32 v6, v7, v6, vcc")
    e("s_add_u32 s43, s43, s42")
    e(f"s_add_u32 s43, s43, {WS_PART}")
    e(f"s_mov_b32 s42, {fbits(-1.4426950408889634)}")
    e("s_waitcnt vmcnt(0) lgkmcnt(0)")
    stamp(e, 7)
    for k in range(14):
        c = "0" if k == 0 else vr(ACC, 4)
        e(f"v_mfma_f32_16x16x32_bf16 {vr(ACC,4)}, {vr(A+4*k,4)}, {vr(B+4*k,4)}, {c}")
    e("s_cmp_lg_u32 s36, 0")
    e("s_cbranch_scc1 L_k3_nometa2")
    e("v_lshlrev_b32 v20, 2, v1")
    e("v_lshlrev_b32 v21, 16, v17")
    e("buffer_store_dword v21, v20, s[16:19], s44 offen")
    e("L_k3_nometa2:")
    e("s_nop 5")
    for r in range(4):
        e(f"v_permlane32_swap_b32 v{ACC+r}, v{ACC+4+r}")
    for r in range(4):
        e(f"v_mul_f32 v{16+r}, s42, v{ACC+r}")
    for r in range(4):
        e(f"v_exp_f32 v{16+r}, v{16+r}")
    for r in range(4):
        e(f"v_mul_f32 v{ACC+r}, v{ACC+r}, v{ACC+4+r}")
    for r in range(4):
        e(f"v_add_f32 v{16+r}, 1.0, v{16+r}")
    for r in range(4):
        e(f"v_rcp_f32 v{16+r}, v{16+r}")
    e("s_mov_b32 exec_hi, 0")
    for r in range(4):
        e(f"v_mul_f32 v{ACC+r}, v{ACC+r}, v{16+r}")
    e(f"v_cvt_pk_bf16_f32 v16, v{ACC}, v{ACC+1}")
    e(f"v_cvt_pk_bf16_f32 v17, v{ACC+2}, v{ACC+3}")
    e("ds_write_b64 v5, v[16:17]")
    e("s_mov_b32 exec_hi, -1")
    e("s_waitcnt lgkmcnt(0)")
    e("s_barrier")
    e(f"ds_read_b128 v[16:19], v4 offset:{ACT}")
    e("s_waitcnt lgkmcnt(0)")
    for i in range(7):
        e(f"v_mfma_f32_16x16x32_bf16 {vr(B+4*i,4)}, {vr(AD_+4*i,4)}, v[16:19], 0")
    e("s_nop 1")
    for i in range(7):
        e(f"buffer_store_dwordx4 {vr(B+4*i,4)}, v6, s[16:19], s43 offen offset:{256*i}")
    stamp(e, 8)
    if DIAG: e("s_waitcnt vmcnt(0)")
    stamp_flush(e, 2, 16, 9, 36)
    e("L_k3_end:")
    e("s_endpgm")
    return dict(name="fnet_k3_kernel", vgpr=216, accum=216, sgpr=56, grid=56, block=256, lds=2048+86016)

def k4(e):
    header(e, "fnet_k4_kernel")
    P = 16
    e("s_cmp_ge_u32 s2, 56")
    e("s_cbranch_scc1 L_k4_end")
    stamp(e, 0)
    e("s_load_dwordx2 s[4:5], s[0:1], 96")
    e("s_load_dwordx2 s[6:7], s[0:1], 80")
    e("v_and_b32 v1, 15, v0")
    e("v_lshrrev_b32 v2, 4, v0")
    e("v_mul_u32_u24 v2, 14336, v2")
    e("v_lshlrev_b32 v3, 4, v1")
    e("v_add_u32 v2, v2, v3")
    e("s_lshl_b32 s16, s2, 8")
    e(f"s_add_u32 s16, s16, {WS_PART}")
    e("s_lshl_b32 s17, s2, 9")
    e(f"s_add_u32 s17, s17, {WS_META}")
    e("v_mov_b32 v10, 1.0")
    e("s_waitcnt lgkmcnt(0)")
    stamp(e, 1)
    srd(e, 8, 4, WS_SIZE)
    for i in range(14):
        e(f"buffer_load_dwordx4 {vr(P+4*i,4)}, v2, s[8:11], s16 offen")
        if i < 13:
            e("s_add_u32 s16, s16, 57344")
    e("buffer_load_dwordx4 v[4:7], v3, s[8:11], s17 offen")
    e("buffer_load_dwordx2 v[8:9], off, s[8:11], s17 offset:256")
    srd(e, 12, 6, XBYTES)
    e("s_mov_b32 s18, 0xffff0000")
    for i in range(1, 14):
        e(f"s_waitcnt vmcnt({15-i})")
        e(f"v_pk_add_f32 {vr(P,2)}, {vr(P,2)}, {vr(P+4*i,2)}")
        e(f"v_pk_add_f32 {vr(P+2,2)}, {vr(P+2,2)}, {vr(P+4*i+2,2)}")
    e("s_nop 1")
    for r in range(4):
        e(f"v_mfma_f32_16x16x4_f32 {vr(32+4*r,4)}, v10, v{P+r}, 0")
    e("s_waitcnt vmcnt(0)")
    stamp(e, 2)
    e("v_lshl_add_u32 v9, v1, 3, v9")
    e("v_cmp_gt_u32 vcc, 16, v0")
    e("s_nop 7")
    e("v_cvt_pk_bf16_f32 v16, v32, v36")
    e("v_cvt_pk_bf16_f32 v17, v40, v44")
    e("v_lshlrev_b32 v20, 16, v16")
    e("v_and_b32 v21, s18, v16")
    e("v_lshlrev_b32 v22, 16, v17")
    e("v_and_b32 v23, s18, v17")
    for r in range(4):
        e(f"v_mul_f32 v{20+r}, v{20+r}, v8")
    e("v_cvt_pk_bf16_f32 v16, v20, v21")
    e("v_cvt_pk_bf16_f32 v17, v22, v23")
    e("v_lshlrev_b32 v20, 16, v16")
    e("v_and_b32 v21, s18, v16")
    e("v_lshlrev_b32 v22, 16, v17")
    e("v_and_b32 v23, s18, v17")
    for r in range(4):
        e(f"v_add_f32 v{20+r}, v{20+r}, v{4+r}")
    e("v_cvt_pk_bf16_f32 v16, v20, v21")
    e("v_cvt_pk_bf16_f32 v17, v22, v23")
    e("s_mov_b64 exec, vcc")
    e("buffer_store_dwordx2 v[16:17], v9, s[12:15], 0 offen")
    stamp(e, 3)
    if DIAG: e("s_waitcnt vmcnt(0)")
    stamp_flush(e, 3, 8, 4, 0)
    e("L_k4_end:")
    e("s_endpgm")
    return dict(name="fnet_k4_kernel", vgpr=72, accum=72, sgpr=24, grid=56, block=64, lds=0)

def build(kernels, path):
    e = E()
    infos = []
    body = E()
    for k in kernels:
        infos.append(k(body))
    hdr = open("cdna_kernels/%s.s.ref" % NAME).read().split("\n")
    top = [l for l in hdr if l.startswith(";") and "@launch" not in l and "Override launch" not in l and "grid=ceil" not in l][:15]
    out = "\n".join(top) + "\n"
    for i in infos:
        out += f"; @launch kernel={i['name']} grid=({i['grid']},1,1) block=({i['block']},1,1) lds={i['lds']}\n"
    out += '.amdgcn_target "amdgcn-amd-amdhsa--gfx950"\n.text\n'
    out += body.text()
    out += '.section .rodata,"a"\n'
    seen = set()
    for i in infos:
        if i['name'] in seen: continue
        seen.add(i['name'])
        out += f""".p2align 6
.amdhsa_kernel {i['name']}
  .amdhsa_next_free_vgpr {i['vgpr']}
  .amdhsa_next_free_sgpr {100 if DIAG else i['sgpr']}
  .amdhsa_accum_offset {i['accum']}
  .amdhsa_group_segment_fixed_size 0
  .amdhsa_kernarg_size 104
  .amdhsa_user_sgpr_count 2
  .amdhsa_user_sgpr_kernarg_segment_ptr 1
  .amdhsa_system_sgpr_workgroup_id_x 1
.end_amdhsa_kernel
"""
    open(path, "w").write(out)

if __name__ == "__main__":
    if len(sys.argv) > 2 and sys.argv[2] == "diag":
        DIAG = True
    if len(sys.argv) > 3:
        DBGSEL = {0: [0, 1, 5, 9], 1: [0, 1, 3, 7], 2: [0, 2, 7, 9], 3: [0, 1, 2, 4]}
    build([k1, k2, k3, k4], sys.argv[1] if len(sys.argv) > 1 else "k.s")

def kempty(grid=1, block=64):
    def f(e):
        if not getattr(e, "_empty_done", False):
            header(e, "fnet_e_kernel")
            e("s_endpgm")
            e._empty_done = True
        return dict(name="fnet_e_kernel", vgpr=8, accum=8, sgpr=8, grid=grid, block=block, lds=0)
    return f
```

```python
import struct, sys

NAME = "sequential_preLN__spectral_fnet__moe_arch_mod__prompt"

def fbits(x):
    return "0x%08x" % struct.unpack("<I", struct.pack("<f", x))[0]

class E:
    def __init__(self):
        self.l = []
    def __call__(self, s=""):
        for line in s.split("\n"):
            line = line.strip()
            if line.endswith(":") or line.startswith("."):
                self.l.append(line)
            elif line:
                self.l.append("    " + line)
    def text(self):
        return "\n".join(self.l) + "\n"

WS_V    = 0x000000
WS_HN   = 0x200000
WS_KEY  = 0x400000
WS_PART = 0x500000
WS_META = 0x600000
WS_SIZE = 0x10000000
XBYTES  = 2048*896

def vr(a, n):
    return "v[%d:%d]" % (a, a+n-1)
def ar(a, n):
    return "a[%d:%d]" % (a, a+n-1)

def srd(e, d, b, size):
    e(f"s_mov_b32 s{d}, s{b}")
    e(f"s_mov_b32 s{d+1}, s{b+1}")
    e(f"s_mov_b32 s{d+2}, {size:#x}")
    e(f"s_mov_b32 s{d+3}, 0x20000")

DIAG = False
WS_DIAG = 0x800000
def stamp(e, i):
    if DIAG:
        e(f"s_memrealtime s[{64+2*i}:{65+2*i}]")
        e("s_waitcnt lgkmcnt(0)")
def stamp_flush(e, kid, srdreg, nst, wavereg):
    if DIAG:
        e("s_mov_b64 exec, -1")
        e(f"s_memrealtime s[{64+2*nst}:{65+2*nst}]")
        e("s_waitcnt lgkmcnt(0)")
        for i in range(nst+1):
            e(f"v_writelane_b32 v0, s{64+2*i}, {i}")
        e(f"s_lshl_b32 s60, s2, 3")
        if wavereg: e(f"s_add_u32 s60, s60, s{wavereg}")
        e(f"s_lshl_b32 s60, s60, 6")
        e(f"s_add_u32 s60, s60, {WS_DIAG + kid*0x40000}")
        e("v_mbcnt_lo_u32_b32 v1, -1, 0")
        e("v_lshlrev_b32 v1, 2, v1")
        e("s_mov_b32 exec_lo, 0xffff")
        e("s_mov_b32 exec_hi, 0")
        e(f"buffer_store_dword v0, v1, s[{srdreg}:{srdreg+3}], s60 offen")
        dbg_flush(e, kid, nst, wavereg)

DBGSEL = None
def dbg_flush(e, kid, nst, wavereg):
    if DIAG and DBGSEL:
        e("s_cmp_lg_u32 s2, 0")
        e(f"s_cbranch_scc1 L_dbg_skip{kid}")
        if wavereg:
            e(f"s_cmp_lg_u32 s{wavereg}, 0")
            e(f"s_cbranch_scc1 L_dbg_skip{kid}")
        e("s_load_dwordx2 s[56:57], s[0:1], 88")
        e("s_waitcnt lgkmcnt(0)")
        e(f"s_add_u32 s56, s56, {512*(3-kid)}")
        e("s_addc_u32 s57, s57, 0")
        e("s_mov_b32 s58, 256")
        e("s_mov_b32 s59, 0x20000")
        for j, i in enumerate(DBGSEL[kid]):
            e(f"v_writelane_b32 v0, s{64+2*i}, {j}")
        e("s_mov_b32 exec_lo, 0xf")
        e(f"buffer_store_dword v0, v1, s[56:59], 0 offen offset:{16*kid}")
        e(f"L_dbg_skip{kid}:")

def header(e, name):
    e(f".globl {name}")
    e(".p2align 8")
    e(f".type {name},@function")
    e(f"{name}:")

def k1(e):
    header(e, "fnet_k1_kernel")
    X, ACC, CUR, PRV, PK, RF = 64, 32, 16, 24, 48, 56
    LDS_Z, LDS_CS = 57344, 57344 + 8192
    e("s_cmp_ge_u32 s2, 224")
    e("s_cbranch_scc1 L_k1_end")
    stamp(e, 0)
    e("s_load_dwordx2 s[4:5], s[0:1], 0")
    e("s_load_dwordx2 s[6:7], s[0:1], 96")
    e("v_lshrrev_b32 v1, 6, v0")
    e("v_and_b32 v2, 15, v0")
    e("v_readfirstlane_b32 s16, v1")
    e("v_bfe_u32 v3, v0, 4, 2")
    e("v_and_b32 v1, 63, v0")
    e("s_and_b32 s17, s2, 7")
    e("s_bfe_u32 s18, s2, 0x20003")
    e("s_lshr_b32 s19, s2, 5")
    e("s_lshl_b32 s20, s17, 2")
    e("s_add_u32 s20, s20, s18")
    e("v_lshrrev_b32 v4, 2, v2")
    e("v_and_b32 v5, 3, v2")
    e("v_lshl_add_u32 v6, v4, 3, v5")
    e("v_mul_u32_u24 v6, 28672, v6")
    e("v_lshl_add_u32 v6, v3, 4, v6")
    e("s_lshr_b32 s21, s16, 1")
    e("s_and_b32 s22, s16, 1")
    e("s_lshl_b32 s23, s21, 10")
    e("s_lshl_b32 s24, s22, 7")
    e("s_add_u32 s23, s23, s24")
    e("s_add_u32 s23, s23, s20")
    e("s_mul_i32 s23, s23, 896")
    e("s_lshl_b32 s24, s19, 6")
    e("s_lshl_b32 s25, s16, 2")
    e("s_add_u32 s24, s24, s25")
    e("v_lshl_add_u32 v7, v4, 4, v5")
    e("v_add_u32 v7, s24, v7")
    e("v_mov_b32 v9, 224")
    e("v_cmp_eq_u32 vcc, 0, v7")
    e("v_subrev_u32 v8, 224, v7")
    e("v_cmp_le_u32 s[26:27], v9, v7")
    e("v_cndmask_b32 v7, v7, v9, vcc")
    e("v_mov_b32 v10, 0x3e800000")
    e("v_cndmask_b32 v7, v7, v8, s[26:27]")
    e("v_cndmask_b32 v10, 0, v10, s[26:27]")
    e("v_cvt_f32_u32 v7, v7")
    e(f"v_mul_f32 v7, {fbits(1.0/448)}, v7")
    e("v_lshlrev_b32 v8, 3, v3")
    e("v_cvt_f32_u32 v8, v8")
    e("v_fma_f32 v8, v8, v7, v10")
    e("v_mul_f32 v9, 0x42000000, v7")
    e("v_cos_f32 v52, v9")
    for j in range(8):
        e(f"v_cos_f32 v{CUR+j}, v8")
        e(f"v_sub_f32 v11, v8, v9")
        if j < 7:
            e(f"v_add_f32 v8, v8, v7")
        e(f"v_cos_f32 v{PRV+j}, v11")
    e("v_add_f32 v52, v52, v52")
    e("s_mov_b32 s28, 0x3f803f80")
    e("v_mov_b32 v54, 0")
    e("s_mul_i32 s24, s16, 14336")
    e("v_lshl_add_u32 v55, v1, 4, s24")
    e("v_mov_b32 v53, v52")
    e("s_waitcnt lgkmcnt(0)")
    stamp(e, 1)
    srd(e, 8, 4, XBYTES)
    for k in range(14):
        e(f"buffer_load_dwordx4 {vr(X+4*k,4)}, v6, s[8:11], s23 offen offset:{64*k}")
    srd(e, 12, 6, WS_SIZE)
    e("s_mov_b32 s29, 0")
    e("L_k1_fgen:")
    for (A, B, off) in ((CUR, PRV, 0), (PRV, CUR, 1024)):
        for j in range(4):
            e(f"v_cvt_pk_bf16_f32 v{PK+j}, v{A+2*j}, v{A+2*j+1}")
        for j in range(4):
            e(f"v_pk_fma_f32 {vr(B+2*j,2)}, v[52:53], {vr(A+2*j,2)}, {vr(B+2*j,2)} neg_lo:[0,0,1] neg_hi:[0,0,1]")
        e(f"ds_write_b128 v55, {vr(PK,4)} offset:{off}")
        for j in range(4):
            e(f"v_dot2c_f32_bf16 v54, s28, v{PK+j}")
    e("v_add_u32 v55, 2048, v55")
    e("s_add_u32 s29, s29, 1")
    e("s_cmp_lt_u32 s29, 7")
    e("s_cbranch_scc1 L_k1_fgen")
    stamp(e, 2)
    e("v_mov_b32 v9, 1.0")
    e("s_nop 2")
    e("v_mfma_f32_16x16x4_f32 v[12:15], v9, v54, 0")
    e("s_lshl_b32 s24, s22, 4")
    e("v_add_u32 v7, s24, v2")
    e("s_mul_i32 s25, s21, 0x3e800000")
    e("v_mov_b32 v10, s25")
    e("s_cmp_eq_u32 s16, 2")
    e("s_cselect_b32 s24, 0, -1")
    e("v_cmp_eq_u32 vcc, s24, v7")
    e("v_mov_b32 v11, 32")
    e("v_lshlrev_b32 v8, 3, v3")
    e("v_cndmask_b32 v7, v7, v11, vcc")
    e("v_cndmask_b32 v10, v10, 0, vcc")
    e("v_cvt_f32_u32 v7, v7")
    e("v_cvt_f32_u32 v8, v8")
    e(f"v_mul_f32 v7, {fbits(1.0/64)}, v7")
    e("s_lshl_b32 s24, s16, 6")
    e(f"s_add_u32 s24, s24, {LDS_CS}")
    e("v_lshl_add_u32 v11, v2, 2, s24")
    e("ds_write_b32 v11, v12")
    e("v_fma_f32 v8, v8, v7, v10")
    e("v_mul_f32 v10, 0x42000000, v7")
    for j in range(8):
        e(f"v_cos_f32 v{CUR+j}, v8")
        e(f"v_add_f32 v11, v8, v10")
        if j < 7:
            e(f"v_add_f32 v8, v8, v7")
        e(f"v_cos_f32 v{PRV+j}, v11")
    e("s_waitcnt lgkmcnt(0)")
    e("s_barrier")
    e("v_lshlrev_b32 v11, 4, v1")
    for k in range(14):
        for n in range(4):
            e(f"ds_read_b128 {ar((k*4+n)*4,4)}, v11 offset:{(n*14+k)*1024}")
        if k == 0:
            for j in range(4):
                e(f"v_cvt_pk_bf16_f32 v{RF+j}, v{CUR+2*j}, v{CUR+2*j+1}")
                e(f"v_cvt_pk_bf16_f32 v{RF+4+j}, v{PRV+2*j}, v{PRV+2*j+1}")
    e(f"v_lshlrev_b32 v10, 2, v2")
    e(f"v_add_u32 v10, {LDS_CS}, v10")
    for n in range(4):
        e(f"ds_read_b32 v{48+n}, v10 offset:{64*n}")
    e("s_lshl_b32 s24, s21, 10")
    e("s_lshl_b32 s25, s22, 3")
    e("s_add_u32 s24, s24, s25")
    e(f"s_add_u32 s24, s24, {LDS_Z}")
    e("v_add_u32 v55, s24, v11")
    e(f"v_add_u32 v54, {LDS_Z}, v11")
    e("v_mul_u32_u24 v53, 57344, v2")
    e("v_lshl_add_u32 v53, v3, 10, v53")
    e("s_mul_i32 s24, s22, 917504")
    e("s_mul_i32 s25, s21, 28672")
    e("s_add_u32 s24, s24, s25")
    e("s_lshl_b32 s25, s19, 12")
    e("s_add_u32 s24, s24, s25")
    e("s_lshr_b32 s25, s17, 2")
    e("s_lshl_b32 s25, s25, 4")
    e("s_and_b32 s26, s17, 1")
    e("s_lshl_b32 s26, s26, 3")
    e("s_add_u32 s25, s25, s26")
    e("s_and_b32 s26, s17, 2")
    e("s_lshl_b32 s26, s26, 1")
    e("s_add_u32 s25, s25, s26")
    e("s_add_u32 s25, s25, s18")
    e("s_lshl_b32 s25, s25, 5")
    e("s_add_u32 s30, s24, s25")
    for r in (4, 5, 6, 7):
        e(f"v_mov_b32 v{r}, 0")
    e("s_waitcnt lgkmcnt(0)")
    stamp(e, 3)
    if DIAG:
        e("s_waitcnt vmcnt(13)")
        stamp(e, 4)
        e("s_waitcnt vmcnt(0)")
        stamp(e, 5)
    def mf(k, n):
        c = "0" if k == 0 else vr(ACC+4*n, 4)
        e(f"v_mfma_f32_16x16x32_bf16 {vr(ACC+4*n,4)}, {vr(X+4*k,4)}, {ar((k*4+n)*4,4)}, {c}")
    LAG = 1
    for k in range(14):
        e(f"s_waitcnt vmcnt({13-k})")
        for j in range(4):
            e(f"v_dot2c_f32_bf16 v{4+(j&1)}, s28, v{X+4*k+j}")
            e(f"v_dot2c_f32_bf16 v{6+(j&1)}, v{X+4*k+j}, v{X+4*k+j}")
            if k >= LAG:
                mf(k-LAG, j)
    e("s_nop 1")
    e("v_add_f32 v4, v4, v5")
    e("v_add_f32 v6, v6, v7")
    e("s_nop 1")
    e("v_mfma_f32_16x16x4_f32 v[16:19], v4, v9, 0")
    e("v_mfma_f32_16x16x4_f32 v[20:23], v6, v9, 0")
    for k in range(14-LAG, 14):
        for n in range(4):
            mf(k, n)
    e("s_nop 5")
    stamp(e, 6)
    inv = fbits(1.0/448)
    e(f"s_mov_b32 s24, {inv}")
    e(f"s_mov_b32 s25, {inv}")
    e(f"s_mov_b32 s26, {fbits(1e-5)}")
    e(f"s_mov_b32 s27, 0xffff0000")
    e("v_pk_mul_f32 v[16:17], v[16:17], s[24:25]")
    e("v_pk_mul_f32 v[18:19], v[18:19], s[24:25]")
    e("v_pk_mul_f32 v[20:21], v[20:21], s[24:25]")
    e("v_pk_mul_f32 v[22:23], v[22:23], s[24:25]")
    e("v_pk_fma_f32 v[20:21], v[16:17], v[16:17], v[20:21] neg_lo:[1,0,0] neg_hi:[1,0,0]")
    e("v_pk_fma_f32 v[22:23], v[18:19], v[18:19], v[22:23] neg_lo:[1,0,0] neg_hi:[1,0,0]")
    def round4():
        e("v_cvt_pk_bf16_f32 v24, v20, v21")
        e("v_cvt_pk_bf16_f32 v25, v22, v23")
        e("v_lshlrev_b32 v20, 16, v24")
        e("v_and_b32 v21, s27, v24")
        e("v_lshlrev_b32 v22, 16, v25")
        e("v_and_b32 v23, s27, v25")
    for r in range(4):
        e(f"v_max_f32 v{20+r}, 0, v{20+r}")
    round4()
    for r in range(4):
        e(f"v_add_f32 v{20+r}, s26, v{20+r}")
    round4()
    for r in range(4):
        e(f"v_sqrt_f32 v{20+r}, v{20+r}")
    e("s_nop 0")
    round4()
    for r in range(4):
        e(f"v_rcp_f32 v{20+r}, v{20+r}")
    e("s_nop 0")
    e("v_pk_mul_f32 v[16:17], v[16:17], v[20:21]")
    e("v_pk_mul_f32 v[18:19], v[18:19], v[22:23]")
    for n in range(4):
        a = ACC + 4*n
        e(f"v_pk_mul_f32 {vr(a,2)}, {vr(a,2)}, v[20:21]")
        e(f"v_pk_mul_f32 {vr(a+2,2)}, {vr(a+2,2)}, v[22:23]")
        for r in range(4):
            e(f"v_fma_f32 v{a+r}, -v{16+r}, v{48+n}, v{a+r}")
        e(f"v_cvt_pk_bf16_f32 v{24+2*n}, v{a}, v{a+1}")
        e(f"v_cvt_pk_bf16_f32 v{25+2*n}, v{a+2}, v{a+3}")
        e(f"ds_write_b64 v55, {vr(24+2*n,2)} offset:{n*2048}")
    e("s_waitcnt lgkmcnt(0)")
    stamp(e, 7)
    e("s_barrier")
    for n in range(4):
        for k2 in range(2):
            e(f"ds_read_b128 {vr(X+(n*2+k2)*4,4)}, v54 offset:{(n*2+k2)*1024}")
    for n in range(4):
        e(f"s_waitcnt lgkmcnt({6-2*n})")
        e(f"v_mfma_f32_16x16x32_bf16 {vr(ACC+4*n,4)}, {vr(X+(n*2)*4,4)}, {vr(RF,4)}, 0")
        e(f"v_mfma_f32_16x16x32_bf16 {vr(ACC+4*n,4)}, {vr(X+(n*2+1)*4,4)}, {vr(RF+4,4)}, {vr(ACC+4*n,4)}")
    e("s_nop 1")
    for n in range(4):
        if n == 3:
            e("s_nop 1")
        e(f"v_cvt_pk_bf16_f32 v{16+2*n}, v{ACC+4*n}, v{ACC+4*n+1}")
        e(f"v_cvt_pk_bf16_f32 v{17+2*n}, v{ACC+4*n+2}, v{ACC+4*n+3}")
    e("buffer_store_dwordx4 v[16:19], v53, s[12:15], s30 offen")
    e("buffer_store_dwordx4 v[20:23], v53, s[12:15], s30 offen offset:16")
    stamp(e, 8)
    if DIAG: e("s_waitcnt vmcnt(0)")
    stamp_flush(e, 0, 12, 9, 16)
    e("L_k1_end:")
    e("s_endpgm")
    return dict(name="fnet_k1_kernel", vgpr=128+224, accum=128, sgpr=40, grid=224, block=256, lds=57344+8192+256)

def dpp_reduce(e, op, regs, first=True):
    steps = ["row_shr:1", "row_shr:2", "row_shr:4", "row_shr:8", "row_bcast:15 row_mask:0xa", "row_bcast:31 row_mask:0xc"]
    for s in steps:
        m = s if "row_mask" in s else s + " row_mask:0xf"
        for r in regs:
            e(f"{op}_dpp v{r}, v{r}, v{r} {m} bank_mask:0xf")
        if len(regs) == 1:
            e("s_nop 1")
        elif len(regs) == 2:
            e("s_nop 0")

def k2(e):
    header(e, "fnet_k2_kernel")
    YB = 57344
    RS = 1808
    C, S, F1, F2, F3 = 16, 20, 24, 28, 32
    A = 64
    ACC = 36
    AD = 44
    XR, WR = 52, 56
    e("s_cmp_ge_u32 s2, 256")
    e("s_cbranch_scc1 L_k2_end")
    stamp(e, 0)
    e("s_load_dwordx2 s[10:11], s[0:1], 96")
    e("s_load_dwordx2 s[4:5], s[0:1], 0")
    e("s_load_dwordx2 s[6:7], s[0:1], 48")
    e("s_load_dwordx2 s[8:9], s[0:1], 80")
    e("v_lshrrev_b32 v1, 6, v0")
    e("v_and_b32 v2, 15, v0")
    e("v_readfirstlane_b32 s28, v1")
    e("v_bfe_u32 v3, v0, 4, 2")
    e("v_and_b32 v1, 63, v0")
    e("s_and_b32 s29, s2, 31")
    e("s_bfe_u32 s30, s2, 0x20005")
    e("s_lshr_b32 s31, s2, 7")
    e("s_sub_u32 s32, 64, s29")
    e("s_cmp_eq_u32 s29, 0")
    e("s_cselect_b32 s32, 32, s32")
    e("s_cmp_eq_u32 s31, 0")
    e("s_cselect_b32 s32, s29, s32")
    e("s_lshl_b32 s33, s30, 9")
    e("s_add_u32 s33, s33, s32")
    e("s_lshl_b32 s34, s28, 6")
    e("s_add_u32 s34, s34, s33")
    e("s_mul_i32 s35, s34, 896")
    e("v_lshlrev_b32 v4, 4, v1")
    e("v_cmp_gt_u32 vcc, 56, v1")
    e("v_mov_b32 v5, 0x7ff00000")
    e("s_mul_i32 s36, s29, 57344")
    e("s_lshl_b32 s37, s28, 11")
    e("v_cndmask_b32 v5, v5, v4, vcc")
    e("s_add_u32 s36, s36, s37")
    e("s_lshl_b32 s37, s28, 13")
    e("s_waitcnt lgkmcnt(0)")
    stamp(e, 1)
    stamp(e, 2)
    stamp(e, 3)
    srd(e, 24, 10, WS_SIZE)
    e("s_cmp_eq_u32 s28, 7")
    e("s_cbranch_scc1 L_k2_w7")
    for blk in range(4):
        half, kind = blk >> 1, blk & 1
        e(f"s_add_u32 m0, s37, {blk*2048}")
        e(f"s_add_u32 s38, s36, {half*28672 + kind*14336}")
        e(f"buffer_load_dwordx4 v4, s[24:27], s38 offen lds")
        e(f"buffer_load_dwordx4 v4, s[24:27], s38 offen offset:1024 lds")
    e("L_k2_w7:")
    srd(e, 12, 4, XBYTES)
    srd(e, 16, 6, 896)
    e(f"buffer_load_dwordx4 {vr(XR,4)}, v5, s[12:15], s35 offen")
    e(f"buffer_load_dwordx4 {vr(WR,4)}, v4, s[16:19], 0 offen")
    srd(e, 20, 8, XBYTES)
    e("s_cmp_eq_u32 s28, 7")
    e("s_cbranch_scc0 L_k2_gemm")
    e(f"v_mul_u32_u24 v6, {RS}, v1")
    e("v_mov_b32 v7, 0")
    e("v_cmp_gt_u32 vcc, 8, v1")
    e("s_and_saveexec_b64 s[38:39], vcc")
    e(f"ds_write_b32 v6, v7 offset:{YB}")
    e("s_mov_b64 exec, s[38:39]")
    e("s_branch L_k2_join")
    e("L_k2_gemm:")
    e("v_and_b32 v6, 7, v2")
    e("v_lshl_add_u32 v7, v6, 6, s33")
    e("v_cvt_f32_u32 v7, v7")
    e(f"v_mul_f32 v7, {fbits(1.0/2048)}, v7")
    e("v_lshlrev_b32 v8, 3, v3")
    e("v_cvt_f32_u32 v8, v8")
    e("v_mul_f32 v8, v8, v7")
    for j in range(8):
        e(f"v_cos_f32 v{A+j}, v8")
        e(f"v_sin_f32 v{A+8+j}, v8")
        if j < 7:
            e("v_add_f32 v8, v8, v7")
    e("v_cmp_gt_u32 s[40:41], 8, v2")
    e("s_mov_b32 s38, 0x80008000")
    e("v_mov_b32 v9, s38")
    for j in range(4):
        e(f"v_cvt_pk_bf16_f32 v{C+j}, v{A+2*j}, v{A+2*j+1}")
        e(f"v_cvt_pk_bf16_f32 v{S+j}, v{A+8+2*j}, v{A+8+2*j+1}")
    e("v_cndmask_b32 v10, v9, 0, s[40:41]")
    e("s_cmp_gt_u32 s32, 32")
    e("s_cselect_b32 s39, s38, 0")
    e("s_xor_b32 s42, s39, s38")
    e("v_xor_b32 v11, s42, v10")
    for j in range(4):
        e(f"v_xor_b32 v{F1+j}, s39, v{S+j}")
        e(f"v_xor_b32 v{F2+j}, v10, v{S+j}")
        e(f"v_xor_b32 v{F3+j}, v11, v{C+j}")
    e("s_cmp_lg_u32 s29, 0")
    e("s_cbranch_scc1 L_k2_nospecial")
    e("s_cmp_eq_u32 s32, 0")
    e("s_cbranch_scc1 L_k2_t0")
    for j in range(4):
        e(f"v_mov_b32 v{F1+j}, v{C+j}")
        e(f"v_mov_b32 v{F3+j}, v{F2+j}")
        e(f"v_mov_b32 v{C+j}, 0")
        e(f"v_mov_b32 v{F2+j}, 0")
    e("s_branch L_k2_nospecial")
    e("L_k2_t0:")
    for j in range(4):
        e(f"v_mov_b32 v{F1+j}, 0")
        e(f"v_mov_b32 v{F3+j}, 0")
    e("L_k2_nospecial:")
    e("v_lshrrev_b32 v12, 1, v3")
    e("v_lshlrev_b32 v12, 4, v12")
    e("v_and_b32 v13, 1, v3")
    e("v_lshl_add_u32 v12, v13, 2, v12")
    e("v_lshrrev_b32 v13, 2, v2")
    e("v_add_u32 v12, v12, v13")
    e("v_lshlrev_b32 v12, 5, v12")
    e("v_and_b32 v13, 3, v2")
    e("v_lshl_add_u32 v12, v13, 3, v12")
    e("v_add_u32 v12, s37, v12")
    e("s_lshl_b32 s42, s28, 7")
    e("v_lshl_add_u32 v13, v3, 4, s42")
    e("v_sub_u32 v14, 1792, v13")
    e("v_cndmask_b32 v13, v14, v13, s[40:41]")
    e(f"v_mul_u32_u24 v14, {RS}, v6")
    e(f"v_add3_u32 v{AD}, v13, v14, 0")
    e(f"v_add_u32 v{AD}, {YB}, v{AD}")
    e("v_cndmask_b32 v13, -4, 4, s[40:41]")
    for r in range(1, 4):
        e(f"v_add_u32 v{AD+r}, v{AD+r-1}, v13")
    e("v_lshlrev_b32 v13, 4, v13")
    for r in range(4):
        e(f"v_add_u32 v{AD+4+r}, v{AD+r}, v13")
    e("v_cmp_gt_u32 vcc, 8, v0")
    e(f"v_add_u32 v13, 896, v{AD}")
    e("s_nop 0")
    e(f"v_cndmask_b32 v{AD}, v{AD}, v13, vcc")
    stamp(e, 2)
    e("s_waitcnt vmcnt(2)")
    stamp(e, 3)
    for mm in range(2):
        for blk in range(4):
            for io in range(2):
                e(f"ds_read_b64_tr_b16 {vr(A+(mm*4+blk)*4+2*io,2)}, v12 offset:{blk*2048+mm*1024+io*256}")
    fr = {0: C, 1: F2, 2: F1, 3: F3}
    for mm in range(2):
        for blk in range(4):
            e(f"s_waitcnt lgkmcnt({14-2*(mm*4+blk)})")
            c = "0" if blk == 0 else vr(ACC+4*mm, 4)
            e(f"v_mfma_f32_16x16x32_bf16 {vr(ACC+4*mm,4)}, {vr(A+(mm*4+blk)*4,4)}, {vr(fr[blk],4)}, {c}")
    e("s_nop 3")
    for r in range(4):
        e(f"ds_write_b32 v{AD+r}, v{ACC+r}")
    for r in range(4):
        e(f"ds_write_b32 v{AD+4+r}, v{ACC+4+r}")
    e("L_k2_join:")
    Y = 64
    for j in range(8):
        e(f"v_mov_b32 v{Y+j}, 0")
    e(f"s_mul_i32 s38, s28, {RS}")
    e(f"s_add_u32 s38, s38, {YB}")
    e("v_lshl_add_u32 v6, v1, 5, s38")
    e("s_mov_b32 s43, 0xffff0000")
    e("s_mov_b32 s44, 0x3f803f80")
    e("s_sub_u32 s45, 0xfff, s34")
    e("v_mov_b32 v15, s45")
    e("v_mov_b32 v8, 0")
    e("v_mov_b32 v9, 0")
    e("v_mov_b32 v10, 0")
    e("s_waitcnt vmcnt(0)")
    for j in range(4):
        e(f"v_lshlrev_b32 v{16+2*j}, 16, v{XR+j}")
        e(f"v_and_b32 v{17+2*j}, s43, v{XR+j}")
    e("s_mov_b32 s40, -1")
    e("s_mov_b32 s41, 0x00ffffff")
    e("s_waitcnt lgkmcnt(0)")
    stamp(e, 4)
    e("s_barrier")
    stamp(e, 5)
    e("s_mov_b64 exec, s[40:41]")
    e(f"ds_read_b128 {vr(Y,4)}, v6")
    e(f"ds_read_b128 {vr(Y+4,4)}, v6 offset:16")
    e("s_mov_b64 exec, -1")
    e("s_waitcnt lgkmcnt(0)")
    for j in range(4):
        e(f"v_pk_add_f32 {vr(Y+2*j,2)}, {vr(Y+2*j,2)}, {vr(16+2*j,2)}")
    for j in range(4):
        e(f"v_cvt_pk_bf16_f32 v{24+j}, v{Y+2*j}, v{Y+2*j+1}")
    for j in range(4):
        e(f"v_dot2c_f32_bf16 v8, s44, v{24+j}")
        e(f"v_dot2c_f32_bf16 v9, v{24+j}, v{24+j}")
    for j in range(4):
        e(f"v_lshlrev_b32 v{Y+2*j}, 16, v{24+j}")
        e(f"v_and_b32 v{Y+2*j+1}, s43, v{24+j}")
    dpp_reduce(e, "v_add_f32", [8, 9])
    e("v_readlane_b32 s46, v8, 63")
    e("v_readlane_b32 s47, v9, 63")
    e(f"v_mov_b32 v11, {fbits(1.0/448)}")
    e("s_nop 0")
    e("v_mul_f32 v8, s46, v11")
    e("v_mul_f32 v9, s47, v11")
    e("v_fma_f32 v9, -v8, v8, v9")
    e("v_max_f32 v9, 0, v9")
    e("v_cvt_pk_bf16_f32 v8, v9, v8")
    e("v_lshlrev_b32 v9, 16, v8")
    e(f"v_add_f32 v9, {fbits(1e-5)}, v9")
    e("v_cvt_pk_bf16_f32 v9, v9, v9")
    e("v_and_b32 v9, s43, v9")
    e("v_sqrt_f32 v9, v9")
    e("v_and_b32 v8, s43, v8")
    e("v_cvt_pk_bf16_f32 v9, v9, v9")
    e("v_and_b32 v9, s43, v9")
    e("v_rcp_f32 v12, v9")
    e("v_mov_b32 v9, v8")
    e("v_mov_b32 v13, v12")
    for j in range(4):
        e(f"v_pk_add_f32 {vr(16+2*j,2)}, {vr(Y+2*j,2)}, v[8:9] neg_lo:[0,1] neg_hi:[0,1]")
    for j in range(4):
        e(f"v_pk_mul_f32 {vr(16+2*j,2)}, {vr(16+2*j,2)}, v[12:13]")
    for j in range(4):
        e(f"v_cvt_pk_bf16_f32 v{28+j}, v{16+2*j}, v{17+2*j}")
    for j in range(4):
        e(f"v_dot2c_f32_bf16 v10, v{28+j}, v{WR+j}")
    e(f"s_add_u32 s38, s35, {WS_HN}")
    e(f"buffer_store_dwordx4 v[28:31], v5, s[24:27], s38 offen")
    for j in range(4):
        e(f"v_lshlrev_b32 v{16+2*j}, 16, v{28+j}")
        e(f"v_and_b32 v{17+2*j}, s43, v{28+j}")
    steps = ["row_shr:1 row_mask:0xf", "row_shr:2 row_mask:0xf", "row_shr:4 row_mask:0xf", "row_shr:8 row_mask:0xf",
             "row_bcast:15 row_mask:0xa", "row_bcast:31 row_mask:0xc"]
    fill = [f"v_pk_add_f32 {vr(16+2*j,2)}, {vr(16+2*j,2)}, {vr(Y+2*j,2)}" for j in range(4)] + \
           [f"v_cvt_pk_bf16_f32 v{24+j}, v{16+2*j}, v{17+2*j}" for j in range(4)] + \
           ["buffer_store_dwordx4 v[24:27], v5, s[20:23], s35 offen", "s_nop 0", "s_nop 0", "s_nop 0"]
    for si, s in enumerate(steps):
        e(f"v_add_f32_dpp v10, v10, v10 {s} bank_mask:0xf")
        e(fill[2*si]); e(fill[2*si+1])
    e("v_cvt_pk_bf16_f32 v10, v10, v10")
    e("v_ashrrev_i32 v11, 31, v10")
    e("v_or_b32 v11, 0x80000000, v11")
    e("v_xor_b32 v10, v10, v11")
    e("v_and_or_b32 v10, v10, s43, v15")
    e("s_lshl_b32 s38, s34, 2")
    e(f"s_add_u32 s38, s38, {WS_KEY}")
    e("s_mov_b32 exec_lo, 0")
    e("s_mov_b32 exec_hi, 0x80000000")
    e("buffer_store_dword v10, off, s[24:27], s38")
    stamp(e, 6)
    if DIAG: e("s_waitcnt vmcnt(0)")
    stamp_flush(e, 1, 24, 7, 28)
    e("L_k2_end:")
    e("s_endpgm")
    return dict(name="fnet_k2_kernel", vgpr=96, accum=96, sgpr=56, grid=256, block=512, lds=57344+8*1808)


def k3(e):
    header(e, "fnet_k3_kernel")
    ACT, IDX, GB = 0, 1024, 2048
    DB = GB + 57344
    B, A, AD_, ACC = 64, 128, 184, 32
    K = 64
    e("s_cmp_ge_u32 s2, 56")
    e("s_cbranch_scc1 L_k3_end")
    stamp(e, 0)
    e("s_load_dwordx2 s[4:5], s[0:1], 96")
    e("s_load_dwordx4 s[8:11], s[0:1], 56")
    e("s_load_dwordx4 s[12:15], s[0:1], 72")
    e("v_lshrrev_b32 v1, 6, v0")
    e("v_and_b32 v2, 15, v0")
    e("v_readfirstlane_b32 s36, v1")
    e("v_bfe_u32 v3, v0, 4, 2")
    e("v_and_b32 v1, 63, v0")
    e("s_and_b32 s37, s2, 7")
    e("s_lshr_b32 s38, s2, 3")
    e("s_mul_i32 s39, s37, 7")
    e("s_add_u32 s39, s39, s38")
    e("v_lshlrev_b32 v4, 4, v1")
    e("s_cmp_eq_u32 s36, 0")
    e("s_cbranch_scc1 L_k3_top8")
    e("v_lshrrev_b32 v5, 2, v1")
    e("v_and_b32 v6, 3, v1")
    e("v_lshrrev_b32 v7, 4, v1")
    e("v_and_b32 v7, 2, v7")
    e("v_xor_b32 v6, v6, v7")
    e("s_cmp_eq_u32 s36, 2")
    e("s_cselect_b32 s40, 1, 0")
    e("v_xor_b32 v6, s40, v6")
    e("s_cmp_eq_u32 s36, 3")
    e("s_movk_i32 s41, 896")
    e("s_cselect_b32 s41, s41, 3584")
    e("s_cselect_b32 s42, 64, 114688")
    e("s_cselect_b32 s43, 28672, 64")
    e("v_mul_u32_u24 v5, s41, v5")
    e("v_lshl_add_u32 v5, v6, 4, v5")
    e("s_lshl_b32 s44, s41, 4")
    e("v_add_u32 v6, s44, v5")
    e("s_mul_i32 s43, s43, s39")
    e("s_sub_u32 s44, s36, 1")
    e("s_mul_i32 s44, s44, 28672")
    e(f"s_add_u32 s44, s44, {GB}")
    e("s_waitcnt lgkmcnt(0)")
    stamp(e, 1)
    stamp(e, 2)
    e("s_cmp_eq_u32 s36, 2")
    e("s_cselect_b32 s20, s10, s8")
    e("s_cselect_b32 s21, s11, s9")
    e("s_cmp_eq_u32 s36, 3")
    e("s_cselect_b32 s20, s12, s20")
    e("s_cselect_b32 s21, s13, s21")
    e(f"s_mov_b32 s22, {448*1792*2:#x}")
    e("s_mov_b32 s23, 0x20000")
    e("s_add_u32 s45, s44, 28672")
    e("L_k3_dma:")
    e("s_mov_b32 m0, s44")
    e("s_add_u32 s44, s44, 2048")
    e("buffer_load_dwordx4 v5, s[20:23], s43 offen lds")
    e("s_add_u32 m0, m0, 1024")
    e("s_nop 0")
    e("buffer_load_dwordx4 v6, s[20:23], s43 offen lds")
    e("s_add_u32 s43, s43, s42")
    e("s_cmp_lt_u32 s44, s45")
    e("s_cbranch_scc1 L_k3_dma")
    srd(e, 16, 4, WS_SIZE)
    e("s_branch L_k3_joinA")
    e("L_k3_top8:")
    e("s_setprio 3")
    e(f"s_mov_b32 s40, {WS_KEY:#x}")
    e(f"s_mov_b32 s41, {WS_KEY+4096:#x}")
    e("s_waitcnt lgkmcnt(0)")
    stamp(e, 1)
    srd(e, 16, 4, WS_SIZE)
    for i in range(8):
        e(f"buffer_load_dwordx4 {vr(K+4*i,4)}, v4, s[16:19], s{40+(i>>2)} offen offset:{(i&3)*1024}")
    e("s_mov_b32 m0, 0")
    e("s_waitcnt vmcnt(7)")
    e(f"v_max3_u32 v8, v{K}, v{K+1}, v{K+2}")
    e(f"v_med3_u32 v9, v{K}, v{K+1}, v{K+2}")
    e(f"v_min3_u32 v10, v{K}, v{K+1}, v{K+2}")
    for i in range(3, 32):
        if i % 4 == 0:
            e(f"s_waitcnt vmcnt({7 - i//4})")
        e(f"v_med3_u32 v10, v9, v10, v{K+i}")
        e(f"v_med3_u32 v9, v8, v9, v{K+i}")
        e(f"v_max_u32 v8, v8, v{K+i}")
    stamp(e, 2)
    e("s_nop 1")
    e("L_k3_round:")
    e("v_max_u32_dpp v11, v8, v8 row_shr:1 row_mask:0xf bank_mask:0xf bound_ctrl:0")
    for st in ["row_shr:2 row_mask:0xf", "row_shr:4 row_mask:0xf", "row_shr:8 row_mask:0xf", "row_bcast:15 row_mask:0xa", "row_bcast:31 row_mask:0xc"]:
        e("s_nop 1")
        e(f"v_max_u32_dpp v11, v11, v11 {st} bank_mask:0xf")
    e("s_nop 0")
    e("v_readlane_b32 s42, v11, 63")
    e("s_nop 1")
    e("v_cmp_eq_u32 vcc, s42, v8")
    e("v_writelane_b32 v12, s42, m0")
    e("s_add_u32 m0, m0, 1")
    e("v_cndmask_b32 v8, v8, v9, vcc")
    e("v_cndmask_b32 v9, v9, v10, vcc")
    e("v_cndmask_b32 v10, v10, 0, vcc")
    e("s_cmp_lt_u32 m0, 8")
    e("s_cbranch_scc1 L_k3_round")
    e("v_cmp_eq_u32 vcc, 0, v8")
    e("s_cbranch_vccz L_k3_topdone")
    e("s_mov_b32 m0, 0")
    e("s_mov_b32 s42, -1")
    e("L_k3_slow:")
    e(f"v_sub_u32 v8, s42, v{K}")
    e(f"v_sub_u32 v9, s42, v{K+1}")
    e("v_min_u32 v8, v8, v9")
    for i in range(2, 32, 2):
        e(f"v_sub_u32 v9, s42, v{K+i}")
        e(f"v_sub_u32 v10, s42, v{K+i+1}")
        e("v_min3_u32 v8, v8, v9, v10")
    for st in ["row_shr:1 row_mask:0xf", "row_shr:2 row_mask:0xf", "row_shr:4 row_mask:0xf", "row_shr:8 row_mask:0xf", "row_bcast:15 row_mask:0xa", "row_bcast:31 row_mask:0xc"]:
        e("s_nop 1")
        e(f"v_min_u32_dpp v8, v8, v8 {st} bank_mask:0xf")
    e("s_nop 0")
    e("v_readlane_b32 s43, v8, 63")
    e("s_nop 3")
    e("s_sub_u32 s42, s42, s43")
    e("v_writelane_b32 v12, s42, m0")
    e("s_sub_u32 s42, s42, 1")
    e("s_add_u32 m0, m0, 1")
    e("s_cmp_lt_u32 m0, 8")
    e("s_cbranch_scc1 L_k3_slow")
    e("L_k3_topdone:")
    e("v_lshlrev_b32 v5, 2, v1")
    e(f"ds_write_b32 v5, v12 offset:{IDX}")
    e("s_waitcnt lgkmcnt(0)")
    e("L_k3_joinA:")
    e("v_and_b32 v5, 7, v1")
    e("v_lshlrev_b32 v5, 2, v5")
    e("s_movk_i32 s40, 896")
    e(f"s_mov_b32 s41, {WS_HN:#x}")
    e("v_lshlrev_b32 v7, 4, v3")
    stamp(e, 3)
    e("s_barrier")
    stamp(e, 4)
    e(f"ds_read_b32 v12, v5 offset:{IDX}")
    e("v_lshrrev_b32 v8, 2, v2")
    e("v_lshl_add_u32 v8, v3, 3, v8")
    e("v_bfe_u32 v9, v2, 1, 1")
    e("v_and_b32 v10, 1, v3")
    e("v_lshl_add_u32 v11, v10, 1, v9")
    e("v_xor_b32 v11, s36, v11")
    e("v_and_b32 v13, 1, v2")
    e("v_lshlrev_b32 v13, 3, v13")
    e("s_waitcnt lgkmcnt(0)")
    e("v_not_b32 v6, v12")
    e("v_and_b32 v6, 0x7ff, v6")
    e("v_mad_u32_u24 v7, v6, s40, v7")
    for k in range(14):
        e(f"buffer_load_dwordx4 {vr(B+4*k,4)}, v7, s[16:19], s41 offen offset:{64*k}")
    e("v_lshl_add_u32 v14, v8, 6, v13")
    e("v_lshl_add_u32 v14, v11, 4, v14")
    e("v_mul_u32_u24 v11, 28672, v9")
    e(f"s_movk_i32 s42, {GB}")
    e("v_add3_u32 v14, v14, v11, s42")
    e("v_lshrrev_b32 v8, 2, v2")
    e("v_lshl_add_u32 v8, v10, 3, v8")
    e("v_lshl_add_u32 v15, v8, 6, v13")
    e("s_and_b32 s42, s36, 1")
    e("v_xor_b32 v10, s42, v10")
    e("v_lshl_add_u32 v10, v10, 1, v9")
    e("v_lshl_add_u32 v15, v10, 4, v15")
    e("v_lshrrev_b32 v10, 1, v3")
    e("v_lshl_add_u32 v15, v10, 10, v15")
    e("s_lshr_b32 s42, s36, 1")
    e("s_lshl_b32 s42, s42, 11")
    e(f"s_add_u32 s42, s42, {DB}")
    e("v_add_u32 v15, s42, v15")
    e("s_cmp_lg_u32 s36, 0")
    e("s_cbranch_scc1 L_k3_nometa")
    e("v_readlane_b32 s42, v6, s37")
    e("v_readlane_b32 s43, v12, s37")
    srd(e, 32, 14, XBYTES)
    e("s_mul_i32 s42, s42, 896")
    e("s_lshl_b32 s44, s38, 7")
    e("s_add_u32 s42, s42, s44")
    e("v_lshlrev_b32 v16, 1, v1")
    e("buffer_load_ushort v17, v16, s[32:35], s42 offen")
    e("s_lshr_b32 s44, s43, 31")
    e("s_sub_u32 s44, s44, 1")
    e("s_or_b32 s44, s44, 0x80000000")
    e("s_xor_b32 s43, s43, s44")
    e("s_and_b32 s43, s43, 0xffff0000")
    e(f"v_mov_b32 v18, {fbits(-1.4426950408889634)}")
    e("v_mul_f32 v18, s43, v18")
    e("v_exp_f32 v18, v18")
    e("v_mov_b32 v19, s42")
    e("v_add_f32 v18, 1.0, v18")
    e("v_rcp_f32 v18, v18")
    e("s_lshl_b32 s44, s39, 9")
    e("v_cvt_pk_bf16_f32 v18, v18, v18")
    e("v_and_b32 v18, 0xffff0000, v18")
    e(f"s_add_u32 s44, s44, {WS_META}")
    e("buffer_store_dwordx2 v[18:19], off, s[16:19], s44 offset:256")
    e("s_branch L_k3_joinB")
    e("L_k3_nometa:")
    e("s_waitcnt vmcnt(14)")
    e("L_k3_joinB:")
    stamp(e, 5)
    e("s_barrier")
    stamp(e, 6)
    for k in range(14):
        for io in range(2):
            e(f"ds_read_b64_tr_b16 {vr(A+4*k+2*io,2)}, v14 offset:{k*2048+io*256}")
    for i in range(7):
        for io in range(2):
            e(f"ds_read_b64_tr_b16 {vr(AD_+4*i+2*io,2)}, v15 offset:{i*4096+io*256}")
    e("s_lshl_b32 s42, s36, 8")
    e(f"s_add_u32 s42, s42, {ACT}")
    e("v_lshl_add_u32 v5, v2, 4, s42")
    e("v_lshl_add_u32 v5, v3, 3, v5")
    e("v_mul_u32_u24 v6, 1792, v2")
    e("v_lshl_add_u32 v6, v3, 4, v6")
    e("v_cmp_gt_u32 vcc, 8, v2")
    e("v_mov_b32 v7, 0x7ff00000")
    e("s_mul_i32 s43, s39, 14336")
    e("s_lshl_b32 s42, s36, 6")
    e("v_cndmask_b32 v6, v7, v6, vcc")
    e("s_add_u32 s43, s43, s42")
    e(f"s_add_u32 s43, s43, {WS_PART}")
    e(f"s_mov_b32 s42, {fbits(-1.4426950408889634)}")
    e("s_waitcnt vmcnt(0) lgkmcnt(0)")
    stamp(e, 7)
    for k in range(14):
        c = "0" if k == 0 else vr(ACC, 4)
        e(f"v_mfma_f32_16x16x32_bf16 {vr(ACC,4)}, {vr(A+4*k,4)}, {vr(B+4*k,4)}, {c}")
    e("s_cmp_lg_u32 s36, 0")
    e("s_cbranch_scc1 L_k3_nometa2")
    e("v_lshlrev_b32 v20, 2, v1")
    e("v_lshlrev_b32 v21, 16, v17")
    e("buffer_store_dword v21, v20, s[16:19], s44 offen")
    e("L_k3_nometa2:")
    e("s_nop 5")
    for r in range(4):
        e(f"v_permlane32_swap_b32 v{ACC+r}, v{ACC+4+r}")
    for r in range(4):
        e(f"v_mul_f32 v{16+r}, s42, v{ACC+r}")
    for r in range(4):
        e(f"v_exp_f32 v{16+r}, v{16+r}")
    for r in range(4):
        e(f"v_mul_f32 v{ACC+r}, v{ACC+r}, v{ACC+4+r}")
    for r in range(4):
        e(f"v_add_f32 v{16+r}, 1.0, v{16+r}")
    for r in range(4):
        e(f"v_rcp_f32 v{16+r}, v{16+r}")
    e("s_mov_b32 exec_hi, 0")
    for r in range(4):
        e(f"v_mul_f32 v{ACC+r}, v{ACC+r}, v{16+r}")
    e(f"v_cvt_pk_bf16_f32 v16, v{ACC}, v{ACC+1}")
    e(f"v_cvt_pk_bf16_f32 v17, v{ACC+2}, v{ACC+3}")
    e("ds_write_b64 v5, v[16:17]")
    e("s_mov_b32 exec_hi, -1")
    e("s_waitcnt lgkmcnt(0)")
    e("s_barrier")
    e(f"ds_read_b128 v[16:19], v4 offset:{ACT}")
    e("s_waitcnt lgkmcnt(0)")
    for i in range(7):
        e(f"v_mfma_f32_16x16x32_bf16 {vr(B+4*i,4)}, {vr(AD_+4*i,4)}, v[16:19], 0")
    e("s_nop 1")
    for i in range(7):
        e(f"buffer_store_dwordx4 {vr(B+4*i,4)}, v6, s[16:19], s43 offen offset:{256*i}")
    stamp(e, 8)
    if DIAG: e("s_waitcnt vmcnt(0)")
    stamp_flush(e, 2, 16, 9, 36)
    e("L_k3_end:")
    e("s_endpgm")
    return dict(name="fnet_k3_kernel", vgpr=216, accum=216, sgpr=56, grid=56, block=256, lds=2048+86016)

def k4(e):
    header(e, "fnet_k4_kernel")
    P = 16
    e("s_cmp_ge_u32 s2, 56")
    e("s_cbranch_scc1 L_k4_end")
    stamp(e, 0)
    e("s_load_dwordx2 s[4:5], s[0:1], 96")
    e("s_load_dwordx2 s[6:7], s[0:1], 80")
    e("v_and_b32 v1, 15, v0")
    e("v_lshrrev_b32 v2, 4, v0")
    e("v_mul_u32_u24 v2, 14336, v2")
    e("v_lshlrev_b32 v3, 4, v1")
    e("v_add_u32 v2, v2, v3")
    e("s_lshl_b32 s16, s2, 8")
    e(f"s_add_u32 s16, s16, {WS_PART}")
    e("s_lshl_b32 s17, s2, 9")
    e(f"s_add_u32 s17, s17, {WS_META}")
    e("v_mov_b32 v10, 1.0")
    e("s_waitcnt lgkmcnt(0)")
    stamp(e, 1)
    srd(e, 8, 4, WS_SIZE)
    for i in range(14):
        e(f"buffer_load_dwordx4 {vr(P+4*i,4)}, v2, s[8:11], s16 offen")
        if i < 13:
            e("s_add_u32 s16, s16, 57344")
    e("buffer_load_dwordx4 v[4:7], v3, s[8:11], s17 offen")
    e("buffer_load_dwordx2 v[8:9], off, s[8:11], s17 offset:256")
    srd(e, 12, 6, XBYTES)
    e("s_mov_b32 s18, 0xffff0000")
    for i in range(1, 14):
        e(f"s_waitcnt vmcnt({15-i})")
        e(f"v_pk_add_f32 {vr(P,2)}, {vr(P,2)}, {vr(P+4*i,2)}")
        e(f"v_pk_add_f32 {vr(P+2,2)}, {vr(P+2,2)}, {vr(P+4*i+2,2)}")
    e("s_nop 1")
    for r in range(4):
        e(f"v_mfma_f32_16x16x4_f32 {vr(32+4*r,4)}, v10, v{P+r}, 0")
    e("s_waitcnt vmcnt(0)")
    stamp(e, 2)
    e("v_lshl_add_u32 v9, v1, 3, v9")
    e("v_cmp_gt_u32 vcc, 16, v0")
    e("s_nop 7")
    e("v_cvt_pk_bf16_f32 v16, v32, v36")
    e("v_cvt_pk_bf16_f32 v17, v40, v44")
    e("v_lshlrev_b32 v20, 16, v16")
    e("v_and_b32 v21, s18, v16")
    e("v_lshlrev_b32 v22, 16, v17")
    e("v_and_b32 v23, s18, v17")
    for r in range(4):
        e(f"v_mul_f32 v{20+r}, v{20+r}, v8")
    e("v_cvt_pk_bf16_f32 v16, v20, v21")
    e("v_cvt_pk_bf16_f32 v17, v22, v23")
    e("v_lshlrev_b32 v20, 16, v16")
    e("v_and_b32 v21, s18, v16")
    e("v_lshlrev_b32 v22, 16, v17")
    e("v_and_b32 v23, s18, v17")
    for r in range(4):
        e(f"v_add_f32 v{20+r}, v{20+r}, v{4+r}")
    e("v_cvt_pk_bf16_f32 v16, v20, v21")
    e("v_cvt_pk_bf16_f32 v17, v22, v23")
    e("s_mov_b64 exec, vcc")
    e("buffer_store_dwordx2 v[16:17], v9, s[12:15], 0 offen")
    stamp(e, 3)
    if DIAG: e("s_waitcnt vmcnt(0)")
    stamp_flush(e, 3, 8, 4, 0)
    e("L_k4_end:")
    e("s_endpgm")
    return dict(name="fnet_k4_kernel", vgpr=72, accum=72, sgpr=24, grid=56, block=64, lds=0)

def build(kernels, path):
    e = E()
    infos = []
    body = E()
    for k in kernels:
        infos.append(k(body))
    hdr = open("cdna_kernels/%s.s.ref" % NAME).read().split("\n")
    top = [l for l in hdr if l.startswith(";") and "@launch" not in l and "Override launch" not in l and "grid=ceil" not in l][:15]
    out = "\n".join(top) + "\n"
    for i in infos:
        out += f"; @launch kernel={i['name']} grid=({i['grid']},1,1) block=({i['block']},1,1) lds={i['lds']}\n"
    out += '.amdgcn_target "amdgcn-amd-amdhsa--gfx950"\n.text\n'
    out += body.text()
    out += '.section .rodata,"a"\n'
    seen = set()
    for i in infos:
        if i['name'] in seen: continue
        seen.add(i['name'])
        out += f""".p2align 6
.amdhsa_kernel {i['name']}
  .amdhsa_next_free_vgpr {i['vgpr']}
  .amdhsa_next_free_sgpr {100 if DIAG else i['sgpr']}
  .amdhsa_accum_offset {i['accum']}
  .amdhsa_group_segment_fixed_size 0
  .amdhsa_kernarg_size 104
  .amdhsa_user_sgpr_count 2
  .amdhsa_user_sgpr_kernarg_segment_ptr 1
  .amdhsa_system_sgpr_workgroup_id_x 1
.end_amdhsa_kernel
"""
    open(path, "w").write(out)

if __name__ == "__main__":
    if len(sys.argv) > 2 and sys.argv[2] == "diag":
        DIAG = True
    if len(sys.argv) > 3:
        DBGSEL = {0: [0, 1, 5, 9], 1: [0, 1, 3, 7], 2: [0, 2, 7, 9], 3: [0, 1, 2, 4]}
    build([k1, k2, k3, k4], sys.argv[1] if len(sys.argv) > 1 else "k.s")

def kempty(grid=1, block=64):
    def f(e):
        if not getattr(e, "_empty_done", False):
            header(e, "fnet_e_kernel")
            e("s_endpgm")
            e._empty_done = True
        return dict(name="fnet_e_kernel", vgpr=8, accum=8, sgpr=8, grid=grid, block=block, lds=0)
    return f
```

```python
import sys; sys.path.insert(0, "work")
import gen
from gen import *
def tail(e, name):
    e("s_memtime s[20:21]")
    e("s_memrealtime s[22:23]")
    e("s_load_dwordx2 s[8:9], s[0:1], 88")
    e("s_waitcnt lgkmcnt(0)")
    e("s_sub_u32 s20, s20, s16")
    e("s_sub_u32 s22, s22, s18")
    e("s_mov_b32 s10, 256")
    e("s_mov_b32 s11, 0x20000")
    e("v_mov_b32 v2, s20")
    e("v_mov_b32 v3, s22")
    e("buffer_store_dwordx2 v[2:3], off, s[8:11], 0")
    e(f"L_{name}_end:")
    e("s_endpgm")
def head(e, name, n=1):
    header(e, name)
    e(f"s_cmp_ge_u32 s2, {n}")
    e(f"s_cbranch_scc1 L_{name}_end")
    e("s_memtime s[16:17]")
    e("s_memrealtime s[18:19]")
    e("s_waitcnt lgkmcnt(0)")
def e1(e):
    head(e, "fnet_x1_kernel")
    e("s_mov_b32 s4, 0")
    e("L_x1_loop:")
    for i in range(16): e("v_add_f32 v1, v1, v1")
    e("s_add_u32 s4, s4, 1")
    e("s_cmp_lt_u32 s4, 300")
    e("s_cbranch_scc1 L_x1_loop")
    tail(e, "fnet_x1_kernel")
    return dict(name="fnet_x1_kernel", vgpr=8, accum=8, sgpr=32, grid=1, block=64, lds=0)
def e2(nwg):
    def f(e):
        head(e, "fnet_x2_kernel", nwg)
        for i in range(4096): e("v_add_f32 v1, v1, v1")
        tail(e, "fnet_x2_kernel")
        return dict(name="fnet_x2_kernel", vgpr=8, accum=8, sgpr=32, grid=nwg, block=64, lds=0)
    return f
def e2loop(e):
    head(e, "fnet_x2_kernel", 1)
    e("s_mov_b32 s4, 0")
    e("L_x1_loop:")
    for i in range(64): e("v_add_f32 v1, v1, v1")
    e("s_add_u32 s4, s4, 1")
    e("s_cmp_lt_u32 s4, 64")
    e("s_cbranch_scc1 L_x1_loop")
    tail(e, "fnet_x2_kernel")
    return dict(name="fnet_x2_kernel", vgpr=8, accum=8, sgpr=32, grid=1, block=64, lds=0)
def e3(stride):
    def f(e):
        head(e, "fnet_x3_kernel")
        e("s_load_dwordx2 s[4:5], s[0:1], 8")
        e("s_waitcnt lgkmcnt(0)")
        srd(e, 12, 4, 2048*4096)
        e("v_mov_b32 v1, 0")
        for i in range(8):
            e(f"buffer_load_dword v2, v1, s[12:15], 0 offen")
            e("s_waitcnt vmcnt(0)")
            e("v_and_b32 v2, 0, v2")
            e(f"v_add_u32 v1, {stride}, v1")
            e("v_add_u32 v1, v1, v2")
        tail(e, "fnet_x3_kernel")
        return dict(name="fnet_x3_kernel", vgpr=8, accum=8, sgpr=32, grid=1, block=64, lds=0)
    return f
base = [k1, k2, k3, k4]
build(base + [e1], "x1.s")
build(base + [e2(1)], "x2.s")
build(base + [e2loop], "x2l.s")
build(base + [e2(256)], "x2b.s")
build(base + [e3(4096)], "x3a.s")
build(base + [e3(1<<20)], "x3b.s")
```

```python
import struct, sys
from gen import E, fbits, vr, ar, srd, header, build, NAME
import gen

WS_V    = 0x000000
WS_STAT = 0x200000
WS_KEY  = 0x300000
WS_PART = 0x302000
CLR_BYTES = 8192 + 56*14336
WS_SIZE = 0x10000000
XBYTES  = 2048*896
WS_DIAG = 0x800000
DIAG = False
OPT = {}

def stamp(e, i):
    if DIAG:
        e(f"s_memrealtime s[{64+2*i}:{65+2*i}]")
        e("s_waitcnt lgkmcnt(0)")
def stamp_flush(e, kid, srdreg, nst, wavereg):
    if DIAG:
        e("s_mov_b64 exec, -1")
        e(f"s_memrealtime s[{64+2*nst}:{65+2*nst}]")
        e("s_waitcnt lgkmcnt(0)")
        for i in range(nst+1):
            e(f"v_writelane_b32 v0, s{64+2*i}, {i}")
        e(f"s_lshl_b32 s60, s2, 3")
        e(f"s_add_u32 s60, s60, s{wavereg}")
        e(f"s_lshl_b32 s60, s60, 6")
        e(f"s_add_u32 s60, s60, {WS_DIAG + kid*0x40000}")
        e("v_mbcnt_lo_u32_b32 v1, -1, 0")
        e("v_lshlrev_b32 v1, 2, v1")
        e("s_mov_b32 exec_lo, 0xffff")
        e("s_mov_b32 exec_hi, 0")
        e(f"buffer_store_dword v0, v1, s[{srdreg}:{srdreg+3}], s60 offen")

def ka(e):
    header(e, "fnet_ka_kernel")
    X, ACC, CUR, PRV, PK, RF, BB = 64, 32, 16, 24, 48, 56, 120
    SUM, GRM = 168, 172
    LDS_Z, LDS_CS = 57344, 57344 + 8192
    e("s_cmp_ge_u32 s2, 256")
    e("s_cbranch_scc1 L_ka_end")
    stamp(e, 0)
    e("s_load_dwordx2 s[4:5], s[0:1], 0")
    e("s_load_dwordx2 s[6:7], s[0:1], 96")
    e("v_lshrrev_b32 v1, 6, v0")
    e("v_and_b32 v2, 15, v0")
    e("v_readfirstlane_b32 s16, v1")
    e("v_bfe_u32 v3, v0, 4, 2")
    e("v_and_b32 v1, 63, v0")
    e("s_cmp_ge_u32 s2, 224")
    e("s_cbranch_scc1 L_ka_clear")
    e("s_and_b32 s17, s2, 7")
    e("s_bfe_u32 s18, s2, 0x20003")
    e("s_lshr_b32 s19, s2, 5")
    e("s_lshl_b32 s20, s17, 2")
    e("s_add_u32 s20, s20, s18")
    e("v_lshrrev_b32 v4, 2, v2")
    e("v_and_b32 v5, 3, v2")
    e("v_lshl_add_u32 v6, v4, 3, v5")
    e("v_mul_u32_u24 v6, 28672, v6")
    e("v_lshl_add_u32 v6, v3, 4, v6")
    e("s_lshr_b32 s21, s16, 1")
    e("s_and_b32 s22, s16, 1")
    e("s_lshl_b32 s23, s21, 10")
    e("s_lshl_b32 s24, s22, 7")
    e("s_add_u32 s23, s23, s24")
    e("s_add_u32 s23, s23, s20")
    e("s_mul_i32 s23, s23, 896")
    e("s_lshl_b32 s24, s19, 6")
    e("s_lshl_b32 s25, s16, 2")
    e("s_add_u32 s24, s24, s25")
    e("v_lshl_add_u32 v7, v4, 4, v5")
    e("v_add_u32 v7, s24, v7")
    e("v_mov_b32 v9, 224")
    e("v_cmp_eq_u32 vcc, 0, v7")
    e("v_subrev_u32 v8, 224, v7")
    e("v_cmp_le_u32 s[26:27], v9, v7")
    e("v_cndmask_b32 v7, v7, v9, vcc")
    e("v_mov_b32 v10, 0x3e800000")
    e("v_cndmask_b32 v7, v7, v8, s[26:27]")
    e("v_cndmask_b32 v10, 0, v10, s[26:27]")
    e("v_cvt_f32_u32 v7, v7")
    e(f"v_mul_f32 v7, {fbits(1.0/448)}, v7")
    e("v_lshlrev_b32 v8, 3, v3")
    e("v_cvt_f32_u32 v8, v8")
    e("v_fma_f32 v8, v8, v7, v10")
    e("v_mul_f32 v9, 0x42000000, v7")
    e("v_cos_f32 v52, v9")
    for j in range(8):
        e(f"v_cos_f32 v{CUR+j}, v8")
        e(f"v_sub_f32 v11, v8, v9")
        if j < 7:
            e(f"v_add_f32 v8, v8, v7")
        e(f"v_cos_f32 v{PRV+j}, v11")
    e("v_add_f32 v52, v52, v52")
    e("s_mov_b32 s28, 0x3f803f80")
    e("v_mov_b32 v54, 0")
    e("s_mul_i32 s24, s16, 14336")
    e("v_lshl_add_u32 v55, v1, 4, s24")
    e("v_mov_b32 v53, v52")
    e("s_waitcnt lgkmcnt(0)")
    stamp(e, 1)
    srd(e, 8, 4, XBYTES)
    LPS = OPT.get("lps", 2)
    nl = 0
    for st in range(14):
        A, B = (CUR, PRV) if st % 2 == 0 else (PRV, CUR)
        P = PK if st % 2 == 0 else PK + 132
        for _ in range(LPS):
            if nl < 14:
                e(f"buffer_load_dwordx4 {vr(X+4*nl,4)}, v6, s[8:11], s23 offen offset:{64*nl}")
                nl += 1
        for j in range(4):
            e(f"v_cvt_pk_bf16_f32 v{P+j}, v{A+2*j}, v{A+2*j+1}")
        e(f"ds_write_b128 v55, {vr(P,4)} offset:{st*1024}")
        if st < 13:
            for j in range(4):
                e(f"v_pk_fma_f32 {vr(B+2*j,2)}, v[52:53], {vr(A+2*j,2)}, {vr(B+2*j,2)} neg_lo:[0,0,1] neg_hi:[0,0,1]")
        for j in range(4):
            e(f"v_dot2c_f32_bf16 v54, s28, v{P+j}")
    stamp(e, 2)
    e("v_mov_b32 v9, 1.0")
    srd(e, 12, 6, WS_SIZE)
    e("v_mfma_f32_16x16x4_f32 v[12:15], v9, v54, 0")
    e("s_lshl_b32 s24, s22, 4")
    e("v_add_u32 v7, s24, v2")
    e("s_mul_i32 s25, s21, 0x3e800000")
    e("v_mov_b32 v10, s25")
    e("s_cmp_eq_u32 s16, 2")
    e("s_cselect_b32 s24, 0, -1")
    e("v_cmp_eq_u32 vcc, s24, v7")
    e("v_mov_b32 v11, 32")
    e("v_lshlrev_b32 v8, 3, v3")
    e("v_cndmask_b32 v7, v7, v11, vcc")
    e("v_cndmask_b32 v10, v10, 0, vcc")
    e("s_lshl_b32 s24, s16, 6")
    e(f"s_add_u32 s24, s24, {LDS_CS}")
    e("v_lshl_add_u32 v11, v2, 2, s24")
    e("ds_write_b32 v11, v12")
    e("v_lshlrev_b32 v11, 4, v1")
    e("s_waitcnt lgkmcnt(0)")
    e("s_barrier")
    def rdB(k):
        for n in range(4):
            e(f"ds_read_b128 {vr(BB+(k%3)*16+4*n,4)}, v11 offset:{(n*14+k)*1024}")
    rdB(0); rdB(1)
    e(f"v_lshlrev_b32 v12, 2, v2")
    e(f"v_add_u32 v12, {LDS_CS}, v12")
    for n in range(4):
        e(f"ds_read_b32 v{48+n}, v12 offset:{64*n}")
    e("v_cvt_f32_u32 v7, v7")
    e("v_cvt_f32_u32 v8, v8")
    e(f"v_mul_f32 v7, {fbits(1.0/64)}, v7")
    e("v_fma_f32 v8, v8, v7, v10")
    e("v_mul_f32 v10, 0x42000000, v7")
    for j in range(8):
        e(f"v_cos_f32 v{CUR+j}, v8")
        e(f"v_add_f32 v12, v8, v10")
        if j < 7:
            e(f"v_add_f32 v8, v8, v7")
        e(f"v_cos_f32 v{PRV+j}, v12")
    e("s_lshl_b32 s24, s21, 10")
    e("s_lshl_b32 s25, s22, 3")
    e("s_add_u32 s24, s24, s25")
    e(f"s_add_u32 s24, s24, {LDS_Z}")
    e("v_add_u32 v55, s24, v11")
    e(f"v_add_u32 v54, {LDS_Z}, v11")
    for j in range(4):
        e(f"v_cvt_pk_bf16_f32 v{RF+j}, v{CUR+2*j}, v{CUR+2*j+1}")
        e(f"v_cvt_pk_bf16_f32 v{RF+4+j}, v{PRV+2*j}, v{PRV+2*j+1}")
    e("v_mul_u32_u24 v53, 57344, v2")
    e("v_lshl_add_u32 v53, v3, 10, v53")
    e("s_mul_i32 s24, s22, 917504")
    e("s_mul_i32 s25, s21, 28672")
    e("s_add_u32 s24, s24, s25")
    e("s_lshl_b32 s25, s19, 12")
    e("s_add_u32 s24, s24, s25")
    e("s_lshr_b32 s25, s17, 2")
    e("s_lshl_b32 s25, s25, 4")
    e("s_and_b32 s26, s17, 1")
    e("s_lshl_b32 s26, s26, 3")
    e("s_add_u32 s25, s25, s26")
    e("s_and_b32 s26, s17, 2")
    e("s_lshl_b32 s26, s26, 1")
    e("s_add_u32 s25, s25, s26")
    e("s_add_u32 s25, s25, s18")
    e("s_lshl_b32 s25, s25, 5")
    e("s_add_u32 s30, s24, s25")
    for j in range(4):
        e(f"v_mov_b32 v{4+j}, s28")
    e(f"s_mov_b32 s24, {fbits(1.0/448)}")
    e(f"s_mov_b32 s26, {fbits(1e-5)}")
    e(f"s_mov_b32 s27, 0xffff0000")
    stamp(e, 3)
    if DIAG:
        e("s_waitcnt vmcnt(13)")
        stamp(e, 4)
    def mf(k, n):
        c = "0" if k == 0 else vr(ACC+4*n, 4)
        e(f"v_mfma_f32_16x16x32_bf16 {vr(ACC+4*n,4)}, {vr(X+4*k,4)}, {vr(BB+(k%3)*16+4*n,4)}, {c}")
    def mstat(k):
        c = "0" if k == 0 else vr(GRM, 4)
        e(f"v_mfma_f32_16x16x32_bf16 {vr(GRM,4)}, {vr(X+4*k,4)}, {vr(X+4*k,4)}, {c}")
        c = "0" if k == 0 else vr(SUM, 4)
        e(f"v_mfma_f32_16x16x32_bf16 {vr(SUM,4)}, {vr(X+4*k,4)}, v[4:7], {c}")
    e("s_waitcnt vmcnt(13) lgkmcnt(0)")
    mstat(0)
    for k in range(1, 14):
        if k + 1 < 14:
            rdB(k + 1)
        e(f"s_waitcnt vmcnt({13-k})")
        mstat(k)
        if k >= 3:
            e(f"s_waitcnt lgkmcnt({8 if k + 1 < 14 else 4})")
        for n in range(4):
            mf(k - 1, n)
    stamp(e, 5)
    e("s_waitcnt lgkmcnt(0)")
    mf(13, 0); mf(13, 1)
    e("s_nop 1")
    for g in range(4):
        for r in range(4):
            e(f"v_mov_b32_dpp v{20+r}, v{GRM+r} row_newbcast:{4*g+r} row_mask:{1<<g:#x} bank_mask:0xf")
        if g < 2:
            mf(13, 2 + g)
    for r in range(4):
        e(f"v_mul_f32 v{16+r}, s24, v{SUM+r}")
    for r in range(4):
        e(f"v_mul_f32 v{20+r}, s24, v{20+r}")
    for r in range(4):
        e(f"v_fma_f32 v{20+r}, -v{16+r}, v{16+r}, v{20+r}")
    def round4():
        e("v_cvt_pk_bf16_f32 v24, v20, v21")
        e("v_cvt_pk_bf16_f32 v25, v22, v23")
        e("v_lshlrev_b32 v20, 16, v24")
        e("v_and_b32 v21, s27, v24")
        e("v_lshlrev_b32 v22, 16, v25")
        e("v_and_b32 v23, s27, v25")
    for r in range(4):
        e(f"v_max_f32 v{20+r}, 0, v{20+r}")
    round4()
    for r in range(4):
        e(f"v_add_f32 v{20+r}, s26, v{20+r}")
    round4()
    for r in range(4):
        e(f"v_sqrt_f32 v{20+r}, v{20+r}")
    for n in range(4):
        for r in range(4):
            e(f"v_fma_f32 v{ACC+4*n+r}, -v{16+r}, v{48+n}, v{ACC+4*n+r}")
        if n == 0:
            round4()
        if n == 1:
            for r in range(4):
                e(f"v_rcp_f32 v{20+r}, v{20+r}")
    for n in range(4):
        a = ACC + 4*n
        e(f"v_pk_mul_f32 {vr(a,2)}, {vr(a,2)}, v[20:21]")
        e(f"v_pk_mul_f32 {vr(a+2,2)}, {vr(a+2,2)}, v[22:23]")
        e(f"v_cvt_pk_bf16_f32 v{24+2*n}, v{a}, v{a+1}")
        e(f"v_cvt_pk_bf16_f32 v{25+2*n}, v{a+2}, v{a+3}")
        e(f"ds_write_b64 v55, {vr(24+2*n,2)} offset:{n*2048}")
    e("s_waitcnt lgkmcnt(0)")
    stamp(e, 6)
    e("s_barrier")
    for n in range(4):
        for k2 in range(2):
            e(f"ds_read_b128 {vr(X+(n*2+k2)*4,4)}, v54 offset:{(n*2+k2)*1024}")
    for n in range(4):
        e(f"s_waitcnt lgkmcnt({6-2*n})")
        e(f"v_mfma_f32_16x16x32_bf16 {vr(ACC+4*n,4)}, {vr(X+(n*2)*4,4)}, {vr(RF,4)}, 0")
        e(f"v_mfma_f32_16x16x32_bf16 {vr(ACC+4*n,4)}, {vr(X+(n*2+1)*4,4)}, {vr(RF+4,4)}, {vr(ACC+4*n,4)}")
    e("s_nop 1")
    sc = " sc1" if OPT.get("vsc1") else ""
    for n in range(4):
        if n == 3:
            e("s_nop 0")
        e(f"v_cvt_pk_bf16_f32 v{16+2*n}, v{ACC+4*n}, v{ACC+4*n+1}")
        e(f"v_cvt_pk_bf16_f32 v{17+2*n}, v{ACC+4*n+2}, v{ACC+4*n+3}")
        if n == 1:
            e(f"buffer_store_dwordx4 v[16:19], v53, s[12:15], s30 offen{sc}")
    e(f"buffer_store_dwordx4 v[20:23], v53, s[12:15], s30 offen offset:16{sc}")
    stamp(e, 7)
    if DIAG: e("s_waitcnt vmcnt(0)")
    stamp_flush(e, 0, 12, 8, 16)
    e("s_endpgm")
    e("L_ka_clear:")
    e("s_sub_u32 s17, s2, 224")
    e("s_mul_i32 s17, s17, 25344")
    e(f"s_add_u32 s17, s17, {WS_KEY}")
    e("v_lshlrev_b32 v2, 4, v0")
    e("s_waitcnt lgkmcnt(0)")
    srd(e, 12, 6, WS_SIZE)
    e(f"s_mov_b32 s18, {WS_PART}")
    for i in range(7):
        e(f"v_add_u32 v3, s17, v2")
        e(f"v_cmp_le_u32 vcc, s18, v3")
        if i == 6:
            e("v_cmp_gt_u32 s[20:21], 48, v0")
        else:
            e("s_nop 0")
        e("s_nop 0")
        e("v_cndmask_b32 v4, 0, -1, vcc")
        e("v_mov_b32 v5, v4")
        e("v_mov_b32 v6, v4")
        e("v_mov_b32 v7, v4")
        if i == 6:
            e("s_and_saveexec_b64 s[22:23], s[20:21]")
            e("s_cbranch_execz L_ka_end")
        e("buffer_store_dwordx4 v[4:7], v3, s[12:15], 0 offen sc1")
        e("s_add_u32 s17, s17, 4096")
        e("s_nop 0")
    e("L_ka_end:")
    e("s_endpgm")
    return dict(name="fnet_ka_kernel", vgpr=184, accum=184, sgpr=40, grid=256, block=256, lds=57344+8192+256)

def kb(e):
    header(e, "fnet_kb_kernel")
    e("s_cmp_ge_u32 s2, 184")
    e("s_cbranch_scc1 L_kb_end")
    stamp(e, 0)
    e("s_load_dwordx2 s[20:21], s[0:1], 96")
    e("s_load_dwordx2 s[4:5], s[0:1], 0")
    e("s_load_dwordx8 s[8:15], s[0:1], 48")
    e("s_load_dwordx2 s[16:17], s[0:1], 80")
    e("v_lshrrev_b32 v1, 6, v0")
    e("v_and_b32 v2, 15, v0")
    e("v_readfirstlane_b32 s28, v1")
    e("v_bfe_u32 v3, v0, 4, 2")
    e("v_and_b32 v1, 63, v0")
    e("v_lshlrev_b32 v4, 4, v1")
    e("s_cmp_ge_u32 s2, 128")
    e("s_cbranch_scc1 L_kb_ffn")
    p2(e)
    e("L_kb_ffn:")
    ffn(e)
    e("L_kb_end:")
    e("s_endpgm")
    return dict(name="fnet_kb_kernel", vgpr=128, accum=128, sgpr=64, grid=184, block=512, lds=104448)

def p2(e):
    YB, RS, KBUF = 57344, 1808, 57344 + 16*1808
    C, S, F1, F3 = 16, 20, 24, 28
    A, ACC = 64, 32
    XR, WR = 48, 56
    e("s_and_b32 s29, s2, 31")
    e("s_bfe_u32 s30, s2, 0x10005")
    e("s_lshr_b32 s31, s2, 6")
    e("s_sub_u32 s32, 64, s29")
    e("s_cmp_eq_u32 s29, 0")
    e("s_cselect_b32 s32, 32, s32")
    e("s_cmp_eq_u32 s31, 0")
    e("s_cselect_b32 s32, s29, s32")
    e("s_lshl_b32 s33, s30, 10")
    e("s_add_u32 s33, s33, s32")
    e("s_mul_i32 s36, s29, 57344")
    e("s_lshl_b32 s37, s28, 11")
    e("s_add_u32 s36, s36, s37")
    e("s_lshl_b32 s37, s28, 13")
    e("v_lshl_add_u32 v7, v2, 6, s33")
    e("v_cvt_f32_u32 v7, v7")
    e(f"v_mul_f32 v7, {fbits(1.0/2048)}, v7")
    e("v_lshlrev_b32 v8, 3, v3")
    e("v_cvt_f32_u32 v8, v8")
    e("v_mul_f32 v8, v8, v7")
    for j in range(8):
        e(f"v_cos_f32 v{A+j}, v8")
        e(f"v_sin_f32 v{A+8+j}, v8")
        if j < 7:
            e("v_add_f32 v8, v8, v7")
    e("s_lshl_b32 s34, s28, 7")
    e("s_add_u32 s34, s34, s33")
    e("s_mul_i32 s35, s34, 896")
    e("v_and_b32 v5, 31, v1")
    e("v_lshrrev_b32 v6, 5, v1")
    e("v_cmp_gt_u32 s[40:41], 28, v5")
    e("v_lshlrev_b32 v9, 4, v5")
    e("v_mov_b32 v10, 0x7ff00000")
    e("v_mul_u32_u24 v11, 57344, v6")
    e("v_cndmask_b32 v9, v10, v9, s[40:41]")
    e("v_add_u32 v10, v9, v11")
    e("s_waitcnt lgkmcnt(0)")
    stamp(e, 1)
    srd(e, 24, 20, WS_SIZE)
    e("s_cmp_eq_u32 s28, 7")
    e("s_cbranch_scc1 L_p2_w7")
    for blk in range(4):
        half, kind = blk >> 1, blk & 1
        e(f"s_add_u32 m0, s37, {blk*2048}")
        e(f"s_add_u32 s38, s36, {half*28672 + kind*14336}")
        e(f"buffer_load_dwordx4 v4, s[24:27], s38 offen lds")
        e(f"buffer_load_dwordx4 v4, s[24:27], s38 offen offset:1024 lds")
    e("L_p2_w7:")
    srd(e, 44, 4, XBYTES)
    srd(e, 48, 8, 896)
    e(f"buffer_load_dwordx4 {vr(XR,4)}, v10, s[44:47], s35 offen")
    e(f"buffer_load_dwordx4 {vr(XR+4,4)}, v10, s[44:47], s35 offen offset:448")
    e(f"buffer_load_dwordx4 {vr(WR,4)}, v9, s[48:51], 0 offen")
    e(f"buffer_load_dwordx4 {vr(WR+4,4)}, v9, s[48:51], 0 offen offset:448")
    srd(e, 44, 16, XBYTES)
    e("s_cmp_eq_u32 s28, 7")
    e("s_cbranch_scc1 L_p2_join")
    for j in range(4):
        e(f"v_cvt_pk_bf16_f32 v{C+j}, v{A+2*j}, v{A+2*j+1}")
        e(f"v_cvt_pk_bf16_f32 v{S+j}, v{A+8+2*j}, v{A+8+2*j+1}")
    e("s_cmp_gt_u32 s32, 32")
    e("s_cselect_b32 s39, 0x80008000, 0")
    e("s_xor_b32 s42, s39, 0x80008000")
    for j in range(4):
        e(f"v_xor_b32 v{F1+j}, s39, v{S+j}")
        e(f"v_xor_b32 v{F3+j}, s42, v{C+j}")
    e("s_cmp_lg_u32 s29, 0")
    e("s_cbranch_scc1 L_p2_nospecial")
    e("s_cmp_eq_u32 s32, 0")
    e("s_cbranch_scc1 L_p2_t0")
    for j in range(4):
        e(f"v_mov_b32 v{F1+j}, v{C+j}")
        e(f"v_mov_b32 v{F3+j}, v{S+j}")
        e(f"v_mov_b32 v{C+j}, 0")
        e(f"v_mov_b32 v{S+j}, 0")
    e("s_branch L_p2_nospecial")
    e("L_p2_t0:")
    for j in range(4):
        e(f"v_mov_b32 v{F1+j}, 0")
        e(f"v_mov_b32 v{F3+j}, 0")
    e("L_p2_nospecial:")
    e("v_lshrrev_b32 v12, 1, v3")
    e("v_lshlrev_b32 v12, 4, v12")
    e("v_and_b32 v13, 1, v3")
    e("v_lshl_add_u32 v12, v13, 2, v12")
    e("v_lshrrev_b32 v13, 2, v2")
    e("v_add_u32 v12, v12, v13")
    e("v_lshlrev_b32 v12, 5, v12")
    e("v_and_b32 v13, 3, v2")
    e("v_lshl_add_u32 v12, v13, 3, v12")
    e("v_add_u32 v12, s37, v12")
    e("s_lshl_b32 s42, s28, 7")
    e("v_lshl_add_u32 v13, v3, 4, s42")
    e(f"v_mul_u32_u24 v14, {RS}, v2")
    e(f"v_add_u32 v14, {YB}, v14")
    e("v_sub_u32 v15, v14, v13")
    e(f"v_add_u32 v15, {(448-19)*4}, v15")
    e("v_add_u32 v13, v13, v14")
    e("v_cmp_gt_u32 vcc, 16, v0")
    e(f"v_add_u32 v7, {19*4}, v15")
    e(f"v_add_u32 v8, {224*4}, v14")
    e("v_cndmask_b32 v14, v7, v8, vcc")
    stamp(e, 2)
    e("s_waitcnt vmcnt(4)")
    stamp(e, 3)
    for mm in range(2):
        for blk in (0, 2, 1, 3):
            for io in range(2):
                e(f"ds_read_b64_tr_b16 {vr(A+(mm*4+blk)*4+2*io,2)}, v12 offset:{blk*2048+mm*1024+io*256}")
    fr = {0: C, 1: S, 2: F1, 3: F3}
    cnt = 0
    for mm in range(2):
        for blk in (0, 2, 1, 3):
            e(f"s_waitcnt lgkmcnt({14-2*cnt})")
            cnt += 1
            acc = ACC + 8*mm + 4*(blk & 1)
            c = "0" if blk < 2 else vr(acc, 4)
            e(f"v_mfma_f32_16x16x32_bf16 {vr(acc,4)}, {vr(A+(mm*4+blk)*4,4)}, {vr(fr[blk],4)}, {c}")
    for mm in range(2):
        E_, O_ = ACC + 8*mm, ACC + 8*mm + 4
        if mm == 1:
            e("s_nop 0")
        for r in range(4):
            e(f"v_add_f32 v{A+8*mm+r}, v{E_+r}, v{O_+r}")
        for r in range(4):
            e(f"v_sub_f32 v{A+8*mm+4+r}, v{E_+r}, v{O_+r}")
        if mm == 0:
            e(f"v_cndmask_b32 v{A}, v{A}, 0, vcc")
        e(f"ds_write_b128 v13, {vr(A+8*mm,4)} offset:{64*mm}")
        o = 16*(1-mm)
        if mm == 0:
            e(f"ds_write_b32 v14, v{A+4}")
            e(f"ds_write_b32 v15, v{A+5} offset:{(o+2)*4}")
        else:
            e(f"ds_write2_b32 v15, v{A+8+4}, v{A+8+5} offset0:{o+3} offset1:{o+2}")
        e(f"ds_write2_b32 v15, v{A+8*mm+6}, v{A+8*mm+7} offset0:{o+1} offset1:{o}")
    e("L_p2_join:")
    Y, H, T = 80, 96, 16
    for j in range(16):
        e(f"v_mov_b32 v{Y+j}, 0")
    e(f"s_mul_i32 s38, s28, {2*RS}")
    e(f"s_add_u32 s38, s38, {YB}")
    e(f"v_mul_u32_u24 v7, {RS}, v6")
    e("v_lshl_add_u32 v7, v5, 5, v7")
    e("v_add_u32 v7, s38, v7")
    e("s_mov_b32 s43, 0xffff0000")
    e("s_mov_b32 s52, 0x3f803f80")
    e("v_lshl_add_u32 v11, v6, 6, s34")
    e("v_sub_u32 v15, 0xfff, v11")
    e(f"v_lshlrev_b32 v11, 2, v11")
    e("s_lshl_b32 s38, s28, 3")
    e(f"s_add_u32 s38, s38, {KBUF}")
    e("v_lshl_add_u32 v14, v6, 2, s38")
    e("v_mov_b32 v8, 0")
    e("v_mov_b32 v9, 0")
    e("v_mov_b32 v12, 0")
    e("s_waitcnt vmcnt(0)")
    for j in range(8):
        e(f"v_lshlrev_b32 v{T+2*j}, 16, v{XR+j}")
        e(f"v_and_b32 v{T+2*j+1}, s43, v{XR+j}")
    e("s_waitcnt lgkmcnt(0)")
    stamp(e, 4)
    e("s_barrier")
    e("s_mov_b64 exec, s[40:41]")
    e(f"ds_read_b128 {vr(Y,4)}, v7")
    e(f"ds_read_b128 {vr(Y+4,4)}, v7 offset:16")
    e(f"ds_read_b128 {vr(Y+8,4)}, v7 offset:896")
    e(f"ds_read_b128 {vr(Y+12,4)}, v7 offset:912")
    e("s_mov_b64 exec, -1")
    for j in range(8):
        if j % 2 == 0:
            e(f"s_waitcnt lgkmcnt({3-j//2})")
        e(f"v_pk_add_f32 {vr(Y+2*j,2)}, {vr(Y+2*j,2)}, {vr(T+2*j,2)}")
    for j in range(8):
        e(f"v_cvt_pk_bf16_f32 v{H+j}, v{Y+2*j}, v{Y+2*j+1}")
    for j in range(8):
        e(f"v_dot2c_f32_bf16 v8, s52, v{H+j}")
        e(f"v_dot2c_f32_bf16 v9, v{H+j}, v{H+j}")
    un = []
    for j in range(8):
        un.append(f"v_lshlrev_b32 v{Y+2*j}, 16, v{H+j}")
        un.append(f"v_and_b32 v{Y+2*j+1}, s43, v{H+j}")
    e(un.pop(0)); e(un.pop(0)); e(un.pop(0))
    for ror in (8, 4, 2, 1):
        e(f"v_add_f32_dpp v8, v8, v8 row_ror:{ror} row_mask:0xf bank_mask:0xf")
        e(f"v_add_f32_dpp v9, v9, v9 row_ror:{ror} row_mask:0xf bank_mask:0xf")
        e(un.pop(0))
    e("v_mov_b32 v13, v8")
    e("v_mov_b32 v5, v9")
    e(un.pop(0)); e(un.pop(0))
    e("v_permlane16_swap_b32 v8, v13")
    e("v_permlane16_swap_b32 v9, v5")
    e(f"s_mov_b32 s38, {fbits(1.0/448)}")
    e("v_add_f32 v8, v8, v13")
    e("v_add_f32 v9, v9, v5")
    chain = ["v_mul_f32 v8, s38, v8",
             "v_mul_f32 v9, s38, v9",
             "v_fma_f32 v9, -v8, v8, v9",
             "v_max_f32 v9, 0, v9",
             "v_cvt_pk_bf16_f32 v8, v9, v8",
             "v_lshlrev_b32 v9, 16, v8",
             f"v_add_f32 v9, {fbits(1e-5)}, v9",
             "v_cvt_pk_bf16_f32 v9, v9, v9",
             "v_and_b32 v9, s43, v9",
             "v_sqrt_f32 v9, v9",
             "v_and_b32 v8, s43, v8"]
    for c in chain:
        e(c)
        if un: e(un.pop(0))
    while un: e(un.pop(0))
    e("v_cvt_pk_bf16_f32 v13, v9, v8")
    e("v_mov_b32 v9, v8")
    e("v_lshlrev_b32 v5, 16, v13")
    e("v_rcp_f32 v4, v5")
    for j in range(8):
        e(f"v_pk_add_f32 {vr(T+2*j,2)}, {vr(Y+2*j,2)}, v[8:9] neg_lo:[0,1] neg_hi:[0,1]")
        if j == 0:
            e("v_mov_b32 v5, v4")
    e(f"s_mov_b32 s38, {WS_STAT}")
    e("s_mov_b32 exec_lo, 1")
    e("s_mov_b32 exec_hi, 1")
    e("buffer_store_dword v13, v11, s[24:27], s38 offen sc1")
    e("s_mov_b64 exec, -1")
    for j in range(8):
        e(f"v_pk_mul_f32 {vr(T+2*j,2)}, {vr(T+2*j,2)}, v[4:5]")
    for j in range(8):
        e(f"v_cvt_pk_bf16_f32 v{H+j}, v{T+2*j}, v{T+2*j+1}")
    for j in range(8):
        e(f"v_lshlrev_b32 v{T+2*j}, 16, v{H+j}")
        e(f"v_and_b32 v{T+2*j+1}, s43, v{H+j}")
    for j in range(8):
        e(f"v_pk_add_f32 {vr(T+2*j,2)}, {vr(T+2*j,2)}, {vr(Y+2*j,2)}")
    for j in range(8):
        e(f"v_cvt_pk_bf16_f32 v{XR+j}, v{T+2*j}, v{T+2*j+1}")
        if j == 3:
            e(f"buffer_store_dwordx4 {vr(XR,4)}, v10, s[44:47], s35 offen sc1")
    e(f"buffer_store_dwordx4 {vr(XR+4,4)}, v10, s[44:47], s35 offen offset:448 sc1")
    for j in range(8):
        e(f"v_dot2c_f32_bf16 v12, v{H+j}, v{WR+j}")
    e("s_nop 2")
    for ror in (8, 4, 2, 1):
        e(f"v_add_f32_dpp v12, v12, v12 row_ror:{ror} row_mask:0xf bank_mask:0xf")
        e("s_nop 1")
    e("v_mov_b32 v13, v12")
    e("s_nop 1")
    e("v_permlane16_swap_b32 v12, v13")
    e("v_add_f32 v12, v12, v13")
    e("v_cvt_pk_bf16_f32 v12, v12, v12")
    e("v_ashrrev_i32 v13, 31, v12")
    e("v_or_b32 v13, 0x80000000, v13")
    e("v_xor_b32 v12, v12, v13")
    e("v_and_or_b32 v12, v12, s43, v15")
    e("ds_write_b32 v14, v12")
    stamp(e, 5)
    e("s_waitcnt vmcnt(0) lgkmcnt(0)")
    stamp(e, 6)
    e("s_barrier")
    e("s_cmp_lg_u32 s28, 0")
    e("s_cbranch_scc1 L_p2_end")
    e("v_lshlrev_b32 v5, 2, v1")
    e("s_mov_b64 exec, 0xffff")
    e(f"v_add_u32 v6, {KBUF}, v5")
    e("ds_read_b32 v12, v6")
    e("s_lshl_b32 s38, s2, 6")
    e(f"s_add_u32 s38, s38, {WS_KEY}")
    e("s_waitcnt lgkmcnt(0)")
    e("buffer_store_dword v12, v5, s[24:27], s38 offen sc1")
    e("L_p2_end:")
    stamp_flush(e, 1, 24, 7, 28)
    e("s_endpgm")

def ffn(e):
    XS, ONES, ACT, MISC, GB = 0, 7168, 14336, 15360, 16384
    DB = GB + 57344
    A, AD_, ACC, B = 64, 36, 32, 16
    K = 64
    e("s_sub_u32 s29, s2, 128")
    e("s_and_b32 s37, s29, 7")
    e("s_lshr_b32 s38, s29, 3")
    e("s_mul_i32 s39, s37, 7")
    e("s_add_u32 s39, s39, s38")
    e("s_cmp_eq_u32 s28, 7")
    e("s_cbranch_scc1 L_f_poll")
    e("s_cmp_lt_u32 s28, 4")
    e("s_cbranch_scc1 L_f_comp")
    e("v_lshrrev_b32 v5, 2, v1")
    e("v_and_b32 v6, 3, v1")
    e("v_lshrrev_b32 v7, 4, v1")
    e("v_and_b32 v7, 2, v7")
    e("v_xor_b32 v6, v6, v7")
    e("s_cmp_eq_u32 s28, 5")
    e("s_cselect_b32 s40, 1, 0")
    e("v_xor_b32 v6, s40, v6")
    e("s_cmp_eq_u32 s28, 6")
    e("s_movk_i32 s41, 896")
    e("s_cselect_b32 s41, s41, 3584")
    e("s_cselect_b32 s42, 64, 114688")
    e("s_cselect_b32 s43, 28672, 64")
    e("v_mul_u32_u24 v5, s41, v5")
    e("v_lshl_add_u32 v5, v6, 4, v5")
    e("s_lshl_b32 s44, s41, 4")
    e("v_add_u32 v6, s44, v5")
    e("s_mul_i32 s43, s43, s39")
    e("s_sub_u32 s44, s28, 4")
    e("s_mul_i32 s44, s44, 28672")
    e(f"s_add_u32 s44, s44, {GB}")
    e("s_waitcnt lgkmcnt(0)")
    stamp(e, 1)
    e("s_cmp_eq_u32 s28, 5")
    e("s_cselect_b32 s48, s12, s10")
    e("s_cselect_b32 s49, s13, s11")
    e("s_cmp_eq_u32 s28, 6")
    e("s_cselect_b32 s48, s14, s48")
    e("s_cselect_b32 s49, s15, s49")
    e(f"s_mov_b32 s50, {448*1792*2:#x}")
    e("s_mov_b32 s51, 0x20000")
    e("s_add_u32 s45, s44, 28672")
    e("s_barrier")
    e("L_f_dma:")
    e("s_mov_b32 m0, s44")
    e("s_add_u32 s44, s44, 2048")
    e("buffer_load_dwordx4 v5, s[48:51], s43 offen lds")
    e("s_add_u32 m0, m0, 1024")
    e("s_nop 0")
    e("buffer_load_dwordx4 v6, s[48:51], s43 offen lds")
    e("s_add_u32 s43, s43, s42")
    e("s_cmp_lt_u32 s44, s45")
    e("s_cbranch_scc1 L_f_dma")
    stamp(e, 2)
    e(f"v_mov_b32 v5, {MISC}")
    e("v_mov_b32 v6, 1")
    e("s_mov_b64 exec, 1")
    e("s_waitcnt vmcnt(0)")
    e("ds_add_u32 v5, v6")
    e("s_waitcnt lgkmcnt(0)")
    if DIAG:
        srd(e, 24, 20, WS_SIZE)
        stamp_flush(e, 1, 24, 3, 28)
    e("s_endpgm")

    e("L_f_comp:")
    e("v_mov_b32 v8, 0x3f803f80")
    e("v_mov_b32 v9, v8")
    e("v_mov_b32 v10, v8")
    e("v_mov_b32 v11, v8")
    e("v_lshlrev_b32 v5, 4, v0")
    e(f"ds_write_b128 v5, v[8:11] offset:{ONES}")
    e(f"ds_write_b128 v5, v[8:11] offset:{ONES+3072}")
    e("v_mov_b32 v6, 0")
    e(f"v_mov_b32 v7, {MISC}")
    e("ds_write_b32 v7, v6")
    e("s_waitcnt lgkmcnt(0)")
    stamp(e, 1)
    e("s_barrier")
    srd(e, 24, 20, WS_SIZE)
    e("v_lshrrev_b32 v8, 2, v2")
    e("v_bfe_u32 v9, v2, 1, 1")
    e("v_and_b32 v10, 1, v3")
    e("v_and_b32 v13, 1, v2")
    e("v_lshlrev_b32 v13, 3, v13")
    e("v_lshl_add_u32 v11, v10, 1, v9")
    e("v_xor_b32 v11, s28, v11")
    e("v_lshl_add_u32 v14, v3, 3, v8")
    e("v_lshl_add_u32 v14, v14, 6, v13")
    e("v_lshl_add_u32 v14, v11, 4, v14")
    e("v_mul_u32_u24 v11, 28672, v9")
    e(f"s_movk_i32 s42, {GB}")
    e("v_add3_u32 v14, v14, v11, s42")
    e("v_lshl_add_u32 v8, v10, 3, v8")
    e("v_lshl_add_u32 v15, v8, 6, v13")
    e("s_and_b32 s42, s28, 1")
    e("v_xor_b32 v10, s42, v10")
    e("v_lshl_add_u32 v10, v10, 1, v9")
    e("v_lshl_add_u32 v15, v10, 4, v15")
    e("v_lshrrev_b32 v10, 1, v3")
    e("v_lshl_add_u32 v15, v10, 10, v15")
    e("s_lshr_b32 s42, s28, 1")
    e("s_lshl_b32 s42, s42, 11")
    e(f"s_add_u32 s42, s42, {DB}")
    e("v_add_u32 v15, s42, v15")
    e("v_and_b32 v8, 7, v2")
    e("v_and_b32 v9, 6, v2")
    e("v_xor_b32 v9, v9, v3")
    e("v_lshlrev_b32 v8, 7, v8")
    e("v_lshl_add_u32 v12, v9, 4, v8")
    e("v_cmp_gt_u32 vcc, 8, v2")
    e(f"v_mov_b32 v8, {ONES}")
    e("v_mul_u32_u24 v6, 1792, v2")
    e("v_cndmask_b32 v12, v8, v12, vcc")
    e("v_xor_b32 v13, 64, v12")
    e("v_lshl_add_u32 v6, v3, 4, v6")
    e("v_mov_b32 v8, 0x7ff00000")
    e("v_cndmask_b32 v6, v8, v6, vcc")
    e("s_lshl_b32 s42, s28, 8")
    e(f"s_add_u32 s42, s42, {ACT}")
    e("v_lshl_add_u32 v5, v2, 4, s42")
    e("v_lshl_add_u32 v5, v3, 3, v5")
    e("s_mul_i32 s43, s39, 14336")
    e("s_lshl_b32 s42, s28, 6")
    e("s_add_u32 s43, s43, s42")
    e(f"s_add_u32 s43, s43, {WS_PART}")
    e(f"s_mov_b32 s42, {fbits(-1.4426950408889634)}")
    e("v_and_b32 v11, 7, v2")
    e("v_lshlrev_b32 v11, 2, v11")
    e("L_f_wait:")
    e("s_sleep 2")
    e("ds_read_b32 v8, v7")
    e("s_waitcnt lgkmcnt(0)")
    e("v_cmp_ne_u32 vcc, 3, v8")
    e("s_cbranch_vccnz L_f_wait")
    stamp(e, 2)
    for k in range(14):
        for io in range(2):
            e(f"ds_read_b64_tr_b16 {vr(A+4*k+2*io,2)}, v14 offset:{k*2048+io*256}")
    for i in range(7):
        for io in range(2):
            e(f"ds_read_b64_tr_b16 {vr(AD_+4*i+2*io,2)}, v15 offset:{i*4096+io*256}")
    e("s_waitcnt lgkmcnt(0)")
    stamp(e, 3)
    e("s_barrier")
    stamp(e, 4)
    BR = [16, 20, 24, 28, 120, 124]
    def rdx(k):
        e(f"ds_read_b128 {vr(BR[k%6],4)}, v{12 + (k&1)} offset:{XS + (k>>1)*1024}")
    for k in range(5): rdx(k)
    e(f"ds_read_b32 v10, v11 offset:{MISC+64}")
    for k in range(14):
        if k + 5 < 14:
            rdx(k + 5)
        n_after = min(k + 5, 13) - k + (1 if k < 5 else 0)
        e(f"s_waitcnt lgkmcnt({n_after})")
        c = "0" if k == 0 else vr(ACC, 4)
        e(f"v_mfma_f32_16x16x32_bf16 {vr(ACC,4)}, {vr(A+4*k,4)}, {vr(BR[k%6],4)}, {c}")
        if k == 6:
            e("v_lshlrev_b32 v9, 16, v10")
            e("v_add_f32 v9, 1.0, v9")
        if k == 8:
            e("v_and_b32 v10, 0xffff0000, v10")
            e("v_rcp_f32 v9, v9")
    e("s_nop 7")
    for r in range(4):
        e(f"v_mov_b32_dpp v{16+r}, v{ACC+r} row_newbcast:8 row_mask:0xf bank_mask:0xf")
    for r in range(4):
        e(f"v_fma_f32 v{ACC+r}, -v10, v{16+r}, v{ACC+r}")
    for r in range(4):
        e(f"v_mul_f32 v{ACC+r}, v{ACC+r}, v9")
    e("s_nop 0")
    for r in range(4):
        e(f"v_permlane32_swap_b32 v{ACC+r}, v{20+r}")
    for r in range(4):
        e(f"v_mul_f32 v{16+r}, s42, v{ACC+r}")
    for r in range(4):
        e(f"v_exp_f32 v{16+r}, v{16+r}")
    for r in range(4):
        e(f"v_mul_f32 v{ACC+r}, v{ACC+r}, v{20+r}")
    for r in range(4):
        e(f"v_add_f32 v{16+r}, 1.0, v{16+r}")
    for r in range(4):
        e(f"v_rcp_f32 v{16+r}, v{16+r}")
    e("s_mov_b32 exec_hi, 0")
    for r in range(4):
        e(f"v_mul_f32 v{ACC+r}, v{ACC+r}, v{16+r}")
    e(f"v_cvt_pk_bf16_f32 v16, v{ACC}, v{ACC+1}")
    e(f"v_cvt_pk_bf16_f32 v17, v{ACC+2}, v{ACC+3}")
    e("ds_write_b64 v5, v[16:17]")
    e("s_mov_b32 exec_hi, -1")
    e("s_waitcnt lgkmcnt(0)")
    stamp(e, 5)
    e("s_barrier")
    e(f"ds_read_b128 v[16:19], v4 offset:{ACT}")
    e("s_waitcnt lgkmcnt(0)")
    for i in range(7):
        e(f"v_mfma_f32_16x16x32_bf16 {vr(A+4*i,4)}, {vr(AD_+4*i,4)}, v[16:19], 0")
    e("s_nop 1")
    for i in range(7):
        e(f"buffer_store_dwordx4 {vr(A+4*i,4)}, v6, s[24:27], s43 offen offset:{256*i} sc1")
    stamp(e, 6)
    if DIAG: e("s_waitcnt vmcnt(0)")
    stamp_flush(e, 1, 24, 7, 28)
    e("s_endpgm")

    e("L_f_poll:")
    e("s_setprio 3")
    e(f"s_mov_b32 s40, {WS_KEY:#x}")
    e(f"s_mov_b32 s41, {WS_KEY+4096:#x}")
    e("s_mov_b32 s46, 0")
    e("v_lshrrev_b32 v5, 3, v1")
    e("v_and_b32 v6, 7, v1")
    e("v_and_b32 v7, 6, v5")
    e("v_xor_b32 v6, v6, v7")
    e("v_lshlrev_b32 v6, 4, v6")
    e("v_lshlrev_b32 v5, 2, v5")
    e("s_waitcnt lgkmcnt(0)")
    stamp(e, 1)
    srd(e, 24, 20, WS_SIZE)
    srd(e, 48, 16, XBYTES)
    e("s_barrier")
    e("L_f_pk:")
    e("s_sleep 1")
    for i in range(8):
        e(f"buffer_load_dwordx4 {vr(K+4*i,4)}, v4, s[24:27], s{40+(i>>2)} offen offset:{(i&3)*1024} sc1")
    e("s_add_u32 s46, s46, 1")
    for i in range(8):
        e(f"s_waitcnt vmcnt({7-i})")
        if i == 0:
            e(f"v_min3_u32 v8, v{K}, v{K+1}, v{K+2}")
            e(f"v_min_u32 v8, v8, v{K+3}")
        else:
            e(f"v_min3_u32 v8, v8, v{K+4*i}, v{K+4*i+1}")
            e(f"v_min3_u32 v8, v8, v{K+4*i+2}, v{K+4*i+3}")
    e("v_cmp_eq_u32 vcc, 0, v8")
    e("s_cbranch_vccz L_f_keys")
    e("s_cmp_lt_u32 s46, 0x40000")
    e("s_cbranch_scc1 L_f_pk")
    e("L_f_keys:")
    stamp(e, 2)
    e("s_mov_b32 m0, 0")
    e(f"v_max3_u32 v8, v{K}, v{K+1}, v{K+2}")
    e(f"v_med3_u32 v9, v{K}, v{K+1}, v{K+2}")
    e(f"v_min3_u32 v10, v{K}, v{K+1}, v{K+2}")
    for i in range(3, 32):
        e(f"v_med3_u32 v10, v9, v10, v{K+i}")
        e(f"v_med3_u32 v9, v8, v9, v{K+i}")
        e(f"v_max_u32 v8, v8, v{K+i}")
    e("s_nop 1")
    e("L_f_round:")
    e("v_max_u32_dpp v11, v8, v8 row_shr:1 row_mask:0xf bank_mask:0xf bound_ctrl:0")
    for st in ["row_shr:2 row_mask:0xf", "row_shr:4 row_mask:0xf", "row_shr:8 row_mask:0xf", "row_bcast:15 row_mask:0xa", "row_bcast:31 row_mask:0xc"]:
        e("s_nop 1")
        e(f"v_max_u32_dpp v11, v11, v11 {st} bank_mask:0xf")
    e("s_nop 0")
    e("v_readlane_b32 s42, v11, 63")
    e("s_nop 1")
    e("v_cmp_eq_u32 vcc, s42, v8")
    e("v_writelane_b32 v12, s42, m0")
    e("s_add_u32 m0, m0, 1")
    e("v_cndmask_b32 v8, v8, v9, vcc")
    e("v_cndmask_b32 v9, v9, v10, vcc")
    e("v_cndmask_b32 v10, v10, 0, vcc")
    e("s_cmp_lt_u32 m0, 8")
    e("s_cbranch_scc1 L_f_round")
    e("v_cmp_eq_u32 vcc, 0, v8")
    e("s_cbranch_vccz L_f_topdone")
    e("s_mov_b32 m0, 0")
    e("s_mov_b32 s42, -1")
    e("L_f_slow:")
    e(f"v_sub_u32 v8, s42, v{K}")
    e(f"v_sub_u32 v9, s42, v{K+1}")
    e("v_min_u32 v8, v8, v9")
    for i in range(2, 32, 2):
        e(f"v_sub_u32 v9, s42, v{K+i}")
        e(f"v_sub_u32 v10, s42, v{K+i+1}")
        e("v_min3_u32 v8, v8, v9, v10")
    for st in ["row_shr:1 row_mask:0xf", "row_shr:2 row_mask:0xf", "row_shr:4 row_mask:0xf", "row_shr:8 row_mask:0xf", "row_bcast:15 row_mask:0xa", "row_bcast:31 row_mask:0xc"]:
        e("s_nop 1")
        e(f"v_min_u32_dpp v8, v8, v8 {st} bank_mask:0xf")
    e("s_nop 0")
    e("v_readlane_b32 s43, v8, 63")
    e("s_nop 3")
    e("s_sub_u32 s42, s42, s43")
    e("v_writelane_b32 v12, s42, m0")
    e("s_sub_u32 s42, s42, 1")
    e("s_add_u32 m0, m0, 1")
    e("s_cmp_lt_u32 m0, 8")
    e("s_cbranch_scc1 L_f_slow")
    e("L_f_topdone:")
    stamp(e, 3)
    e("ds_bpermute_b32 v8, v5, v12")
    e("v_not_b32 v9, v12")
    e("v_and_b32 v9, 0x7ff, v9")
    e("v_lshlrev_b32 v10, 2, v9")
    e(f"s_mov_b32 s42, {WS_STAT}")
    e("s_movk_i32 s44, 896")
    e(f"s_mov_b32 m0, {XS}")
    e("s_waitcnt lgkmcnt(0)")
    e("v_not_b32 v8, v8")
    e("v_and_b32 v8, 0x7ff, v8")
    e("v_mad_u32_u24 v8, v8, s44, v6")
    for j in range(7):
        e(f"buffer_load_dwordx4 v8, s[48:51], 0 offen sc1 lds")
        if j < 6:
            e(f"s_mov_b32 m0, {XS + 1024*(j+1)}")
            e("v_add_u32 v8, 128, v8")
    e("s_mov_b64 exec, 0xff")
    e("buffer_load_dword v11, v10, s[24:27], s42 offen sc1")
    e("s_mov_b64 exec, -1")
    e("v_readlane_b32 s42, v9, s37")
    e("v_readlane_b32 s43, v12, s37")
    e("v_lshlrev_b32 v13, 2, v1")
    e("v_lshlrev_b32 v14, 3, v2")
    e("s_mul_i32 s42, s42, 896")
    e("s_lshl_b32 s44, s38, 7")
    e("s_add_u32 s42, s42, s44")
    e("buffer_load_dwordx2 v[16:17], v14, s[48:51], s42 offen sc1")
    e("s_waitcnt vmcnt(1)")
    e("s_mov_b64 exec, 0xff")
    e(f"ds_write_b32 v13, v11 offset:{MISC+64}")
    e("s_mov_b64 exec, -1")
    e("s_waitcnt lgkmcnt(0)")
    stamp(e, 4)
    e("s_barrier")
    e("s_lshr_b32 s44, s43, 31")
    e("s_sub_u32 s44, s44, 1")
    e("s_or_b32 s44, s44, 0x80000000")
    e("s_xor_b32 s43, s43, s44")
    e("s_and_b32 s43, s43, 0xffff0000")
    e(f"v_mov_b32 v18, {fbits(-1.4426950408889634)}")
    e("v_mul_f32 v18, s43, v18")
    e("v_exp_f32 v18, v18")
    e("v_mul_u32_u24 v7, 14336, v3")
    e("v_add_f32 v18, 1.0, v18")
    e("v_rcp_f32 v18, v18")
    e("v_lshl_add_u32 v7, v2, 4, v7")
    e("v_cvt_pk_bf16_f32 v18, v18, v18")
    e("s_mov_b32 s47, 0xffff0000")
    e("v_and_b32 v18, s47, v18")
    e("v_mov_b32 v10, 1.0")
    e("s_lshl_b32 s44, s39, 8")
    e(f"s_add_u32 s44, s44, {WS_PART}")
    for j in range(1, 4):
        e(f"s_add_u32 s{44+j+7}, s44, {4*57344*j}")
    e(f"v_add_u32 v8, 57344, v7")
    e(f"v_add_u32 v9, 57344, v8")
    e(f"v_add_u32 v11, 57344, v9")
    e("s_waitcnt vmcnt(0)")
    e("v_lshlrev_b32 v20, 16, v16")
    e("v_and_b32 v21, s47, v16")
    e("v_lshlrev_b32 v22, 16, v17")
    e("v_and_b32 v23, s47, v17")
    e("s_mov_b32 s46, 0")
    e("s_barrier")
    stamp(e, 5)
    P = 64
    vo = [7, 8, 9, 11]; so = [44, 52, 53, 54]
    e("L_f_pp:")
    e("s_sleep 1")
    for i in range(14):
        e(f"buffer_load_dwordx4 {vr(P+4*i,4)}, v{vo[i&3]}, s[24:27], s{so[i>>2]} offen sc1")
    e("s_add_u32 s46, s46, 1")
    e("s_waitcnt vmcnt(12)")
    e(f"v_pk_add_f32 v[24:25], {vr(P,2)}, {vr(P+4,2)}")
    e(f"v_pk_add_f32 v[26:27], {vr(P+2,2)}, {vr(P+6,2)}")
    for i in range(2, 14):
        e(f"s_waitcnt vmcnt({13-i})")
        e(f"v_pk_add_f32 v[24:25], v[24:25], {vr(P+4*i,2)}")
        e(f"v_pk_add_f32 v[26:27], v[26:27], {vr(P+4*i+2,2)}")
    e("v_add_f32 v28, v24, v25")
    e("v_add_f32 v29, v26, v27")
    e("v_cmp_u_f32 vcc, v28, v29")
    e("s_cbranch_vccz L_f_got")
    e(f"v_max3_u32 v28, v{P}, v{P+1}, v{P+2}")
    for i in range(3, 55, 2):
        e(f"v_max3_u32 v28, v28, v{P+i}, v{P+i+1}")
    e(f"v_max_u32 v28, v28, v{P+55}")
    e("v_cmp_eq_u32 vcc, -1, v28")
    e("s_cbranch_vccz L_f_got")
    e("s_cmp_lt_u32 s46, 0x40000")
    e("s_cbranch_scc1 L_f_pp")
    e("L_f_got:")
    stamp(e, 6)
    for r in range(4):
        e(f"v_mfma_f32_16x16x4_f32 {vr(32+4*r,4)}, v10, v{24+r}, 0")
    e("s_nop 7")
    e("s_nop 0")
    e("v_cvt_pk_bf16_f32 v16, v32, v36")
    e("v_cvt_pk_bf16_f32 v17, v40, v44")
    e("v_lshlrev_b32 v24, 16, v16")
    e("v_and_b32 v25, s47, v16")
    e("v_lshlrev_b32 v26, 16, v17")
    e("v_and_b32 v27, s47, v17")
    for r in range(4):
        e(f"v_mul_f32 v{24+r}, v{24+r}, v18")
    e("v_cvt_pk_bf16_f32 v16, v24, v25")
    e("v_cvt_pk_bf16_f32 v17, v26, v27")
    e("v_lshlrev_b32 v24, 16, v16")
    e("v_and_b32 v25, s47, v16")
    e("v_lshlrev_b32 v26, 16, v17")
    e("v_and_b32 v27, s47, v17")
    for r in range(4):
        e(f"v_add_f32 v{24+r}, v{24+r}, v{20+r}")
    e("v_cvt_pk_bf16_f32 v16, v24, v25")
    e("v_cvt_pk_bf16_f32 v17, v26, v27")
    e("s_mov_b64 exec, 0xffff")
    e("buffer_store_dwordx2 v[16:17], v14, s[48:51], s42 offen")
    stamp_flush(e, 1, 24, 7, 28)

if __name__ == "__main__":
    for a in sys.argv[2:]:
        if a == "diag":
            DIAG = True; gen.DIAG = True
        else:
            k, v = a.split("=")
            OPT[k] = int(v)
    build([ka, kb], sys.argv[1])
```

```python
import struct, sys
from gen import E, fbits, vr, ar, srd, header, build, NAME
import gen

WS_V    = 0x000000
WS_KEY  = 0x300000
WS_FLAG = 0x304000
WS_PART = 0x308000
WS_SIZE = 0x10000000
XBYTES  = 2048*896
WBYTES  = 448*1792*2
WS_DIAG = 0x800000
DIAG = False
OPT = {}
DPP6 = ["row_shr:1 row_mask:0xf", "row_shr:2 row_mask:0xf", "row_shr:4 row_mask:0xf", "row_shr:8 row_mask:0xf",
        "row_bcast:15 row_mask:0xa", "row_bcast:31 row_mask:0xc"]

def stamp(e, i):
    if DIAG:
        e(f"s_memrealtime s[{64+2*i}:{65+2*i}]")
        e("s_waitcnt lgkmcnt(0)")
def stamp_flush(e, kid, srdreg, nst, wavereg):
    if DIAG:
        e("s_mov_b64 exec, -1")
        e(f"s_memrealtime s[{64+2*nst}:{65+2*nst}]")
        e("s_waitcnt lgkmcnt(0)")
        for i in range(nst+1):
            e(f"v_writelane_b32 v0, s{64+2*i}, {i}")
        e(f"s_lshl_b32 s60, s2, 3")
        e(f"s_add_u32 s60, s60, s{wavereg}")
        e(f"s_lshl_b32 s60, s60, 6")
        e(f"s_add_u32 s60, s60, {WS_DIAG + kid*0x40000}")
        e("v_mbcnt_lo_u32_b32 v1, -1, 0")
        e("v_lshlrev_b32 v1, 2, v1")
        e("s_mov_b32 exec_lo, 0xffff")
        e("s_mov_b32 exec_hi, 0")
        e(f"buffer_store_dword v0, v1, s[{srdreg}:{srdreg+3}], s60 offen")

class Lds:
    def __init__(self, e):
        self.e = e; self.q = []
    def issue(self, tag, ins):
        self.e(ins); self.q.append(tag)
    def need(self, tag):
        if tag not in self.q: return
        last = max(i for i, t in enumerate(self.q) if t == tag)
        n = len(self.q) - 1 - last
        assert n <= 15, n
        self.e(f"s_waitcnt lgkmcnt({n})")
        self.q = self.q[last+1:]

def ka(e):
    header(e, "fnet_ka_kernel")
    X, ACC, CUR, PRV, PK, RF, BB = 64, 32, 16, 24, 48, 56, 120
    SUM, GRM = 168, 172
    LDS_X, LDS_Z = 57344, 114688
    LDS_CS = LDS_Z + 8192
    e("s_cmp_ge_u32 s2, 256")
    e("s_cbranch_scc1 L_ka_end")
    stamp(e, 0)
    e("s_load_dwordx2 s[4:5], s[0:1], 0")
    e("s_load_dwordx2 s[6:7], s[0:1], 96")
    e("s_load_dwordx2 s[52:53], s[0:1], 48")
    e("s_load_dwordx4 s[44:47], s[0:1], 56")
    e("s_load_dwordx2 s[48:49], s[0:1], 72")
    e("v_lshrrev_b32 v1, 6, v0")
    e("v_and_b32 v2, 15, v0")
    e("v_readfirstlane_b32 s16, v1")
    e("v_bfe_u32 v3, v0, 4, 2")
    e("v_and_b32 v1, 63, v0")
    e("s_cmp_ge_u32 s2, 224")
    e("s_cbranch_scc1 L_ka_clear")
    e("s_and_b32 s17, s2, 7")
    e("s_bfe_u32 s18, s2, 0x20003")
    e("s_lshr_b32 s19, s2, 5")
    e("s_lshl_b32 s20, s17, 2")
    e("s_add_u32 s20, s20, s18")
    e("v_lshrrev_b32 v4, 3, v1")
    e("v_and_b32 v5, 7, v1")
    e("v_and_b32 v6, 6, v4")
    e("v_xor_b32 v5, v5, v6")
    e("v_lshrrev_b32 v6, 2, v4")
    e("v_and_b32 v4, 3, v4")
    e("v_lshl_add_u32 v6, v6, 3, v4")
    e("v_mul_u32_u24 v6, 28672, v6")
    e("v_lshl_add_u32 v6, v5, 4, v6")
    e(f"v_add_u32 v13, {16*28672}, v6")
    e("s_lshr_b32 s21, s16, 1")
    e("s_and_b32 s22, s16, 1")
    e("s_lshl_b32 s23, s21, 10")
    e("s_lshl_b32 s24, s22, 7")
    e("s_add_u32 s23, s23, s24")
    e("s_add_u32 s23, s23, s20")
    e("s_mul_i32 s23, s23, 896")
    e("s_lshl_b32 s31, s19, 7")
    e("s_add_u32 s32, s23, 896")
    e("s_add_u32 s31, s31, s23")
    e("s_mul_i32 s29, s16, 14336")
    e(f"s_add_u32 s41, s29, {LDS_X}")
    e("v_lshrrev_b32 v4, 2, v2")
    e("v_and_b32 v5, 3, v2")
    e("s_lshl_b32 s24, s19, 6")
    e("s_lshl_b32 s25, s16, 2")
    e("s_add_u32 s25, s24, s25")
    e("v_lshl_add_u32 v7, v4, 4, v5")
    e("v_add_u32 v7, s25, v7")
    e("v_mov_b32 v9, 224")
    e("v_cmp_eq_u32 vcc, 0, v7")
    e("v_subrev_u32 v8, 224, v7")
    e("v_cmp_le_u32 s[26:27], v9, v7")
    e("v_cndmask_b32 v7, v7, v9, vcc")
    e("v_mov_b32 v10, 0x3e800000")
    e("v_cndmask_b32 v7, v7, v8, s[26:27]")
    e("v_cndmask_b32 v10, 0, v10, s[26:27]")
    e("v_lshl_add_u32 v8, v3, 3, s24")
    e("v_mul_u32_u24 v8, v8, v7")
    e("v_cvt_f32_u32 v7, v7")
    e("v_cvt_f32_u32 v8, v8")
    e(f"s_mov_b32 s24, {fbits(1.0/448)}")
    e("v_mul_f32 v9, s24, v8")
    e("v_floor_f32 v9, v9")
    e(f"v_fmamk_f32 v8, v9, {fbits(-448.0)}, v8")
    e("v_mul_f32 v7, s24, v7")
    e("v_fma_f32 v8, v8, s24, v10")
    e("v_mul_f32 v9, 0x42000000, v7")
    e("v_cos_f32 v52, v9")
    NS = OPT.get("ns", 4)
    def seed(j):
        e(f"v_cos_f32 v{CUR+j}, v8")
        e(f"v_sub_f32 v11, v8, v9")
        if j < 7:
            e(f"v_add_f32 v8, v8, v7")
        e(f"v_cos_f32 v{PRV+j}, v11")
    for j in range(NS): seed(j)
    e("s_waitcnt lgkmcnt(0)")
    stamp(e, 1)
    srd(e, 8, 4, XBYTES)
    XNT = " nt" if OPT.get("xnt", 1) else ""
    def xhalf(c, h):
        if h == 0:
            e(f"s_add_u32 m0, s41, {c*2048}")
            e("s_add_u32 s33, s31, 128")
            e(f"buffer_load_dwordx4 v6, s[8:11], s31 offen{XNT} lds")
        else:
            e(f"s_add_u32 m0, s41, {c*2048+1024}")
            e("s_cmp_eq_u32 s33, s32")
            e(f"buffer_load_dwordx4 v13, s[8:11], s31 offen{XNT} lds")
            e("s_cselect_b32 s31, s23, s33")
    NF = OPT.get("nf", 3)
    pend = [(c, h) for c in range(NF) for h in range(2)]
    def xnext():
        if pend: xhalf(*pend.pop(0))
    xnext(); xnext()
    for j in range(NS, 8):
        seed(j)
        if j % 2 == 1: xnext()
    e("v_add_f32 v52, v52, v52")
    e("s_mov_b32 s28, 0x3f803f80")
    e("v_mov_b32 v54, 0")
    e("v_lshl_add_u32 v55, v1, 4, s29")
    e("v_mov_b32 v53, v52")
    for st in range(14):
        A, B = (CUR, PRV) if st % 2 == 0 else (PRV, CUR)
        P = PK if st % 2 == 0 else 180
        for j in range(4):
            e(f"v_cvt_pk_bf16_f32 v{P+j}, v{A+2*j}, v{A+2*j+1}")
        e(f"ds_write_b128 v55, {vr(P,4)} offset:{st*1024}")
        if st < 13:
            for j in range(4):
                e(f"v_pk_fma_f32 {vr(B+2*j,2)}, v[52:53], {vr(A+2*j,2)}, {vr(B+2*j,2)} neg_lo:[0,0,1] neg_hi:[0,0,1]")
        for j in range(4):
            e(f"v_dot2c_f32_bf16 v54, s28, v{P+j}")
        xnext()
    assert not pend
    stamp(e, 2)
    e("v_mov_b32 v9, 1.0")
    srd(e, 12, 6, WS_SIZE)
    e("v_mfma_f32_16x16x4_f32 v[40:43], v9, v54, 0")
    e("s_lshl_b32 s24, s16, 6")
    e(f"s_add_u32 s24, s24, {LDS_CS}")
    e("v_lshl_add_u32 v11, v2, 2, s24")
    e("s_cmp_ge_u32 s2, 8")
    e("s_cselect_b32 s34, -1, 0")
    e("s_lshl_b32 s35, s2, 12")
    e(f"s_add_u32 s35, s35, {WS_KEY}")
    e("s_cmp_ge_u32 s2, 204")
    e("s_cselect_b32 s36, 0x7ff00000, 0")
    e("v_lshl_add_u32 v12, v0, 4, s36")
    for j in range(4):
        e(f"v_mov_b32 v{44+j}, s34")
    e("buffer_store_dwordx4 v[44:47], v12, s[12:15], s35 offen sc1")
    e("ds_write_b32 v11, v40")
    e("v_lshlrev_b32 v11, 4, v1")
    e("s_waitcnt lgkmcnt(0)")
    e("s_barrier")
    L = Lds(e)
    def rdB(k):
        for n in range(4):
            L.issue(("B", k), f"ds_read_b128 {vr(BB+(k%3)*16+4*n,4)}, v11 offset:{(n*14+k)*1024}")
    rdB(0); rdB(1)
    e(f"v_lshlrev_b32 v12, 2, v2")
    e(f"v_add_u32 v12, {LDS_CS}, v12")
    for n in range(4):
        L.issue("cs", f"ds_read_b32 v{48+n}, v12 offset:{64*n}")
    e("v_and_b32 v12, 6, v2")
    e("v_xor_b32 v12, v12, v3")
    e("v_and_b32 v14, 7, v2")
    e("v_lshlrev_b32 v14, 7, v14")
    e("v_lshl_add_u32 v14, v12, 4, v14")
    e("v_lshrrev_b32 v12, 3, v2")
    e("v_lshl_add_u32 v14, v12, 10, v14")
    e("v_add_u32 v14, s41, v14")
    e("v_xor_b32 v15, 64, v14")
    class Cap:
        def __init__(self): self.l = []
        def __call__(self, x): self.l.append(x)
    late = Cap()
    def _late(e):
        e("s_mul_i32 s42, s16, 224")
        e("s_add_u32 s42, s42, s2")
        e(f"s_cmp_lt_u32 s42, {OPT.get('nch', 392)}")
        e(f"s_cselect_b32 s38, {WBYTES:#x}, 0")
        e("s_cmp_ge_u32 s42, 196")
        e("s_cselect_b32 s36, s46, s44")
        e("s_cselect_b32 s37, s47, s45")
        e("s_cselect_b32 s34, 196, 0")
        e("s_cmp_ge_u32 s42, 392")
        e("s_cselect_b32 s36, s48, s36")
        e("s_cselect_b32 s37, s49, s37")
        e("s_cselect_b32 s34, 392, s34")
        e("s_sub_u32 s42, s42, s34")
        e("s_lshl_b32 s42, s42, 13")
        e("s_mov_b32 s39, 0x20000")
        e("v_lshlrev_b32 v177, 7, v1")
        e("v_add_u32 v177, s42, v177")
        e("s_lshl_b32 s24, s22, 4")
        e("v_add_u32 v7, s24, v2")
        e("s_mul_i32 s25, s21, 0x3e800000")
        e("v_mov_b32 v10, s25")
        e("s_cmp_eq_u32 s16, 2")
        e("s_cselect_b32 s24, 0, -1")
        e("v_cmp_eq_u32 vcc, s24, v7")
        e("v_mov_b32 v12, 32")
        e("v_lshlrev_b32 v8, 3, v3")
        e("v_cndmask_b32 v7, v7, v12, vcc")
        e("v_cndmask_b32 v10, v10, 0, vcc")
        e("v_cvt_f32_u32 v7, v7")
        e("v_cvt_f32_u32 v8, v8")
        e(f"v_mul_f32 v7, {fbits(1.0/64)}, v7")
        e("v_fma_f32 v8, v8, v7, v10")
        e("v_mul_f32 v10, 0x42000000, v7")
        for j in range(8):
            e(f"v_cos_f32 v{CUR+j}, v8")
            e(f"v_add_f32 v12, v8, v10")
            if j < 7:
                e(f"v_add_f32 v8, v8, v7")
            e(f"v_cos_f32 v{PRV+j}, v12")
        e("s_lshl_b32 s24, s21, 10")
        e("s_lshl_b32 s25, s22, 3")
        e("s_add_u32 s24, s24, s25")
        e(f"s_add_u32 s24, s24, {LDS_Z}")
        e("v_add_u32 v55, s24, v11")
        e(f"v_add_u32 v54, {LDS_Z}, v11")
        for j in range(4):
            e(f"v_cvt_pk_bf16_f32 v{RF+j}, v{CUR+2*j}, v{CUR+2*j+1}")
            e(f"v_cvt_pk_bf16_f32 v{RF+4+j}, v{PRV+2*j}, v{PRV+2*j+1}")
        e("v_mul_u32_u24 v53, 57344, v2")
        e("v_lshl_add_u32 v53, v3, 10, v53")
        e("s_mul_i32 s24, s22, 917504")
        e("s_mul_i32 s25, s21, 28672")
        e("s_add_u32 s24, s24, s25")
        e("s_lshl_b32 s25, s19, 12")
        e("s_add_u32 s24, s24, s25")
        e("s_lshr_b32 s25, s17, 2")
        e("s_lshl_b32 s25, s25, 4")
        e("s_and_b32 s26, s17, 1")
        e("s_lshl_b32 s26, s26, 3")
        e("s_add_u32 s25, s25, s26")
        e("s_and_b32 s26, s17, 2")
        e("s_lshl_b32 s26, s26, 1")
        e("s_add_u32 s25, s25, s26")
        e("s_add_u32 s25, s25, s18")
        e("s_lshl_b32 s25, s25, 5")
        e("s_add_u32 s30, s24, s25")
    _late(late)
    late = late.l
    for j in range(4):
        e(f"v_mov_b32 v{180+j}, s28")
    late += [f"s_mov_b32 s24, {fbits(1.0/448)}", f"s_mov_b32 s26, {fbits(1e-5)}", "s_mov_b32 s27, 0xffff0000"]
    grouped = []
    for x in late:
        if x.startswith("s_cselect"): grouped[-1] += "\n" + x
        else: grouped.append(x)
    late = grouped
    stamp(e, 3)
    if DIAG: L.q = []
    vq = [("x", c) for c in range(NF) for h in range(2)]
    vq.append("clr")
    nxt = [NF]
    def rdA(c):
        last = max(i for i, t in enumerate(vq) if t == ("x", c))
        e(f"s_waitcnt vmcnt({len(vq)-1-last})")
        del vq[:last+1]
        if c == 0 and OPT.get("allx", 0): e("s_waitcnt vmcnt(0)")
        if c == 0: stamp(e, 4)
        for o in range(2):
            L.issue(("A", 2*c+o), f"ds_read_b128 {vr(X+4*(2*c+o),4)}, v{14+o} offset:{c*2048}")
        if nxt[0] < 7:
            xhalf(nxt[0], 0); xhalf(nxt[0], 1)
            vq.extend([("x", nxt[0])]*2)
        if c == OPT.get("pfat", 3):
            assert not any("v177" in x for x in late)
            e("buffer_load_dword v176, v177, s[36:39], 0 offen"); vq.append("pf")
        nxt[0] += 1
    def shadow():
        budget = 2
        while late and budget > 0:
            x = late.pop(0)
            e(x)
            budget -= 2 if x.startswith("v_cos") else (0.5*(x.count("\n")+1) if x.startswith("s_") else 1)
    def mf(k, n):
        c = "0" if k == 0 else vr(ACC+4*n, 4)
        e(f"v_mfma_f32_16x16x32_bf16 {vr(ACC+4*n,4)}, {vr(X+4*k,4)}, {vr(BB+(k%3)*16+4*n,4)}, {c}")
    def mstat(k):
        L.need(("A", k))
        c = "0" if k == 0 else vr(GRM, 4)
        e(f"v_mfma_f32_16x16x32_bf16 {vr(GRM,4)}, {vr(X+4*k,4)}, {vr(X+4*k,4)}, {c}")
        shadow()
        c = "0" if k == 0 else vr(SUM, 4)
        e(f"v_mfma_f32_16x16x32_bf16 {vr(SUM,4)}, {vr(X+4*k,4)}, v[180:183], {c}")
        shadow()
    def main(m, fill=None):
        if m + 2 < 14:
            rdB(m + 2)
        L.need(("B", m))
        for n in range(4):
            mf(m, n)
            if fill is None:
                shadow()
            elif fill:
                for _ in range(4):
                    if fill: e(fill.pop(0))
    LAG = OPT.get("lag", 4)
    rdA(0)
    for k in range(14):
        if k % 2 == 1 and k // 2 + 1 < 7:
            rdA(k // 2 + 1)
        mstat(k)
        if k - LAG >= 0:
            main(k - LAG)
    assert not late, len(late)
    stamp(e, 5)
    if DIAG: L.q = []
    fin = []
    for g in range(4):
        for r in range(4):
            fin.append(f"v_mov_b32_dpp v{20+r}, v{GRM+r} row_newbcast:{4*g+r} row_mask:{1<<g:#x} bank_mask:0xf")
    for r in range(4):
        fin.append(f"v_mul_f32 v{16+r}, s24, v{SUM+r}")
    for r in range(4):
        fin.append(f"v_mul_f32 v{20+r}, s24, v{20+r}")
    for r in range(4):
        fin.append(f"v_fma_f32 v{20+r}, -v{16+r}, v{16+r}, v{20+r}")
    r4 = ["v_cvt_pk_bf16_f32 v24, v20, v21", "v_cvt_pk_bf16_f32 v25, v22, v23", "v_lshlrev_b32 v20, 16, v24",
          "v_and_b32 v21, s27, v24", "v_lshlrev_b32 v22, 16, v25", "v_and_b32 v23, s27, v25"]
    for r in range(4):
        fin.append(f"v_max_f32 v{20+r}, 0, v{20+r}")
    fin += r4
    for r in range(4):
        fin.append(f"v_add_f32 v{20+r}, s26, v{20+r}")
    fin += r4
    for r in range(4):
        fin.append(f"v_sqrt_f32 v{20+r}, v{20+r}")
    fin.append("s_nop 0")
    fin += r4
    for r in range(4):
        fin.append(f"v_rcp_f32 v{20+r}, v{20+r}")
    for m in range(14 - LAG, 14):
        main(m, fin)
    nleft = len(fin)
    while fin: e(fin.pop(0))
    if nleft < 8: e(f"s_nop {7-nleft}")
    L.need("cs")
    for n in range(4):
        a = ACC + 4*n
        for r in range(4):
            e(f"v_fma_f32 v{a+r}, -v{16+r}, v{48+n}, v{a+r}")
    for n in range(4):
        a = ACC + 4*n
        e(f"v_pk_mul_f32 {vr(a,2)}, {vr(a,2)}, v[20:21]")
        e(f"v_pk_mul_f32 {vr(a+2,2)}, {vr(a+2,2)}, v[22:23]")
        e(f"v_cvt_pk_bf16_f32 v{24+2*n}, v{a}, v{a+1}")
        e(f"v_cvt_pk_bf16_f32 v{25+2*n}, v{a+2}, v{a+3}")
        e(f"ds_write_b64 v55, {vr(24+2*n,2)} offset:{n*2048}")
    e("s_waitcnt lgkmcnt(0)")
    stamp(e, 6)
    e("s_barrier")
    for n in range(4):
        for k2 in range(2):
            e(f"ds_read_b128 {vr(X+(n*2+k2)*4,4)}, v54 offset:{(n*2+k2)*1024}")
    for n in range(4):
        e(f"s_waitcnt lgkmcnt({6-2*n})")
        e(f"v_mfma_f32_16x16x32_bf16 {vr(ACC+4*n,4)}, {vr(X+(n*2)*4,4)}, {vr(RF,4)}, 0")
        e(f"v_mfma_f32_16x16x32_bf16 {vr(ACC+4*n,4)}, {vr(X+(n*2+1)*4,4)}, {vr(RF+4,4)}, {vr(ACC+4*n,4)}")
    e("s_nop 1")
    for n in range(4):
        if n == 3:
            e("s_nop 0")
        e(f"v_cvt_pk_bf16_f32 v{16+2*n}, v{ACC+4*n}, v{ACC+4*n+1}")
        e(f"v_cvt_pk_bf16_f32 v{17+2*n}, v{ACC+4*n+2}, v{ACC+4*n+3}")
        if n == 1:
            e(f"buffer_store_dwordx4 v[16:19], v53, s[12:15], s30 offen")
    e(f"buffer_store_dwordx4 v[20:23], v53, s[12:15], s30 offen offset:16")
    stamp(e, 7)
    if DIAG: e("s_waitcnt vmcnt(0)")
    stamp_flush(e, 0, 12, 8, 16)
    e("s_endpgm")
    e("L_ka_clear:")
    e("s_sub_u32 s19, s2, 224")
    e("s_lshl_b32 s19, s19, 15")
    e("v_lshlrev_b32 v8, 7, v0")
    e("v_add_u32 v9, s19, v8")
    e(f"v_add_u32 v10, {128*8192}, v9")
    e("s_waitcnt lgkmcnt(0)")
    srd(e, 24, 52, 896)
    e(f"buffer_load_dword v16, v8, s[24:27], 0 offen")
    srd(e, 28, 48, WBYTES)
    e("s_waitcnt vmcnt(0)")
    e(f"buffer_load_dword v11, v9, s[28:31], 0 offen")
    e(f"buffer_load_dword v12, v10, s[28:31], 0 offen")
    e("L_ka_end:")
    e("s_endpgm")
    return dict(name="fnet_ka_kernel", vgpr=184, accum=184, sgpr=56, grid=256, block=256, lds=LDS_CS+256)

def kb(e):
    header(e, "fnet_kb_kernel")
    e("s_cmp_ge_u32 s2, 256")
    e("s_cbranch_scc1 L_kb_end")
    stamp(e, 0)
    e("s_load_dwordx2 s[20:21], s[0:1], 96")
    e("s_load_dwordx2 s[4:5], s[0:1], 0")
    e("s_load_dwordx8 s[8:15], s[0:1], 48")
    e("s_load_dwordx2 s[16:17], s[0:1], 80")
    e("v_lshrrev_b32 v1, 6, v0")
    e("v_and_b32 v2, 15, v0")
    e("v_readfirstlane_b32 s28, v1")
    e("v_bfe_u32 v3, v0, 4, 2")
    e("v_and_b32 v1, 63, v0")
    e("v_lshlrev_b32 v4, 4, v1")
    e("s_cmp_ge_u32 s2, 128")
    e("s_cbranch_scc1 L_kb_ffn")
    p2(e)
    e("L_kb_ffn:")
    e("s_cmp_ge_u32 s2, 184")
    e("s_cbranch_scc1 L_kb_help")
    ffn(e)
    e("s_endpgm")
    e("L_kb_help:")
    e("s_sub_u32 s29, s2, 184")
    e("s_and_b32 s30, s29, 7")
    e("s_and_b32 s29, s29, 0xf8")
    e("s_add_u32 s29, s29, s28")
    e("s_cmp_ge_u32 s29, 56")
    e("s_cbranch_scc1 L_kb_helpd")
    e("s_cmp_ge_u32 s29, 28")
    e("s_cselect_b32 s31, 28, 0")
    e("s_sub_u32 s29, s29, s31")
    e("s_mul_i32 s29, s29, 57344")
    e("s_mul_i32 s30, s30, 448")
    e("s_and_b32 s30, s30, 0xffffff80")
    e("s_add_u32 s29, s29, s30")
    e("v_lshrrev_b32 v5, 2, v1")
    e("v_mul_u32_u24 v5, 3584, v5")
    e("v_and_b32 v6, 3, v1")
    e("v_lshl_add_u32 v5, v6, 7, v5")
    e("v_add_u32 v5, s29, v5")
    e("s_waitcnt lgkmcnt(0)")
    e("s_cmp_eq_u32 s31, 0")
    e("s_cselect_b32 s24, s10, s12")
    e("s_cselect_b32 s25, s11, s13")
    e(f"s_mov_b32 s26, {WBYTES:#x}")
    e("s_mov_b32 s27, 0x20000")
    e("buffer_load_dword v6, v5, s[24:27], 0 offen")
    e("s_endpgm")
    e("L_kb_helpd:")
    e("s_sub_u32 s29, s29, 56")
    e("s_lshl_b32 s29, s29, 14")
    e(f"s_mul_i32 s30, s30, {224*896}")
    e("s_add_u32 s29, s29, s30")
    e("v_lshlrev_b32 v5, 7, v1")
    e("v_add_u32 v5, s29, v5")
    e("v_add_u32 v7, 8192, v5")
    e("s_waitcnt lgkmcnt(0)")
    srd(e, 24, 14, WBYTES)
    e("buffer_load_dword v6, v5, s[24:27], 0 offen")
    e("buffer_load_dword v8, v7, s[24:27], 0 offen")
    e("L_kb_end:")
    e("s_endpgm")
    return dict(name="fnet_kb_kernel", vgpr=128, accum=128, sgpr=64, grid=(256 if OPT.get('help', 0) else 184), block=512, lds=104448)

def p2(e):
    YB, RS, KBUF = 57344, 1808, 57344 + 16*1808
    C, S, F1, F3 = 16, 20, 24, 28
    A, ACC = 64, 32
    XR, WR = 48, 56
    H, T = 96, 104
    e("s_and_b32 s29, s2, 31")
    e("s_bfe_u32 s30, s2, 0x10005")
    e("s_lshr_b32 s31, s2, 6")
    e("s_sub_u32 s32, 64, s29")
    e("s_cmp_eq_u32 s29, 0")
    e("s_cselect_b32 s32, 32, s32")
    e("s_cmp_eq_u32 s31, 0")
    e("s_cselect_b32 s32, s29, s32")
    e("s_lshl_b32 s33, s30, 10")
    e("s_add_u32 s33, s33, s32")
    e("s_lshr_b32 s53, s2, 5")
    e(f"s_mul_i32 s62, s53, {OPT.get('trot', 2)}")
    e("s_add_u32 s62, s62, s28")
    e("s_sub_u32 s63, s62, 7")
    e("s_cmp_ge_u32 s62, 7")
    e("s_cselect_b32 s62, s63, s62")
    e("s_mul_i32 s36, s29, 57344")
    e("s_lshl_b32 s37, s62, 11")
    e("s_add_u32 s36, s36, s37")
    e("s_lshl_b32 s37, s28, 13")
    e("v_lshl_add_u32 v7, v2, 6, s33")
    e("v_cvt_f32_u32 v7, v7")
    e(f"v_mul_f32 v7, {fbits(1.0/2048)}, v7")
    e("v_lshlrev_b32 v8, 3, v3")
    e("v_cvt_f32_u32 v8, v8")
    e("v_mul_f32 v8, v8, v7")
    for j in range(8):
        e(f"v_cos_f32 v{A+j}, v8")
        e(f"v_sin_f32 v{A+8+j}, v8")
        if j < 7:
            e("v_add_f32 v8, v8, v7")
    e("s_waitcnt lgkmcnt(0)")
    stamp(e, 1)
    srd(e, 24, 20, WS_SIZE)
    def batch(mm):
        e("s_cmp_eq_u32 s28, 7")
        e(f"s_cbranch_scc1 L_p2_nodma{mm}")
        for blk in (0, 2, 1, 3):
            e(f"s_add_u32 m0, s37, {blk*2048}")
            e(f"s_add_u32 s54, s36, {blk*14336}")
            e(f"buffer_load_dwordx4 v4, s[24:27], s54 offen offset:{1024*mm} lds")
        e(f"L_p2_nodma{mm}:")
    batch(0)
    for j in range(4):
        e(f"v_cvt_pk_bf16_f32 v{C+j}, v{A+2*j}, v{A+2*j+1}")
        e(f"v_cvt_pk_bf16_f32 v{S+j}, v{A+8+2*j}, v{A+8+2*j+1}")
    e("s_cmp_gt_u32 s32, 32")
    e("s_cselect_b32 s39, 0x80008000, 0")
    e("s_xor_b32 s42, s39, 0x80008000")
    for j in range(4):
        e(f"v_xor_b32 v{F1+j}, s39, v{S+j}")
        e(f"v_xor_b32 v{F3+j}, s42, v{C+j}")
    e("s_cmp_lg_u32 s29, 0")
    e("s_cbranch_scc1 L_p2_nospecial")
    e("s_cmp_eq_u32 s32, 0")
    e("s_cbranch_scc1 L_p2_t0")
    for j in range(4):
        e(f"v_mov_b32 v{F1+j}, v{C+j}")
        e(f"v_mov_b32 v{F3+j}, v{S+j}")
        e(f"v_mov_b32 v{C+j}, 0")
        e(f"v_mov_b32 v{S+j}, 0")
    e("s_branch L_p2_nospecial")
    e("L_p2_t0:")
    for j in range(4):
        e(f"v_mov_b32 v{F1+j}, 0")
        e(f"v_mov_b32 v{F3+j}, 0")
    e("L_p2_nospecial:")
    e("v_lshrrev_b32 v12, 1, v3")
    e("v_lshlrev_b32 v12, 4, v12")
    e("v_and_b32 v13, 1, v3")
    e("v_lshl_add_u32 v12, v13, 2, v12")
    e("v_lshrrev_b32 v13, 2, v2")
    e("v_add_u32 v12, v12, v13")
    e("v_lshlrev_b32 v12, 5, v12")
    e("v_and_b32 v13, 3, v2")
    e("v_lshl_add_u32 v12, v13, 3, v12")
    e("v_add_u32 v12, s37, v12")
    e("s_lshl_b32 s42, s62, 7")
    e("v_lshl_add_u32 v13, v3, 4, s42")
    e("v_cmp_eq_u32 vcc, 0, v13")
    e(f"v_mul_u32_u24 v14, {RS}, v2")
    e(f"v_add_u32 v14, {YB}, v14")
    e("v_sub_u32 v15, v14, v13")
    e(f"v_add_u32 v15, {(448-19)*4}, v15")
    e("v_add_u32 v13, v13, v14")
    e(f"v_add_u32 v7, {19*4}, v15")
    e(f"v_add_u32 v8, {224*4}, v14")
    e("v_cndmask_b32 v14, v7, v8, vcc")
    e("s_lshl_b32 s34, s28, 7")
    e("s_add_u32 s34, s34, s33")
    e("s_mul_i32 s35, s34, 896")
    e("v_and_b32 v5, 31, v1")
    e("v_lshrrev_b32 v6, 5, v1")
    e("v_cmp_gt_u32 s[40:41], 28, v5")
    e("v_lshlrev_b32 v9, 4, v5")
    e("v_mov_b32 v10, 0x7ff00000")
    e("v_mul_u32_u24 v11, 57344, v6")
    e("v_cndmask_b32 v125, v10, v9, s[40:41]")
    e("v_add_u32 v10, v125, v11")
    e(f"s_mul_i32 s38, s28, {2*RS}")
    e(f"s_add_u32 s38, s38, {YB}")
    e(f"v_mul_u32_u24 v7, {RS}, v6")
    e("v_lshl_add_u32 v7, v5, 5, v7")
    e("v_add_u32 v7, s38, v7")
    e("s_mov_b32 s43, 0xffff0000")
    e("s_mov_b32 s52, 0x3f803f80")
    e("v_lshl_add_u32 v11, v6, 6, s34")
    e("v_sub_u32 v121, 0xfff, v11")
    e("s_lshl_b32 s38, s28, 3")
    e(f"s_add_u32 s38, s38, {KBUF}")
    e("v_lshl_add_u32 v120, v6, 2, s38")
    for r in (8, 9, 122, 123):
        e(f"v_mov_b32 v{r}, 0")
    e(f"s_mov_b32 s38, {fbits(1.0/448)}")
    e("s_lshl_b32 s53, s2, 7")
    e(f"s_add_u32 s53, s53, {WS_KEY}")
    srd(e, 44, 4, XBYTES)
    srd(e, 48, 8, 896)
    batch(1)
    e(f"buffer_load_dwordx4 {vr(WR,4)}, v125, s[48:51], 0 offen")
    e(f"buffer_load_dwordx4 {vr(WR+4,4)}, v125, s[48:51], 0 offen offset:448")
    e(f"buffer_load_dwordx4 {vr(XR,4)}, v10, s[44:47], s35 offen")
    e(f"buffer_load_dwordx4 {vr(XR+4,4)}, v10, s[44:47], s35 offen offset:448")
    srd(e, 44, 16, XBYTES)
    e("s_cmp_eq_u32 s28, 7")
    e("s_cbranch_scc1 L_p2_join")
    stamp(e, 2)
    fr = {0: C, 1: S, 2: F1, 3: F3}
    for mm in range(2):
        e(f"s_waitcnt vmcnt({8-4*mm})")
        if mm == 1: stamp(e, 3)
        for blk in (0, 2, 1, 3):
            for io in range(2):
                e(f"ds_read_b64_tr_b16 {vr(A+(mm*4+blk)*4+2*io,2)}, v12 offset:{blk*2048+mm*1024+io*256}")
        cnt = 0
        for blk in (0, 2, 1, 3):
            e(f"s_waitcnt lgkmcnt({6-2*cnt})")
            cnt += 1
            acc = ACC + 8*mm + 4*(blk & 1)
            c = "0" if blk < 2 else vr(acc, 4)
            e(f"v_mfma_f32_16x16x32_bf16 {vr(acc,4)}, {vr(A+(mm*4+blk)*4,4)}, {vr(fr[blk],4)}, {c}")
        E_, O_ = ACC + 8*mm, ACC + 8*mm + 4
        D_ = A + 16*mm
        e("s_nop 7")
        for r in range(4):
            e(f"v_add_f32 v{D_+r}, v{E_+r}, v{O_+r}")
        for r in range(4):
            e(f"v_sub_f32 v{D_+4+r}, v{E_+r}, v{O_+r}")
        if mm == 0:
            e(f"v_cndmask_b32 v{D_}, v{D_}, 0, vcc")
        e(f"ds_write_b128 v13, {vr(D_,4)} offset:{64*mm}")
        o = 16*(1-mm)
        if mm == 0:
            e(f"ds_write_b32 v14, v{D_+4}")
            e(f"ds_write_b32 v15, v{D_+5} offset:{(o+2)*4}")
        else:
            e(f"ds_write2_b32 v15, v{D_+4}, v{D_+5} offset0:{o+3} offset1:{o+2}")
        e(f"ds_write2_b32 v15, v{D_+6}, v{D_+7} offset0:{o+1} offset1:{o}")
    e("L_p2_join:")
    Y = 16
    e(f"s_waitcnt vmcnt(2)")
    for j in range(8):
        e(f"v_dot2c_f32_bf16 v123, s52, v{WR+j}")
    e(f"s_waitcnt vmcnt(0)")
    un = []
    for j in range(8):
        un.append(f"v_lshlrev_b32 v{T+2*j}, 16, v{XR+j}")
        un.append(f"v_and_b32 v{T+2*j+1}, s43, v{XR+j}")
    for _ in range(3): e(un.pop(0))
    for ror in (8, 4, 2, 1):
        e(f"v_add_f32_dpp v123, v123, v123 row_ror:{ror} row_mask:0xf bank_mask:0xf")
        e(un.pop(0)); e(un.pop(0))
    e("v_mov_b32 v124, v123")
    e(un.pop(0)); e(un.pop(0))
    e("v_permlane16_swap_b32 v123, v124")
    while un: e(un.pop(0))
    e("v_add_f32 v123, v123, v124")
    e("s_waitcnt lgkmcnt(0)")
    if not OPT.get("x1", 0): stamp(e, 4)
    e("s_barrier")
    e("s_mov_b64 exec, s[40:41]")
    e(f"ds_read_b128 {vr(Y,4)}, v7")
    e(f"ds_read_b128 {vr(Y+4,4)}, v7 offset:16")
    e(f"ds_read_b128 {vr(Y+8,4)}, v7 offset:896")
    e(f"ds_read_b128 {vr(Y+12,4)}, v7 offset:912")
    for j in range(8):
        if j % 2 == 0:
            e(f"s_waitcnt lgkmcnt({3-j//2})")
        e(f"v_pk_add_f32 {vr(T+2*j,2)}, {vr(Y+2*j,2)}, {vr(T+2*j,2)}")
        if j % 2 == 1:
            e(f"v_cvt_pk_bf16_f32 v{H+j-1}, v{T+2*j-2}, v{T+2*j-1}")
            e(f"v_cvt_pk_bf16_f32 v{H+j}, v{T+2*j}, v{T+2*j+1}")
    for j in range(8):
        e(f"v_dot2c_f32_bf16 v8, s52, v{H+j}")
        e(f"v_dot2c_f32_bf16 v9, v{H+j}, v{H+j}")
        e(f"v_dot2c_f32_bf16 v122, v{H+j}, v{WR+j}")
    e("s_mov_b64 exec, -1")
    for ror in (8, 4, 2, 1):
        for r in (8, 9, 122):
            e(f"v_add_f32_dpp v{r}, v{r}, v{r} row_ror:{ror} row_mask:0xf bank_mask:0xf")
    e("v_mov_b32 v13, v8")
    e("v_mov_b32 v14, v9")
    e("v_mov_b32 v15, v122")
    e("v_permlane16_swap_b32 v8, v13")
    e("v_permlane16_swap_b32 v9, v14")
    e("v_permlane16_swap_b32 v122, v15")
    e("v_add_f32 v8, v8, v13")
    e("v_add_f32 v9, v9, v14")
    e("v_add_f32 v12, v122, v15")
    e("v_mul_f32 v8, s38, v8")
    e("v_mul_f32 v9, s38, v9")
    e("v_fma_f32 v9, -v8, v8, v9")
    e("v_max_f32 v9, 0, v9")
    e("v_cvt_pk_bf16_f32 v8, v9, v8")
    e("v_lshlrev_b32 v9, 16, v8")
    e(f"v_add_f32 v9, {fbits(1e-5)}, v9")
    e("v_cvt_pk_bf16_f32 v9, v9, v9")
    e("v_and_b32 v9, s43, v9")
    e("v_sqrt_f32 v9, v9")
    e("v_and_b32 v8, s43, v8")
    e("v_cvt_pk_bf16_f32 v13, v9, v8")
    e("v_lshlrev_b32 v9, 16, v13")
    e("v_rcp_f32 v9, v9")
    e("v_fma_f32 v12, -v8, v123, v12")
    e("v_mul_f32 v12, v12, v9")
    e("v_add_f32 v4, 1.0, v9")
    e("v_cvt_pk_bf16_f32 v12, v12, v12")
    e("v_mul_f32 v14, -v8, v9")
    e("v_ashrrev_i32 v6, 31, v12")
    e("v_mov_b32 v5, v4")
    e("v_or_b32 v6, 0x80000000, v6")
    e("v_mov_b32 v15, v14")
    e("v_xor_b32 v12, v12, v6")
    e("v_and_or_b32 v12, v12, s43, v121")
    e("ds_write2_b32 v120, v12, v13 offset0:0 offset1:16")
    def outs(lo, hi):
        for j in range(lo, hi):
            e(f"v_pk_fma_f32 {vr(T+2*j,2)}, {vr(T+2*j,2)}, v[4:5], v[14:15]")
            if j % 2 == 1:
                e(f"v_cvt_pk_bf16_f32 v{XR+j-1}, v{T+2*j-2}, v{T+2*j-1}")
                e(f"v_cvt_pk_bf16_f32 v{XR+j}, v{T+2*j}, v{T+2*j+1}")
    e("v_lshlrev_b32 v6, 2, v1")
    e(f"v_add_u32 v7, {KBUF}, v6")
    KF = OPT.get("kf", 1)
    if KF:
        outs(0, 8)
    else:
        outs(0, 4)
        e(f"buffer_store_dwordx4 {vr(XR,4)}, v10, s[44:47], s35 offen sc1")
    e("s_waitcnt lgkmcnt(0)")
    stamp(e, 5)
    e("s_barrier")
    e("s_cmp_lg_u32 s28, 0")
    e("s_cbranch_scc1 L_p2_nokey")
    e("ds_read_b32 v12, v7")
    e("s_mov_b32 exec_hi, 0")
    e("s_waitcnt lgkmcnt(0)")
    e("buffer_store_dword v12, v6, s[24:27], s53 offen sc1")
    e("s_mov_b64 exec, -1")
    e("L_p2_nokey:")
    if KF:
        e("s_barrier")
        e(f"buffer_store_dwordx4 {vr(XR,4)}, v10, s[44:47], s35 offen sc1")
    else:
        outs(4, 8)
    e(f"buffer_store_dwordx4 {vr(XR+4,4)}, v10, s[44:47], s35 offen offset:448 sc1")
    e("s_waitcnt vmcnt(0)")
    stamp(e, 6)
    e("s_barrier")
    e("s_cmp_lg_u32 s28, 0")
    e("s_cbranch_scc1 L_p2_end")
    e("s_mov_b64 exec, 1")
    e("v_mov_b32 v12, 1")
    e(f"s_add_u32 s53, s53, {WS_FLAG - WS_KEY}")
    e(f"buffer_store_dword v12, off, s[24:27], s53 sc1")
    e("L_p2_end:")
    stamp_flush(e, 1, 24, 7, 28)
    e("s_endpgm")

def ffn(e):
    XS, ONES, ACT, MISC, GB = 0, 7168, 14336, 15360, 16384
    DB = GB + 57344
    A, AD_, ACC = 64, 36, 32
    K = 64
    e("s_sub_u32 s29, s2, 128")
    e("s_and_b32 s37, s29, 7")
    e("s_lshr_b32 s38, s29, 3")
    e("s_mul_i32 s39, s37, 7")
    e("s_add_u32 s39, s39, s38")
    e("s_cmp_eq_u32 s28, 7")
    e("s_cbranch_scc1 L_f_poll")
    e("s_cmp_lt_u32 s28, 4")
    e("s_cbranch_scc1 L_f_comp")
    e("v_lshrrev_b32 v5, 2, v1")
    e("v_and_b32 v6, 3, v1")
    e("v_lshrrev_b32 v7, 4, v1")
    e("v_and_b32 v7, 2, v7")
    e("v_xor_b32 v6, v6, v7")
    e("s_cmp_eq_u32 s28, 5")
    e("s_cselect_b32 s40, 1, 0")
    e("v_xor_b32 v6, s40, v6")
    e("s_cmp_eq_u32 s28, 6")
    e("s_movk_i32 s41, 896")
    e("s_cselect_b32 s41, s41, 3584")
    e("s_cselect_b32 s42, 64, 114688")
    e("s_cselect_b32 s43, 28672, 64")
    e("v_mul_u32_u24 v5, s41, v5")
    e("v_lshl_add_u32 v5, v6, 4, v5")
    e("s_lshl_b32 s44, s41, 4")
    e("v_add_u32 v6, s44, v5")
    e("s_mul_i32 s43, s43, s39")
    e("s_sub_u32 s44, s28, 4")
    e("s_mul_i32 s44, s44, 28672")
    e(f"s_add_u32 s44, s44, {GB}")
    e("s_waitcnt lgkmcnt(0)")
    stamp(e, 1)
    e("s_cmp_eq_u32 s28, 5")
    e("s_cselect_b32 s48, s12, s10")
    e("s_cselect_b32 s49, s13, s11")
    e("s_cmp_eq_u32 s28, 6")
    e("s_cselect_b32 s48, s14, s48")
    e("s_cselect_b32 s49, s15, s49")
    e(f"s_mov_b32 s50, {WBYTES:#x}")
    e("s_mov_b32 s51, 0x20000")
    e("s_add_u32 s45, s44, 28672")
    e("s_barrier")
    if OPT.get("ldly", 0): e(f"s_sleep {OPT['ldly']}")
    e("L_f_dma:")
    e("s_mov_b32 m0, s44")
    e("s_add_u32 s44, s44, 2048")
    e("buffer_load_dwordx4 v5, s[48:51], s43 offen lds")
    e("s_add_u32 m0, m0, 1024")
    e("s_nop 0")
    e("buffer_load_dwordx4 v6, s[48:51], s43 offen lds")
    e("s_add_u32 s43, s43, s42")
    e("s_cmp_lt_u32 s44, s45")
    e("s_cbranch_scc1 L_f_dma")
    stamp(e, 2)
    e(f"v_mov_b32 v5, {MISC}")
    e("v_mov_b32 v6, 1")
    e("s_mov_b64 exec, 1")
    e("s_waitcnt vmcnt(0)")
    e("ds_add_u32 v5, v6")
    e("s_waitcnt lgkmcnt(0)")
    if DIAG:
        srd(e, 24, 20, WS_SIZE)
        stamp_flush(e, 1, 24, 3, 28)
    e("s_endpgm")

    e("L_f_comp:")
    e("v_mov_b32 v8, 0x3f803f80")
    e("v_mov_b32 v9, v8")
    e("v_mov_b32 v10, v8")
    e("v_mov_b32 v11, v8")
    e("v_lshlrev_b32 v5, 4, v0")
    e(f"ds_write_b128 v5, v[8:11] offset:{ONES}")
    e(f"ds_write_b128 v5, v[8:11] offset:{ONES+3072}")
    e("v_mov_b32 v6, 0")
    e(f"v_mov_b32 v7, {MISC}")
    e("ds_write_b32 v7, v6")
    e("s_waitcnt lgkmcnt(0)")
    stamp(e, 1)
    e("s_barrier")
    srd(e, 24, 20, WS_SIZE)
    e("v_lshrrev_b32 v8, 2, v2")
    e("v_bfe_u32 v9, v2, 1, 1")
    e("v_and_b32 v10, 1, v3")
    e("v_and_b32 v13, 1, v2")
    e("v_lshlrev_b32 v13, 3, v13")
    e("v_lshl_add_u32 v11, v10, 1, v9")
    e("v_xor_b32 v11, s28, v11")
    e("v_lshl_add_u32 v14, v3, 3, v8")
    e("v_lshl_add_u32 v14, v14, 6, v13")
    e("v_lshl_add_u32 v14, v11, 4, v14")
    e("v_mul_u32_u24 v11, 28672, v9")
    e(f"s_movk_i32 s42, {GB}")
    e("v_add3_u32 v14, v14, v11, s42")
    e("v_lshl_add_u32 v8, v10, 3, v8")
    e("v_lshl_add_u32 v15, v8, 6, v13")
    e("s_and_b32 s42, s28, 1")
    e("v_xor_b32 v10, s42, v10")
    e("v_lshl_add_u32 v10, v10, 1, v9")
    e("v_lshl_add_u32 v15, v10, 4, v15")
    e("v_lshrrev_b32 v10, 1, v3")
    e("v_lshl_add_u32 v15, v10, 10, v15")
    e("s_lshr_b32 s42, s28, 1")
    e("s_lshl_b32 s42, s42, 11")
    e(f"s_add_u32 s42, s42, {DB}")
    e("v_add_u32 v15, s42, v15")
    e("v_and_b32 v8, 7, v2")
    e("v_and_b32 v9, 6, v2")
    e("v_xor_b32 v9, v9, v3")
    e("v_lshlrev_b32 v8, 7, v8")
    e("v_lshl_add_u32 v12, v9, 4, v8")
    e("v_cmp_gt_u32 vcc, 8, v2")
    e(f"v_mov_b32 v8, {ONES}")
    e("v_lshlrev_b32 v6, 4, v2")
    e("v_cndmask_b32 v12, v8, v12, vcc")
    e("v_xor_b32 v13, 64, v12")
    e("v_lshl_add_u32 v6, v3, 7, v6")
    e("v_mov_b32 v8, 0x7ff00000")
    e("v_cndmask_b32 v6, v8, v6, vcc")
    e("s_lshl_b32 s42, s28, 8")
    e(f"s_add_u32 s42, s42, {ACT}")
    e("v_lshl_add_u32 v5, v2, 4, s42")
    e("v_lshl_add_u32 v5, v3, 3, v5")
    e("s_mul_i32 s44, s39, 14336")
    e("s_lshl_b32 s42, s28, 9")
    e("s_add_u32 s44, s44, s42")
    e(f"s_add_u32 s44, s44, {WS_PART}")
    for j in range(1, 4):
        e(f"s_add_u32 s{44+j}, s44, {4096*j}")
    e(f"s_mov_b32 s42, {fbits(-1.4426950408889634)}")
    e("v_and_b32 v11, 7, v2")
    e("v_lshlrev_b32 v11, 2, v11")
    e("L_f_wait:")
    e("s_sleep 2")
    e("ds_read_b32 v8, v7")
    e("s_waitcnt lgkmcnt(0)")
    e("v_cmp_ne_u32 vcc, 3, v8")
    e("s_cbranch_vccnz L_f_wait")
    stamp(e, 2)
    for k in range(14):
        for io in range(2):
            e(f"ds_read_b64_tr_b16 {vr(A+4*k+2*io,2)}, v14 offset:{k*2048+io*256}")
    for i in range(7):
        for io in range(2):
            e(f"ds_read_b64_tr_b16 {vr(AD_+4*i+2*io,2)}, v15 offset:{i*4096+io*256}")
    e("s_waitcnt lgkmcnt(0)")
    stamp(e, 3)
    e("s_barrier")
    stamp(e, 4)
    BR = [16, 20, 24, 28, 120, 124]
    def rdx(k):
        e(f"ds_read_b128 {vr(BR[k%6],4)}, v{12 + (k&1)} offset:{XS + (k>>1)*1024}")
    for k in range(5): rdx(k)
    e(f"ds_read_b32 v10, v11 offset:{MISC+64}")
    for k in range(14):
        if k + 5 < 14:
            rdx(k + 5)
        n_after = min(k + 5, 13) - k + (1 if k < 5 else 0)
        e(f"s_waitcnt lgkmcnt({n_after})")
        c = "0" if k == 0 else vr(ACC, 4)
        e(f"v_mfma_f32_16x16x32_bf16 {vr(ACC,4)}, {vr(A+4*k,4)}, {vr(BR[k%6],4)}, {c}")
        if k == 6:
            e("v_lshlrev_b32 v9, 16, v10")
            e("v_add_f32 v9, 1.0, v9")
        if k == 8:
            e("v_and_b32 v10, 0xffff0000, v10")
            e("v_rcp_f32 v9, v9")
    e("s_nop 7")
    for r in range(4):
        e(f"v_mov_b32_dpp v{16+r}, v{ACC+r} row_newbcast:8 row_mask:0xf bank_mask:0xf")
    for r in range(4):
        e(f"v_fma_f32 v{ACC+r}, -v10, v{16+r}, v{ACC+r}")
    for r in range(4):
        e(f"v_mul_f32 v{ACC+r}, v{ACC+r}, v9")
    e("s_nop 0")
    for r in range(4):
        e(f"v_permlane32_swap_b32 v{ACC+r}, v{20+r}")
    for r in range(4):
        e(f"v_mul_f32 v{16+r}, s42, v{ACC+r}")
    for r in range(4):
        e(f"v_exp_f32 v{16+r}, v{16+r}")
    for r in range(4):
        e(f"v_mul_f32 v{ACC+r}, v{ACC+r}, v{20+r}")
    for r in range(4):
        e(f"v_add_f32 v{16+r}, 1.0, v{16+r}")
    for r in range(4):
        e(f"v_rcp_f32 v{16+r}, v{16+r}")
    e("s_mov_b32 exec_hi, 0")
    for r in range(4):
        e(f"v_mul_f32 v{ACC+r}, v{ACC+r}, v{16+r}")
    e(f"v_cvt_pk_bf16_f32 v16, v{ACC}, v{ACC+1}")
    e(f"v_cvt_pk_bf16_f32 v17, v{ACC+2}, v{ACC+3}")
    e("ds_write_b64 v5, v[16:17]")
    e("s_mov_b32 exec_hi, -1")
    e("s_waitcnt lgkmcnt(0)")
    stamp(e, 5)
    e("s_barrier")
    e(f"ds_read_b128 v[16:19], v4 offset:{ACT}")
    e("s_waitcnt lgkmcnt(0)")
    for i in range(7):
        e(f"v_mfma_f32_16x16x32_bf16 {vr(A+4*i,4)}, {vr(AD_+4*i,4)}, v[16:19], 0")
    e("s_nop 1")
    for i in range(7):
        e(f"buffer_store_dwordx4 {vr(A+4*i,4)}, v6, s[24:27], s{44+(i>>1)} offen offset:{2048*(i&1)} sc1")
    stamp(e, 6)
    B4 = OPT.get("b4", 0)
    if B4 >= 0:
        e(f"s_waitcnt vmcnt({B4})")
        e("s_barrier")
    stamp_flush(e, 1, 24, 7, 28)
    e("s_endpgm")

    e("L_f_poll:")
    PFL = ["sc1", "sc0 sc1"][OPT.get("pfl", 0)]
    e("s_setprio 3")
    for j in range(4):
        e(f"s_mov_b32 s{58+j}, {WS_KEY+4096*j:#x}")
    e(f"s_mov_b32 s56, {WS_FLAG:#x}")
    e(f"s_mov_b32 s57, {WS_FLAG+8192:#x}")
    e("v_lshrrev_b32 v4, 2, v1")
    e("v_lshlrev_b32 v4, 7, v4")
    e("v_and_b32 v5, 3, v1")
    e("v_lshl_add_u32 v4, v5, 4, v4")
    e("s_mov_b32 s46, 0")
    e("s_mov_b32 s47, 0")
    e("v_lshrrev_b32 v5, 3, v1")
    e("v_and_b32 v6, 7, v1")
    e("v_lshlrev_b32 v13, 2, v6")
    e("v_and_b32 v7, 6, v5")
    e("v_xor_b32 v6, v6, v7")
    e("v_lshlrev_b32 v6, 4, v6")
    e("v_lshlrev_b32 v5, 2, v5")
    e("v_bfe_u32 v14, v1, 3, 1")
    e("s_lshl_b32 s42, s39, 4")
    e("v_lshl_add_u32 v14, v14, 3, s42")
    e("v_mul_u32_u24 v24, 14336, v3")
    e("v_lshl_add_u32 v24, v2, 4, v24")
    e("v_add_u32 v25, 57344, v24")
    e("v_add_u32 v26, 57344, v25")
    e("v_add_u32 v27, 57344, v26")
    e("s_lshl_b32 s52, s39, 8")
    e(f"s_add_u32 s52, s52, {WS_PART}")
    for j in range(1, 4):
        e(f"s_add_u32 s{52+j}, s52, {4*57344*j}")
    e("v_mov_b32 v8, 0")
    e("v_mov_b32 v9, 0")
    e("v_mov_b32 v10, 0")
    e("v_lshlrev_b32 v7, 12, v1")
    e("v_lshlrev_b32 v19, 7, v1")
    e("v_lshlrev_b32 v30, 2, v1")
    e("s_movk_i32 s44, 896")
    e("s_mov_b32 s45, 0xffff0000")
    e("s_waitcnt lgkmcnt(0)")
    stamp(e, 1)
    srd(e, 24, 20, WS_SIZE)
    srd(e, 48, 16, XBYTES)
    e("s_barrier")
    e("s_mov_b64 exec, 0xf")
    e("L_f_p0:")
    e("s_sleep 2")
    e("buffer_load_dword v11, v7, s[24:27], s58 offen offset:3968 " + PFL)
    e("s_add_u32 s47, s47, 1")
    e("s_waitcnt vmcnt(0)")
    e("v_cmp_ne_u32 vcc, 0, v11")
    e("s_cbranch_vccnz L_f_p1")
    e("s_cmp_lt_u32 s47, 0x40000")
    e("s_cbranch_scc1 L_f_p0")
    e("L_f_p1:")
    e("s_mov_b64 exec, -1")
    e("L_f_pk:")
    for i in range(8):
        e(f"s_bitcmp1_b32 s46, {i}")
        e(f"s_cbranch_scc1 L_f_sl{i}")
        e(f"buffer_load_dwordx4 {vr(K+4*i,4)}, v4, s[24:27], s{58+(i>>1)} offen offset:{(i&1)*2048} " + PFL)
        e(f"L_f_sl{i}:")
    e("s_add_u32 s47, s47, 1")
    e("s_waitcnt vmcnt(0)")
    for i in range(8):
        e(f"s_bitcmp1_b32 s46, {i}")
        e(f"s_cbranch_scc1 L_f_sf{i}")
        e(f"v_min3_u32 v11, v{K+4*i}, v{K+4*i+1}, v{K+4*i+2}")
        e(f"v_min_u32 v11, v11, v{K+4*i+3}")
        e("v_cmp_eq_u32 vcc, 0, v11")
        e(f"s_cbranch_vccnz L_f_sf{i}")
        e(f"s_bitset1_b32 s46, {i}")
        for j in range(4):
            e(f"v_med3_u32 v10, v9, v10, v{K+4*i+j}")
            e(f"v_med3_u32 v9, v8, v9, v{K+4*i+j}")
            e(f"v_max_u32 v8, v8, v{K+4*i+j}")
        e(f"L_f_sf{i}:")
    e("s_cmp_eq_u32 s46, 0xff")
    e("s_cbranch_scc1 L_f_keys")
    e("s_cmp_lt_u32 s47, 0x40000")
    e("s_cbranch_scc1 L_f_pk")
    e("L_f_keys:")
    stamp(e, 2)
    FR = OPT.get("fr", 2)
    def flagloads():
        e("buffer_load_dword v28, v19, s[24:27], s56 offen sc1")
        e("buffer_load_dword v29, v19, s[24:27], s57 offen sc1")
    for rd in range(8):
        for si, st in enumerate(DPP6):
            if si == 0:
                e(f"v_max_u32_dpp v11, v8, v8 {st} bank_mask:0xf bound_ctrl:0")
            else:
                e(f"v_max_u32_dpp v11, v11, v11 {st} bank_mask:0xf")
            if si < 5:
                if rd == FR and si == 0:
                    flagloads()
                else:
                    e("s_nop 1")
        e("s_nop 0")
        e("v_readlane_b32 s42, v11, 63")
        e("s_nop 1")
        e("v_cmp_eq_u32 vcc, s42, v8")
        e(f"v_writelane_b32 v12, s42, {rd}")
        e("s_nop 0")
        e("v_cndmask_b32 v8, v8, v9, vcc")
        e("v_cndmask_b32 v9, v9, v10, vcc")
        e("v_cndmask_b32 v10, v10, 0, vcc")
    e("v_cmp_eq_u32 vcc, 0, v8")
    e("s_cbranch_vccz L_f_topdone")
    e("s_mov_b32 m0, 0")
    e("s_mov_b32 s42, -1")
    e("L_f_slow:")
    e(f"v_sub_u32 v8, s42, v{K}")
    e(f"v_sub_u32 v9, s42, v{K+1}")
    e("v_min_u32 v8, v8, v9")
    for i in range(2, 32, 2):
        e(f"v_sub_u32 v9, s42, v{K+i}")
        e(f"v_sub_u32 v10, s42, v{K+i+1}")
        e("v_min3_u32 v8, v8, v9, v10")
    for st in DPP6:
        e("s_nop 1")
        e(f"v_min_u32_dpp v8, v8, v8 {st} bank_mask:0xf")
    e("s_nop 0")
    e("v_readlane_b32 s47, v8, 63")
    e("s_nop 3")
    e("s_sub_u32 s42, s42, s47")
    e("v_writelane_b32 v12, s42, m0")
    e("s_sub_u32 s42, s42, 1")
    e("s_add_u32 m0, m0, 1")
    e("s_cmp_lt_u32 m0, 8")
    e("s_cbranch_scc1 L_f_slow")
    e("L_f_topdone:")
    stamp(e, 3)
    e("ds_bpermute_b32 v8, v5, v12")
    e("ds_bpermute_b32 v15, v13, v12")
    e("s_mov_b32 s47, 0")
    e("s_waitcnt lgkmcnt(1)")
    e("v_not_b32 v8, v8")
    e("v_and_b32 v8, 0x7ff, v8")
    e("v_mad_u32_u24 v31, v8, s44, v6")
    e("L_f_gather:")
    e(f"s_mov_b32 m0, {XS}")
    e("v_mov_b32 v8, v31")
    e("s_waitcnt vmcnt(0)")
    for j in range(7):
        e(f"buffer_load_dwordx4 v8, s[48:51], 0 offen sc1 lds")
        if j < 6:
            e(f"s_mov_b32 m0, {XS + 1024*(j+1)}")
            e("v_add_u32 v8, 128, v8")
    e("s_waitcnt lgkmcnt(0)")
    e("v_not_b32 v9, v15")
    e("v_and_b32 v9, 0x7ff, v9")
    e("v_mad_u32_u24 v20, v9, s44, v14")
    e("v_and_b32 v21, 63, v9")
    e("v_sub_u32 v22, 64, v21")
    e("v_min_u32 v22, v21, v22")
    e("v_and_b32 v22, 31, v22")
    e("v_lshrrev_b32 v23, 10, v9")
    e("v_lshl_add_u32 v22, v23, 5, v22")
    e("v_lshrrev_b32 v23, 5, v21")
    e("v_lshl_add_u32 v10, v23, 6, v22")
    e("v_bfe_u32 v23, v9, 6, 4")
    e("v_lshlrev_b32 v10, 7, v10")
    e("v_lshl_add_u32 v10, v23, 2, v10")
    e("buffer_load_dword v11, v10, s[24:27], s58 offen offset:64 sc1")
    e("buffer_load_dwordx2 v[16:17], v20, s[48:51], 0 offen sc1")
    e("v_lshlrev_b32 v22, 2, v22")
    e("ds_bpermute_b32 v23, v22, v28")
    e("ds_bpermute_b32 v22, v22, v29")
    e("v_cmp_gt_u32 vcc, 32, v21")
    e("s_add_u32 s47, s47, 1")
    e("s_waitcnt lgkmcnt(0)")
    e("v_cndmask_b32 v22, v22, v23, vcc")
    e("v_cmp_eq_u32 vcc, 0, v22")
    e("s_cbranch_vccz L_f_flagok")
    flagloads()
    e("s_cmp_lt_u32 s47, 0x40000")
    e("s_cbranch_scc1 L_f_gather")
    e("L_f_flagok:")
    e("s_waitcnt vmcnt(1)")
    e("s_mov_b64 exec, 0xff")
    e(f"ds_write_b32 v30, v11 offset:{MISC+64}")
    e("s_mov_b64 exec, -1")
    e("s_waitcnt lgkmcnt(0)")
    stamp(e, 4)
    e("s_barrier")
    e("v_ashrrev_i32 v9, 31, v15")
    e("v_not_b32 v9, v9")
    e("v_or_b32 v9, 0x80000000, v9")
    e("v_xor_b32 v15, v15, v9")
    e("v_and_b32 v15, s45, v15")
    e(f"v_mul_f32 v18, {fbits(-1.4426950408889634)}, v15")
    e("v_exp_f32 v18, v18")
    e("v_mov_b32 v10, 1.0")
    e("v_add_f32 v18, 1.0, v18")
    e("v_rcp_f32 v18, v18")
    e("s_mov_b32 s47, 0")
    e("v_cvt_pk_bf16_f32 v18, v18, v18")
    e("v_and_b32 v18, s45, v18")
    e("v_mov_b32 v14, v20")
    e("s_waitcnt vmcnt(0)")
    e("v_lshlrev_b32 v20, 16, v16")
    e("v_and_b32 v21, s45, v16")
    e("v_lshlrev_b32 v22, 16, v17")
    e("v_and_b32 v23, s45, v17")
    e("s_barrier")
    if B4 >= 0:
        e("s_barrier")
    stamp(e, 5)
    P = 64
    e("L_f_pp:")
    for i in range(14):
        e(f"buffer_load_dwordx4 {vr(P+4*i,4)}, v{24+(i&3)}, s[24:27], s{52+(i>>2)} offen sc1")
    e("s_add_u32 s47, s47, 1")
    e("s_waitcnt vmcnt(12)")
    e(f"v_pk_add_f32 v[28:29], {vr(P,2)}, {vr(P+4,2)}")
    e(f"v_pk_add_f32 v[30:31], {vr(P+2,2)}, {vr(P+6,2)}")
    for i in range(2, 14):
        e(f"s_waitcnt vmcnt({13-i})")
        e(f"v_pk_add_f32 v[28:29], v[28:29], {vr(P+4*i,2)}")
        e(f"v_pk_add_f32 v[30:31], v[30:31], {vr(P+4*i+2,2)}")
    e("v_add_f32 v8, v28, v29")
    e("v_add_f32 v9, v30, v31")
    e("v_cmp_u_f32 vcc, v8, v9")
    e("s_cbranch_vccz L_f_got")
    e(f"v_max3_u32 v8, v{P}, v{P+1}, v{P+2}")
    for i in range(3, 55, 2):
        e(f"v_max3_u32 v8, v8, v{P+i}, v{P+i+1}")
    e(f"v_max_u32 v8, v8, v{P+55}")
    e("v_cmp_eq_u32 vcc, -1, v8")
    e("s_cbranch_vccz L_f_got")
    e("s_cmp_lt_u32 s47, 0x40000")
    e("s_cbranch_scc1 L_f_pp")
    e("L_f_got:")
    stamp(e, 6)
    for r in range(4):
        e(f"v_mfma_f32_16x16x4_f32 {vr(32+4*r,4)}, v10, v{28+r}, 0")
    e("s_nop 7")
    e("s_nop 0")
    e("v_cvt_pk_bf16_f32 v16, v32, v36")
    e("v_cvt_pk_bf16_f32 v17, v40, v44")
    e("v_lshlrev_b32 v24, 16, v16")
    e("v_and_b32 v25, s45, v16")
    e("v_lshlrev_b32 v26, 16, v17")
    e("v_and_b32 v27, s45, v17")
    for r in range(4):
        e(f"v_mul_f32 v{24+r}, v{24+r}, v18")
    e("v_cvt_pk_bf16_f32 v16, v24, v25")
    e("v_cvt_pk_bf16_f32 v17, v26, v27")
    e("v_lshlrev_b32 v24, 16, v16")
    e("v_and_b32 v25, s45, v16")
    e("v_lshlrev_b32 v26, 16, v17")
    e("v_and_b32 v27, s45, v17")
    for r in range(4):
        e(f"v_add_f32 v{24+r}, v{24+r}, v{20+r}")
    e("v_cvt_pk_bf16_f32 v16, v24, v25")
    e("v_cvt_pk_bf16_f32 v17, v26, v27")
    e("s_mov_b64 exec, 0xffff")
    e("buffer_store_dwordx2 v[16:17], v14, s[48:51], 0 offen")
    stamp_flush(e, 1, 24, 7, 28)

if __name__ == "__main__":
    for a in sys.argv[2:]:
        if a == "diag":
            DIAG = True; gen.DIAG = True
        else:
            k, v = a.split("=")
            OPT[k] = int(v)
    build([ka, kb], sys.argv[1])
```

```python
import struct, sys
from gen import E, fbits, vr, ar, srd, header, build, NAME
import gen

WS_V    = 0x000000
WS_KEY  = 0x300000
WS_FLAG = 0x304000
WS_PART = 0x308000
WS_SIZE = 0x10000000
XBYTES  = 2048*896
WBYTES  = 448*1792*2
WS_DIAG = 0x800000
DIAG = False
OPT = {}
DPP6 = ["row_shr:1 row_mask:0xf", "row_shr:2 row_mask:0xf", "row_shr:4 row_mask:0xf", "row_shr:8 row_mask:0xf",
        "row_bcast:15 row_mask:0xa", "row_bcast:31 row_mask:0xc"]

def stamp(e, i):
    if DIAG:
        e(f"s_mem{'time' if OPT.get('cyc', 0) and i in (4, 5) else 'realtime'} s[{64+2*i}:{65+2*i}]")
        e("s_waitcnt lgkmcnt(0)")
def stamp_flush(e, kid, srdreg, nst, wavereg):
    if DIAG:
        e("s_mov_b64 exec, -1")
        e(f"s_memrealtime s[{64+2*nst}:{65+2*nst}]")
        e("s_waitcnt lgkmcnt(0)")
        for i in range(nst+1):
            e(f"v_writelane_b32 v0, s{64+2*i}, {i}")
        e(f"s_lshl_b32 s60, s2, 3")
        e(f"s_add_u32 s60, s60, s{wavereg}")
        e(f"s_lshl_b32 s60, s60, 6")
        e(f"s_add_u32 s60, s60, {WS_DIAG + kid*0x40000}")
        e("v_mbcnt_lo_u32_b32 v1, -1, 0")
        e("v_lshlrev_b32 v1, 2, v1")
        e("s_mov_b32 exec_lo, 0xffff")
        e("s_mov_b32 exec_hi, 0")
        e(f"buffer_store_dword v0, v1, s[{srdreg}:{srdreg+3}], s60 offen")

class Lds:
    def __init__(self, e):
        self.e = e; self.q = []
    def issue(self, tag, ins):
        self.e(ins); self.q.append(tag)
    def need(self, tag):
        if tag not in self.q: return
        last = max(i for i, t in enumerate(self.q) if t == tag)
        n = len(self.q) - 1 - last
        assert n <= 15, n
        self.e(f"s_waitcnt lgkmcnt({n})")
        self.q = self.q[last+1:]

def ka(e):
    header(e, "fnet_ka_kernel")
    X, ACC, CUR, PRV, PK, RF, BB = 64, 32, 16, 24, 48, 56, 120
    SUM, GRM = 32, 36
    LDS_X, LDS_Z = 57344, 114688
    LDS_R = LDS_Z + 8192
    LDS_ST = LDS_R + 8192
    LDS_CS = LDS_ST + 8192
    e("s_cmp_ge_u32 s2, 256")
    e("s_cbranch_scc1 L_ka_end")
    stamp(e, 0)
    e("s_load_dwordx2 s[4:5], s[0:1], 0")
    e("s_load_dwordx2 s[6:7], s[0:1], 96")
    e("s_load_dwordx8 s[44:51], s[0:1], 48")
    e("v_lshrrev_b32 v1, 6, v0")
    e("v_and_b32 v2, 15, v0")
    e("v_readfirstlane_b32 s43, v1")
    e("v_bfe_u32 v3, v0, 4, 2")
    e("v_and_b32 v1, 63, v0")
    e("s_cmp_ge_u32 s2, 224")
    e("s_cbranch_scc1 L_ka_spare")
    e("s_and_b32 s16, s43, 3")
    e("s_and_b32 s17, s2, 7")
    e("s_bfe_u32 s18, s2, 0x20003")
    e("s_lshr_b32 s19, s2, 5")
    e("s_lshr_b32 s21, s16, 1")
    e("s_and_b32 s22, s16, 1")
    e("s_mul_i32 s29, s16, 14336")
    e(f"s_add_u32 s41, s29, {LDS_X}")
    e("s_mov_b32 s28, 0x3f803f80")
    e("s_cmp_ge_u32 s43, 4")
    e("s_cbranch_scc1 L_ka_help")

    def common_addr():
        e("v_lshlrev_b32 v11, 4, v1")
        e("v_and_b32 v12, 6, v2")
        e("v_xor_b32 v12, v12, v3")
        e("v_and_b32 v14, 7, v2")
        e("v_lshlrev_b32 v14, 7, v14")
        e("v_lshl_add_u32 v14, v12, 4, v14")
        e("v_lshrrev_b32 v12, 3, v2")
        e("v_lshl_add_u32 v14, v12, 10, v14")
        e("v_add_u32 v14, s41, v14")
        e("v_xor_b32 v15, 64, v14")
        e("v_mul_u32_u24 v53, 57344, v2")
        e("v_lshl_add_u32 v53, v3, 10, v53")
        e("s_mul_i32 s24, s22, 917504")
        e("s_mul_i32 s25, s21, 28672")
        e("s_add_u32 s24, s24, s25")
        e("s_lshl_b32 s25, s19, 12")
        e("s_add_u32 s24, s24, s25")
        e("s_lshr_b32 s25, s17, 2")
        e("s_lshl_b32 s25, s25, 4")
        e("s_and_b32 s26, s17, 1")
        e("s_lshl_b32 s26, s26, 3")
        e("s_add_u32 s25, s25, s26")
        e("s_and_b32 s26, s17, 2")
        e("s_lshl_b32 s26, s26, 1")
        e("s_add_u32 s25, s25, s26")
        e("s_add_u32 s25, s25, s18")
        e("s_lshl_b32 s25, s25, 5")
        e("s_add_u32 s30, s24, s25")
        e("s_lshl_b32 s24, s16, 11")
        e(f"s_add_u32 s24, s24, {LDS_R}")
        e("v_add_u32 v52, s24, v11")
    def gemm2(hh):
        e(f"v_add_u32 v54, {LDS_Z + hh*4096}, v11")
        e("s_barrier")
        for j in range(4):
            e(f"ds_read_b128 {vr(X+4*j,4)}, v54 offset:{j*1024}")
        for n in range(2):
            e(f"s_waitcnt lgkmcnt({2-2*n})")
            e(f"v_mfma_f32_16x16x32_bf16 {vr(40+4*n,4)}, {vr(X+8*n,4)}, {vr(RF,4)}, 0")
            e(f"v_mfma_f32_16x16x32_bf16 {vr(40+4*n,4)}, {vr(X+8*n+4,4)}, {vr(RF+4,4)}, {vr(40+4*n,4)}")
        e("s_nop 4")
        e("v_cvt_pk_bf16_f32 v16, v40, v41")
        e("v_cvt_pk_bf16_f32 v17, v42, v43")
        e("s_nop 0")
        e("v_cvt_pk_bf16_f32 v18, v44, v45")
        e("v_cvt_pk_bf16_f32 v19, v46, v47")
        e(f"buffer_store_dwordx4 v[16:19], v53, s[12:15], s30 offen offset:{16*hh}")
        stamp(e, 7)
        if DIAG: e("s_waitcnt vmcnt(0)")
        stamp_flush(e, 0, 12, 8, 43)
        e("s_endpgm")

    MACC, AR, CS, MB = 16, 32, 44, 64
    FC, FP, FK = 64, 72, 80
    e("v_lshrrev_b32 v4, 2, v2")
    e("v_and_b32 v5, 3, v2")
    e("s_lshl_b32 s24, s19, 6")
    e("s_lshl_b32 s25, s16, 2")
    e("s_add_u32 s25, s24, s25")
    e("v_lshl_add_u32 v7, v4, 4, v5")
    e("v_add_u32 v7, s25, v7")
    e("v_mov_b32 v9, 224")
    e("v_cmp_eq_u32 vcc, 0, v7")
    e("v_subrev_u32 v8, 224, v7")
    e("v_cmp_le_u32 s[26:27], v9, v7")
    e("v_cndmask_b32 v7, v7, v9, vcc")
    e("v_mov_b32 v10, 0x3e800000")
    e("v_cndmask_b32 v7, v7, v8, s[26:27]")
    e("v_cndmask_b32 v10, 0, v10, s[26:27]")
    e("v_lshl_add_u32 v8, v3, 3, s24")
    e("v_mul_u32_u24 v8, v8, v7")
    e("v_cvt_f32_u32 v7, v7")
    e("v_cvt_f32_u32 v8, v8")
    e(f"s_mov_b32 s24, {fbits(1.0/448)}")
    e("v_mul_f32 v9, s24, v8")
    e("v_floor_f32 v9, v9")
    e(f"v_fmamk_f32 v8, v9, {fbits(-448.0)}, v8")
    e("v_mul_f32 v7, s24, v7")
    e("v_fma_f32 v8, v8, s24, v10")
    e("v_mul_f32 v9, 0x42000000, v7")
    e("v_cos_f32 v88, v9")
    for j in range(8):
        e(f"v_cos_f32 v{FC+j}, v8")
        e(f"v_sub_f32 v11, v8, v9")
        if j < 7:
            e(f"v_add_f32 v8, v8, v7")
        e(f"v_cos_f32 v{FP+j}, v11")
    e("v_add_f32 v88, v88, v88")
    e("v_lshl_add_u32 v91, v1, 4, s29")
    e("v_mov_b32 v89, v88")
    stamp(e, 1)
    e(".p2align 3")
    for st in range(14):
        A, B = (FC, FP) if st % 2 == 0 else (FP, FC)
        P = FK + 4*(st % 2)
        for j in range(4):
            e(f"v_cvt_pk_bf16_f32 v{P+j}, v{A+2*j}, v{A+2*j+1}")
        e(f"ds_write_b128 v91, {vr(P,4)} offset:{st*1024}")
        if st < 13:
            for j in range(4):
                e(f"v_pk_fma_f32 {vr(B+2*j,2)}, v[88:89], {vr(A+2*j,2)}, {vr(B+2*j,2)} neg_lo:[0,0,1] neg_hi:[0,0,1]")
    e("v_lshlrev_b32 v11, 4, v1")
    e("s_waitcnt lgkmcnt(0)")
    stamp(e, 2)
    e("s_barrier")
    L = Lds(e)
    def rB(k, n):
        L.issue(("B", k), f"ds_read_b128 {vr(MB+32+((k+6)%8)*16+4*n,4)}, v11 offset:{(n*14+k)*1024}")
    def Breg(k, n): return vr(MB+32+((k+6)%8)*16+4*n, 4)
    PRE = OPT.get("pre", 4)
    for k in range(2):
        for n in range(4): rB(k, n)
    common_addr()
    for k in range(2, PRE):
        for n in range(4): rB(k, n)
    e("s_lshl_b32 s24, s21, 10")
    e("s_lshl_b32 s25, s22, 3")
    e("s_add_u32 s24, s24, s25")
    e(f"s_add_u32 s24, s24, {LDS_Z}")
    e("v_add_u32 v55, s24, v11")
    e(f"v_lshlrev_b32 v12, 2, v2")
    e(f"v_add_u32 v12, {LDS_CS}, v12")
    e("s_lshl_b32 s25, s16, 7")
    e(f"s_add_u32 s25, s25, {LDS_ST}")
    e("v_lshl_add_u32 v13, v3, 4, s25")
    srd(e, 12, 6, WS_SIZE)
    stamp(e, 3)
    e("s_barrier")
    stamp(e, 4)
    if DIAG: L.q = []
    def rA(k):
        L.issue(("A", k), f"ds_read_b128 {vr(AR+4*(k%3),4)}, v{14+(k&1)} offset:{(k>>1)*2048}")
    L.q = L.q[-13:]
    rA(0); rA(1)
    ST, U = 64, 72
    CK = OPT.get("ck", 11)
    sh = []
    for k in range(14):
        if k == 2: e("s_barrier")
        if k == 6: e("s_barrier")
        if k == CK:
            e("s_barrier")
            L.issue("st", f"ds_read_b128 {vr(ST,4)}, v13")
            L.issue("st", f"ds_read_b128 {vr(ST+4,4)}, v13 offset:64")
        if k == CK + 1:
            L.need("st")
            for n in range(4):
                for r in range(4): sh.append(f"v_mul_f32 v{U+4*n+r}, v{ST+r}, v{CS+n}")
        L.need(("A", k))
        L.need(("B", k))
        for n in range(4):
            c = "0" if k == 0 else vr(MACC+4*n, 4)
            e(f"v_mfma_f32_16x16x32_bf16 {vr(MACC+4*n,4)}, {vr(AR+4*(k%3),4)}, {Breg(k,n)}, {c}")
            if n == 0 and k + 2 < 14: rA(k + 2)
            if k + PRE < 14: rB(k + PRE, n)
            elif k == 14 - PRE: L.issue("cs", f"ds_read_b32 v{CS+n}, v12 offset:{64*n}")
            elif k == 15 - PRE and n < 2: L.issue("R", f"ds_read_b128 {vr(RF+4*n,4)}, v52 offset:{1024*n}")
            for _ in range(3):
                if sh: e(sh.pop(0))
    if CK == 13:
        L.need("st")
        for n in range(4):
            for r in range(4): sh.append(f"v_mul_f32 v{U+4*n+r}, v{ST+r}, v{CS+n}")
    stamp(e, 5)
    nl = len(sh)
    while sh: e(sh.pop(0))
    if nl < 5: e(f"s_nop {4-nl}")
    for n in range(4):
        a = MACC + 4*n
        e(f"v_pk_fma_f32 {vr(a,2)}, {vr(a,2)}, {vr(ST+4,2)}, {vr(U+4*n,2)}")
        e(f"v_pk_fma_f32 {vr(a+2,2)}, {vr(a+2,2)}, {vr(ST+6,2)}, {vr(U+4*n+2,2)}")
        e(f"v_cvt_pk_bf16_f32 v{32+2*n}, v{a}, v{a+1}")
        e(f"v_cvt_pk_bf16_f32 v{33+2*n}, v{a+2}, v{a+3}")
        e(f"ds_write_b64 v55, {vr(32+2*n,2)} offset:{n*2048}")
    e("s_waitcnt lgkmcnt(0)")
    stamp(e, 6)
    gemm2(0)

    e("L_ka_help:")
    e("s_setprio 2")
    e("s_lshl_b32 s20, s17, 2")
    e("s_add_u32 s20, s20, s18")
    e("v_lshrrev_b32 v4, 3, v1")
    e("v_and_b32 v5, 7, v1")
    e("v_and_b32 v6, 6, v4")
    e("v_xor_b32 v5, v5, v6")
    e("v_lshrrev_b32 v6, 2, v4")
    e("v_and_b32 v4, 3, v4")
    e("v_lshl_add_u32 v6, v6, 3, v4")
    e("v_mul_u32_u24 v6, 28672, v6")
    e("v_lshl_add_u32 v6, v5, 4, v6")
    e(f"v_add_u32 v13, {16*28672}, v6")
    e("s_lshl_b32 s23, s21, 10")
    e("s_lshl_b32 s24, s22, 7")
    e("s_add_u32 s23, s23, s24")
    e("s_add_u32 s23, s23, s20")
    e("s_mul_i32 s23, s23, 896")
    e("s_lshl_b32 s31, s19, 7")
    e("s_add_u32 s32, s23, 896")
    e("s_add_u32 s31, s31, s23")
    e("s_waitcnt lgkmcnt(0)")
    stamp(e, 1)
    srd(e, 8, 4, XBYTES)
    XNT = " nt" if OPT.get("xnt", 0) else ""
    def xpair(c):
        e(f"s_add_u32 m0, s41, {c*2048}")
        e("s_add_u32 s33, s31, 128")
        e(f"buffer_load_dwordx4 v6, s[8:11], s31 offen{XNT} lds")
        e(f"s_add_u32 m0, s41, {c*2048+1024}")
        e("s_cmp_eq_u32 s33, s32")
        e(f"buffer_load_dwordx4 v13, s[8:11], s31 offen{XNT} lds")
        e("s_cselect_b32 s31, s23, s33")
    NF = OPT.get("nf", 4)
    for c in range(NF): xpair(c)
    e("s_setprio 0")
    srd(e, 12, 6, WS_SIZE)
    e("s_cmp_ge_u32 s2, 8")
    e("s_cselect_b32 s34, -1, 0")
    e("s_lshl_b32 s35, s2, 12")
    e(f"s_add_u32 s35, s35, {WS_KEY - 4096}")
    e("s_cmp_ge_u32 s2, 204")
    e("s_cselect_b32 s36, 0x7ff00000, 0")
    e("v_lshl_add_u32 v12, v0, 4, s36")
    for j in range(4):
        e(f"v_mov_b32 v{44+j}, s34")
    e("buffer_store_dwordx4 v[44:47], v12, s[12:15], s35 offen sc1")
    e("s_lshl_b32 s24, s22, 4")
    e("v_add_u32 v7, s24, v2")
    e("s_mul_i32 s25, s21, 0x3e800000")
    e("v_mov_b32 v10, s25")
    e("s_cmp_eq_u32 s16, 2")
    e("s_cselect_b32 s24, 0, -1")
    e("v_cmp_eq_u32 vcc, s24, v7")
    e("v_mov_b32 v12, 32")
    e("v_lshlrev_b32 v8, 3, v3")
    e("v_cndmask_b32 v7, v7, v12, vcc")
    e("v_cndmask_b32 v10, v10, 0, vcc")
    e("v_cvt_f32_u32 v7, v7")
    e("v_cvt_f32_u32 v8, v8")
    e(f"v_mul_f32 v7, {fbits(1.0/64)}, v7")
    e("v_fma_f32 v8, v8, v7, v10")
    e("v_mul_f32 v10, 0x42000000, v7")
    for j in range(8):
        e(f"v_cos_f32 v{CUR+j}, v8")
        e(f"v_add_f32 v12, v8, v10")
        if j < 7:
            e(f"v_add_f32 v8, v8, v7")
        e(f"v_cos_f32 v{PRV+j}, v12")
    common_addr()
    for j in range(4):
        e(f"v_cvt_pk_bf16_f32 v{RF+j}, v{CUR+2*j}, v{CUR+2*j+1}")
        e(f"v_cvt_pk_bf16_f32 v{RF+4+j}, v{PRV+2*j}, v{PRV+2*j+1}")
    e(f"ds_write_b128 v52, {vr(RF,4)}")
    e(f"ds_write_b128 v52, {vr(RF+4,4)} offset:1024")
    e("s_mul_i32 s42, s16, 224")
    e("s_add_u32 s42, s42, s2")
    e(f"s_cmp_lt_u32 s42, {OPT.get('nch', 392)}")
    e(f"s_cselect_b32 s38, {WBYTES:#x}, 0")
    e("s_cmp_ge_u32 s42, 196")
    e("s_cselect_b32 s36, s48, s46")
    e("s_cselect_b32 s37, s49, s47")
    e("s_cselect_b32 s34, 196, 0")
    e("s_cmp_ge_u32 s42, 392")
    e("s_cselect_b32 s36, s50, s36")
    e("s_cselect_b32 s37, s51, s37")
    e("s_cselect_b32 s34, 392, s34")
    e("s_sub_u32 s42, s42, s34")
    e("s_lshl_b32 s42, s42, 13")
    e("s_mov_b32 s39, 0x20000")
    e("v_lshlrev_b32 v9, 7, v1")
    e("v_add_u32 v9, s42, v9")
    for j in range(4):
        e(f"v_mov_b32 v{48+j}, s28")
    e(f"s_mov_b32 s24, {fbits(1.0/448)}")
    e(f"s_mov_b32 s26, {fbits(1e-5)}")
    e(f"s_mov_b32 s27, 0xffff0000")
    stamp(e, 2)
    vq = [c for c in range(NF) for h in range(2)] + ["clr"]
    def vwait(c):
        last = max(i for i, t in enumerate(vq) if t == c)
        e(f"s_waitcnt vmcnt({len(vq)-1-last})")
        del vq[:last+1]
    e("v_and_b32 v4, 3, v2")
    e("v_lshrrev_b32 v5, 2, v2")
    e("v_cmp_eq_u32 s[52:53], 1, v4")
    e("v_cmp_eq_u32 s[54:55], 2, v4")
    e("v_cmp_eq_u32 s[56:57], 3, v4")
    e("v_cmp_eq_u32 s[58:59], v5, v3")
    e("s_lshl_b32 s25, s16, 7")
    e(f"s_add_u32 s25, s25, {LDS_ST}")
    e("v_lshl_add_u32 v4, v2, 2, s25")
    e("v_add_u32 v5, s29, v11")
    e("s_lshl_b32 s25, s16, 6")
    e(f"s_add_u32 s25, s25, {LDS_CS}")
    e("v_lshl_add_u32 v7, v2, 2, s25")
    e("s_waitcnt lgkmcnt(0)")
    e("s_setprio 2")
    e("s_barrier")
    nx = [NF]
    def land(c):
        vwait(c)
        if nx[0] < 7:
            xpair(nx[0]); vq.extend([nx[0]]*2); nx[0] += 1
    def stat(k):
        c = "0" if k == 0 else vr(GRM, 4)
        e(f"v_mfma_f32_16x16x32_bf16 {vr(GRM,4)}, {vr(X+4*k,4)}, {vr(X+4*k,4)}, {c}")
        c = "0" if k == 0 else vr(SUM, 4)
        e(f"v_mfma_f32_16x16x32_bf16 {vr(SUM,4)}, {vr(X+4*k,4)}, v[48:51], {c}")
    def rdx(k0, k1):
        for k in range(k0, k1):
            e(f"ds_read_b128 {vr(X+4*k,4)}, v{14+(k&1)} offset:{(k>>1)*2048}")
    def stats(k0, k1, kend):
        for k in range(k0, k1):
            e(f"s_waitcnt lgkmcnt({kend-1-k})")
            stat(k)
    for k in range(14):
        e(f"ds_read_b128 {vr(120+4*k,4)}, v5 offset:{k*1024}")
    for k in range(14):
        e(f"s_waitcnt lgkmcnt({13-k})")
        e(f"v_mfma_f32_16x16x32_bf16 v[40:43], v[48:51], {vr(120+4*k,4)}, {'0' if k == 0 else 'v[40:43]'}")
    land(0); land(1)
    e("ds_write_b32 v7, v40")
    rdx(0, 4)
    stamp(e, 3)
    e("s_barrier")
    stamp(e, 4)
    stats(0, 2, 4)
    land(2)
    stats(2, 4, 4)
    land(3)
    assert nx[0] == 7
    rdx(4, 8)
    e("s_barrier")
    stats(4, 8, 8)
    e("s_waitcnt vmcnt(0)")
    rdx(8, 14)
    if OPT.get("sb", 0): stamp(e, 2)
    BE = OPT.get("be", 0)
    if BE: e("s_barrier")
    if OPT.get("pf", 1):
        e("buffer_load_dword v10, v9, s[36:39], 0 offen")
    stats(8, 14, 14)
    if not BE: e("s_barrier")
    e("s_nop 6")
    e(f"v_cndmask_b32 v20, v{GRM}, v{GRM+1}, s[52:53]")
    e(f"v_cndmask_b32 v16, v{SUM}, v{SUM+1}, s[52:53]")
    e(f"v_cndmask_b32 v20, v20, v{GRM+2}, s[54:55]")
    e(f"v_cndmask_b32 v16, v16, v{SUM+2}, s[54:55]")
    e(f"v_cndmask_b32 v20, v20, v{GRM+3}, s[56:57]")
    e(f"v_cndmask_b32 v16, v16, v{SUM+3}, s[56:57]")
    e("v_mul_f32 v20, s24, v20")
    e("v_mul_f32 v16, s24, v16")
    e("v_fma_f32 v20, -v16, v16, v20")
    e("v_max_f32 v20, 0, v20")
    e("v_cvt_pk_bf16_f32 v20, v20, v20")
    e("v_and_b32 v20, s27, v20")
    e("v_add_f32 v20, s26, v20")
    e("v_cvt_pk_bf16_f32 v20, v20, v20")
    e("v_and_b32 v20, s27, v20")
    e("v_sqrt_f32 v20, v20")
    e("s_mov_b64 exec, s[58:59]")
    e("v_cvt_pk_bf16_f32 v20, v20, v20")
    e("v_and_b32 v20, s27, v20")
    e("v_rcp_f32 v20, v20")
    e("s_nop 0")
    e("v_mul_f32 v16, -v16, v20")
    e("ds_write2_b32 v4, v16, v20 offset0:0 offset1:16")
    e("s_mov_b64 exec, -1")
    e("s_waitcnt lgkmcnt(0)")
    stamp(e, 5)
    e("s_barrier")
    stamp(e, 6)
    gemm2(1)

    e("L_ka_spare:")
    e("s_sub_u32 s19, s2, 224")
    e("s_lshl_b32 s19, s19, 16")
    e("v_lshlrev_b32 v8, 7, v0")
    e("v_add_u32 v9, s19, v8")
    e("s_waitcnt lgkmcnt(0)")
    srd(e, 24, 44, 896)
    e(f"buffer_load_dword v16, v8, s[24:27], 0 offen")
    srd(e, 28, 50, WBYTES)
    e("s_waitcnt vmcnt(0)")
    e(f"buffer_load_dword v11, v9, s[28:31], 0 offen")
    e("L_ka_end:")
    e("s_endpgm")
    return dict(name="fnet_ka_kernel", vgpr=224, accum=224, sgpr=64, grid=256, block=512, lds=LDS_CS+256)

def kb(e):
    header(e, "fnet_kb_kernel")
    e("s_cmp_ge_u32 s2, 256")
    e("s_cbranch_scc1 L_kb_end")
    stamp(e, 0)
    e("s_load_dwordx2 s[20:21], s[0:1], 96")
    e("s_load_dwordx2 s[4:5], s[0:1], 0")
    e("s_load_dwordx8 s[8:15], s[0:1], 48")
    e("s_load_dwordx2 s[16:17], s[0:1], 80")
    e("v_lshrrev_b32 v1, 6, v0")
    e("v_and_b32 v2, 15, v0")
    e("v_readfirstlane_b32 s28, v1")
    e("v_bfe_u32 v3, v0, 4, 2")
    e("v_and_b32 v1, 63, v0")
    e("v_lshlrev_b32 v4, 4, v1")
    e("s_cmp_ge_u32 s2, 128")
    e("s_cbranch_scc1 L_kb_ffn")
    p2(e)
    e("L_kb_ffn:")
    e("s_cmp_ge_u32 s2, 184")
    e("s_cbranch_scc1 L_kb_help")
    ffn(e)
    e("s_endpgm")
    e("L_kb_help:")
    e("s_sub_u32 s29, s2, 184")
    e("s_and_b32 s30, s29, 7")
    e("s_and_b32 s29, s29, 0xf8")
    e("s_add_u32 s29, s29, s28")
    e("s_cmp_ge_u32 s29, 56")
    e("s_cbranch_scc1 L_kb_helpd")
    e("s_cmp_ge_u32 s29, 28")
    e("s_cselect_b32 s31, 28, 0")
    e("s_sub_u32 s29, s29, s31")
    e("s_mul_i32 s29, s29, 57344")
    e("s_mul_i32 s30, s30, 448")
    e("s_and_b32 s30, s30, 0xffffff80")
    e("s_add_u32 s29, s29, s30")
    e("v_lshrrev_b32 v5, 2, v1")
    e("v_mul_u32_u24 v5, 3584, v5")
    e("v_and_b32 v6, 3, v1")
    e("v_lshl_add_u32 v5, v6, 7, v5")
    e("v_add_u32 v5, s29, v5")
    e("s_waitcnt lgkmcnt(0)")
    e("s_cmp_eq_u32 s31, 0")
    e("s_cselect_b32 s24, s10, s12")
    e("s_cselect_b32 s25, s11, s13")
    e(f"s_mov_b32 s26, {WBYTES:#x}")
    e("s_mov_b32 s27, 0x20000")
    e("buffer_load_dword v6, v5, s[24:27], 0 offen")
    e("s_endpgm")
    e("L_kb_helpd:")
    e("s_sub_u32 s29, s29, 56")
    e("s_lshl_b32 s29, s29, 14")
    e(f"s_mul_i32 s30, s30, {224*896}")
    e("s_add_u32 s29, s29, s30")
    e("v_lshlrev_b32 v5, 7, v1")
    e("v_add_u32 v5, s29, v5")
    e("v_add_u32 v7, 8192, v5")
    e("s_waitcnt lgkmcnt(0)")
    srd(e, 24, 14, WBYTES)
    e("buffer_load_dword v6, v5, s[24:27], 0 offen")
    e("buffer_load_dword v8, v7, s[24:27], 0 offen")
    e("L_kb_end:")
    e("s_endpgm")
    return dict(name="fnet_kb_kernel", vgpr=128, accum=128, sgpr=64, grid=(256 if OPT.get('help', 0) else 184), block=512, lds=104448)

def p2(e):
    YB, RS, KBUF = 57344, 1808, 57344 + 16*1808
    C, S, F1, F3 = 16, 20, 24, 28
    A, ACC = 64, 32
    XR, WR = 48, 56
    H, T = 96, 104
    e("s_and_b32 s29, s2, 31")
    e("s_bfe_u32 s30, s2, 0x10005")
    e("s_lshr_b32 s31, s2, 6")
    e("s_sub_u32 s32, 64, s29")
    e("s_cmp_eq_u32 s29, 0")
    e("s_cselect_b32 s32, 32, s32")
    e("s_cmp_eq_u32 s31, 0")
    e("s_cselect_b32 s32, s29, s32")
    e("s_lshl_b32 s33, s30, 10")
    e("s_add_u32 s33, s33, s32")
    e("s_lshr_b32 s53, s2, 5")
    e(f"s_mul_i32 s62, s53, {OPT.get('trot', 2)}")
    e("s_add_u32 s62, s62, s28")
    e("s_sub_u32 s63, s62, 7")
    e("s_cmp_ge_u32 s62, 7")
    e("s_cselect_b32 s62, s63, s62")
    e("s_mul_i32 s36, s29, 57344")
    e("s_lshl_b32 s37, s62, 11")
    e("s_add_u32 s36, s36, s37")
    e("s_lshl_b32 s37, s28, 13")
    e("v_lshl_add_u32 v7, v2, 6, s33")
    e("v_cvt_f32_u32 v7, v7")
    e(f"v_mul_f32 v7, {fbits(1.0/2048)}, v7")
    e("v_lshlrev_b32 v8, 3, v3")
    e("v_cvt_f32_u32 v8, v8")
    e("v_mul_f32 v8, v8, v7")
    for j in range(8):
        e(f"v_cos_f32 v{A+j}, v8")
        e(f"v_sin_f32 v{A+8+j}, v8")
        if j < 7:
            e("v_add_f32 v8, v8, v7")
    e("s_waitcnt lgkmcnt(0)")
    stamp(e, 1)
    srd(e, 24, 20, WS_SIZE)
    def batch(mm):
        e("s_cmp_eq_u32 s28, 7")
        e(f"s_cbranch_scc1 L_p2_nodma{mm}")
        for blk in (0, 2, 1, 3):
            e(f"s_add_u32 m0, s37, {blk*2048}")
            e(f"s_add_u32 s54, s36, {blk*14336}")
            e(f"buffer_load_dwordx4 v4, s[24:27], s54 offen offset:{1024*mm} lds")
        e(f"L_p2_nodma{mm}:")
    batch(0)
    for j in range(4):
        e(f"v_cvt_pk_bf16_f32 v{C+j}, v{A+2*j}, v{A+2*j+1}")
        e(f"v_cvt_pk_bf16_f32 v{S+j}, v{A+8+2*j}, v{A+8+2*j+1}")
    e("s_cmp_gt_u32 s32, 32")
    e("s_cselect_b32 s39, 0x80008000, 0")
    e("s_xor_b32 s42, s39, 0x80008000")
    for j in range(4):
        e(f"v_xor_b32 v{F1+j}, s39, v{S+j}")
        e(f"v_xor_b32 v{F3+j}, s42, v{C+j}")
    e("s_cmp_lg_u32 s29, 0")
    e("s_cbranch_scc1 L_p2_nospecial")
    e("s_cmp_eq_u32 s32, 0")
    e("s_cbranch_scc1 L_p2_t0")
    for j in range(4):
        e(f"v_mov_b32 v{F1+j}, v{C+j}")
        e(f"v_mov_b32 v{F3+j}, v{S+j}")
        e(f"v_mov_b32 v{C+j}, 0")
        e(f"v_mov_b32 v{S+j}, 0")
    e("s_branch L_p2_nospecial")
    e("L_p2_t0:")
    for j in range(4):
        e(f"v_mov_b32 v{F1+j}, 0")
        e(f"v_mov_b32 v{F3+j}, 0")
    e("L_p2_nospecial:")
    e("v_lshrrev_b32 v12, 1, v3")
    e("v_lshlrev_b32 v12, 4, v12")
    e("v_and_b32 v13, 1, v3")
    e("v_lshl_add_u32 v12, v13, 2, v12")
    e("v_lshrrev_b32 v13, 2, v2")
    e("v_add_u32 v12, v12, v13")
    e("v_lshlrev_b32 v12, 5, v12")
    e("v_and_b32 v13, 3, v2")
    e("v_lshl_add_u32 v12, v13, 3, v12")
    e("v_add_u32 v12, s37, v12")
    e("s_lshl_b32 s42, s62, 7")
    e("v_lshl_add_u32 v13, v3, 4, s42")
    e("v_cmp_eq_u32 vcc, 0, v13")
    e(f"v_mul_u32_u24 v14, {RS}, v2")
    e(f"v_add_u32 v14, {YB}, v14")
    e("v_sub_u32 v15, v14, v13")
    e(f"v_add_u32 v15, {(448-19)*4}, v15")
    e("v_add_u32 v13, v13, v14")
    e(f"v_add_u32 v7, {19*4}, v15")
    e(f"v_add_u32 v8, {224*4}, v14")
    e("v_cndmask_b32 v14, v7, v8, vcc")
    e("s_lshl_b32 s34, s28, 7")
    e("s_add_u32 s34, s34, s33")
    e("s_mul_i32 s35, s34, 896")
    e("v_and_b32 v5, 31, v1")
    e("v_lshrrev_b32 v6, 5, v1")
    e("v_cmp_gt_u32 s[40:41], 28, v5")
    e("v_lshlrev_b32 v9, 4, v5")
    e("v_mov_b32 v10, 0x7ff00000")
    e("v_mul_u32_u24 v11, 57344, v6")
    e("v_cndmask_b32 v125, v10, v9, s[40:41]")
    e("v_add_u32 v10, v125, v11")
    e(f"s_mul_i32 s38, s28, {2*RS}")
    e(f"s_add_u32 s38, s38, {YB}")
    e(f"v_mul_u32_u24 v7, {RS}, v6")
    e("v_lshl_add_u32 v7, v5, 5, v7")
    e("v_add_u32 v7, s38, v7")
    e("s_mov_b32 s43, 0xffff0000")
    e("s_mov_b32 s52, 0x3f803f80")
    e("v_lshl_add_u32 v11, v6, 6, s34")
    e("v_sub_u32 v121, 0xfff, v11")
    e("s_lshl_b32 s38, s28, 3")
    e(f"s_add_u32 s38, s38, {KBUF}")
    e("v_lshl_add_u32 v120, v6, 2, s38")
    for r in (8, 9, 122, 123):
        e(f"v_mov_b32 v{r}, 0")
    e(f"s_mov_b32 s38, {fbits(1.0/448)}")
    e("s_lshl_b32 s53, s2, 7")
    e(f"s_add_u32 s53, s53, {WS_KEY}")
    srd(e, 44, 4, XBYTES)
    srd(e, 48, 8, 896)
    batch(1)
    e(f"buffer_load_dwordx4 {vr(WR,4)}, v125, s[48:51], 0 offen")
    e(f"buffer_load_dwordx4 {vr(WR+4,4)}, v125, s[48:51], 0 offen offset:448")
    e(f"buffer_load_dwordx4 {vr(XR,4)}, v10, s[44:47], s35 offen")
    e(f"buffer_load_dwordx4 {vr(XR+4,4)}, v10, s[44:47], s35 offen offset:448")
    srd(e, 44, 16, XBYTES)
    e("s_cmp_eq_u32 s28, 7")
    e("s_cbranch_scc1 L_p2_join")
    stamp(e, 2)
    fr = {0: C, 1: S, 2: F1, 3: F3}
    for mm in range(2):
        e(f"s_waitcnt vmcnt({8-4*mm})")
        if mm == 1: stamp(e, 3)
        for blk in (0, 2, 1, 3):
            for io in range(2):
                e(f"ds_read_b64_tr_b16 {vr(A+(mm*4+blk)*4+2*io,2)}, v12 offset:{blk*2048+mm*1024+io*256}")
        cnt = 0
        for blk in (0, 2, 1, 3):
            e(f"s_waitcnt lgkmcnt({6-2*cnt})")
            cnt += 1
            acc = ACC + 8*mm + 4*(blk & 1)
            c = "0" if blk < 2 else vr(acc, 4)
            e(f"v_mfma_f32_16x16x32_bf16 {vr(acc,4)}, {vr(A+(mm*4+blk)*4,4)}, {vr(fr[blk],4)}, {c}")
        E_, O_ = ACC + 8*mm, ACC + 8*mm + 4
        D_ = A + 16*mm
        e("s_nop 7")
        for r in range(4):
            e(f"v_add_f32 v{D_+r}, v{E_+r}, v{O_+r}")
        for r in range(4):
            e(f"v_sub_f32 v{D_+4+r}, v{E_+r}, v{O_+r}")
        if mm == 0:
            e(f"v_cndmask_b32 v{D_}, v{D_}, 0, vcc")
        e(f"ds_write_b128 v13, {vr(D_,4)} offset:{64*mm}")
        o = 16*(1-mm)
        if mm == 0:
            e(f"ds_write_b32 v14, v{D_+4}")
            e(f"ds_write_b32 v15, v{D_+5} offset:{(o+2)*4}")
        else:
            e(f"ds_write2_b32 v15, v{D_+4}, v{D_+5} offset0:{o+3} offset1:{o+2}")
        e(f"ds_write2_b32 v15, v{D_+6}, v{D_+7} offset0:{o+1} offset1:{o}")
    e("L_p2_join:")
    Y = 16
    e(f"s_waitcnt vmcnt(2)")
    for j in range(8):
        e(f"v_dot2c_f32_bf16 v123, s52, v{WR+j}")
    e(f"s_waitcnt vmcnt(0)")
    un = []
    for j in range(8):
        un.append(f"v_lshlrev_b32 v{T+2*j}, 16, v{XR+j}")
        un.append(f"v_and_b32 v{T+2*j+1}, s43, v{XR+j}")
    for _ in range(3): e(un.pop(0))
    for ror in (8, 4, 2, 1):
        e(f"v_add_f32_dpp v123, v123, v123 row_ror:{ror} row_mask:0xf bank_mask:0xf")
        e(un.pop(0)); e(un.pop(0))
    e("v_mov_b32 v124, v123")
    e(un.pop(0)); e(un.pop(0))
    e("v_permlane16_swap_b32 v123, v124")
    while un: e(un.pop(0))
    e("v_add_f32 v123, v123, v124")
    e("s_waitcnt lgkmcnt(0)")
    if not OPT.get("x1", 0): stamp(e, 4)
    e("s_barrier")
    e("s_mov_b64 exec, s[40:41]")
    e(f"ds_read_b128 {vr(Y,4)}, v7")
    e(f"ds_read_b128 {vr(Y+4,4)}, v7 offset:16")
    e(f"ds_read_b128 {vr(Y+8,4)}, v7 offset:896")
    e(f"ds_read_b128 {vr(Y+12,4)}, v7 offset:912")
    for j in range(8):
        if j % 2 == 0:
            e(f"s_waitcnt lgkmcnt({3-j//2})")
        e(f"v_pk_add_f32 {vr(T+2*j,2)}, {vr(Y+2*j,2)}, {vr(T+2*j,2)}")
        if j % 2 == 1:
            e(f"v_cvt_pk_bf16_f32 v{H+j-1}, v{T+2*j-2}, v{T+2*j-1}")
            e(f"v_cvt_pk_bf16_f32 v{H+j}, v{T+2*j}, v{T+2*j+1}")
    for j in range(8):
        e(f"v_dot2c_f32_bf16 v8, s52, v{H+j}")
        e(f"v_dot2c_f32_bf16 v9, v{H+j}, v{H+j}")
        e(f"v_dot2c_f32_bf16 v122, v{H+j}, v{WR+j}")
    e("s_mov_b64 exec, -1")
    for ror in (8, 4, 2, 1):
        for r in (8, 9, 122):
            e(f"v_add_f32_dpp v{r}, v{r}, v{r} row_ror:{ror} row_mask:0xf bank_mask:0xf")
    e("v_mov_b32 v13, v8")
    e("v_mov_b32 v14, v9")
    e("v_mov_b32 v15, v122")
    e("v_permlane16_swap_b32 v8, v13")
    e("v_permlane16_swap_b32 v9, v14")
    e("v_permlane16_swap_b32 v122, v15")
    e("v_add_f32 v8, v8, v13")
    e("v_add_f32 v9, v9, v14")
    e("v_add_f32 v12, v122, v15")
    e("v_mul_f32 v8, s38, v8")
    e("v_mul_f32 v9, s38, v9")
    e("v_fma_f32 v9, -v8, v8, v9")
    e("v_max_f32 v9, 0, v9")
    e("v_cvt_pk_bf16_f32 v8, v9, v8")
    e("v_lshlrev_b32 v9, 16, v8")
    e(f"v_add_f32 v9, {fbits(1e-5)}, v9")
    e("v_cvt_pk_bf16_f32 v9, v9, v9")
    e("v_and_b32 v9, s43, v9")
    e("v_sqrt_f32 v9, v9")
    e("v_and_b32 v8, s43, v8")
    e("v_cvt_pk_bf16_f32 v13, v9, v8")
    e("v_lshlrev_b32 v9, 16, v13")
    e("v_rcp_f32 v9, v9")
    e("v_fma_f32 v12, -v8, v123, v12")
    e("v_mul_f32 v12, v12, v9")
    e("v_add_f32 v4, 1.0, v9")
    e("v_cvt_pk_bf16_f32 v12, v12, v12")
    e("v_mul_f32 v14, -v8, v9")
    e("v_ashrrev_i32 v6, 31, v12")
    e("v_mov_b32 v5, v4")
    e("v_or_b32 v6, 0x80000000, v6")
    e("v_mov_b32 v15, v14")
    e("v_xor_b32 v12, v12, v6")
    e("v_and_or_b32 v12, v12, s43, v121")
    e("ds_write2_b32 v120, v12, v13 offset0:0 offset1:16")
    def outs(lo, hi):
        for j in range(lo, hi):
            e(f"v_pk_fma_f32 {vr(T+2*j,2)}, {vr(T+2*j,2)}, v[4:5], v[14:15]")
            if j % 2 == 1:
                e(f"v_cvt_pk_bf16_f32 v{XR+j-1}, v{T+2*j-2}, v{T+2*j-1}")
                e(f"v_cvt_pk_bf16_f32 v{XR+j}, v{T+2*j}, v{T+2*j+1}")
    e("v_lshlrev_b32 v6, 2, v1")
    e(f"v_add_u32 v7, {KBUF}, v6")
    KF = OPT.get("kf", 1)
    if KF:
        outs(0, 8)
    else:
        outs(0, 4)
        e(f"buffer_store_dwordx4 {vr(XR,4)}, v10, s[44:47], s35 offen sc1")
    e("s_waitcnt lgkmcnt(0)")
    stamp(e, 5)
    e("s_barrier")
    e("s_cmp_lg_u32 s28, 0")
    e("s_cbranch_scc1 L_p2_nokey")
    e("ds_read_b32 v12, v7")
    e("s_mov_b32 exec_hi, 0")
    e("s_waitcnt lgkmcnt(0)")
    e("buffer_store_dword v12, v6, s[24:27], s53 offen sc1")
    e("s_mov_b64 exec, -1")
    e("L_p2_nokey:")
    if KF:
        e("s_barrier")
        e(f"buffer_store_dwordx4 {vr(XR,4)}, v10, s[44:47], s35 offen sc1")
    else:
        outs(4, 8)
    e(f"buffer_store_dwordx4 {vr(XR+4,4)}, v10, s[44:47], s35 offen offset:448 sc1")
    e("s_waitcnt vmcnt(0)")
    stamp(e, 6)
    e("s_barrier")
    e("s_cmp_lg_u32 s28, 0")
    e("s_cbranch_scc1 L_p2_end")
    e("s_mov_b64 exec, 1")
    e("v_mov_b32 v12, 1")
    e(f"s_add_u32 s53, s53, {WS_FLAG - WS_KEY}")
    e(f"buffer_store_dword v12, off, s[24:27], s53 sc1")
    e("L_p2_end:")
    stamp_flush(e, 1, 24, 7, 28)
    e("s_endpgm")

def ffn(e):
    XS, ONES, ACT, MISC, GB = 0, 7168, 14336, 15360, 16384
    DB = GB + 57344
    A, AD_, ACC = 64, 36, 32
    K = 64
    e("s_sub_u32 s29, s2, 128")
    e("s_and_b32 s37, s29, 7")
    e("s_lshr_b32 s38, s29, 3")
    e("s_mul_i32 s39, s37, 7")
    e("s_add_u32 s39, s39, s38")
    e("s_cmp_eq_u32 s28, 7")
    e("s_cbranch_scc1 L_f_poll")
    e("s_cmp_lt_u32 s28, 4")
    e("s_cbranch_scc1 L_f_comp")
    e("v_lshrrev_b32 v5, 2, v1")
    e("v_and_b32 v6, 3, v1")
    e("v_lshrrev_b32 v7, 4, v1")
    e("v_and_b32 v7, 2, v7")
    e("v_xor_b32 v6, v6, v7")
    e("s_cmp_eq_u32 s28, 5")
    e("s_cselect_b32 s40, 1, 0")
    e("v_xor_b32 v6, s40, v6")
    e("s_cmp_eq_u32 s28, 6")
    e("s_movk_i32 s41, 896")
    e("s_cselect_b32 s41, s41, 3584")
    e("s_cselect_b32 s42, 64, 114688")
    e("s_cselect_b32 s43, 28672, 64")
    e("v_mul_u32_u24 v5, s41, v5")
    e("v_lshl_add_u32 v5, v6, 4, v5")
    e("s_lshl_b32 s44, s41, 4")
    e("v_add_u32 v6, s44, v5")
    e("s_mul_i32 s43, s43, s39")
    e("s_sub_u32 s44, s28, 4")
    e("s_mul_i32 s44, s44, 28672")
    e(f"s_add_u32 s44, s44, {GB}")
    e("s_waitcnt lgkmcnt(0)")
    stamp(e, 1)
    e("s_cmp_eq_u32 s28, 5")
    e("s_cselect_b32 s48, s12, s10")
    e("s_cselect_b32 s49, s13, s11")
    e("s_cmp_eq_u32 s28, 6")
    e("s_cselect_b32 s48, s14, s48")
    e("s_cselect_b32 s49, s15, s49")
    e(f"s_mov_b32 s50, {WBYTES:#x}")
    e("s_mov_b32 s51, 0x20000")
    e("s_add_u32 s45, s44, 28672")
    e("s_barrier")
    if OPT.get("ldly", 0): e(f"s_sleep {OPT['ldly']}")
    e("L_f_dma:")
    e("s_mov_b32 m0, s44")
    e("s_add_u32 s44, s44, 2048")
    e("buffer_load_dwordx4 v5, s[48:51], s43 offen lds")
    e("s_add_u32 m0, m0, 1024")
    e("s_nop 0")
    e("buffer_load_dwordx4 v6, s[48:51], s43 offen lds")
    e("s_add_u32 s43, s43, s42")
    e("s_cmp_lt_u32 s44, s45")
    e("s_cbranch_scc1 L_f_dma")
    stamp(e, 2)
    e(f"v_mov_b32 v5, {MISC}")
    e("v_mov_b32 v6, 1")
    e("s_mov_b64 exec, 1")
    e("s_waitcnt vmcnt(0)")
    e("ds_add_u32 v5, v6")
    e("s_waitcnt lgkmcnt(0)")
    if DIAG:
        srd(e, 24, 20, WS_SIZE)
        stamp_flush(e, 1, 24, 3, 28)
    e("s_endpgm")

    e("L_f_comp:")
    e("v_mov_b32 v8, 0x3f803f80")
    e("v_mov_b32 v9, v8")
    e("v_mov_b32 v10, v8")
    e("v_mov_b32 v11, v8")
    e("v_lshlrev_b32 v5, 4, v0")
    e(f"ds_write_b128 v5, v[8:11] offset:{ONES}")
    e(f"ds_write_b128 v5, v[8:11] offset:{ONES+3072}")
    e("v_mov_b32 v6, 0")
    e(f"v_mov_b32 v7, {MISC}")
    e("ds_write_b32 v7, v6")
    e("s_waitcnt lgkmcnt(0)")
    stamp(e, 1)
    e("s_barrier")
    srd(e, 24, 20, WS_SIZE)
    e("v_lshrrev_b32 v8, 2, v2")
    e("v_bfe_u32 v9, v2, 1, 1")
    e("v_and_b32 v10, 1, v3")
    e("v_and_b32 v13, 1, v2")
    e("v_lshlrev_b32 v13, 3, v13")
    e("v_lshl_add_u32 v11, v10, 1, v9")
    e("v_xor_b32 v11, s28, v11")
    e("v_lshl_add_u32 v14, v3, 3, v8")
    e("v_lshl_add_u32 v14, v14, 6, v13")
    e("v_lshl_add_u32 v14, v11, 4, v14")
    e("v_mul_u32_u24 v11, 28672, v9")
    e(f"s_movk_i32 s42, {GB}")
    e("v_add3_u32 v14, v14, v11, s42")
    e("v_lshl_add_u32 v8, v10, 3, v8")
    e("v_lshl_add_u32 v15, v8, 6, v13")
    e("s_and_b32 s42, s28, 1")
    e("v_xor_b32 v10, s42, v10")
    e("v_lshl_add_u32 v10, v10, 1, v9")
    e("v_lshl_add_u32 v15, v10, 4, v15")
    e("v_lshrrev_b32 v10, 1, v3")
    e("v_lshl_add_u32 v15, v10, 10, v15")
    e("s_lshr_b32 s42, s28, 1")
    e("s_lshl_b32 s42, s42, 11")
    e(f"s_add_u32 s42, s42, {DB}")
    e("v_add_u32 v15, s42, v15")
    e("v_and_b32 v8, 7, v2")
    e("v_and_b32 v9, 6, v2")
    e("v_xor_b32 v9, v9, v3")
    e("v_lshlrev_b32 v8, 7, v8")
    e("v_lshl_add_u32 v12, v9, 4, v8")
    e("v_cmp_gt_u32 vcc, 8, v2")
    e(f"v_mov_b32 v8, {ONES}")
    e("v_lshlrev_b32 v6, 4, v2")
    e("v_cndmask_b32 v12, v8, v12, vcc")
    e("v_xor_b32 v13, 64, v12")
    e("v_lshl_add_u32 v6, v3, 7, v6")
    e("v_mov_b32 v8, 0x7ff00000")
    e("v_cndmask_b32 v6, v8, v6, vcc")
    e("s_lshl_b32 s42, s28, 8")
    e(f"s_add_u32 s42, s42, {ACT}")
    e("v_lshl_add_u32 v5, v2, 4, s42")
    e("v_lshl_add_u32 v5, v3, 3, v5")
    e("s_mul_i32 s44, s39, 14336")
    e("s_lshl_b32 s42, s28, 9")
    e("s_add_u32 s44, s44, s42")
    e(f"s_add_u32 s44, s44, {WS_PART}")
    for j in range(1, 4):
        e(f"s_add_u32 s{44+j}, s44, {4096*j}")
    e(f"s_mov_b32 s42, {fbits(-1.4426950408889634)}")
    e("v_and_b32 v11, 7, v2")
    e("v_lshlrev_b32 v11, 2, v11")
    e("L_f_wait:")
    e("s_sleep 2")
    e("ds_read_b32 v8, v7")
    e("s_waitcnt lgkmcnt(0)")
    e("v_cmp_ne_u32 vcc, 3, v8")
    e("s_cbranch_vccnz L_f_wait")
    stamp(e, 2)
    for k in range(14):
        for io in range(2):
            e(f"ds_read_b64_tr_b16 {vr(A+4*k+2*io,2)}, v14 offset:{k*2048+io*256}")
    for i in range(7):
        for io in range(2):
            e(f"ds_read_b64_tr_b16 {vr(AD_+4*i+2*io,2)}, v15 offset:{i*4096+io*256}")
    e("s_waitcnt lgkmcnt(0)")
    stamp(e, 3)
    e("s_barrier")
    stamp(e, 4)
    BR = [16, 20, 24, 28, 120, 124]
    def rdx(k):
        e(f"ds_read_b128 {vr(BR[k%6],4)}, v{12 + (k&1)} offset:{XS + (k>>1)*1024}")
    for k in range(5): rdx(k)
    e(f"ds_read_b32 v10, v11 offset:{MISC+64}")
    for k in range(14):
        if k + 5 < 14:
            rdx(k + 5)
        n_after = min(k + 5, 13) - k + (1 if k < 5 else 0)
        e(f"s_waitcnt lgkmcnt({n_after})")
        c = "0" if k == 0 else vr(ACC, 4)
        e(f"v_mfma_f32_16x16x32_bf16 {vr(ACC,4)}, {vr(A+4*k,4)}, {vr(BR[k%6],4)}, {c}")
        if k == 6:
            e("v_lshlrev_b32 v9, 16, v10")
            e("v_add_f32 v9, 1.0, v9")
        if k == 8:
            e("v_and_b32 v10, 0xffff0000, v10")
            e("v_rcp_f32 v9, v9")
    e("s_nop 7")
    for r in range(4):
        e(f"v_mov_b32_dpp v{16+r}, v{ACC+r} row_newbcast:8 row_mask:0xf bank_mask:0xf")
    for r in range(4):
        e(f"v_fma_f32 v{ACC+r}, -v10, v{16+r}, v{ACC+r}")
    for r in range(4):
        e(f"v_mul_f32 v{ACC+r}, v{ACC+r}, v9")
    e("s_nop 0")
    for r in range(4):
        e(f"v_permlane32_swap_b32 v{ACC+r}, v{20+r}")
    for r in range(4):
        e(f"v_mul_f32 v{16+r}, s42, v{ACC+r}")
    for r in range(4):
        e(f"v_exp_f32 v{16+r}, v{16+r}")
    for r in range(4):
        e(f"v_mul_f32 v{ACC+r}, v{ACC+r}, v{20+r}")
    for r in range(4):
        e(f"v_add_f32 v{16+r}, 1.0, v{16+r}")
    for r in range(4):
        e(f"v_rcp_f32 v{16+r}, v{16+r}")
    e("s_mov_b32 exec_hi, 0")
    for r in range(4):
        e(f"v_mul_f32 v{ACC+r}, v{ACC+r}, v{16+r}")
    e(f"v_cvt_pk_bf16_f32 v16, v{ACC}, v{ACC+1}")
    e(f"v_cvt_pk_bf16_f32 v17, v{ACC+2}, v{ACC+3}")
    e("ds_write_b64 v5, v[16:17]")
    e("s_mov_b32 exec_hi, -1")
    e("s_waitcnt lgkmcnt(0)")
    stamp(e, 5)
    e("s_barrier")
    e(f"ds_read_b128 v[16:19], v4 offset:{ACT}")
    e("s_waitcnt lgkmcnt(0)")
    for i in range(7):
        e(f"v_mfma_f32_16x16x32_bf16 {vr(A+4*i,4)}, {vr(AD_+4*i,4)}, v[16:19], 0")
    e("s_nop 1")
    for i in range(7):
        e(f"buffer_store_dwordx4 {vr(A+4*i,4)}, v6, s[24:27], s{44+(i>>1)} offen offset:{2048*(i&1)} sc1")
    stamp(e, 6)
    B4 = OPT.get("b4", 0)
    if B4 >= 0:
        e(f"s_waitcnt vmcnt({B4})")
        e("s_barrier")
    stamp_flush(e, 1, 24, 7, 28)
    e("s_endpgm")

    e("L_f_poll:")
    PFL = ["sc1", "sc0 sc1"][OPT.get("pfl", 0)]
    e("s_setprio 3")
    for j in range(4):
        e(f"s_mov_b32 s{58+j}, {WS_KEY+4096*j:#x}")
    e(f"s_mov_b32 s56, {WS_FLAG:#x}")
    e(f"s_mov_b32 s57, {WS_FLAG+8192:#x}")
    e("v_lshrrev_b32 v4, 2, v1")
    e("v_lshlrev_b32 v4, 7, v4")
    e("v_and_b32 v5, 3, v1")
    e("v_lshl_add_u32 v4, v5, 4, v4")
    e("s_mov_b32 s46, 0")
    e("s_mov_b32 s47, 0")
    e("v_lshrrev_b32 v5, 3, v1")
    e("v_and_b32 v6, 7, v1")
    e("v_lshlrev_b32 v13, 2, v6")
    e("v_and_b32 v7, 6, v5")
    e("v_xor_b32 v6, v6, v7")
    e("v_lshlrev_b32 v6, 4, v6")
    e("v_lshlrev_b32 v5, 2, v5")
    e("v_bfe_u32 v14, v1, 3, 1")
    e("s_lshl_b32 s42, s39, 4")
    e("v_lshl_add_u32 v14, v14, 3, s42")
    e("v_mul_u32_u24 v24, 14336, v3")
    e("v_lshl_add_u32 v24, v2, 4, v24")
    e("v_add_u32 v25, 57344, v24")
    e("v_add_u32 v26, 57344, v25")
    e("v_add_u32 v27, 57344, v26")
    e("s_lshl_b32 s52, s39, 8")
    e(f"s_add_u32 s52, s52, {WS_PART}")
    for j in range(1, 4):
        e(f"s_add_u32 s{52+j}, s52, {4*57344*j}")
    e("v_mov_b32 v8, 0")
    e("v_mov_b32 v9, 0")
    e("v_mov_b32 v10, 0")
    e("v_lshlrev_b32 v7, 12, v1")
    e("v_lshlrev_b32 v19, 7, v1")
    e("v_lshlrev_b32 v30, 2, v1")
    e("s_movk_i32 s44, 896")
    e("s_mov_b32 s45, 0xffff0000")
    e("s_waitcnt lgkmcnt(0)")
    stamp(e, 1)
    srd(e, 24, 20, WS_SIZE)
    srd(e, 48, 16, XBYTES)
    e("s_barrier")
    e("s_mov_b64 exec, 0xf")
    e("L_f_p0:")
    e("s_sleep 2")
    e("buffer_load_dword v11, v7, s[24:27], s58 offen offset:3968 " + PFL)
    e("s_add_u32 s47, s47, 1")
    e("s_waitcnt vmcnt(0)")
    e("v_cmp_ne_u32 vcc, 0, v11")
    e("s_cbranch_vccnz L_f_p1")
    e("s_cmp_lt_u32 s47, 0x40000")
    e("s_cbranch_scc1 L_f_p0")
    e("L_f_p1:")
    e("s_mov_b64 exec, -1")
    e("L_f_pk:")
    for i in range(8):
        e(f"s_bitcmp1_b32 s46, {i}")
        e(f"s_cbranch_scc1 L_f_sl{i}")
        e(f"buffer_load_dwordx4 {vr(K+4*i,4)}, v4, s[24:27], s{58+(i>>1)} offen offset:{(i&1)*2048} " + PFL)
        e(f"L_f_sl{i}:")
    e("s_add_u32 s47, s47, 1")
    e("s_waitcnt vmcnt(0)")
    for i in range(8):
        e(f"s_bitcmp1_b32 s46, {i}")
        e(f"s_cbranch_scc1 L_f_sf{i}")
        e(f"v_min3_u32 v11, v{K+4*i}, v{K+4*i+1}, v{K+4*i+2}")
        e(f"v_min_u32 v11, v11, v{K+4*i+3}")
        e("v_cmp_eq_u32 vcc, 0, v11")
        e(f"s_cbranch_vccnz L_f_sf{i}")
        e(f"s_bitset1_b32 s46, {i}")
        for j in range(4):
            e(f"v_med3_u32 v10, v9, v10, v{K+4*i+j}")
            e(f"v_med3_u32 v9, v8, v9, v{K+4*i+j}")
            e(f"v_max_u32 v8, v8, v{K+4*i+j}")
        e(f"L_f_sf{i}:")
    e("s_cmp_eq_u32 s46, 0xff")
    e("s_cbranch_scc1 L_f_keys")
    e("s_cmp_lt_u32 s47, 0x40000")
    e("s_cbranch_scc1 L_f_pk")
    e("L_f_keys:")
    stamp(e, 2)
    FR = OPT.get("fr", 2)
    def flagloads():
        e("buffer_load_dword v28, v19, s[24:27], s56 offen sc1")
        e("buffer_load_dword v29, v19, s[24:27], s57 offen sc1")
    for rd in range(8):
        for si, st in enumerate(DPP6):
            if si == 0:
                e(f"v_max_u32_dpp v11, v8, v8 {st} bank_mask:0xf bound_ctrl:0")
            else:
                e(f"v_max_u32_dpp v11, v11, v11 {st} bank_mask:0xf")
            if si < 5:
                if rd == FR and si == 0:
                    flagloads()
                else:
                    e("s_nop 1")
        e("s_nop 0")
        e("v_readlane_b32 s42, v11, 63")
        e("s_nop 1")
        e("v_cmp_eq_u32 vcc, s42, v8")
        e(f"v_writelane_b32 v12, s42, {rd}")
        e("s_nop 0")
        e("v_cndmask_b32 v8, v8, v9, vcc")
        e("v_cndmask_b32 v9, v9, v10, vcc")
        e("v_cndmask_b32 v10, v10, 0, vcc")
    e("v_cmp_eq_u32 vcc, 0, v8")
    e("s_cbranch_vccz L_f_topdone")
    e("s_mov_b32 m0, 0")
    e("s_mov_b32 s42, -1")
    e("L_f_slow:")
    e(f"v_sub_u32 v8, s42, v{K}")
    e(f"v_sub_u32 v9, s42, v{K+1}")
    e("v_min_u32 v8, v8, v9")
    for i in range(2, 32, 2):
        e(f"v_sub_u32 v9, s42, v{K+i}")
        e(f"v_sub_u32 v10, s42, v{K+i+1}")
        e("v_min3_u32 v8, v8, v9, v10")
    for st in DPP6:
        e("s_nop 1")
        e(f"v_min_u32_dpp v8, v8, v8 {st} bank_mask:0xf")
    e("s_nop 0")
    e("v_readlane_b32 s47, v8, 63")
    e("s_nop 3")
    e("s_sub_u32 s42, s42, s47")
    e("v_writelane_b32 v12, s42, m0")
    e("s_sub_u32 s42, s42, 1")
    e("s_add_u32 m0, m0, 1")
    e("s_cmp_lt_u32 m0, 8")
    e("s_cbranch_scc1 L_f_slow")
    e("L_f_topdone:")
    stamp(e, 3)
    e("ds_bpermute_b32 v8, v5, v12")
    e("ds_bpermute_b32 v15, v13, v12")
    e("s_mov_b32 s47, 0")
    e("s_waitcnt lgkmcnt(1)")
    e("v_not_b32 v8, v8")
    e("v_and_b32 v8, 0x7ff, v8")
    e("v_mad_u32_u24 v31, v8, s44, v6")
    e("L_f_gather:")
    e(f"s_mov_b32 m0, {XS}")
    e("v_mov_b32 v8, v31")
    e("s_waitcnt vmcnt(0)")
    for j in range(7):
        e(f"buffer_load_dwordx4 v8, s[48:51], 0 offen sc1 lds")
        if j < 6:
            e(f"s_mov_b32 m0, {XS + 1024*(j+1)}")
            e("v_add_u32 v8, 128, v8")
    e("s_waitcnt lgkmcnt(0)")
    e("v_not_b32 v9, v15")
    e("v_and_b32 v9, 0x7ff, v9")
    e("v_mad_u32_u24 v20, v9, s44, v14")
    e("v_and_b32 v21, 63, v9")
    e("v_sub_u32 v22, 64, v21")
    e("v_min_u32 v22, v21, v22")
    e("v_and_b32 v22, 31, v22")
    e("v_lshrrev_b32 v23, 10, v9")
    e("v_lshl_add_u32 v22, v23, 5, v22")
    e("v_lshrrev_b32 v23, 5, v21")
    e("v_lshl_add_u32 v10, v23, 6, v22")
    e("v_bfe_u32 v23, v9, 6, 4")
    e("v_lshlrev_b32 v10, 7, v10")
    e("v_lshl_add_u32 v10, v23, 2, v10")
    e("buffer_load_dword v11, v10, s[24:27], s58 offen offset:64 sc1")
    e("buffer_load_dwordx2 v[16:17], v20, s[48:51], 0 offen sc1")
    e("v_lshlrev_b32 v22, 2, v22")
    e("ds_bpermute_b32 v23, v22, v28")
    e("ds_bpermute_b32 v22, v22, v29")
    e("v_cmp_gt_u32 vcc, 32, v21")
    e("s_add_u32 s47, s47, 1")
    e("s_waitcnt lgkmcnt(0)")
    e("v_cndmask_b32 v22, v22, v23, vcc")
    e("v_cmp_eq_u32 vcc, 0, v22")
    e("s_cbranch_vccz L_f_flagok")
    flagloads()
    e("s_cmp_lt_u32 s47, 0x40000")
    e("s_cbranch_scc1 L_f_gather")
    e("L_f_flagok:")
    e("s_waitcnt vmcnt(1)")
    e("s_mov_b64 exec, 0xff")
    e(f"ds_write_b32 v30, v11 offset:{MISC+64}")
    e("s_mov_b64 exec, -1")
    e("s_waitcnt lgkmcnt(0)")
    stamp(e, 4)
    e("s_barrier")
    e("v_ashrrev_i32 v9, 31, v15")
    e("v_not_b32 v9, v9")
    e("v_or_b32 v9, 0x80000000, v9")
    e("v_xor_b32 v15, v15, v9")
    e("v_and_b32 v15, s45, v15")
    e(f"v_mul_f32 v18, {fbits(-1.4426950408889634)}, v15")
    e("v_exp_f32 v18, v18")
    e("v_mov_b32 v10, 1.0")
    e("v_add_f32 v18, 1.0, v18")
    e("v_rcp_f32 v18, v18")
    e("s_mov_b32 s47, 0")
    e("v_cvt_pk_bf16_f32 v18, v18, v18")
    e("v_and_b32 v18, s45, v18")
    e("v_mov_b32 v14, v20")
    e("s_waitcnt vmcnt(0)")
    e("v_lshlrev_b32 v20, 16, v16")
    e("v_and_b32 v21, s45, v16")
    e("v_lshlrev_b32 v22, 16, v17")
    e("v_and_b32 v23, s45, v17")
    e("s_barrier")
    if B4 >= 0:
        e("s_barrier")
    stamp(e, 5)
    P = 64
    e("L_f_pp:")
    for i in range(14):
        e(f"buffer_load_dwordx4 {vr(P+4*i,4)}, v{24+(i&3)}, s[24:27], s{52+(i>>2)} offen sc1")
    e("s_add_u32 s47, s47, 1")
    e("s_waitcnt vmcnt(12)")
    e(f"v_pk_add_f32 v[28:29], {vr(P,2)}, {vr(P+4,2)}")
    e(f"v_pk_add_f32 v[30:31], {vr(P+2,2)}, {vr(P+6,2)}")
    for i in range(2, 14):
        e(f"s_waitcnt vmcnt({13-i})")
        e(f"v_pk_add_f32 v[28:29], v[28:29], {vr(P+4*i,2)}")
        e(f"v_pk_add_f32 v[30:31], v[30:31], {vr(P+4*i+2,2)}")
    e("v_add_f32 v8, v28, v29")
    e("v_add_f32 v9, v30, v31")
    e("v_cmp_u_f32 vcc, v8, v9")
    e("s_cbranch_vccz L_f_got")
    e(f"v_max3_u32 v8, v{P}, v{P+1}, v{P+2}")
    for i in range(3, 55, 2):
        e(f"v_max3_u32 v8, v8, v{P+i}, v{P+i+1}")
    e(f"v_max_u32 v8, v8, v{P+55}")
    e("v_cmp_eq_u32 vcc, -1, v8")
    e("s_cbranch_vccz L_f_got")
    e("s_cmp_lt_u32 s47, 0x40000")
    e("s_cbranch_scc1 L_f_pp")
    e("L_f_got:")
    stamp(e, 6)
    for r in range(4):
        e(f"v_mfma_f32_16x16x4_f32 {vr(32+4*r,4)}, v10, v{28+r}, 0")
    e("s_nop 7")
    e("s_nop 0")
    e("v_cvt_pk_bf16_f32 v16, v32, v36")
    e("v_cvt_pk_bf16_f32 v17, v40, v44")
    e("v_lshlrev_b32 v24, 16, v16")
    e("v_and_b32 v25, s45, v16")
    e("v_lshlrev_b32 v26, 16, v17")
    e("v_and_b32 v27, s45, v17")
    for r in range(4):
        e(f"v_mul_f32 v{24+r}, v{24+r}, v18")
    e("v_cvt_pk_bf16_f32 v16, v24, v25")
    e("v_cvt_pk_bf16_f32 v17, v26, v27")
    e("v_lshlrev_b32 v24, 16, v16")
    e("v_and_b32 v25, s45, v16")
    e("v_lshlrev_b32 v26, 16, v17")
    e("v_and_b32 v27, s45, v17")
    for r in range(4):
        e(f"v_add_f32 v{24+r}, v{24+r}, v{20+r}")
    e("v_cvt_pk_bf16_f32 v16, v24, v25")
    e("v_cvt_pk_bf16_f32 v17, v26, v27")
    e("s_mov_b64 exec, 0xffff")
    e("buffer_store_dwordx2 v[16:17], v14, s[48:51], 0 offen" + (" sc1" if OPT.get("fsc1", 0) else ""))
    stamp_flush(e, 1, 24, 7, 28)

if __name__ == "__main__":
    for a in sys.argv[2:]:
        if a == "diag":
            DIAG = True; gen.DIAG = True
        else:
            k, v = a.split("=")
            OPT[k] = int(v)
    build([ka, kb] + [gen.kempty()]*OPT.get("tail", 0), sys.argv[1])
```

```python
import struct, sys
from gen import E, fbits, vr, ar, srd, header, build, NAME
import gen

WS_V    = 0x000000
WS_KEY  = 0x300000
WS_FLAG = 0x304000
WS_PART = 0x308000
WS_FL1  = 0x3E0000
WS_SIZE = 0x10000000
XBYTES  = 2048*896
WBYTES  = 448*1792*2
WS_DIAG = 0x800000
DIAG = False
OPT = {}
DPP6 = ["row_shr:1 row_mask:0xf", "row_shr:2 row_mask:0xf", "row_shr:4 row_mask:0xf", "row_shr:8 row_mask:0xf",
        "row_bcast:15 row_mask:0xa", "row_bcast:31 row_mask:0xc"]

def stamp(e, i):
    if DIAG:
        e(f"s_mem{'time' if OPT.get('cyc', 0) and i in (4, 5) else 'realtime'} s[{64+2*i}:{65+2*i}]")
        e("s_waitcnt lgkmcnt(0)")
def stamp_flush(e, kid, srdreg, nst, wavereg):
    if DIAG:
        e("s_mov_b64 exec, -1")
        e(f"s_memrealtime s[{64+2*nst}:{65+2*nst}]")
        e("s_waitcnt lgkmcnt(0)")
        for i in range(nst+1):
            e(f"v_writelane_b32 v220, s{64+2*i}, {i}")
        e(f"s_lshl_b32 s90, s2, 3")
        e(f"s_add_u32 s90, s90, s{wavereg}")
        e(f"s_lshl_b32 s90, s90, 6")
        e(f"s_add_u32 s90, s90, {WS_DIAG + kid*0x40000}")
        e("v_mbcnt_lo_u32_b32 v221, -1, 0")
        e("v_lshlrev_b32 v221, 2, v221")
        e("s_mov_b32 exec_lo, 0xffff")
        e("s_mov_b32 exec_hi, 0")
        e(f"buffer_store_dword v220, v221, s[{srdreg}:{srdreg+3}], s90 offen")
        e("s_mov_b64 exec, -1")

class Lds:
    def __init__(self, e):
        self.e = e; self.q = []
    def issue(self, tag, ins):
        self.e(ins); self.q.append(tag)
    def need(self, tag):
        if tag not in self.q: return
        last = max(i for i, t in enumerate(self.q) if t == tag)
        n = len(self.q) - 1 - last
        assert n <= 15, n
        self.e(f"s_waitcnt lgkmcnt({n})")
        self.q = self.q[last+1:]

def tagcheck(e, u):
    e("s_mov_b32 s63, 0")
    e(f"L_tag{u}:")
    e("v_cmp_ne_u32 vcc, 0, v222")
    e(f"s_cbranch_vccnz L_tagok{u}")
    if u != "a": srd(e, 56, 18, 256)
    e("buffer_load_dwordx2 v[222:223], off, s[56:59], 0 sc1")
    e("s_add_u32 s63, s63, 1")
    e("s_waitcnt vmcnt(0)")
    e("s_cmp_lt_u32 s63, 0x40000")
    e(f"s_cbranch_scc1 L_tag{u}")
    e(f"L_tagok{u}:")

def ka(e):
    header(e, NAME + "_kernel")
    X, ACC, CUR, PRV, PK, RF, BB = 64, 32, 16, 24, 48, 56, 120
    SUM, GRM = 32, 36
    LDS_X, LDS_Z = 57344, 114688
    LDS_R = LDS_Z + 8192
    LDS_ST = LDS_R + 8192
    LDS_CS = LDS_ST + 512
    LDS_TB = LDS_CS + 512
    e("s_cmp_ge_u32 s2, 256")
    e("s_cbranch_scc1 L_ka_end")
    stamp(e, 0)
    e("s_load_dwordx2 s[4:5], s[0:1], 0")
    e("s_load_dwordx2 s[6:7], s[0:1], 96")
    e("s_load_dwordx8 s[44:51], s[0:1], 48")
    e("s_load_dwordx2 s[60:61], s[0:1], 88")
    e("v_lshrrev_b32 v1, 6, v0")
    e("v_and_b32 v2, 15, v0")
    e("v_readfirstlane_b32 s43, v1")
    e("v_bfe_u32 v3, v0, 4, 2")
    e("v_and_b32 v1, 63, v0")
    e("s_cmp_ge_u32 s2, 224")
    e("s_cbranch_scc1 L_ka_spare")
    e("s_and_b32 s16, s43, 3")
    e("s_and_b32 s20, s2, 31")
    e("s_lshr_b32 s19, s2, 5")
    e("s_lshr_b32 s21, s16, 1")
    e("s_and_b32 s22, s16, 1")
    e("s_mul_i32 s29, s16, 14336")
    e(f"s_add_u32 s41, s29, {LDS_X}")
    e("s_mov_b32 s28, 0x3f803f80")
    e("s_cmp_ge_u32 s43, 4")
    e("s_cbranch_scc1 L_ka_help")

    def common_addr():
        e("v_lshlrev_b32 v11, 4, v1")
        e("v_and_b32 v12, 6, v2")
        e("v_xor_b32 v12, v12, v3")
        e("v_and_b32 v14, 7, v2")
        e("v_lshlrev_b32 v14, 7, v14")
        e("v_lshl_add_u32 v14, v12, 4, v14")
        e("v_lshrrev_b32 v12, 3, v2")
        e("v_lshl_add_u32 v14, v12, 10, v14")
        e("v_add_u32 v14, s41, v14")
        e("v_xor_b32 v15, 64, v14")
        e("v_lshrrev_b32 v12, 2, v1")
        e("v_and_b32 v53, 3, v1")
        e("v_bfe_u32 v10, v1, 3, 2")
        e("v_xor_b32 v10, v10, v53")
        e("v_lshlrev_b32 v10, 4, v10")
        e("v_lshl_add_u32 v10, v12, 6, v10")
        e("v_mul_u32_u24 v12, 57344, v12")
        e("v_lshl_add_u32 v53, v53, 4, v12")
        e("s_lshl_b32 s24, s43, 10")
        e(f"s_add_u32 s24, s24, {LDS_TB}")
        e("v_add_u32 v10, s24, v10")
        e("v_bfe_u32 v12, v2, 1, 2")
        e("v_xor_b32 v12, v12, v3")
        e("v_lshlrev_b32 v12, 4, v12")
        e("v_lshl_add_u32 v12, v2, 6, v12")
        e("v_add_u32 v8, s24, v12")
        e("s_mul_i32 s24, s22, 917504")
        e("s_mul_i32 s25, s21, 28672")
        e("s_add_u32 s24, s24, s25")
        e("s_lshl_b32 s25, s19, 7")
        e("s_add_u32 s24, s24, s25")
        e("s_mul_i32 s25, s20, 896")
        e("s_add_u32 s30, s24, s25")
        e("s_lshl_b32 s24, s16, 11")
        e(f"s_add_u32 s24, s24, {LDS_R}")
        e("v_add_u32 v52, s24, v11")
    def gemm2(hh):
        e(f"v_add_u32 v54, {LDS_Z + hh*4096}, v11")
        e("s_barrier")
        for j in range(4):
            e(f"ds_read_b128 {vr(X+4*j,4)}, v54 offset:{j*1024}")
        for n in range(2):
            e(f"s_waitcnt lgkmcnt({2-2*n})")
            e(f"v_mfma_f32_16x16x32_bf16 {vr(40+4*n,4)}, {vr(X+8*n,4)}, {vr(RF,4)}, 0")
            e(f"v_mfma_f32_16x16x32_bf16 {vr(40+4*n,4)}, {vr(X+8*n+4,4)}, {vr(RF+4,4)}, {vr(40+4*n,4)}")
        e("s_nop 4")
        e("v_cvt_pk_bf16_f32 v16, v40, v41")
        e("v_cvt_pk_bf16_f32 v17, v42, v43")
        e("s_nop 0")
        e("v_cvt_pk_bf16_f32 v18, v44, v45")
        e("v_cvt_pk_bf16_f32 v19, v46, v47")
        e("ds_write_b128 v8, v[16:19]")
        e("s_waitcnt lgkmcnt(0)")
        e("ds_read_b128 v[20:23], v10")
        e("s_waitcnt lgkmcnt(0)")
        e(f"buffer_store_dwordx4 v[20:23], v53, s[12:15], s30 offen offset:{64*hh} sc1")
        stamp(e, 7)
        e("s_waitcnt vmcnt(0)")
        stamp(e, 8)
        e("s_barrier")
        if hh == 1:
            e("s_cmp_lg_u32 s43, 4")
            e("s_cbranch_scc1 L_ka_noflag")
            tagcheck(e, "a")
            e("s_lshl_b32 s24, s2, 6")
            e(f"s_add_u32 s24, s24, {WS_FL1}")
            e("s_mov_b64 exec, 1")
            e("buffer_store_dwordx2 v[222:223], off, s[12:15], s24 sc1")
            e("s_mov_b64 exec, -1")
            e("L_ka_noflag:")
        stamp_flush(e, 0, 12, 9, 43)
        e("s_branch L_kb_entry")

    MACC, AR, CS, MB = 16, 32, 44, 64
    FC, FP, FK = 64, 72, 80
    e("v_lshrrev_b32 v4, 2, v2")
    e("v_and_b32 v5, 3, v2")
    e("s_lshl_b32 s24, s19, 6")
    e("s_lshl_b32 s25, s21, 5")
    e("s_add_u32 s25, s24, s25")
    e("s_lshl_b32 s26, s22, 2")
    e("s_add_u32 s25, s25, s26")
    e("v_lshl_add_u32 v7, v4, 3, v5")
    e("v_add_u32 v7, s25, v7")
    e("v_lshrrev_b32 v8, 5, v7")
    e("v_and_b32 v9, 15, v7")
    e("v_lshl_add_u32 v8, v8, 4, v9")
    e("v_cmp_eq_u32 vcc, 0, v7")
    e("v_bfe_u32 v10, v7, 4, 1")
    e("v_mov_b32 v9, 224")
    e("v_cndmask_b32 v7, v8, v9, vcc")
    e("v_mul_u32_u24 v10, 0x3e80, v10")
    e("v_lshlrev_b32 v10, 16, v10")
    e("v_lshl_add_u32 v8, v3, 3, s24")
    e("v_mul_u32_u24 v8, v8, v7")
    e("v_cvt_f32_u32 v7, v7")
    e("v_cvt_f32_u32 v8, v8")
    e(f"s_mov_b32 s24, {fbits(1.0/448)}")
    e("v_mul_f32 v9, s24, v8")
    e("v_floor_f32 v9, v9")
    e(f"v_fmamk_f32 v8, v9, {fbits(-448.0)}, v8")
    e("v_mul_f32 v7, s24, v7")
    e("v_fma_f32 v8, v8, s24, v10")
    e("v_mul_f32 v9, 0x42000000, v7")
    e("v_cos_f32 v88, v9")
    for j in range(8):
        e(f"v_cos_f32 v{FC+j}, v8")
        e(f"v_sub_f32 v11, v8, v9")
        if j < 7:
            e(f"v_add_f32 v8, v8, v7")
        e(f"v_cos_f32 v{FP+j}, v11")
    e("v_add_f32 v88, v88, v88")
    e("v_lshl_add_u32 v91, v1, 4, s29")
    e("v_mov_b32 v89, v88")
    stamp(e, 1)
    e(".p2align 3")
    for st in range(14):
        A, B = (FC, FP) if st % 2 == 0 else (FP, FC)
        P = FK + 4*(st % 2)
        for j in range(4):
            e(f"v_cvt_pk_bf16_f32 v{P+j}, v{A+2*j}, v{A+2*j+1}")
        e(f"ds_write_b128 v91, {vr(P,4)} offset:{st*1024}")
        if st < 13:
            for j in range(4):
                e(f"v_pk_fma_f32 {vr(B+2*j,2)}, v[88:89], {vr(A+2*j,2)}, {vr(B+2*j,2)} neg_lo:[0,0,1] neg_hi:[0,0,1]")
    e("v_lshlrev_b32 v11, 4, v1")
    e("s_waitcnt lgkmcnt(0)")
    stamp(e, 2)
    e("s_barrier")
    L = Lds(e)
    def rB(k, n):
        L.issue(("B", k), f"ds_read_b128 {vr(MB+32+((k+6)%8)*16+4*n,4)}, v11 offset:{(n*14+k)*1024}")
    def Breg(k, n): return vr(MB+32+((k+6)%8)*16+4*n, 4)
    PRE = OPT.get("pre", 4)
    for k in range(2):
        for n in range(4): rB(k, n)
    common_addr()
    for k in range(2, PRE):
        for n in range(4): rB(k, n)
    e("s_lshl_b32 s24, s21, 10")
    e("s_lshl_b32 s25, s22, 3")
    e("s_add_u32 s24, s24, s25")
    e(f"s_add_u32 s24, s24, {LDS_Z}")
    e("v_add_u32 v55, s24, v11")
    e(f"v_lshlrev_b32 v12, 2, v2")
    e(f"v_add_u32 v12, {LDS_CS}, v12")
    e("s_lshl_b32 s25, s16, 7")
    e(f"s_add_u32 s25, s25, {LDS_ST}")
    e("v_lshl_add_u32 v13, v3, 4, s25")
    srd(e, 12, 6, WS_SIZE)
    stamp(e, 3)
    e("s_barrier")
    stamp(e, 4)
    if DIAG: L.q = []
    def rA(k):
        L.issue(("A", k), f"ds_read_b128 {vr(AR+4*(k%3),4)}, v{14+(k&1)} offset:{(k>>1)*2048}")
    L.q = L.q[-13:]
    rA(0); rA(1)
    ST, U = 64, 72
    CK = OPT.get("ck", 11)
    sh = []
    for k in range(14):
        if k == 2: e("s_barrier")
        if k == 6: e("s_barrier")
        if k == CK:
            e("s_barrier")
            L.issue("st", f"ds_read_b128 {vr(ST,4)}, v13")
            L.issue("st", f"ds_read_b128 {vr(ST+4,4)}, v13 offset:64")
        if k == CK + 1:
            L.need("st")
            for n in range(4):
                for r in range(4): sh.append(f"v_mul_f32 v{U+4*n+r}, v{ST+r}, v{CS+n}")
        L.need(("A", k))
        L.need(("B", k))
        for n in range(4):
            c = "0" if k == 0 else vr(MACC+4*n, 4)
            e(f"v_mfma_f32_16x16x32_bf16 {vr(MACC+4*n,4)}, {vr(AR+4*(k%3),4)}, {Breg(k,n)}, {c}")
            if n == 0 and k + 2 < 14: rA(k + 2)
            if k + PRE < 14: rB(k + PRE, n)
            elif k == 14 - PRE: L.issue("cs", f"ds_read_b32 v{CS+n}, v12 offset:{64*n}")
            elif k == 15 - PRE and n < 2: L.issue("R", f"ds_read_b128 {vr(RF+4*n,4)}, v52 offset:{1024*n}")
            for _ in range(3):
                if sh: e(sh.pop(0))
    if CK == 13:
        L.need("st")
        for n in range(4):
            for r in range(4): sh.append(f"v_mul_f32 v{U+4*n+r}, v{ST+r}, v{CS+n}")
    stamp(e, 5)
    nl = len(sh)
    while sh: e(sh.pop(0))
    if nl < 5: e(f"s_nop {4-nl}")
    for n in range(4):
        a = MACC + 4*n
        e(f"v_pk_fma_f32 {vr(a,2)}, {vr(a,2)}, {vr(ST+4,2)}, {vr(U+4*n,2)}")
        e(f"v_pk_fma_f32 {vr(a+2,2)}, {vr(a+2,2)}, {vr(ST+6,2)}, {vr(U+4*n+2,2)}")
        e(f"v_cvt_pk_bf16_f32 v{32+2*n}, v{a}, v{a+1}")
        e(f"v_cvt_pk_bf16_f32 v{33+2*n}, v{a+2}, v{a+3}")
        e(f"ds_write_b64 v55, {vr(32+2*n,2)} offset:{n*2048}")
    e("s_waitcnt lgkmcnt(0)")
    stamp(e, 6)
    gemm2(0)

    e("L_ka_help:")
    e("s_setprio 2")
    e("v_lshrrev_b32 v4, 3, v1")
    e("v_and_b32 v5, 7, v1")
    e("v_and_b32 v6, 6, v4")
    e("v_xor_b32 v5, v5, v6")
    e("v_lshrrev_b32 v6, 2, v4")
    e("v_and_b32 v4, 3, v4")
    e("v_lshl_add_u32 v6, v6, 3, v4")
    e("v_mul_u32_u24 v6, 28672, v6")
    e("v_lshl_add_u32 v6, v5, 4, v6")
    e(f"v_add_u32 v13, {16*28672}, v6")
    e("s_lshl_b32 s23, s21, 10")
    e("s_lshl_b32 s24, s22, 7")
    e("s_add_u32 s23, s23, s24")
    e("s_add_u32 s23, s23, s20")
    e("s_mul_i32 s23, s23, 896")
    e("s_lshl_b32 s31, s19, 7")
    e("s_add_u32 s32, s23, 896")
    e("s_add_u32 s31, s31, s23")
    e("s_waitcnt lgkmcnt(0)")
    stamp(e, 1)
    srd(e, 8, 4, XBYTES)
    XNT = " nt" if OPT.get("xnt", 0) else ""
    def xpair(c):
        e(f"s_add_u32 m0, s41, {c*2048}")
        e("s_add_u32 s33, s31, 128")
        e(f"buffer_load_dwordx4 v6, s[8:11], s31 offen{XNT} lds")
        e(f"s_add_u32 m0, s41, {c*2048+1024}")
        e("s_cmp_eq_u32 s33, s32")
        e(f"buffer_load_dwordx4 v13, s[8:11], s31 offen{XNT} lds")
        e("s_cselect_b32 s31, s23, s33")
    NF = OPT.get("nf", 4)
    for c in range(NF): xpair(c)
    e("s_setprio 0")
    srd(e, 12, 6, WS_SIZE)
    e("s_cmp_ge_u32 s2, 8")
    e("s_cselect_b32 s34, -1, 0")
    e("s_lshl_b32 s35, s2, 12")
    e(f"s_add_u32 s35, s35, {WS_KEY - 4096}")
    e("s_cmp_ge_u32 s2, 204")
    e("s_cselect_b32 s36, 0x7ff00000, 0")
    e("v_lshl_add_u32 v12, v0, 4, s36")
    for j in range(4):
        e(f"v_mov_b32 v{44+j}, s34")
    e("buffer_store_dwordx4 v[44:47], v12, s[12:15], s35 offen sc1")
    e("s_mov_b32 s56, s60")
    e("s_mov_b32 s57, s61")
    e("s_movk_i32 s58, 256")
    e("s_mov_b32 s59, 0x20000")
    e("s_or_b32 s24, s2, s16")
    e("s_cmp_lg_u32 s24, 0")
    e("s_cbranch_scc1 L_ka_notag")
    e("s_memrealtime s[24:25]")
    e("s_waitcnt lgkmcnt(0)")
    e("s_or_b32 s24, s24, 1")
    e("v_mov_b32 v44, s24")
    e("v_mov_b32 v45, s25")
    e("s_mov_b64 exec, 1")
    e("buffer_store_dwordx2 v[44:45], off, s[56:59], 0 sc1")
    e("s_mov_b64 exec, -1")
    e("L_ka_notag:")
    e("s_lshl_b32 s24, s22, 4")
    e("v_add_u32 v7, s24, v2")
    e("s_mul_i32 s25, s21, 0x3e800000")
    e("v_mov_b32 v10, s25")
    e("s_cmp_eq_u32 s16, 2")
    e("s_cselect_b32 s24, 0, -1")
    e("v_cmp_eq_u32 vcc, s24, v7")
    e("v_mov_b32 v12, 32")
    e("v_lshlrev_b32 v8, 3, v3")
    e("v_cndmask_b32 v7, v7, v12, vcc")
    e("v_cndmask_b32 v10, v10, 0, vcc")
    e("v_cvt_f32_u32 v7, v7")
    e("v_cvt_f32_u32 v8, v8")
    e(f"v_mul_f32 v7, {fbits(1.0/64)}, v7")
    e("v_fma_f32 v8, v8, v7, v10")
    e("v_mul_f32 v10, 0x42000000, v7")
    for j in range(8):
        e(f"v_cos_f32 v{CUR+j}, v8")
        e(f"v_add_f32 v12, v8, v10")
        if j < 7:
            e(f"v_add_f32 v8, v8, v7")
        e(f"v_cos_f32 v{PRV+j}, v12")
    common_addr()
    for j in range(4):
        e(f"v_cvt_pk_bf16_f32 v{RF+j}, v{CUR+2*j}, v{CUR+2*j+1}")
        e(f"v_cvt_pk_bf16_f32 v{RF+4+j}, v{PRV+2*j}, v{PRV+2*j+1}")
    e(f"ds_write_b128 v52, {vr(RF,4)}")
    e(f"ds_write_b128 v52, {vr(RF+4,4)} offset:1024")
    e("s_mul_i32 s42, s16, 224")
    e("s_add_u32 s42, s42, s2")
    e(f"s_cmp_lt_u32 s42, {OPT.get('nch', 392)}")
    e(f"s_cselect_b32 s38, {WBYTES:#x}, 0")
    e("s_cmp_ge_u32 s42, 196")
    e("s_cselect_b32 s36, s48, s46")
    e("s_cselect_b32 s37, s49, s47")
    e("s_cselect_b32 s34, 196, 0")
    e("s_cmp_ge_u32 s42, 392")
    e("s_cselect_b32 s36, s50, s36")
    e("s_cselect_b32 s37, s51, s37")
    e("s_cselect_b32 s34, 392, s34")
    e("s_sub_u32 s42, s42, s34")
    e("s_lshl_b32 s42, s42, 13")
    e("s_mov_b32 s39, 0x20000")
    e("v_lshlrev_b32 v9, 7, v1")
    e("v_add_u32 v9, s42, v9")
    for j in range(4):
        e(f"v_mov_b32 v{48+j}, s28")
    e(f"s_mov_b32 s24, {fbits(1.0/448)}")
    e(f"s_mov_b32 s26, {fbits(1e-5)}")
    e(f"s_mov_b32 s27, 0xffff0000")
    stamp(e, 2)
    vq = [c for c in range(NF) for h in range(2)] + ["clr"]
    def vwait(c):
        last = max(i for i, t in enumerate(vq) if t == c)
        e(f"s_waitcnt vmcnt({len(vq)-1-last})")
        del vq[:last+1]
    e("v_and_b32 v4, 3, v2")
    e("v_lshrrev_b32 v5, 2, v2")
    e("v_cmp_eq_u32 s[52:53], 1, v4")
    e("v_cmp_eq_u32 s[54:55], 2, v4")
    e("v_cmp_eq_u32 s[62:63], 3, v4")
    e("v_cmp_eq_u32 s[60:61], v5, v3")
    e("s_lshl_b32 s25, s16, 7")
    e(f"s_add_u32 s25, s25, {LDS_ST}")
    e("v_lshl_add_u32 v4, v2, 2, s25")
    e("v_add_u32 v5, s29, v11")
    e("s_lshl_b32 s25, s16, 6")
    e(f"s_add_u32 s25, s25, {LDS_CS}")
    e("v_lshl_add_u32 v7, v2, 2, s25")
    e("s_waitcnt lgkmcnt(0)")
    e("s_setprio 2")
    e("s_barrier")
    nx = [NF]
    def land(c):
        vwait(c)
        if nx[0] < 7:
            xpair(nx[0]); vq.extend([nx[0]]*2); nx[0] += 1
    def stat(k):
        c = "0" if k == 0 else vr(GRM, 4)
        e(f"v_mfma_f32_16x16x32_bf16 {vr(GRM,4)}, {vr(X+4*k,4)}, {vr(X+4*k,4)}, {c}")
        c = "0" if k == 0 else vr(SUM, 4)
        e(f"v_mfma_f32_16x16x32_bf16 {vr(SUM,4)}, {vr(X+4*k,4)}, v[48:51], {c}")
    def rdx(k0, k1):
        for k in range(k0, k1):
            e(f"ds_read_b128 {vr(X+4*k,4)}, v{14+(k&1)} offset:{(k>>1)*2048}")
    def stats(k0, k1, kend):
        for k in range(k0, k1):
            e(f"s_waitcnt lgkmcnt({kend-1-k})")
            stat(k)
    for k in range(14):
        e(f"ds_read_b128 {vr(120+4*k,4)}, v5 offset:{k*1024}")
    for k in range(14):
        e(f"s_waitcnt lgkmcnt({13-k})")
        e(f"v_mfma_f32_16x16x32_bf16 v[40:43], v[48:51], {vr(120+4*k,4)}, {'0' if k == 0 else 'v[40:43]'}")
    land(0); land(1)
    e("ds_write_b32 v7, v40")
    rdx(0, 4)
    stamp(e, 3)
    e("s_barrier")
    stamp(e, 4)
    stats(0, 2, 4)
    land(2)
    stats(2, 4, 4)
    land(3)
    assert nx[0] == 7
    rdx(4, 8)
    e("s_barrier")
    stats(4, 8, 8)
    e("s_waitcnt vmcnt(0)")
    e("buffer_load_dwordx2 v[222:223], off, s[56:59], 0 sc1")
    rdx(8, 14)
    if OPT.get("sb", 0): stamp(e, 2)
    BE = OPT.get("be", 0)
    if BE: e("s_barrier")
    if OPT.get("pf", 1):
        e("buffer_load_dword v219, v9, s[36:39], 0 offen")
    stats(8, 14, 14)
    if not BE: e("s_barrier")
    e("s_nop 6")
    e(f"v_cndmask_b32 v20, v{GRM}, v{GRM+1}, s[52:53]")
    e(f"v_cndmask_b32 v16, v{SUM}, v{SUM+1}, s[52:53]")
    e(f"v_cndmask_b32 v20, v20, v{GRM+2}, s[54:55]")
    e(f"v_cndmask_b32 v16, v16, v{SUM+2}, s[54:55]")
    e(f"v_cndmask_b32 v20, v20, v{GRM+3}, s[62:63]")
    e(f"v_cndmask_b32 v16, v16, v{SUM+3}, s[62:63]")
    e("v_mul_f32 v20, s24, v20")
    e("v_mul_f32 v16, s24, v16")
    e("v_fma_f32 v20, -v16, v16, v20")
    e("v_max_f32 v20, 0, v20")
    e("v_cvt_pk_bf16_f32 v20, v20, v20")
    e("v_and_b32 v20, s27, v20")
    e("v_add_f32 v20, s26, v20")
    e("v_cvt_pk_bf16_f32 v20, v20, v20")
    e("v_and_b32 v20, s27, v20")
    e("v_sqrt_f32 v20, v20")
    e("s_mov_b64 exec, s[60:61]")
    e("v_cvt_pk_bf16_f32 v20, v20, v20")
    e("v_and_b32 v20, s27, v20")
    e("v_rcp_f32 v20, v20")
    e("s_nop 0")
    e("v_mul_f32 v16, -v16, v20")
    e("ds_write2_b32 v4, v16, v20 offset0:0 offset1:16")
    e("s_mov_b64 exec, -1")
    e("s_waitcnt lgkmcnt(0)")
    stamp(e, 5)
    e("s_barrier")
    stamp(e, 6)
    gemm2(1)

    e("L_ka_spare:")
    e("s_sub_u32 s19, s2, 224")
    e("s_lshl_b32 s19, s19, 16")
    e("v_lshlrev_b32 v8, 7, v0")
    e("v_add_u32 v9, s19, v8")
    e("s_waitcnt lgkmcnt(0)")
    srd(e, 24, 44, 896)
    e(f"buffer_load_dword v16, v8, s[24:27], 0 offen")
    srd(e, 28, 50, WBYTES)
    e("s_waitcnt vmcnt(0)")
    e(f"buffer_load_dword v11, v9, s[28:31], 0 offen")
    e("L_ka_end:")
    e("s_endpgm")
    kb(e)
    return dict(name=NAME + "_kernel", vgpr=224, accum=224, sgpr=64, grid=256, block=512, lds=LDS_TB+8192)

def sync1(e, u):
    tagcheck(e, u)
    e("v_lshlrev_b32 v64, 6, v1")
    e("v_mov_b32 v65, 0x7ff00000")
    e("v_cmp_gt_u32 vcc, 32, v1")
    for j in range(4):
        e(f"s_mov_b32 s{56+j}, {WS_FL1 + 4096*j:#x}")
    e("v_cndmask_b32 v65, v65, v64, vcc")
    e("s_mov_b32 s63, 0")
    e(f"L_s1{u}:")
    if OPT.get("s1sl", 0): e(f"s_sleep {OPT['s1sl']}")
    for j in range(4):
        e(f"buffer_load_dwordx2 {vr(66+2*j,2)}, v{65 if j == 3 else 64}, s[24:27], s{56+j} offen sc1")
    e("s_add_u32 s63, s63, 1")
    e("s_waitcnt vmcnt(0)")
    e("v_cndmask_b32 v72, v222, v72, vcc")
    e("v_cndmask_b32 v73, v223, v73, vcc")
    for j in range(4):
        e(f"v_xor_b32 v{66+2*j}, v{66+2*j}, v222")
        e(f"v_xor_b32 v{67+2*j}, v{67+2*j}, v223")
    e("v_or3_b32 v66, v66, v67, v68")
    e("v_or3_b32 v69, v69, v70, v71")
    e("v_or3_b32 v66, v66, v72, v73")
    e("v_or_b32 v66, v66, v69")
    e("v_cmpx_ne_u32 s[60:61], 0, v66")
    e(f"s_cbranch_execz L_s1d{u}")
    e("s_cmp_lt_u32 s63, 0x40000")
    e(f"s_cbranch_scc1 L_s1{u}")
    e(f"L_s1d{u}:")
    e("s_mov_b64 exec, -1")

def kb(e):
    e("L_kb_entry:")
    e("s_cmp_ge_u32 s2, 184")
    e("s_cbranch_scc1 L_kb_end")
    stamp(e, 0)
    e("s_setprio 0")
    e("s_load_dwordx2 s[20:21], s[0:1], 96")
    e("s_load_dwordx2 s[4:5], s[0:1], 0")
    e("s_load_dwordx8 s[8:15], s[0:1], 48")
    e("s_load_dwordx4 s[16:19], s[0:1], 80")
    e("s_mov_b32 s28, s43")
    e("v_lshlrev_b32 v4, 4, v1")
    e("s_cmp_ge_u32 s2, 128")
    e("s_cbranch_scc1 L_kb_ffn")
    p2(e)
    e("L_kb_ffn:")
    ffn(e)
    e("L_kb_end:")
    e("s_endpgm")

def p2(e):
    YB, RS, KBUF = 57344, 1808, 57344 + 16*1808
    C, S, F1, F3 = 16, 20, 24, 28
    A, ACC = 64, 32
    XR, WR = 48, 56
    H, T = 96, 104
    Y = 16
    e("s_and_b32 s29, s2, 31")
    e("s_bfe_u32 s30, s2, 0x10005")
    e("s_lshr_b32 s31, s2, 6")
    e("s_sub_u32 s32, 64, s29")
    e("s_cmp_eq_u32 s29, 0")
    e("s_cselect_b32 s32, 32, s32")
    e("s_cmp_eq_u32 s31, 0")
    e("s_cselect_b32 s32, s29, s32")
    e("s_lshl_b32 s33, s30, 10")
    e("s_add_u32 s33, s33, s32")
    e("s_lshl_b32 s34, s28, 7")
    e("s_add_u32 s34, s34, s33")
    e("s_mul_i32 s35, s34, 896")
    e("v_and_b32 v5, 31, v1")
    e("v_lshrrev_b32 v6, 5, v1")
    e("v_cmp_gt_u32 s[40:41], 28, v5")
    e("v_lshlrev_b32 v9, 4, v5")
    e("v_mov_b32 v10, 0x7ff00000")
    e("v_mul_u32_u24 v11, 57344, v6")
    e("v_cndmask_b32 v125, v10, v9, s[40:41]")
    e("v_add_u32 v10, v125, v11")
    e("s_waitcnt lgkmcnt(0)")
    srd(e, 44, 4, XBYTES)
    srd(e, 48, 8, 896)
    e(f"buffer_load_dwordx4 {vr(WR,4)}, v125, s[48:51], 0 offen")
    e(f"buffer_load_dwordx4 {vr(WR+4,4)}, v125, s[48:51], 0 offen offset:448")
    e(f"buffer_load_dwordx4 {vr(XR,4)}, v10, s[44:47], s35 offen")
    e(f"buffer_load_dwordx4 {vr(XR+4,4)}, v10, s[44:47], s35 offen offset:448")
    srd(e, 44, 16, XBYTES)
    srd(e, 24, 20, WS_SIZE)
    e(f"s_mul_i32 s38, s28, {2*RS}")
    e(f"s_add_u32 s38, s38, {YB}")
    e(f"v_mul_u32_u24 v7, {RS}, v6")
    e("v_lshl_add_u32 v7, v5, 5, v7")
    e("v_add_u32 v7, s38, v7")
    e("s_mov_b32 s43, 0xffff0000")
    e("s_mov_b32 s52, 0x3f803f80")
    e("v_lshl_add_u32 v11, v6, 6, s34")
    e("v_sub_u32 v121, 0xfff, v11")
    e("s_lshl_b32 s38, s28, 3")
    e(f"s_add_u32 s38, s38, {KBUF}")
    e("v_lshl_add_u32 v120, v6, 2, s38")
    e(f"s_mov_b32 s38, {fbits(1.0/448)}")
    e("s_lshl_b32 s53, s2, 7")
    e(f"s_add_u32 s53, s53, {WS_KEY}")
    e("s_cmp_eq_u32 s28, 7")
    e("s_cbranch_scc1 L_p2_nocoef")
    e("s_mul_i32 s36, s29, 57344")
    e("s_lshl_b32 s37, s28, 7")
    e("s_add_u32 s36, s36, s37")
    e("s_lshl_b32 s37, s28, 13")
    e("v_lshl_add_u32 v9, v2, 6, s33")
    e("v_cvt_f32_u32 v9, v9")
    e(f"v_mul_f32 v9, {fbits(1.0/2048)}, v9")
    e("v_lshlrev_b32 v8, 3, v3")
    e("v_cvt_f32_u32 v8, v8")
    e("v_mul_f32 v8, v8, v9")
    for j in range(8):
        e(f"v_cos_f32 v{A+j}, v8")
        e(f"v_sin_f32 v{A+8+j}, v8")
        if j < 7:
            e("v_add_f32 v8, v8, v9")
    e("v_lshrrev_b32 v4, 2, v1")
    e("v_mul_u32_u24 v4, 896, v4")
    e("v_lshlrev_b32 v8, 1, v6")
    e("v_and_b32 v9, 3, v1")
    e("v_xor_b32 v8, v8, v9")
    e("v_lshl_add_u32 v4, v8, 4, v4")
    for j in range(4):
        e(f"v_cvt_pk_bf16_f32 v{C+j}, v{A+2*j}, v{A+2*j+1}")
        e(f"v_cvt_pk_bf16_f32 v{S+j}, v{A+8+2*j}, v{A+8+2*j+1}")
    e("s_cmp_gt_u32 s32, 32")
    e("s_cselect_b32 s39, 0x80008000, 0")
    e("s_xor_b32 s42, s39, 0x80008000")
    for j in range(4):
        e(f"v_xor_b32 v{F1+j}, s39, v{S+j}")
        e(f"v_xor_b32 v{F3+j}, s42, v{C+j}")
    e("s_cmp_lg_u32 s29, 0")
    e("s_cbranch_scc1 L_p2_nospecial")
    e("s_cmp_eq_u32 s32, 0")
    e("s_cbranch_scc1 L_p2_t0")
    for j in range(4):
        e(f"v_mov_b32 v{F1+j}, v{C+j}")
        e(f"v_mov_b32 v{F3+j}, v{S+j}")
        e(f"v_mov_b32 v{C+j}, 0")
        e(f"v_mov_b32 v{S+j}, 0")
    e("s_branch L_p2_nospecial")
    e("L_p2_t0:")
    for j in range(4):
        e(f"v_mov_b32 v{F1+j}, 0")
        e(f"v_mov_b32 v{F3+j}, 0")
    e("L_p2_nospecial:")
    e("v_and_b32 v13, 1, v3")
    e("v_lshrrev_b32 v12, 2, v2")
    e("v_lshl_add_u32 v12, v13, 3, v12")
    e("v_lshlrev_b32 v12, 6, v12")
    e("v_lshrrev_b32 v14, 1, v3")
    e("v_lshl_add_u32 v12, v14, 10, v12")
    e("v_bfe_u32 v14, v2, 1, 1")
    e("v_lshl_add_u32 v14, v13, 1, v14")
    e("v_lshl_add_u32 v12, v14, 4, v12")
    e("v_and_b32 v14, 1, v2")
    e("v_lshl_add_u32 v12, v14, 3, v12")
    e("v_add_u32 v12, s37, v12")
    e("v_xor_b32 v126, 32, v12")
    e("s_lshl_b32 s42, s28, 7")
    e("v_lshl_add_u32 v13, v3, 4, s42")
    e("v_cmp_eq_u32 vcc, 0, v13")
    e(f"v_mul_u32_u24 v14, {RS}, v2")
    e(f"v_add_u32 v14, {YB}, v14")
    e("v_sub_u32 v15, v14, v13")
    e(f"v_add_u32 v15, {(448-19)*4}, v15")
    e("v_add_u32 v13, v13, v14")
    e(f"v_add_u32 v9, {19*4}, v15")
    e(f"v_add_u32 v8, {224*4}, v14")
    e("v_cndmask_b32 v14, v9, v8, vcc")
    e("L_p2_nocoef:")
    for r in (8, 9, 122, 123):
        e(f"v_mov_b32 v{r}, 0")
    e(f"s_waitcnt vmcnt(2)")
    for j in range(8):
        e(f"v_dot2c_f32_bf16 v123, s52, v{WR+j}")
    e(f"s_waitcnt vmcnt(0)")
    un = []
    for j in range(8):
        un.append(f"v_lshlrev_b32 v{T+2*j}, 16, v{XR+j}")
        un.append(f"v_and_b32 v{T+2*j+1}, s43, v{XR+j}")
    for _ in range(3): e(un.pop(0))
    for ror in (8, 4, 2, 1):
        e(f"v_add_f32_dpp v123, v123, v123 row_ror:{ror} row_mask:0xf bank_mask:0xf")
        e(un.pop(0)); e(un.pop(0))
    e("v_mov_b32 v124, v123")
    e(un.pop(0)); e(un.pop(0))
    e("v_permlane16_swap_b32 v123, v124")
    while un: e(un.pop(0))
    e("v_add_f32 v123, v123, v124")
    stamp(e, 1)
    e("s_cmp_lg_u32 s28, 7")
    e("s_cbranch_scc1 L_p2_s1")
    sync1(e, "p")
    e("s_barrier")
    stamp(e, 2)
    e("s_barrier")
    e("s_branch L_p2_join")
    e("L_p2_s1:")
    e(f"s_mov_b32 m0, s37")
    e("s_barrier")
    stamp(e, 2)
    for mm in range(2):
        for hf in range(2):
            for rb in range(2):
                if mm or hf or rb:
                    e(f"s_add_u32 m0, s37, {((mm*2+hf)*2+rb)*1024}")
                e(f"s_add_u32 s54, s36, {hf*28672 + rb*14336 + mm*64}")
                e(f"buffer_load_dwordx4 v4, s[24:27], s54 offen{' sc1' if OPT.get('vsc', 1) else ''} lds")
        if mm == 0:
            e("s_barrier")
    for mm in range(2):
        e(f"s_waitcnt vmcnt({4-4*mm})")
        if mm == 1: stamp(e, 3)
        order = [(0, 0, C), (0, 1, F1), (1, 0, S), (1, 1, F3)]
        for i, (kd, hf, fr) in enumerate(order):
            for io in range(2):
                e(f"ds_read_b64_tr_b16 {vr(A+(mm*4+i)*4+2*io,2)}, v{126 if kd else 12} offset:{(mm*2+hf)*2048+io*256}")
        for i, (kd, hf, fr) in enumerate(order):
            e(f"s_waitcnt lgkmcnt({6-2*i})")
            acc = ACC + 8*mm + 4*kd
            c = "0" if hf == 0 else vr(acc, 4)
            e(f"v_mfma_f32_16x16x32_bf16 {vr(acc,4)}, {vr(A+(mm*4+i)*4,4)}, {vr(fr,4)}, {c}")
        E_, O_ = ACC + 8*mm, ACC + 8*mm + 4
        D_ = A + 16*mm
        e("s_nop 7")
        for r in range(4):
            e(f"v_add_f32 v{D_+r}, v{E_+r}, v{O_+r}")
        for r in range(4):
            e(f"v_sub_f32 v{D_+4+r}, v{E_+r}, v{O_+r}")
        if mm == 0:
            e(f"v_cndmask_b32 v{D_}, v{D_}, 0, vcc")
        e(f"ds_write_b128 v13, {vr(D_,4)} offset:{64*mm}")
        o = 16*(1-mm)
        if mm == 0:
            e(f"ds_write_b32 v14, v{D_+4}")
            e(f"ds_write_b32 v15, v{D_+5} offset:{(o+2)*4}")
        else:
            e(f"ds_write2_b32 v15, v{D_+4}, v{D_+5} offset0:{o+3} offset1:{o+2}")
        e(f"ds_write2_b32 v15, v{D_+6}, v{D_+7} offset0:{o+1} offset1:{o}")
    e("s_waitcnt lgkmcnt(0)")
    e("L_p2_join:")
    stamp(e, 4)
    e("s_barrier")
    e("s_mov_b64 exec, s[40:41]")
    e(f"ds_read_b128 {vr(Y,4)}, v7")
    e(f"ds_read_b128 {vr(Y+4,4)}, v7 offset:16")
    e(f"ds_read_b128 {vr(Y+8,4)}, v7 offset:896")
    e(f"ds_read_b128 {vr(Y+12,4)}, v7 offset:912")
    for j in range(8):
        if j % 2 == 0:
            e(f"s_waitcnt lgkmcnt({3-j//2})")
        e(f"v_pk_add_f32 {vr(T+2*j,2)}, {vr(Y+2*j,2)}, {vr(T+2*j,2)}")
        if j % 2 == 1:
            e(f"v_cvt_pk_bf16_f32 v{H+j-1}, v{T+2*j-2}, v{T+2*j-1}")
            e(f"v_cvt_pk_bf16_f32 v{H+j}, v{T+2*j}, v{T+2*j+1}")
    for j in range(8):
        e(f"v_dot2c_f32_bf16 v8, s52, v{H+j}")
        e(f"v_dot2c_f32_bf16 v9, v{H+j}, v{H+j}")
        e(f"v_dot2c_f32_bf16 v122, v{H+j}, v{WR+j}")
    e("s_mov_b64 exec, -1")
    for ror in (8, 4, 2, 1):
        for r in (8, 9, 122):
            e(f"v_add_f32_dpp v{r}, v{r}, v{r} row_ror:{ror} row_mask:0xf bank_mask:0xf")
    e("v_mov_b32 v13, v8")
    e("v_mov_b32 v14, v9")
    e("v_mov_b32 v15, v122")
    e("v_permlane16_swap_b32 v8, v13")
    e("v_permlane16_swap_b32 v9, v14")
    e("v_permlane16_swap_b32 v122, v15")
    e("v_add_f32 v8, v8, v13")
    e("v_add_f32 v9, v9, v14")
    e("v_add_f32 v12, v122, v15")
    e("v_mul_f32 v8, s38, v8")
    e("v_mul_f32 v9, s38, v9")
    e("v_fma_f32 v9, -v8, v8, v9")
    e("v_max_f32 v9, 0, v9")
    e("v_cvt_pk_bf16_f32 v8, v9, v8")
    e("v_lshlrev_b32 v9, 16, v8")
    e(f"v_add_f32 v9, {fbits(1e-5)}, v9")
    e("v_cvt_pk_bf16_f32 v9, v9, v9")
    e("v_and_b32 v9, s43, v9")
    e("v_sqrt_f32 v9, v9")
    e("v_and_b32 v8, s43, v8")
    e("v_cvt_pk_bf16_f32 v13, v9, v8")
    e("v_lshlrev_b32 v9, 16, v13")
    e("v_rcp_f32 v9, v9")
    e("v_fma_f32 v12, -v8, v123, v12")
    e("v_mul_f32 v12, v12, v9")
    e("v_add_f32 v4, 1.0, v9")
    e("v_cvt_pk_bf16_f32 v12, v12, v12")
    e("v_mul_f32 v14, -v8, v9")
    e("v_ashrrev_i32 v6, 31, v12")
    e("v_mov_b32 v5, v4")
    e("v_or_b32 v6, 0x80000000, v6")
    e("v_mov_b32 v15, v14")
    e("v_xor_b32 v12, v12, v6")
    e("v_and_or_b32 v12, v12, s43, v121")
    e("ds_write2_b32 v120, v12, v13 offset0:0 offset1:16")
    def outs(lo, hi):
        for j in range(lo, hi):
            e(f"v_pk_fma_f32 {vr(T+2*j,2)}, {vr(T+2*j,2)}, v[4:5], v[14:15]")
            if j % 2 == 1:
                e(f"v_cvt_pk_bf16_f32 v{XR+j-1}, v{T+2*j-2}, v{T+2*j-1}")
                e(f"v_cvt_pk_bf16_f32 v{XR+j}, v{T+2*j}, v{T+2*j+1}")
    e("v_lshlrev_b32 v6, 2, v1")
    e(f"v_add_u32 v7, {KBUF}, v6")
    e("s_waitcnt lgkmcnt(0)")
    stamp(e, 5)
    e("s_barrier")
    e("s_cmp_lg_u32 s28, 0")
    e("s_cbranch_scc1 L_p2_nokey")
    e("ds_read_b32 v12, v7")
    e("s_mov_b32 exec_hi, 0")
    e("s_waitcnt lgkmcnt(0)")
    e("buffer_store_dword v12, v6, s[24:27], s53 offen sc1")
    e("s_mov_b64 exec, -1")
    e("L_p2_nokey:")
    outs(0, 8)
    e(f"buffer_store_dwordx4 {vr(XR,4)}, v10, s[44:47], s35 offen sc1")
    e(f"buffer_store_dwordx4 {vr(XR+4,4)}, v10, s[44:47], s35 offen offset:448 sc1")
    e("s_waitcnt vmcnt(0)")
    stamp(e, 6)
    e("s_barrier")
    e("s_cmp_lg_u32 s28, 0")
    e("s_cbranch_scc1 L_p2_end")
    e("s_mov_b64 exec, 1")
    e("v_mov_b32 v12, 1")
    e(f"s_add_u32 s53, s53, {WS_FLAG - WS_KEY}")
    e(f"buffer_store_dword v12, off, s[24:27], s53 sc1")
    e("L_p2_end:")
    stamp_flush(e, 1, 24, 7, 28)
    e("s_endpgm")

def ffn(e):
    XS, ONES, ACT, MISC, GB = 0, 7168, 14336, 15360, 16384
    DB = GB + 57344
    A, AD_, ACC = 64, 36, 32
    K = 64
    e("s_sub_u32 s29, s2, 128")
    e("s_and_b32 s37, s29, 7")
    e("s_lshr_b32 s38, s29, 3")
    e("s_mul_i32 s39, s37, 7")
    e("s_add_u32 s39, s39, s38")
    e("s_cmp_eq_u32 s28, 7")
    e("s_cbranch_scc1 L_f_poll")
    e("s_cmp_lt_u32 s28, 4")
    e("s_cbranch_scc1 L_f_comp")
    e("v_lshrrev_b32 v5, 2, v1")
    e("v_and_b32 v6, 3, v1")
    e("v_lshrrev_b32 v7, 4, v1")
    e("v_and_b32 v7, 2, v7")
    e("v_xor_b32 v6, v6, v7")
    e("s_cmp_eq_u32 s28, 5")
    e("s_cselect_b32 s40, 1, 0")
    e("v_xor_b32 v6, s40, v6")
    e("s_cmp_eq_u32 s28, 6")
    e("s_movk_i32 s41, 896")
    e("s_cselect_b32 s41, s41, 3584")
    e("s_cselect_b32 s42, 64, 114688")
    e("s_cselect_b32 s43, 28672, 64")
    e("v_mul_u32_u24 v5, s41, v5")
    e("v_lshl_add_u32 v5, v6, 4, v5")
    e("s_lshl_b32 s44, s41, 4")
    e("v_add_u32 v6, s44, v5")
    e("s_mul_i32 s43, s43, s39")
    e("s_sub_u32 s44, s28, 4")
    e("s_mul_i32 s44, s44, 28672")
    e(f"s_add_u32 s44, s44, {GB}")
    e("s_waitcnt lgkmcnt(0)")
    stamp(e, 1)
    e("s_cmp_eq_u32 s28, 5")
    e("s_cselect_b32 s48, s12, s10")
    e("s_cselect_b32 s49, s13, s11")
    e("s_cmp_eq_u32 s28, 6")
    e("s_cselect_b32 s48, s14, s48")
    e("s_cselect_b32 s49, s15, s49")
    e(f"s_mov_b32 s50, {WBYTES:#x}")
    e("s_mov_b32 s51, 0x20000")
    e("s_add_u32 s45, s44, 28672")
    e("s_barrier")
    if OPT.get("ldly", 0): e(f"s_sleep {OPT['ldly']}")
    e("L_f_dma:")
    e("s_mov_b32 m0, s44")
    e("s_add_u32 s44, s44, 2048")
    e("buffer_load_dwordx4 v5, s[48:51], s43 offen lds")
    e("s_add_u32 m0, m0, 1024")
    e("s_nop 0")
    e("buffer_load_dwordx4 v6, s[48:51], s43 offen lds")
    e("s_add_u32 s43, s43, s42")
    e("s_cmp_lt_u32 s44, s45")
    e("s_cbranch_scc1 L_f_dma")
    stamp(e, 2)
    e(f"v_mov_b32 v5, {MISC}")
    e("v_mov_b32 v6, 1")
    e("s_mov_b64 exec, 1")
    e("s_waitcnt vmcnt(0)")
    e("ds_add_u32 v5, v6")
    e("s_waitcnt lgkmcnt(0)")
    if DIAG:
        srd(e, 24, 20, WS_SIZE)
        stamp_flush(e, 1, 24, 3, 28)
    e("s_endpgm")

    e("L_f_comp:")
    e("v_mov_b32 v8, 0x3f803f80")
    e("v_mov_b32 v9, v8")
    e("v_mov_b32 v10, v8")
    e("v_mov_b32 v11, v8")
    e("v_lshlrev_b32 v5, 4, v0")
    e(f"ds_write_b128 v5, v[8:11] offset:{ONES}")
    e(f"ds_write_b128 v5, v[8:11] offset:{ONES+3072}")
    e("v_mov_b32 v6, 0")
    e(f"v_mov_b32 v7, {MISC}")
    e("ds_write_b32 v7, v6")
    e("s_waitcnt lgkmcnt(0)")
    stamp(e, 1)
    e("s_barrier")
    srd(e, 24, 20, WS_SIZE)
    e("v_lshrrev_b32 v8, 2, v2")
    e("v_bfe_u32 v9, v2, 1, 1")
    e("v_and_b32 v10, 1, v3")
    e("v_and_b32 v13, 1, v2")
    e("v_lshlrev_b32 v13, 3, v13")
    e("v_lshl_add_u32 v11, v10, 1, v9")
    e("v_xor_b32 v11, s28, v11")
    e("v_lshl_add_u32 v14, v3, 3, v8")
    e("v_lshl_add_u32 v14, v14, 6, v13")
    e("v_lshl_add_u32 v14, v11, 4, v14")
    e("v_mul_u32_u24 v11, 28672, v9")
    e(f"s_movk_i32 s42, {GB}")
    e("v_add3_u32 v14, v14, v11, s42")
    e("v_lshl_add_u32 v8, v10, 3, v8")
    e("v_lshl_add_u32 v15, v8, 6, v13")
    e("s_and_b32 s42, s28, 1")
    e("v_xor_b32 v10, s42, v10")
    e("v_lshl_add_u32 v10, v10, 1, v9")
    e("v_lshl_add_u32 v15, v10, 4, v15")
    e("v_lshrrev_b32 v10, 1, v3")
    e("v_lshl_add_u32 v15, v10, 10, v15")
    e("s_lshr_b32 s42, s28, 1")
    e("s_lshl_b32 s42, s42, 11")
    e(f"s_add_u32 s42, s42, {DB}")
    e("v_add_u32 v15, s42, v15")
    e("v_and_b32 v8, 7, v2")
    e("v_and_b32 v9, 6, v2")
    e("v_xor_b32 v9, v9, v3")
    e("v_lshlrev_b32 v8, 7, v8")
    e("v_lshl_add_u32 v12, v9, 4, v8")
    e("v_cmp_gt_u32 vcc, 8, v2")
    e(f"v_mov_b32 v8, {ONES}")
    e("v_lshlrev_b32 v6, 4, v2")
    e("v_cndmask_b32 v12, v8, v12, vcc")
    e("v_xor_b32 v13, 64, v12")
    e("v_lshl_add_u32 v6, v3, 7, v6")
    e("v_mov_b32 v8, 0x7ff00000")
    e("v_cndmask_b32 v6, v8, v6, vcc")
    e("s_lshl_b32 s42, s28, 8")
    e(f"s_add_u32 s42, s42, {ACT}")
    e("v_lshl_add_u32 v5, v2, 4, s42")
    e("v_lshl_add_u32 v5, v3, 3, v5")
    e("s_mul_i32 s44, s39, 14336")
    e("s_lshl_b32 s42, s28, 9")
    e("s_add_u32 s44, s44, s42")
    e(f"s_add_u32 s44, s44, {WS_PART}")
    for j in range(1, 4):
        e(f"s_add_u32 s{44+j}, s44, {4096*j}")
    e(f"s_mov_b32 s42, {fbits(-1.4426950408889634)}")
    e("v_and_b32 v11, 7, v2")
    e("v_lshlrev_b32 v11, 2, v11")
    e("L_f_wait:")
    e("s_sleep 2")
    e("ds_read_b32 v8, v7")
    e("s_waitcnt lgkmcnt(0)")
    e("v_cmp_ne_u32 vcc, 3, v8")
    e("s_cbranch_vccnz L_f_wait")
    stamp(e, 2)
    for k in range(14):
        for io in range(2):
            e(f"ds_read_b64_tr_b16 {vr(A+4*k+2*io,2)}, v14 offset:{k*2048+io*256}")
    for i in range(7):
        for io in range(2):
            e(f"ds_read_b64_tr_b16 {vr(AD_+4*i+2*io,2)}, v15 offset:{i*4096+io*256}")
    e("s_waitcnt lgkmcnt(0)")
    stamp(e, 3)
    e("s_barrier")
    stamp(e, 4)
    BR = [16, 20, 24, 28, 120, 124]
    def rdx(k):
        e(f"ds_read_b128 {vr(BR[k%6],4)}, v{12 + (k&1)} offset:{XS + (k>>1)*1024}")
    for k in range(5): rdx(k)
    e(f"ds_read_b32 v10, v11 offset:{MISC+64}")
    for k in range(14):
        if k + 5 < 14:
            rdx(k + 5)
        n_after = min(k + 5, 13) - k + (1 if k < 5 else 0)
        e(f"s_waitcnt lgkmcnt({n_after})")
        c = "0" if k == 0 else vr(ACC, 4)
        e(f"v_mfma_f32_16x16x32_bf16 {vr(ACC,4)}, {vr(A+4*k,4)}, {vr(BR[k%6],4)}, {c}")
        if k == 6:
            e("v_lshlrev_b32 v9, 16, v10")
            e("v_add_f32 v9, 1.0, v9")
        if k == 8:
            e("v_and_b32 v10, 0xffff0000, v10")
            e("v_rcp_f32 v9, v9")
    e("s_nop 7")
    for r in range(4):
        e(f"v_mov_b32_dpp v{16+r}, v{ACC+r} row_newbcast:8 row_mask:0xf bank_mask:0xf")
    for r in range(4):
        e(f"v_fma_f32 v{ACC+r}, -v10, v{16+r}, v{ACC+r}")
    for r in range(4):
        e(f"v_mul_f32 v{ACC+r}, v{ACC+r}, v9")
    e("s_nop 0")
    for r in range(4):
        e(f"v_permlane32_swap_b32 v{ACC+r}, v{20+r}")
    for r in range(4):
        e(f"v_mul_f32 v{16+r}, s42, v{ACC+r}")
    for r in range(4):
        e(f"v_exp_f32 v{16+r}, v{16+r}")
    for r in range(4):
        e(f"v_mul_f32 v{ACC+r}, v{ACC+r}, v{20+r}")
    for r in range(4):
        e(f"v_add_f32 v{16+r}, 1.0, v{16+r}")
    for r in range(4):
        e(f"v_rcp_f32 v{16+r}, v{16+r}")
    e("s_mov_b32 exec_hi, 0")
    for r in range(4):
        e(f"v_mul_f32 v{ACC+r}, v{ACC+r}, v{16+r}")
    e(f"v_cvt_pk_bf16_f32 v16, v{ACC}, v{ACC+1}")
    e(f"v_cvt_pk_bf16_f32 v17, v{ACC+2}, v{ACC+3}")
    e("ds_write_b64 v5, v[16:17]")
    e("s_mov_b32 exec_hi, -1")
    e("s_waitcnt lgkmcnt(0)")
    stamp(e, 5)
    e("s_barrier")
    e(f"ds_read_b128 v[16:19], v4 offset:{ACT}")
    e("s_waitcnt lgkmcnt(0)")
    for i in range(7):
        e(f"v_mfma_f32_16x16x32_bf16 {vr(A+4*i,4)}, {vr(AD_+4*i,4)}, v[16:19], 0")
    e("s_nop 1")
    for i in range(7):
        e(f"buffer_store_dwordx4 {vr(A+4*i,4)}, v6, s[24:27], s{44+(i>>1)} offen offset:{2048*(i&1)} sc1")
    stamp(e, 6)
    B4 = OPT.get("b4", 0)
    if B4 >= 0:
        e(f"s_waitcnt vmcnt({B4})")
        e("s_barrier")
    stamp_flush(e, 1, 24, 7, 28)
    e("s_endpgm")

    e("L_f_poll:")
    PFL = ["sc1", "sc0 sc1"][OPT.get("pfl", 0)]
    e("s_setprio 3")
    e("v_lshrrev_b32 v4, 2, v1")
    e("v_lshlrev_b32 v4, 7, v4")
    e("v_and_b32 v5, 3, v1")
    e("v_lshl_add_u32 v4, v5, 4, v4")
    e("s_mov_b32 s46, 0")
    e("s_mov_b32 s47, 0")
    e("v_lshrrev_b32 v5, 3, v1")
    e("v_and_b32 v6, 7, v1")
    e("v_lshlrev_b32 v13, 2, v6")
    e("v_and_b32 v7, 6, v5")
    e("v_xor_b32 v6, v6, v7")
    e("v_lshlrev_b32 v6, 4, v6")
    e("v_lshlrev_b32 v5, 2, v5")
    e("v_bfe_u32 v14, v1, 3, 1")
    e("s_lshl_b32 s42, s39, 4")
    e("v_lshl_add_u32 v14, v14, 3, s42")
    e("v_mul_u32_u24 v24, 14336, v3")
    e("v_lshl_add_u32 v24, v2, 4, v24")
    e("v_add_u32 v25, 57344, v24")
    e("v_add_u32 v26, 57344, v25")
    e("v_add_u32 v27, 57344, v26")
    e("s_lshl_b32 s52, s39, 8")
    e(f"s_add_u32 s52, s52, {WS_PART}")
    for j in range(1, 4):
        e(f"s_add_u32 s{52+j}, s52, {4*57344*j}")
    e("v_mov_b32 v8, 0")
    e("v_mov_b32 v9, 0")
    e("v_mov_b32 v10, 0")
    e("v_lshlrev_b32 v7, 12, v1")
    e("v_lshlrev_b32 v19, 7, v1")
    e("v_lshlrev_b32 v30, 2, v1")
    e("s_movk_i32 s44, 896")
    e("s_mov_b32 s45, 0xffff0000")
    e("s_waitcnt lgkmcnt(0)")
    stamp(e, 1)
    srd(e, 24, 20, WS_SIZE)
    srd(e, 48, 16, XBYTES)
    e("s_barrier")
    sync1(e, "f")
    for j in range(4):
        e(f"s_mov_b32 s{58+j}, {WS_KEY+4096*j:#x}")
    e(f"s_mov_b32 s56, {WS_FLAG:#x}")
    e(f"s_mov_b32 s57, {WS_FLAG+8192:#x}")
    e("s_mov_b64 exec, 0xf")
    e("L_f_p0:")
    e("s_sleep 2")
    e("buffer_load_dword v11, v7, s[24:27], s58 offen offset:3968 " + PFL)
    e("s_add_u32 s47, s47, 1")
    e("s_waitcnt vmcnt(0)")
    e("v_cmp_ne_u32 vcc, 0, v11")
    e("s_cbranch_vccnz L_f_p1")
    e("s_cmp_lt_u32 s47, 0x40000")
    e("s_cbranch_scc1 L_f_p0")
    e("L_f_p1:")
    e("s_mov_b64 exec, -1")
    e("L_f_pk:")
    for i in range(8):
        e(f"s_bitcmp1_b32 s46, {i}")
        e(f"s_cbranch_scc1 L_f_sl{i}")
        e(f"buffer_load_dwordx4 {vr(K+4*i,4)}, v4, s[24:27], s{58+(i>>1)} offen offset:{(i&1)*2048} " + PFL)
        e(f"L_f_sl{i}:")
    e("s_add_u32 s47, s47, 1")
    e("s_waitcnt vmcnt(0)")
    for i in range(8):
        e(f"s_bitcmp1_b32 s46, {i}")
        e(f"s_cbranch_scc1 L_f_sf{i}")
        e(f"v_min3_u32 v11, v{K+4*i}, v{K+4*i+1}, v{K+4*i+2}")
        e(f"v_min_u32 v11, v11, v{K+4*i+3}")
        e("v_cmp_eq_u32 vcc, 0, v11")
        e(f"s_cbranch_vccnz L_f_sf{i}")
        e(f"s_bitset1_b32 s46, {i}")
        for j in range(4):
            e(f"v_med3_u32 v10, v9, v10, v{K+4*i+j}")
            e(f"v_med3_u32 v9, v8, v9, v{K+4*i+j}")
            e(f"v_max_u32 v8, v8, v{K+4*i+j}")
        e(f"L_f_sf{i}:")
    e("s_cmp_eq_u32 s46, 0xff")
    e("s_cbranch_scc1 L_f_keys")
    e("s_cmp_lt_u32 s47, 0x40000")
    e("s_cbranch_scc1 L_f_pk")
    e("L_f_keys:")
    stamp(e, 2)
    FR = OPT.get("fr", 2)
    def flagloads():
        e("buffer_load_dword v28, v19, s[24:27], s56 offen sc1")
        e("buffer_load_dword v29, v19, s[24:27], s57 offen sc1")
    for rd in range(8):
        for si, st in enumerate(DPP6):
            if si == 0:
                e(f"v_max_u32_dpp v11, v8, v8 {st} bank_mask:0xf bound_ctrl:0")
            else:
                e(f"v_max_u32_dpp v11, v11, v11 {st} bank_mask:0xf")
            if si < 5:
                if rd == FR and si == 0:
                    flagloads()
                else:
                    e("s_nop 1")
        e("s_nop 0")
        e("v_readlane_b32 s42, v11, 63")
        e("s_nop 1")
        e("v_cmp_eq_u32 vcc, s42, v8")
        e(f"v_writelane_b32 v12, s42, {rd}")
        e("s_nop 0")
        e("v_cndmask_b32 v8, v8, v9, vcc")
        e("v_cndmask_b32 v9, v9, v10, vcc")
        e("v_cndmask_b32 v10, v10, 0, vcc")
    e("v_cmp_eq_u32 vcc, 0, v8")
    e("s_cbranch_vccz L_f_topdone")
    e("s_mov_b32 m0, 0")
    e("s_mov_b32 s42, -1")
    e("L_f_slow:")
    e(f"v_sub_u32 v8, s42, v{K}")
    e(f"v_sub_u32 v9, s42, v{K+1}")
    e("v_min_u32 v8, v8, v9")
    for i in range(2, 32, 2):
        e(f"v_sub_u32 v9, s42, v{K+i}")
        e(f"v_sub_u32 v10, s42, v{K+i+1}")
        e("v_min3_u32 v8, v8, v9, v10")
    for st in DPP6:
        e("s_nop 1")
        e(f"v_min_u32_dpp v8, v8, v8 {st} bank_mask:0xf")
    e("s_nop 0")
    e("v_readlane_b32 s47, v8, 63")
    e("s_nop 3")
    e("s_sub_u32 s42, s42, s47")
    e("v_writelane_b32 v12, s42, m0")
    e("s_sub_u32 s42, s42, 1")
    e("s_add_u32 m0, m0, 1")
    e("s_cmp_lt_u32 m0, 8")
    e("s_cbranch_scc1 L_f_slow")
    e("L_f_topdone:")
    stamp(e, 3)
    e("ds_bpermute_b32 v8, v5, v12")
    e("ds_bpermute_b32 v15, v13, v12")
    e("s_mov_b32 s47, 0")
    e("s_waitcnt lgkmcnt(1)")
    e("v_not_b32 v8, v8")
    e("v_and_b32 v8, 0x7ff, v8")
    e("v_mad_u32_u24 v31, v8, s44, v6")
    e("L_f_gather:")
    e(f"s_mov_b32 m0, {XS}")
    e("v_mov_b32 v8, v31")
    e("s_waitcnt vmcnt(0)")
    for j in range(7):
        e(f"buffer_load_dwordx4 v8, s[48:51], 0 offen sc1 lds")
        if j < 6:
            e(f"s_mov_b32 m0, {XS + 1024*(j+1)}")
            e("v_add_u32 v8, 128, v8")
    e("s_waitcnt lgkmcnt(0)")
    e("v_not_b32 v9, v15")
    e("v_and_b32 v9, 0x7ff, v9")
    e("v_mad_u32_u24 v20, v9, s44, v14")
    e("v_and_b32 v21, 63, v9")
    e("v_sub_u32 v22, 64, v21")
    e("v_min_u32 v22, v21, v22")
    e("v_and_b32 v22, 31, v22")
    e("v_lshrrev_b32 v23, 10, v9")
    e("v_lshl_add_u32 v22, v23, 5, v22")
    e("v_lshrrev_b32 v23, 5, v21")
    e("v_lshl_add_u32 v10, v23, 6, v22")
    e("v_bfe_u32 v23, v9, 6, 4")
    e("v_lshlrev_b32 v10, 7, v10")
    e("v_lshl_add_u32 v10, v23, 2, v10")
    e("buffer_load_dword v11, v10, s[24:27], s58 offen offset:64 sc1")
    e("buffer_load_dwordx2 v[16:17], v20, s[48:51], 0 offen sc1")
    e("v_lshlrev_b32 v22, 2, v22")
    e("ds_bpermute_b32 v23, v22, v28")
    e("ds_bpermute_b32 v22, v22, v29")
    e("v_cmp_gt_u32 vcc, 32, v21")
    e("s_add_u32 s47, s47, 1")
    e("s_waitcnt lgkmcnt(0)")
    e("v_cndmask_b32 v22, v22, v23, vcc")
    e("v_cmp_eq_u32 vcc, 0, v22")
    e("s_cbranch_vccz L_f_flagok")
    flagloads()
    e("s_cmp_lt_u32 s47, 0x40000")
    e("s_cbranch_scc1 L_f_gather")
    e("L_f_flagok:")
    e("s_waitcnt vmcnt(1)")
    e("s_mov_b64 exec, 0xff")
    e(f"ds_write_b32 v30, v11 offset:{MISC+64}")
    e("s_mov_b64 exec, -1")
    e("s_waitcnt lgkmcnt(0)")
    stamp(e, 4)
    e("s_barrier")
    e("v_ashrrev_i32 v9, 31, v15")
    e("v_not_b32 v9, v9")
    e("v_or_b32 v9, 0x80000000, v9")
    e("v_xor_b32 v15, v15, v9")
    e("v_and_b32 v15, s45, v15")
    e(f"v_mul_f32 v18, {fbits(-1.4426950408889634)}, v15")
    e("v_exp_f32 v18, v18")
    e("v_mov_b32 v10, 1.0")
    e("v_add_f32 v18, 1.0, v18")
    e("v_rcp_f32 v18, v18")
    e("s_mov_b32 s47, 0")
    e("v_cvt_pk_bf16_f32 v18, v18, v18")
    e("v_and_b32 v18, s45, v18")
    e("v_mov_b32 v14, v20")
    e("s_waitcnt vmcnt(0)")
    e("v_lshlrev_b32 v20, 16, v16")
    e("v_and_b32 v21, s45, v16")
    e("v_lshlrev_b32 v22, 16, v17")
    e("v_and_b32 v23, s45, v17")
    e("s_barrier")
    if B4 >= 0:
        e("s_barrier")
    stamp(e, 5)
    P = 64
    e("L_f_pp:")
    for i in range(14):
        e(f"buffer_load_dwordx4 {vr(P+4*i,4)}, v{24+(i&3)}, s[24:27], s{52+(i>>2)} offen sc1")
    e("s_add_u32 s47, s47, 1")
    e("s_waitcnt vmcnt(12)")
    e(f"v_pk_add_f32 v[28:29], {vr(P,2)}, {vr(P+4,2)}")
    e(f"v_pk_add_f32 v[30:31], {vr(P+2,2)}, {vr(P+6,2)}")
    for i in range(2, 14):
        e(f"s_waitcnt vmcnt({13-i})")
        e(f"v_pk_add_f32 v[28:29], v[28:29], {vr(P+4*i,2)}")
        e(f"v_pk_add_f32 v[30:31], v[30:31], {vr(P+4*i+2,2)}")
    e("v_add_f32 v8, v28, v29")
    e("v_add_f32 v9, v30, v31")
    e("v_cmp_u_f32 vcc, v8, v9")
    e("s_cbranch_vccz L_f_got")
    e(f"v_max3_u32 v8, v{P}, v{P+1}, v{P+2}")
    for i in range(3, 55, 2):
        e(f"v_max3_u32 v8, v8, v{P+i}, v{P+i+1}")
    e(f"v_max_u32 v8, v8, v{P+55}")
    e("v_cmp_eq_u32 vcc, -1, v8")
    e("s_cbranch_vccz L_f_got")
    e("s_cmp_lt_u32 s47, 0x40000")
    e("s_cbranch_scc1 L_f_pp")
    e("L_f_got:")
    stamp(e, 6)
    for r in range(4):
        e(f"v_mfma_f32_16x16x4_f32 {vr(32+4*r,4)}, v10, v{28+r}, 0")
    e("s_nop 7")
    e("s_nop 0")
    e("v_cvt_pk_bf16_f32 v16, v32, v36")
    e("v_cvt_pk_bf16_f32 v17, v40, v44")
    e("v_lshlrev_b32 v24, 16, v16")
    e("v_and_b32 v25, s45, v16")
    e("v_lshlrev_b32 v26, 16, v17")
    e("v_and_b32 v27, s45, v17")
    for r in range(4):
        e(f"v_mul_f32 v{24+r}, v{24+r}, v18")
    e("v_cvt_pk_bf16_f32 v16, v24, v25")
    e("v_cvt_pk_bf16_f32 v17, v26, v27")
    e("v_lshlrev_b32 v24, 16, v16")
    e("v_and_b32 v25, s45, v16")
    e("v_lshlrev_b32 v26, 16, v17")
    e("v_and_b32 v27, s45, v17")
    for r in range(4):
        e(f"v_add_f32 v{24+r}, v{24+r}, v{20+r}")
    e("v_cvt_pk_bf16_f32 v16, v24, v25")
    e("v_cvt_pk_bf16_f32 v17, v26, v27")
    e("s_mov_b64 exec, 0xffff")
    e("buffer_store_dwordx2 v[16:17], v14, s[48:51], 0 offen" + (" sc1" if OPT.get("fsc1", 1) else ""))
    stamp_flush(e, 1, 24, 7, 28)

if __name__ == "__main__":
    for a in sys.argv[2:]:
        if a == "diag":
            DIAG = True; gen.DIAG = True
        else:
            k, v = a.split("=")
            OPT[k] = int(v)
    build([ka], sys.argv[1])
    if not OPT.get("aslist", 0):
        t = open(sys.argv[1]).read().replace("; @launch kernel=" + NAME + "_kernel grid", "; @launch grid")
        open(sys.argv[1], "w").write(t)
```

```python
import struct, sys
from gen import E, fbits, vr, ar, srd, header, build, NAME
import gen

WS_V    = 0x000000
WS_KEY  = 0x300000
WS_FLAG = 0x304000
WS_PART = 0x308000
WS_FL1  = 0x3E0000
WS_SIZE = 0x10000000
XBYTES  = 2048*896
WBYTES  = 448*1792*2
WS_DIAG = 0x800000
LDS_XROW = 140288
DIAG = False
OPT = {}
DPP6 = ["row_shr:1 row_mask:0xf", "row_shr:2 row_mask:0xf", "row_shr:4 row_mask:0xf", "row_shr:8 row_mask:0xf",
        "row_bcast:15 row_mask:0xa", "row_bcast:31 row_mask:0xc"]

def stamp(e, i):
    if DIAG:
        e(f"s_mem{'time' if OPT.get('cyc', 0) and i in (4, 5) else 'realtime'} s[{64+2*i}:{65+2*i}]")
        e("s_waitcnt lgkmcnt(0)")
def stamp_flush(e, kid, srdreg, nst, wavereg):
    if DIAG:
        e("s_mov_b64 exec, -1")
        e(f"s_memrealtime s[{64+2*nst}:{65+2*nst}]")
        e("s_waitcnt lgkmcnt(0)")
        for i in range(nst+1):
            e(f"v_writelane_b32 v220, s{64+2*i}, {i}")
        e(f"s_lshl_b32 s90, s2, 3")
        e(f"s_add_u32 s90, s90, s{wavereg}")
        e(f"s_lshl_b32 s90, s90, 6")
        e(f"s_add_u32 s90, s90, {WS_DIAG + kid*0x40000}")
        e("v_mbcnt_lo_u32_b32 v221, -1, 0")
        e("v_lshlrev_b32 v221, 2, v221")
        e("s_mov_b32 exec_lo, 0xffff")
        e("s_mov_b32 exec_hi, 0")
        e(f"buffer_store_dword v220, v221, s[{srdreg}:{srdreg+3}], s90 offen")
        e("s_mov_b64 exec, -1")

class Lds:
    def __init__(self, e):
        self.e = e; self.q = []
    def issue(self, tag, ins):
        self.e(ins); self.q.append(tag)
    def need(self, tag):
        if tag not in self.q: return
        last = max(i for i, t in enumerate(self.q) if t == tag)
        n = len(self.q) - 1 - last
        assert n <= 15, n
        self.e(f"s_waitcnt lgkmcnt({n})")
        self.q = self.q[last+1:]

def tagcheck(e, u):
    e("s_mov_b32 s63, 0")
    e(f"L_tag{u}:")
    e("v_cmp_ne_u32 vcc, 0, v222")
    e(f"s_cbranch_vccnz L_tagok{u}")
    if u != "a": srd(e, 56, 18, 256)
    e("buffer_load_dwordx2 v[222:223], off, s[56:59], 0 sc1")
    e("s_add_u32 s63, s63, 1")
    e("s_waitcnt vmcnt(0)")
    e("s_cmp_lt_u32 s63, 0x40000")
    e(f"s_cbranch_scc1 L_tag{u}")
    e(f"L_tagok{u}:")

def ka(e):
    header(e, NAME + "_kernel")
    X, ACC, CUR, PRV, PK, RF, BB = 64, 32, 16, 24, 48, 56, 120
    SUM, GRM = 32, 36
    LDS_X, LDS_Z = 57344, 114688
    LDS_R = LDS_Z + 8192
    LDS_ST = LDS_R + 8192
    LDS_CS = LDS_ST + 512
    LDS_TB = LDS_CS + 512
    LDS_XR = LDS_XROW
    assert LDS_TB + 8192 == LDS_XROW
    e("s_cmp_ge_u32 s2, 256")
    e("s_cbranch_scc1 L_ka_end")
    stamp(e, 0)
    e("s_load_dwordx2 s[4:5], s[0:1], 0")
    e("s_load_dwordx2 s[6:7], s[0:1], 96")
    e("s_load_dwordx8 s[44:51], s[0:1], 48")
    e("s_load_dwordx2 s[60:61], s[0:1], 88")
    e("v_lshrrev_b32 v1, 6, v0")
    e("v_and_b32 v2, 15, v0")
    e("v_readfirstlane_b32 s43, v1")
    e("v_bfe_u32 v3, v0, 4, 2")
    e("v_and_b32 v1, 63, v0")
    e("s_cmp_ge_u32 s2, 224")
    e("s_cbranch_scc1 L_ka_spare")
    e("s_and_b32 s16, s43, 3")
    e("s_and_b32 s20, s2, 31")
    e("s_lshr_b32 s19, s2, 5")
    e("s_lshr_b32 s21, s16, 1")
    e("s_and_b32 s22, s16, 1")
    e("s_mul_i32 s29, s16, 14336")
    e(f"s_add_u32 s41, s29, {LDS_X}")
    e("s_mov_b32 s28, 0x3f803f80")
    e("s_cmp_ge_u32 s43, 4")
    e("s_cbranch_scc1 L_ka_help")

    def common_addr():
        e("v_lshlrev_b32 v11, 4, v1")
        e("v_and_b32 v12, 6, v2")
        e("v_xor_b32 v12, v12, v3")
        e("v_and_b32 v14, 7, v2")
        e("v_lshlrev_b32 v14, 7, v14")
        e("v_lshl_add_u32 v14, v12, 4, v14")
        e("v_lshrrev_b32 v12, 3, v2")
        e("v_lshl_add_u32 v14, v12, 10, v14")
        e("v_add_u32 v14, s41, v14")
        e("v_xor_b32 v15, 64, v14")
        e("v_lshrrev_b32 v12, 2, v1")
        e("v_and_b32 v53, 3, v1")
        e("v_bfe_u32 v10, v1, 3, 2")
        e("v_xor_b32 v10, v10, v53")
        e("v_lshlrev_b32 v10, 4, v10")
        e("v_lshl_add_u32 v10, v12, 6, v10")
        e("v_mul_u32_u24 v12, 57344, v12")
        e("v_lshl_add_u32 v53, v53, 4, v12")
        e("s_lshl_b32 s24, s43, 10")
        e(f"s_add_u32 s24, s24, {LDS_TB}")
        e("v_add_u32 v10, s24, v10")
        e("v_bfe_u32 v12, v2, 1, 2")
        e("v_xor_b32 v12, v12, v3")
        e("v_lshlrev_b32 v12, 4, v12")
        e("v_lshl_add_u32 v12, v2, 6, v12")
        e("v_add_u32 v8, s24, v12")
        e("s_mul_i32 s24, s22, 917504")
        e("s_mul_i32 s25, s21, 28672")
        e("s_add_u32 s24, s24, s25")
        e("s_lshl_b32 s25, s19, 7")
        e("s_add_u32 s24, s24, s25")
        e("s_mul_i32 s25, s20, 896")
        e("s_add_u32 s30, s24, s25")
        e("s_lshl_b32 s24, s16, 11")
        e(f"s_add_u32 s24, s24, {LDS_R}")
        e("v_add_u32 v52, s24, v11")
    def gemm2(hh):
        e(f"v_add_u32 v54, {LDS_Z + hh*4096}, v11")
        e("s_barrier")
        for j in range(4):
            e(f"ds_read_b128 {vr(X+4*j,4)}, v54 offset:{j*1024}")
        for n in range(2):
            e(f"s_waitcnt lgkmcnt({2-2*n})")
            e(f"v_mfma_f32_16x16x32_bf16 {vr(40+4*n,4)}, {vr(X+8*n,4)}, {vr(RF,4)}, 0")
            e(f"v_mfma_f32_16x16x32_bf16 {vr(40+4*n,4)}, {vr(X+8*n+4,4)}, {vr(RF+4,4)}, {vr(40+4*n,4)}")
        e("s_nop 4")
        e("v_cvt_pk_bf16_f32 v16, v40, v41")
        e("v_cvt_pk_bf16_f32 v17, v42, v43")
        e("s_nop 0")
        e("v_cvt_pk_bf16_f32 v18, v44, v45")
        e("v_cvt_pk_bf16_f32 v19, v46, v47")
        e("ds_write_b128 v8, v[16:19]")
        e("s_waitcnt lgkmcnt(0)")
        e("ds_read_b128 v[20:23], v10")
        e("s_waitcnt lgkmcnt(0)")
        e(f"buffer_store_dwordx4 v[20:23], v53, s[12:15], s30 offen offset:{64*hh} sc1")
        stamp(e, 7)
        e("s_waitcnt vmcnt(0)")
        stamp(e, 8)
        e("s_barrier")
        if hh == 1:
            e("s_cmp_lg_u32 s43, 4")
            e("s_cbranch_scc1 L_ka_noflag")
            tagcheck(e, "a")
            e("s_lshl_b32 s24, s2, 6")
            e(f"s_add_u32 s24, s24, {WS_FL1}")
            e("s_mov_b64 exec, 1")
            e("buffer_store_dwordx2 v[222:223], off, s[12:15], s24 sc1")
            e("s_mov_b64 exec, -1")
            e("L_ka_noflag:")
        stamp_flush(e, 0, 12, 9, 43)
        e("s_branch L_kb_entry")

    MACC, AR, CS, MB = 16, 32, 44, 64
    FC, FP, FK = 64, 72, 80
    e("v_lshrrev_b32 v4, 2, v2")
    e("v_and_b32 v5, 3, v2")
    e("s_lshl_b32 s24, s19, 6")
    e("s_lshl_b32 s25, s21, 5")
    e("s_add_u32 s25, s24, s25")
    e("s_lshl_b32 s26, s22, 2")
    e("s_add_u32 s25, s25, s26")
    e("v_lshl_add_u32 v7, v4, 3, v5")
    e("v_add_u32 v7, s25, v7")
    e("v_lshrrev_b32 v8, 5, v7")
    e("v_and_b32 v9, 15, v7")
    e("v_lshl_add_u32 v8, v8, 4, v9")
    e("v_cmp_eq_u32 vcc, 0, v7")
    e("v_bfe_u32 v10, v7, 4, 1")
    e("v_mov_b32 v9, 224")
    e("v_cndmask_b32 v7, v8, v9, vcc")
    e("v_mul_u32_u24 v10, 0x3e80, v10")
    e("v_lshlrev_b32 v10, 16, v10")
    e("v_lshl_add_u32 v8, v3, 3, s24")
    e("v_mul_u32_u24 v8, v8, v7")
    e("v_cvt_f32_u32 v7, v7")
    e("v_cvt_f32_u32 v8, v8")
    e(f"s_mov_b32 s24, {fbits(1.0/448)}")
    e("v_mul_f32 v9, s24, v8")
    e("v_floor_f32 v9, v9")
    e(f"v_fmamk_f32 v8, v9, {fbits(-448.0)}, v8")
    e("v_mul_f32 v7, s24, v7")
    e("v_fma_f32 v8, v8, s24, v10")
    e("v_mul_f32 v9, 0x42000000, v7")
    e("v_cos_f32 v88, v9")
    for j in range(8):
        e(f"v_cos_f32 v{FC+j}, v8")
        e(f"v_sub_f32 v11, v8, v9")
        if j < 7:
            e(f"v_add_f32 v8, v8, v7")
        e(f"v_cos_f32 v{FP+j}, v11")
    e("v_add_f32 v88, v88, v88")
    e("v_lshl_add_u32 v91, v1, 4, s29")
    e("v_mov_b32 v89, v88")
    stamp(e, 1)
    e(".p2align 3")
    for st in range(14):
        A, B = (FC, FP) if st % 2 == 0 else (FP, FC)
        P = FK + 4*(st % 2)
        for j in range(4):
            e(f"v_cvt_pk_bf16_f32 v{P+j}, v{A+2*j}, v{A+2*j+1}")
        e(f"ds_write_b128 v91, {vr(P,4)} offset:{st*1024}")
        if st < 13:
            for j in range(4):
                e(f"v_pk_fma_f32 {vr(B+2*j,2)}, v[88:89], {vr(A+2*j,2)}, {vr(B+2*j,2)} neg_lo:[0,0,1] neg_hi:[0,0,1]")
    common_addr()
    e("s_lshl_b32 s24, s21, 10")
    e("s_lshl_b32 s25, s22, 3")
    e("s_add_u32 s24, s24, s25")
    e(f"s_add_u32 s24, s24, {LDS_Z}")
    e("v_add_u32 v55, s24, v11")
    e(f"v_lshlrev_b32 v12, 2, v2")
    e(f"v_add_u32 v12, {LDS_CS}, v12")
    e("s_lshl_b32 s25, s16, 7")
    e(f"s_add_u32 s25, s25, {LDS_ST}")
    e("v_lshl_add_u32 v13, v3, 4, s25")
    e("s_waitcnt lgkmcnt(0)")
    srd(e, 12, 6, WS_SIZE)
    stamp(e, 2)
    e("s_barrier")
    L = Lds(e)
    def rB(k, n):
        L.issue(("B", k), f"ds_read_b128 {vr(MB+32+((k+6)%8)*16+4*n,4)}, v11 offset:{(n*14+k)*1024}")
    def Breg(k, n): return vr(MB+32+((k+6)%8)*16+4*n, 4)
    PRE = OPT.get("pre", 4)
    for k in range(PRE):
        for n in range(4): rB(k, n)
    stamp(e, 3)
    e("s_barrier")
    stamp(e, 4)
    if DIAG: L.q = []
    def rA(k):
        L.issue(("A", k), f"ds_read_b128 {vr(AR+4*(k%3),4)}, v{14+(k&1)} offset:{(k>>1)*2048}")
    L.q = L.q[-13:]
    rA(0); rA(1)
    ST, U = 64, 72
    CK = OPT.get("ck", 11)
    sh = []
    for k in range(14):
        if k == 2: e("s_barrier")
        if k == 6: e("s_barrier")
        if k == CK:
            e("s_barrier")
            L.issue("st", f"ds_read_b128 {vr(ST,4)}, v13")
            L.issue("st", f"ds_read_b128 {vr(ST+4,4)}, v13 offset:64")
        if k == CK + 1:
            L.need("st")
            for n in range(4):
                for r in range(4): sh.append(f"v_mul_f32 v{U+4*n+r}, v{ST+r}, v{CS+n}")
        L.need(("A", k))
        L.need(("B", k))
        for n in range(4):
            c = "0" if k == 0 else vr(MACC+4*n, 4)
            e(f"v_mfma_f32_16x16x32_bf16 {vr(MACC+4*n,4)}, {vr(AR+4*(k%3),4)}, {Breg(k,n)}, {c}")
            if n == 0 and k + 2 < 14: rA(k + 2)
            if k + PRE < 14: rB(k + PRE, n)
            elif k == 14 - PRE: L.issue("cs", f"ds_read_b32 v{CS+n}, v12 offset:{64*n}")
            elif k == 15 - PRE and n < 2: L.issue("R", f"ds_read_b128 {vr(RF+4*n,4)}, v52 offset:{1024*n}")
            for _ in range(3):
                if sh: e(sh.pop(0))
    if CK == 13:
        L.need("st")
        for n in range(4):
            for r in range(4): sh.append(f"v_mul_f32 v{U+4*n+r}, v{ST+r}, v{CS+n}")
    stamp(e, 5)
    nl = len(sh)
    while sh: e(sh.pop(0))
    if nl < 5: e(f"s_nop {4-nl}")
    for n in range(4):
        a = MACC + 4*n
        e(f"v_pk_fma_f32 {vr(a,2)}, {vr(a,2)}, {vr(ST+4,2)}, {vr(U+4*n,2)}")
        e(f"v_pk_fma_f32 {vr(a+2,2)}, {vr(a+2,2)}, {vr(ST+6,2)}, {vr(U+4*n+2,2)}")
        e(f"v_cvt_pk_bf16_f32 v{32+2*n}, v{a}, v{a+1}")
        e(f"v_cvt_pk_bf16_f32 v{33+2*n}, v{a+2}, v{a+3}")
        e(f"ds_write_b64 v55, {vr(32+2*n,2)} offset:{n*2048}")
    e("s_waitcnt lgkmcnt(0)")
    stamp(e, 6)
    gemm2(0)

    e("L_ka_help:")
    e("s_setprio 2")
    e("v_lshrrev_b32 v4, 3, v1")
    e("v_and_b32 v5, 7, v1")
    e("v_and_b32 v6, 6, v4")
    e("v_xor_b32 v5, v5, v6")
    e("v_lshrrev_b32 v6, 2, v4")
    e("v_and_b32 v4, 3, v4")
    e("v_lshl_add_u32 v6, v6, 3, v4")
    e("v_mul_u32_u24 v6, 28672, v6")
    e("v_lshl_add_u32 v6, v5, 4, v6")
    e(f"v_add_u32 v13, {16*28672}, v6")
    e("s_lshl_b32 s23, s21, 10")
    e("s_lshl_b32 s24, s22, 7")
    e("s_add_u32 s23, s23, s24")
    e("s_add_u32 s23, s23, s20")
    e("s_mul_i32 s23, s23, 896")
    e("s_lshl_b32 s31, s19, 7")
    e("s_add_u32 s32, s23, 896")
    e("s_add_u32 s31, s31, s23")
    e("s_waitcnt lgkmcnt(0)")
    stamp(e, 1)
    srd(e, 8, 4, XBYTES)
    XNT = " nt" if OPT.get("xnt", 1) else ""
    def xpair(c):
        e(f"s_add_u32 m0, s41, {c*2048}")
        e("s_add_u32 s33, s31, 128")
        e(f"buffer_load_dwordx4 v6, s[8:11], s31 offen{XNT} lds")
        e(f"s_add_u32 m0, s41, {c*2048+1024}")
        e("s_cmp_eq_u32 s33, s32")
        e(f"buffer_load_dwordx4 v13, s[8:11], s31 offen{XNT} lds")
        e("s_cselect_b32 s31, s23, s33")
    NF = OPT.get("nf", 4)
    for c in range(NF): xpair(c)
    e("s_setprio 0")
    srd(e, 12, 6, WS_SIZE)
    e("s_cmp_ge_u32 s2, 8")
    e("s_cselect_b32 s34, -1, 0")
    e("s_lshl_b32 s35, s2, 12")
    e(f"s_add_u32 s35, s35, {WS_KEY - 4096}")
    e("s_cmp_ge_u32 s2, 204")
    e("s_cselect_b32 s36, 0x7ff00000, 0")
    e("v_lshl_add_u32 v12, v0, 4, s36")
    for j in range(4):
        e(f"v_mov_b32 v{44+j}, s34")
    e("buffer_store_dwordx4 v[44:47], v12, s[12:15], s35 offen sc1")
    e("s_mov_b32 s56, s60")
    e("s_mov_b32 s57, s61")
    e("s_movk_i32 s58, 256")
    e("s_mov_b32 s59, 0x20000")
    e("s_or_b32 s24, s2, s16")
    e("s_cmp_lg_u32 s24, 0")
    e("s_cbranch_scc1 L_ka_notag")
    e("s_memrealtime s[24:25]")
    e("s_waitcnt lgkmcnt(0)")
    e("s_or_b32 s24, s24, 1")
    e("v_mov_b32 v44, s24")
    e("v_mov_b32 v45, s25")
    e("s_mov_b64 exec, 1")
    e("buffer_store_dwordx2 v[44:45], off, s[56:59], 0 sc1")
    e("s_mov_b64 exec, -1")
    e("L_ka_notag:")
    e("s_lshl_b32 s24, s22, 4")
    e("v_add_u32 v7, s24, v2")
    e("s_mul_i32 s25, s21, 0x3e800000")
    e("v_mov_b32 v10, s25")
    e("s_cmp_eq_u32 s16, 2")
    e("s_cselect_b32 s24, 0, -1")
    e("v_cmp_eq_u32 vcc, s24, v7")
    e("v_mov_b32 v12, 32")
    e("v_lshlrev_b32 v8, 3, v3")
    e("v_cndmask_b32 v7, v7, v12, vcc")
    e("v_cndmask_b32 v10, v10, 0, vcc")
    e("v_cvt_f32_u32 v7, v7")
    e("v_cvt_f32_u32 v8, v8")
    e(f"v_mul_f32 v7, {fbits(1.0/64)}, v7")
    e("v_fma_f32 v8, v8, v7, v10")
    e("v_mul_f32 v10, 0x42000000, v7")
    for j in range(8):
        e(f"v_cos_f32 v{CUR+j}, v8")
        e(f"v_add_f32 v12, v8, v10")
        if j < 7:
            e(f"v_add_f32 v8, v8, v7")
        e(f"v_cos_f32 v{PRV+j}, v12")
    common_addr()
    for j in range(4):
        e(f"v_cvt_pk_bf16_f32 v{RF+j}, v{CUR+2*j}, v{CUR+2*j+1}")
        e(f"v_cvt_pk_bf16_f32 v{RF+4+j}, v{PRV+2*j}, v{PRV+2*j+1}")
    e(f"ds_write_b128 v52, {vr(RF,4)}")
    e(f"ds_write_b128 v52, {vr(RF+4,4)} offset:1024")
    for j in range(4):
        e(f"v_mov_b32 v{48+j}, s28")
    e(f"s_mov_b32 s24, {fbits(1.0/448)}")
    e(f"s_mov_b32 s26, {fbits(1e-5)}")
    e(f"s_mov_b32 s27, 0xffff0000")
    stamp(e, 2)
    vq = [c for c in range(NF) for h in range(2)] + ["clr"]
    def vwait(c):
        last = max(i for i, t in enumerate(vq) if t == c)
        e(f"s_waitcnt vmcnt({len(vq)-1-last})")
        del vq[:last+1]
    e("s_sub_u32 s17, 64, s20")
    e("s_cmp_eq_u32 s20, 0")
    e("s_cselect_b32 s17, 32, s17")
    e("s_bitcmp1_b32 s2, 6")
    e("s_cselect_b32 s17, s17, s20")
    e("s_bfe_u32 s18, s2, 0x10005")
    e("s_lshl_b32 s18, s18, 10")
    e("s_add_u32 s18, s18, s17")
    e("s_lshl_b32 s17, s16, 8")
    e("s_add_u32 s18, s18, s17")
    e("s_mul_i32 s18, s18, 896")
    e("s_lshl_b32 s17, s16, 12")
    e(f"s_add_u32 s17, s17, {LDS_XR}")
    e("s_cmp_lt_u32 s2, 128")
    e("s_cselect_b32 s25, 56, 0")
    e("v_cmp_gt_u32 vcc, s25, v1")
    e("v_mov_b32 v218, 0x7ff00000")
    e("s_nop 0")
    e("v_cndmask_b32 v218, v218, v11, vcc")
    e("v_and_b32 v4, 3, v2")
    e("v_lshrrev_b32 v5, 2, v2")
    e("v_cmp_eq_u32 s[52:53], 1, v4")
    e("v_cmp_eq_u32 s[54:55], 2, v4")
    e("v_cmp_eq_u32 s[62:63], 3, v4")
    e("v_cmp_eq_u32 s[60:61], v5, v3")
    e("s_lshl_b32 s25, s16, 7")
    e(f"s_add_u32 s25, s25, {LDS_ST}")
    e("v_lshl_add_u32 v4, v2, 2, s25")
    e("v_add_u32 v5, s29, v11")
    e("s_lshl_b32 s25, s16, 6")
    e(f"s_add_u32 s25, s25, {LDS_CS}")
    e("v_lshl_add_u32 v7, v2, 2, s25")
    e("s_waitcnt lgkmcnt(0)")
    e(f"s_setprio {OPT.get('csp', 2)}")
    e("s_barrier")
    nx = [NF]
    def land(c):
        vwait(c)
        if nx[0] < 7:
            xpair(nx[0]); vq.extend([nx[0]]*2); nx[0] += 1
    def stat(k):
        c = "0" if k == 0 else vr(GRM, 4)
        e(f"v_mfma_f32_16x16x32_bf16 {vr(GRM,4)}, {vr(X+4*k,4)}, {vr(X+4*k,4)}, {c}")
        c = "0" if k == 0 else vr(SUM, 4)
        e(f"v_mfma_f32_16x16x32_bf16 {vr(SUM,4)}, {vr(X+4*k,4)}, v[48:51], {c}")
    def rdx(k0, k1):
        for k in range(k0, k1):
            e(f"ds_read_b128 {vr(X+4*k,4)}, v{14+(k&1)} offset:{(k>>1)*2048}")
    def stats(k0, k1, kend):
        for k in range(k0, k1):
            e(f"s_waitcnt lgkmcnt({kend-1-k})")
            stat(k)
    for k in range(14):
        e(f"ds_read_b128 {vr(120+4*k,4)}, v5 offset:{k*1024}")
    for k in range(14):
        e(f"s_waitcnt lgkmcnt({13-k})")
        e(f"v_mfma_f32_16x16x32_bf16 v[40:43], v[48:51], {vr(120+4*k,4)}, {'0' if k == 0 else 'v[40:43]'}")
    e("s_setprio 2")
    land(0); land(1)
    e("ds_write_b32 v7, v40")
    rdx(0, 4)
    stamp(e, 3)
    e("s_barrier")
    stamp(e, 4)
    stats(0, 2, 4)
    land(2)
    stats(2, 4, 4)
    land(3)
    assert nx[0] == 7
    rdx(4, 8)
    e("s_barrier")
    for j in range(4):
        e(f"s_add_u32 m0, s17, {j*1024}")
        e(f"s_add_u32 s33, s18, {j*64*896}")
        e(f"buffer_load_dwordx4 v218, s[8:11], s33 offen lds")
    e(f"s_mov_b32 m0, {LDS_XR + 16384}")
    srd(e, 8, 44, 896)
    e(f"buffer_load_dwordx4 v11, s[8:11], 0 offen lds")
    e("buffer_load_dwordx2 v[222:223], off, s[56:59], 0 sc1")
    stats(4, 8, 8)
    e("s_waitcnt vmcnt(6)")
    rdx(8, 14)
    if OPT.get("sb", 0): stamp(e, 2)
    BE = OPT.get("be", 0)
    if BE: e("s_barrier")
    stats(8, 14, 14)
    if not BE: e("s_barrier")
    e("s_nop 6")
    e(f"v_cndmask_b32 v20, v{GRM}, v{GRM+1}, s[52:53]")
    e(f"v_cndmask_b32 v16, v{SUM}, v{SUM+1}, s[52:53]")
    e(f"v_cndmask_b32 v20, v20, v{GRM+2}, s[54:55]")
    e(f"v_cndmask_b32 v16, v16, v{SUM+2}, s[54:55]")
    e(f"v_cndmask_b32 v20, v20, v{GRM+3}, s[62:63]")
    e(f"v_cndmask_b32 v16, v16, v{SUM+3}, s[62:63]")
    e("v_mul_f32 v20, s24, v20")
    e("v_mul_f32 v16, s24, v16")
    e("v_fma_f32 v20, -v16, v16, v20")
    e("v_max_f32 v20, 0, v20")
    e("v_cvt_pk_bf16_f32 v20, v20, v20")
    e("v_and_b32 v20, s27, v20")
    e("v_add_f32 v20, s26, v20")
    e("v_cvt_pk_bf16_f32 v20, v20, v20")
    e("v_and_b32 v20, s27, v20")
    e("v_sqrt_f32 v20, v20")
    e("s_mov_b64 exec, s[60:61]")
    e("v_cvt_pk_bf16_f32 v20, v20, v20")
    e("v_and_b32 v20, s27, v20")
    e("v_rcp_f32 v20, v20")
    e("s_nop 0")
    e("v_mul_f32 v16, -v16, v20")
    e("ds_write2_b32 v4, v16, v20 offset0:0 offset1:16")
    e("s_mov_b64 exec, -1")
    e("s_waitcnt lgkmcnt(0)")
    stamp(e, 5)
    e("s_barrier")
    stamp(e, 6)
    gemm2(1)

    e("L_ka_spare:")
    e("s_sub_u32 s19, s2, 224")
    e("s_lshl_b32 s19, s19, 16")
    e("v_lshlrev_b32 v8, 7, v0")
    e("v_add_u32 v9, s19, v8")
    e(f"v_subrev_u32 v10, {WBYTES}, v9")
    e(f"v_add_u32 v12, {256*8192 - WBYTES}, v9")
    e("s_waitcnt lgkmcnt(0)")
    srd(e, 24, 44, 896)
    e(f"buffer_load_dword v16, v8, s[24:27], 0 offen")
    srd(e, 28, 46, WBYTES)
    srd(e, 32, 48, WBYTES)
    if OPT.get("spw", 1): e("s_waitcnt vmcnt(0)")
    e(f"buffer_load_dword v11, v9, s[28:31], 0 offen")
    e(f"buffer_load_dword v13, v10, s[32:35], 0 offen")
    e(f"buffer_load_dword v14, v12, s[32:35], 0 offen")
    e("L_ka_end:")
    e("s_endpgm")
    kb(e)
    return dict(name=NAME + "_kernel", vgpr=224, accum=224, sgpr=64, grid=256, block=512, lds=LDS_XROW+17408)

def sync1(e, u, nl, soff):
    tagcheck(e, u)
    e("v_lshlrev_b32 v80, 6, v1")
    e("s_mov_b32 s63, 0")
    e(f"s_mov_b64 exec, {(1 << nl) - 1:#x}" if nl < 32 else "s_mov_b32 exec_hi, 0")
    e(f"L_s1{u}:")
    if u == "f": e("s_sleep 4")
    elif OPT.get("s1sl", 0): e(f"s_sleep {OPT['s1sl']}")
    e(f"buffer_load_dwordx2 v[82:83], v80, s[24:27], {soff} offen sc1")
    e("s_add_u32 s63, s63, 1")
    e("s_waitcnt vmcnt(0)")
    e("v_cmpx_ne_u64 s[60:61], v[82:83], v[222:223]")
    e(f"s_cbranch_execz L_s1d{u}")
    e("s_cmp_lt_u32 s63, 0x40000")
    e(f"s_cbranch_scc1 L_s1{u}")
    e(f"L_s1d{u}:")
    e("s_mov_b64 exec, -1")

def sync_all(e):
    tagcheck(e, "f")
    e("v_lshlrev_b32 v80, 6, v1")
    e("v_mov_b32 v81, 0x7ff00000")
    e("v_cmp_gt_u32 vcc, 32, v1")
    for j in range(4):
        e(f"s_mov_b32 s{56+j}, {WS_FL1 + 4096*j:#x}")
    e("v_cndmask_b32 v81, v81, v80, vcc")
    e("s_mov_b32 s63, 0")
    e("L_sa:")
    e(f"s_sleep {OPT.get('sasl', 4)}")
    for j in range(4):
        e(f"buffer_load_dwordx2 {vr(82+2*j,2)}, v{81 if j == 3 else 80}, s[24:27], s{56+j} offen sc1")
    e("s_add_u32 s63, s63, 1")
    e("s_waitcnt vmcnt(0)")
    e("v_cndmask_b32 v88, v222, v88, vcc")
    e("v_cndmask_b32 v89, v223, v89, vcc")
    for j in range(4):
        e(f"v_xor_b32 v{82+2*j}, v{82+2*j}, v222")
        e(f"v_xor_b32 v{83+2*j}, v{83+2*j}, v223")
    e("v_or3_b32 v82, v82, v83, v84")
    e("v_or3_b32 v85, v85, v86, v87")
    e("v_or3_b32 v82, v82, v88, v89")
    e("v_or_b32 v82, v82, v85")
    e("v_cmpx_ne_u32 s[60:61], 0, v82")
    e("s_cbranch_execz L_sad")
    e("s_cmp_lt_u32 s63, 0x40000")
    e("s_cbranch_scc1 L_sa")
    e("L_sad:")
    e("s_mov_b64 exec, -1")

def kb(e):
    e("L_kb_entry:")
    e("s_cmp_ge_u32 s2, 184")
    e("s_cbranch_scc1 L_kb_warm")
    stamp(e, 0)
    e("s_setprio 0")
    e("s_load_dwordx2 s[20:21], s[0:1], 96")
    e("s_load_dwordx2 s[4:5], s[0:1], 0")
    e("s_load_dwordx8 s[8:15], s[0:1], 48")
    e("s_load_dwordx4 s[16:19], s[0:1], 80")
    e("s_mov_b32 s28, s43")
    e("v_lshlrev_b32 v4, 4, v1")
    e("s_cmp_ge_u32 s43, 4")
    e("s_cbranch_scc1 L_kb_hastag")
    e("v_mov_b32 v222, 0")
    e("L_kb_hastag:")
    e("s_cmp_ge_u32 s2, 128")
    e("s_cbranch_scc1 L_kb_ffn")
    p2(e)
    e("L_kb_ffn:")
    ffn(e)
    e("s_endpgm")
    e("L_kb_warm:")
    e("s_load_dwordx2 s[8:9], s[0:1], 72")
    e("s_sub_u32 s19, s2, 184")
    e("s_lshl_b32 s19, s19, 16")
    e("v_lshlrev_b32 v8, 7, v0")
    e("v_add_u32 v9, s19, v8")
    e("s_waitcnt lgkmcnt(0)")
    e(f"s_mov_b32 s10, {WBYTES:#x}")
    e("s_mov_b32 s11, 0x20000")
    e(f"buffer_load_dword v11, v9, s[8:11], 0 offen")
    e("L_kb_end:")
    e("s_endpgm")

def p2(e):
    YB, RS, KBUF = 57344, 1808, 57344 + 16*1808
    C, S, F1, F3 = 16, 20, 24, 28
    A, ACC = 64, 32
    XR, WR = 48, 56
    H, T = 96, 104
    Y = 16
    e("s_and_b32 s29, s2, 31")
    e("s_bfe_u32 s30, s2, 0x10005")
    e("s_lshr_b32 s31, s2, 6")
    e("s_sub_u32 s32, 64, s29")
    e("s_cmp_eq_u32 s29, 0")
    e("s_cselect_b32 s32, 32, s32")
    e("s_cmp_eq_u32 s31, 0")
    e("s_cselect_b32 s32, s29, s32")
    e("s_lshl_b32 s33, s30, 10")
    e("s_add_u32 s33, s33, s32")
    e("s_lshl_b32 s34, s28, 7")
    e("s_add_u32 s34, s34, s33")
    e("s_mul_i32 s35, s34, 896")
    e("v_and_b32 v5, 31, v1")
    e("v_lshrrev_b32 v6, 5, v1")
    e("v_cmp_gt_u32 s[40:41], 28, v5")
    e("v_lshlrev_b32 v9, 4, v5")
    e("v_mov_b32 v10, 0x7ff00000")
    e("v_mul_u32_u24 v11, 57344, v6")
    e("v_cndmask_b32 v10, v10, v9, s[40:41]")
    e("v_add_u32 v10, v10, v11")
    e(f"v_add_u32 v125, {LDS_XROW + 16384}, v9")
    e("s_lshl_b32 s38, s28, 11")
    e(f"s_add_u32 s38, s38, {LDS_XROW}")
    e("v_lshl_add_u32 v11, v6, 10, s38")
    e("v_add_u32 v11, v11, v9")
    e(f"ds_read_b128 {vr(WR,4)}, v125")
    e(f"ds_read_b128 {vr(WR+4,4)}, v125 offset:448")
    e(f"ds_read_b128 {vr(XR,4)}, v11")
    e(f"ds_read_b128 {vr(XR+4,4)}, v11 offset:448")
    e("s_waitcnt lgkmcnt(0)")
    srd(e, 44, 16, XBYTES)
    srd(e, 24, 20, WS_SIZE)
    e(f"s_mul_i32 s38, s28, {2*RS}")
    e(f"s_add_u32 s38, s38, {YB}")
    e(f"v_mul_u32_u24 v7, {RS}, v6")
    e("v_lshl_add_u32 v7, v5, 5, v7")
    e("v_add_u32 v7, s38, v7")
    e("s_mov_b32 s43, 0xffff0000")
    e("s_mov_b32 s52, 0x3f803f80")
    e("v_lshl_add_u32 v11, v6, 6, s34")
    e("v_sub_u32 v121, 0xfff, v11")
    e("s_lshl_b32 s38, s28, 3")
    e(f"s_add_u32 s38, s38, {KBUF}")
    e("v_lshl_add_u32 v120, v6, 2, s38")
    e(f"s_mov_b32 s38, {fbits(1.0/448)}")
    e("s_lshl_b32 s53, s2, 7")
    e(f"s_add_u32 s53, s53, {WS_KEY}")
    for r in (122, 123):
        e(f"v_mov_b32 v{r}, 0")
    e("s_cmp_eq_u32 s28, 7")
    e("s_cbranch_scc1 L_p2_w7")
    e("s_mul_i32 s36, s29, 57344")
    e("s_lshl_b32 s37, s28, 7")
    e("s_add_u32 s36, s36, s37")
    e("s_lshl_b32 s37, s28, 13")
    e("v_lshl_add_u32 v9, v2, 6, s33")
    e("v_cvt_f32_u32 v9, v9")
    e(f"v_mul_f32 v9, {fbits(1.0/2048)}, v9")
    e("v_lshlrev_b32 v8, 3, v3")
    e("v_cvt_f32_u32 v8, v8")
    e("v_mul_f32 v8, v8, v9")
    for j in range(8):
        e(f"v_cos_f32 v{A+j}, v8")
        e(f"v_sin_f32 v{A+8+j}, v8")
        if j < 7:
            e("v_add_f32 v8, v8, v9")
    e("v_lshrrev_b32 v4, 2, v1")
    e("v_mul_u32_u24 v4, 896, v4")
    e("v_lshlrev_b32 v8, 1, v6")
    e("v_and_b32 v9, 3, v1")
    e("v_xor_b32 v8, v8, v9")
    e("v_lshl_add_u32 v4, v8, 4, v4")
    for j in range(4):
        e(f"v_cvt_pk_bf16_f32 v{C+j}, v{A+2*j}, v{A+2*j+1}")
        e(f"v_cvt_pk_bf16_f32 v{S+j}, v{A+8+2*j}, v{A+8+2*j+1}")
    e("s_cmp_gt_u32 s32, 32")
    e("s_cselect_b32 s39, 0x80008000, 0")
    e("s_xor_b32 s42, s39, 0x80008000")
    for j in range(4):
        e(f"v_xor_b32 v{F1+j}, s39, v{S+j}")
        e(f"v_xor_b32 v{F3+j}, s42, v{C+j}")
    e("s_cmp_lg_u32 s29, 0")
    e("s_cbranch_scc1 L_p2_nospecial")
    e("s_cmp_eq_u32 s32, 0")
    e("s_cbranch_scc1 L_p2_t0")
    for j in range(4):
        e(f"v_mov_b32 v{F1+j}, v{C+j}")
        e(f"v_mov_b32 v{F3+j}, v{S+j}")
        e(f"v_mov_b32 v{C+j}, 0")
        e(f"v_mov_b32 v{S+j}, 0")
    e("s_branch L_p2_nospecial")
    e("L_p2_t0:")
    for j in range(4):
        e(f"v_mov_b32 v{F1+j}, 0")
        e(f"v_mov_b32 v{F3+j}, 0")
    e("L_p2_nospecial:")
    e("v_and_b32 v13, 1, v3")
    e("v_lshrrev_b32 v12, 2, v2")
    e("v_lshl_add_u32 v12, v13, 3, v12")
    e("v_lshlrev_b32 v12, 6, v12")
    e("v_lshrrev_b32 v14, 1, v3")
    e("v_lshl_add_u32 v12, v14, 10, v12")
    e("v_bfe_u32 v14, v2, 1, 1")
    e("v_lshl_add_u32 v14, v13, 1, v14")
    e("v_lshl_add_u32 v12, v14, 4, v12")
    e("v_and_b32 v14, 1, v2")
    e("v_lshl_add_u32 v12, v14, 3, v12")
    e("v_add_u32 v12, s37, v12")
    e("v_xor_b32 v126, 32, v12")
    e("s_lshl_b32 s42, s28, 7")
    e("v_lshl_add_u32 v13, v3, 4, s42")
    e("v_cmp_eq_u32 vcc, 0, v13")
    e(f"v_mul_u32_u24 v14, {RS}, v2")
    e(f"v_add_u32 v14, {YB}, v14")
    e("v_sub_u32 v15, v14, v13")
    e(f"v_add_u32 v15, {(448-19)*4}, v15")
    e("v_add_u32 v13, v13, v14")
    e(f"v_add_u32 v9, {19*4}, v15")
    e(f"v_add_u32 v8, {224*4}, v14")
    e("v_cndmask_b32 v14, v9, v8, vcc")
    def rowprep():
        e("v_mov_b32 v8, 0")
        e("v_mov_b32 v9, 0")
        e("s_mov_b64 exec, s[40:41]")
        for j in range(8):
            e(f"v_dot2c_f32_bf16 v123, s52, v{WR+j}")
        e("s_mov_b64 exec, -1")
        un = []
        for j in range(8):
            un.append(f"v_lshlrev_b32 v{T+2*j}, 16, v{XR+j}")
            un.append(f"v_and_b32 v{T+2*j+1}, s43, v{XR+j}")
        for _ in range(3): e(un.pop(0))
        for ror in (8, 4, 2, 1):
            e(f"v_add_f32_dpp v123, v123, v123 row_ror:{ror} row_mask:0xf bank_mask:0xf")
            e(un.pop(0)); e(un.pop(0))
        e("v_mov_b32 v124, v123")
        e(un.pop(0)); e(un.pop(0))
        e("v_permlane16_swap_b32 v123, v124")
        while un: e(un.pop(0))
        e("v_add_f32 v123, v123, v124")
    e("s_branch L_p2_s1")
    e("L_p2_w7:")
    rowprep()
    e("s_branch L_p2_join")
    e("L_p2_s1:")
    e("s_lshl_b32 s54, s28, 11")
    e(f"s_add_u32 s54, s54, {WS_FL1}")
    stamp(e, 1)
    sync1(e, "p", 32, "s54")
    e("s_lshl_b32 s54, s28, 7")
    e("v_lshl_add_u32 v80, v3, 4, s54")
    e("v_cmp_eq_u32 s[62:63], 0, v80")
    e(f"s_mov_b32 m0, s37")
    stamp(e, 2)
    for mm in range(2):
        for hf in range(2):
            for rb in range(2):
                if mm or hf or rb:
                    e(f"s_add_u32 m0, s37, {((mm*2+hf)*2+rb)*1024}")
                e(f"s_add_u32 s54, s36, {hf*28672 + rb*14336 + mm*64}")
                e(f"buffer_load_dwordx4 v4, s[24:27], s54 offen{' sc1' if OPT.get('vsc', 1) else ''} lds")
    rowprep()
    for mm in range(2):
        e(f"s_waitcnt vmcnt({4-4*mm})")
        if mm == 1: stamp(e, 3)
        order = [(0, 0, C), (0, 1, F1), (1, 0, S), (1, 1, F3)]
        for i, (kd, hf, fr) in enumerate(order):
            for io in range(2):
                e(f"ds_read_b64_tr_b16 {vr(A+(mm*4+i)*4+2*io,2)}, v{126 if kd else 12} offset:{(mm*2+hf)*2048+io*256}")
        for i, (kd, hf, fr) in enumerate(order):
            e(f"s_waitcnt lgkmcnt({6-2*i})")
            acc = ACC + 8*mm + 4*kd
            c = "0" if hf == 0 else vr(acc, 4)
            e(f"v_mfma_f32_16x16x32_bf16 {vr(acc,4)}, {vr(A+(mm*4+i)*4,4)}, {vr(fr,4)}, {c}")
        E_, O_ = ACC + 8*mm, ACC + 8*mm + 4
        D_ = A + 16*mm
        e("s_nop 7")
        for r in range(4):
            e(f"v_add_f32 v{D_+r}, v{E_+r}, v{O_+r}")
        for r in range(4):
            e(f"v_sub_f32 v{D_+4+r}, v{E_+r}, v{O_+r}")
        if mm == 0:
            e(f"v_cndmask_b32 v{D_}, v{D_}, 0, s[62:63]")
        e(f"ds_write_b128 v13, {vr(D_,4)} offset:{64*mm}")
        o = 16*(1-mm)
        if mm == 0:
            e(f"ds_write_b32 v14, v{D_+4}")
            e(f"ds_write_b32 v15, v{D_+5} offset:{(o+2)*4}")
        else:
            e(f"ds_write2_b32 v15, v{D_+4}, v{D_+5} offset0:{o+3} offset1:{o+2}")
        e(f"ds_write2_b32 v15, v{D_+6}, v{D_+7} offset0:{o+1} offset1:{o}")
    e("s_waitcnt lgkmcnt(0)")
    e("L_p2_join:")
    stamp(e, 4)
    e("s_barrier")
    e("s_mov_b64 exec, s[40:41]")
    e(f"ds_read_b128 {vr(Y,4)}, v7")
    e(f"ds_read_b128 {vr(Y+4,4)}, v7 offset:16")
    e(f"ds_read_b128 {vr(Y+8,4)}, v7 offset:896")
    e(f"ds_read_b128 {vr(Y+12,4)}, v7 offset:912")
    for j in range(8):
        if j % 2 == 0:
            e(f"s_waitcnt lgkmcnt({3-j//2})")
        e(f"v_pk_add_f32 {vr(T+2*j,2)}, {vr(Y+2*j,2)}, {vr(T+2*j,2)}")
        if j % 2 == 1:
            e(f"v_cvt_pk_bf16_f32 v{H+j-1}, v{T+2*j-2}, v{T+2*j-1}")
            e(f"v_cvt_pk_bf16_f32 v{H+j}, v{T+2*j}, v{T+2*j+1}")
    for j in range(8):
        e(f"v_dot2c_f32_bf16 v8, s52, v{H+j}")
        e(f"v_dot2c_f32_bf16 v9, v{H+j}, v{H+j}")
        e(f"v_dot2c_f32_bf16 v122, v{H+j}, v{WR+j}")
    e("s_mov_b64 exec, -1")
    for ror in (8, 4, 2, 1):
        for r in (8, 9, 122):
            e(f"v_add_f32_dpp v{r}, v{r}, v{r} row_ror:{ror} row_mask:0xf bank_mask:0xf")
    e("v_mov_b32 v13, v8")
    e("v_mov_b32 v14, v9")
    e("v_mov_b32 v15, v122")
    e("v_permlane16_swap_b32 v8, v13")
    e("v_permlane16_swap_b32 v9, v14")
    e("v_permlane16_swap_b32 v122, v15")
    e("v_add_f32 v8, v8, v13")
    e("v_add_f32 v9, v9, v14")
    e("v_add_f32 v12, v122, v15")
    e("v_mul_f32 v8, s38, v8")
    e("v_mul_f32 v9, s38, v9")
    e("v_fma_f32 v9, -v8, v8, v9")
    e("v_max_f32 v9, 0, v9")
    e("v_cvt_pk_bf16_f32 v8, v9, v8")
    e("v_lshlrev_b32 v9, 16, v8")
    e(f"v_add_f32 v9, {fbits(1e-5)}, v9")
    e("v_cvt_pk_bf16_f32 v9, v9, v9")
    e("v_and_b32 v9, s43, v9")
    e("v_sqrt_f32 v9, v9")
    e("v_and_b32 v8, s43, v8")
    e("v_cvt_pk_bf16_f32 v13, v9, v8")
    e("v_lshlrev_b32 v9, 16, v13")
    e("v_rcp_f32 v9, v9")
    e("v_fma_f32 v12, -v8, v123, v12")
    e("v_mul_f32 v12, v12, v9")
    e("v_add_f32 v4, 1.0, v9")
    e("v_cvt_pk_bf16_f32 v12, v12, v12")
    e("v_mul_f32 v14, -v8, v9")
    e("v_ashrrev_i32 v6, 31, v12")
    e("v_mov_b32 v5, v4")
    e("v_or_b32 v6, 0x80000000, v6")
    e("v_mov_b32 v15, v14")
    e("v_xor_b32 v12, v12, v6")
    e("v_and_or_b32 v12, v12, s43, v121")
    e("ds_write2_b32 v120, v12, v13 offset0:0 offset1:16")
    def outs(lo, hi):
        for j in range(lo, hi):
            e(f"v_pk_fma_f32 {vr(T+2*j,2)}, {vr(T+2*j,2)}, v[4:5], v[14:15]")
            if j % 2 == 1:
                e(f"v_cvt_pk_bf16_f32 v{XR+j-1}, v{T+2*j-2}, v{T+2*j-1}")
                e(f"v_cvt_pk_bf16_f32 v{XR+j}, v{T+2*j}, v{T+2*j+1}")
    e("v_lshlrev_b32 v6, 2, v1")
    e(f"v_add_u32 v7, {KBUF}, v6")
    e("s_waitcnt lgkmcnt(0)")
    stamp(e, 5)
    e("s_barrier")
    e("s_cmp_lg_u32 s28, 0")
    e("s_cbranch_scc1 L_p2_nokey")
    e("ds_read_b32 v12, v7")
    e("s_mov_b32 exec_hi, 0")
    e("s_waitcnt lgkmcnt(0)")
    e("buffer_store_dword v12, v6, s[24:27], s53 offen sc1")
    e("s_mov_b64 exec, -1")
    e("L_p2_nokey:")
    outs(0, 8)
    e(f"buffer_store_dwordx4 {vr(XR,4)}, v10, s[44:47], s35 offen sc1")
    e(f"buffer_store_dwordx4 {vr(XR+4,4)}, v10, s[44:47], s35 offen offset:448 sc1")
    e("s_waitcnt vmcnt(0)")
    stamp(e, 6)
    e("s_barrier")
    e("s_cmp_lg_u32 s28, 0")
    e("s_cbranch_scc1 L_p2_end")
    e("s_mov_b64 exec, 1")
    e("v_mov_b32 v12, 1")
    e(f"s_add_u32 s53, s53, {WS_FLAG - WS_KEY}")
    e(f"buffer_store_dword v12, off, s[24:27], s53 sc1")
    e("L_p2_end:")
    stamp_flush(e, 1, 24, 7, 28)
    e("s_endpgm")

def ffn(e):
    XS, ONES, ACT, MISC, GB = 0, 7168, 14336, 15360, 16384
    DB = GB + 57344
    A, AD_, ACC = 64, 36, 32
    K = 64
    e("s_sub_u32 s29, s2, 128")
    e("s_and_b32 s37, s29, 7")
    e("s_lshr_b32 s38, s29, 3")
    e("s_mul_i32 s39, s37, 7")
    e("s_add_u32 s39, s39, s38")
    e("s_cmp_eq_u32 s28, 7")
    e("s_cbranch_scc1 L_f_poll")
    e("s_cmp_lt_u32 s28, 4")
    e("s_cbranch_scc1 L_f_comp")
    e("v_lshrrev_b32 v5, 2, v1")
    e("v_and_b32 v6, 3, v1")
    e("v_lshrrev_b32 v7, 4, v1")
    e("v_and_b32 v7, 2, v7")
    e("v_xor_b32 v6, v6, v7")
    e("s_cmp_eq_u32 s28, 5")
    e("s_cselect_b32 s40, 1, 0")
    e("v_xor_b32 v6, s40, v6")
    e("s_cmp_eq_u32 s28, 6")
    e("s_movk_i32 s41, 896")
    e("s_cselect_b32 s41, s41, 3584")
    e("s_cselect_b32 s42, 64, 114688")
    e("s_cselect_b32 s43, 28672, 64")
    e("v_mul_u32_u24 v5, s41, v5")
    e("v_lshl_add_u32 v5, v6, 4, v5")
    e("s_lshl_b32 s44, s41, 4")
    e("v_add_u32 v6, s44, v5")
    e("s_mul_i32 s43, s43, s39")
    e("s_sub_u32 s44, s28, 4")
    e("s_mul_i32 s44, s44, 28672")
    e(f"s_add_u32 s44, s44, {GB}")
    e("s_waitcnt lgkmcnt(0)")
    stamp(e, 1)
    e("s_cmp_eq_u32 s28, 5")
    e("s_cselect_b32 s48, s12, s10")
    e("s_cselect_b32 s49, s13, s11")
    e("s_cmp_eq_u32 s28, 6")
    e("s_cselect_b32 s48, s14, s48")
    e("s_cselect_b32 s49, s15, s49")
    e(f"s_mov_b32 s50, {WBYTES:#x}")
    e("s_mov_b32 s51, 0x20000")
    e("s_add_u32 s45, s44, 28672")
    e("s_barrier")
    if OPT.get("ldly", 0): e(f"s_sleep {OPT['ldly']}")
    e("L_f_dma:")
    e("s_mov_b32 m0, s44")
    e("s_add_u32 s44, s44, 2048")
    e("buffer_load_dwordx4 v5, s[48:51], s43 offen lds")
    e("s_add_u32 m0, m0, 1024")
    e("s_nop 0")
    e("buffer_load_dwordx4 v6, s[48:51], s43 offen lds")
    e("s_add_u32 s43, s43, s42")
    e("s_cmp_lt_u32 s44, s45")
    e("s_cbranch_scc1 L_f_dma")
    stamp(e, 2)
    e(f"v_mov_b32 v5, {MISC}")
    e("v_mov_b32 v6, 1")
    e("s_mov_b64 exec, 1")
    e("s_waitcnt vmcnt(0)")
    e("ds_add_u32 v5, v6")
    e("s_waitcnt lgkmcnt(0)")
    if DIAG:
        srd(e, 24, 20, WS_SIZE)
        stamp_flush(e, 1, 24, 3, 28)
    e("s_endpgm")

    e("L_f_comp:")
    e("v_mov_b32 v8, 0x3f803f80")
    e("v_mov_b32 v9, v8")
    e("v_mov_b32 v10, v8")
    e("v_mov_b32 v11, v8")
    e("v_lshlrev_b32 v5, 4, v0")
    e(f"ds_write_b128 v5, v[8:11] offset:{ONES}")
    e(f"ds_write_b128 v5, v[8:11] offset:{ONES+3072}")
    e("v_mov_b32 v6, 0")
    e(f"v_mov_b32 v7, {MISC}")
    e("ds_write_b32 v7, v6")
    e("s_waitcnt lgkmcnt(0)")
    stamp(e, 1)
    e("s_barrier")
    srd(e, 24, 20, WS_SIZE)
    e("v_lshrrev_b32 v8, 2, v2")
    e("v_bfe_u32 v9, v2, 1, 1")
    e("v_and_b32 v10, 1, v3")
    e("v_and_b32 v13, 1, v2")
    e("v_lshlrev_b32 v13, 3, v13")
    e("v_lshl_add_u32 v11, v10, 1, v9")
    e("v_xor_b32 v11, s28, v11")
    e("v_lshl_add_u32 v14, v3, 3, v8")
    e("v_lshl_add_u32 v14, v14, 6, v13")
    e("v_lshl_add_u32 v14, v11, 4, v14")
    e("v_mul_u32_u24 v11, 28672, v9")
    e(f"s_movk_i32 s42, {GB}")
    e("v_add3_u32 v14, v14, v11, s42")
    e("v_lshl_add_u32 v8, v10, 3, v8")
    e("v_lshl_add_u32 v15, v8, 6, v13")
    e("s_and_b32 s42, s28, 1")
    e("v_xor_b32 v10, s42, v10")
    e("v_lshl_add_u32 v10, v10, 1, v9")
    e("v_lshl_add_u32 v15, v10, 4, v15")
    e("v_lshrrev_b32 v10, 1, v3")
    e("v_lshl_add_u32 v15, v10, 10, v15")
    e("s_lshr_b32 s42, s28, 1")
    e("s_lshl_b32 s42, s42, 11")
    e(f"s_add_u32 s42, s42, {DB}")
    e("v_add_u32 v15, s42, v15")
    e("v_and_b32 v8, 7, v2")
    e("v_and_b32 v9, 6, v2")
    e("v_xor_b32 v9, v9, v3")
    e("v_lshlrev_b32 v8, 7, v8")
    e("v_lshl_add_u32 v12, v9, 4, v8")
    e("v_cmp_gt_u32 vcc, 8, v2")
    e(f"v_mov_b32 v8, {ONES}")
    e("v_lshlrev_b32 v6, 4, v2")
    e("v_cndmask_b32 v12, v8, v12, vcc")
    e("v_xor_b32 v13, 64, v12")
    e("v_lshl_add_u32 v6, v3, 7, v6")
    e("v_mov_b32 v8, 0x7ff00000")
    e("v_cndmask_b32 v6, v8, v6, vcc")
    e("s_lshl_b32 s42, s28, 8")
    e(f"s_add_u32 s42, s42, {ACT}")
    e("v_lshl_add_u32 v5, v2, 4, s42")
    e("v_lshl_add_u32 v5, v3, 3, v5")
    e("s_mul_i32 s44, s39, 14336")
    e("s_lshl_b32 s42, s28, 9")
    e("s_add_u32 s44, s44, s42")
    e(f"s_add_u32 s44, s44, {WS_PART}")
    for j in range(1, 4):
        e(f"s_add_u32 s{44+j}, s44, {4096*j}")
    e(f"s_mov_b32 s42, {fbits(-1.4426950408889634)}")
    e("v_and_b32 v11, 7, v2")
    e("v_lshlrev_b32 v11, 2, v11")
    e("L_f_wait:")
    e("s_sleep 2")
    e("ds_read_b32 v8, v7")
    e("s_waitcnt lgkmcnt(0)")
    e("v_cmp_ne_u32 vcc, 3, v8")
    e("s_cbranch_vccnz L_f_wait")
    stamp(e, 2)
    for k in range(14):
        for io in range(2):
            e(f"ds_read_b64_tr_b16 {vr(A+4*k+2*io,2)}, v14 offset:{k*2048+io*256}")
    for i in range(7):
        for io in range(2):
            e(f"ds_read_b64_tr_b16 {vr(AD_+4*i+2*io,2)}, v15 offset:{i*4096+io*256}")
    e("s_waitcnt lgkmcnt(0)")
    stamp(e, 3)
    e("s_barrier")
    stamp(e, 4)
    BR = [16, 20, 24, 28, 120, 124]
    def rdx(k):
        e(f"ds_read_b128 {vr(BR[k%6],4)}, v{12 + (k&1)} offset:{XS + (k>>1)*1024}")
    for k in range(5): rdx(k)
    e(f"ds_read_b32 v10, v11 offset:{MISC+64}")
    for k in range(14):
        if k + 5 < 14:
            rdx(k + 5)
        n_after = min(k + 5, 13) - k + (1 if k < 5 else 0)
        e(f"s_waitcnt lgkmcnt({n_after})")
        c = "0" if k == 0 else vr(ACC, 4)
        e(f"v_mfma_f32_16x16x32_bf16 {vr(ACC,4)}, {vr(A+4*k,4)}, {vr(BR[k%6],4)}, {c}")
        if k == 6:
            e("v_lshlrev_b32 v9, 16, v10")
            e("v_add_f32 v9, 1.0, v9")
        if k == 8:
            e("v_and_b32 v10, 0xffff0000, v10")
            e("v_rcp_f32 v9, v9")
    e("s_nop 7")
    for r in range(4):
        e(f"v_mov_b32_dpp v{16+r}, v{ACC+r} row_newbcast:8 row_mask:0xf bank_mask:0xf")
    for r in range(4):
        e(f"v_fma_f32 v{ACC+r}, -v10, v{16+r}, v{ACC+r}")
    for r in range(4):
        e(f"v_mul_f32 v{ACC+r}, v{ACC+r}, v9")
    e("s_nop 0")
    for r in range(4):
        e(f"v_permlane32_swap_b32 v{ACC+r}, v{20+r}")
    for r in range(4):
        e(f"v_mul_f32 v{16+r}, s42, v{ACC+r}")
    for r in range(4):
        e(f"v_exp_f32 v{16+r}, v{16+r}")
    for r in range(4):
        e(f"v_mul_f32 v{ACC+r}, v{ACC+r}, v{20+r}")
    for r in range(4):
        e(f"v_add_f32 v{16+r}, 1.0, v{16+r}")
    for r in range(4):
        e(f"v_rcp_f32 v{16+r}, v{16+r}")
    e("s_mov_b32 exec_hi, 0")
    for r in range(4):
        e(f"v_mul_f32 v{ACC+r}, v{ACC+r}, v{16+r}")
    e(f"v_cvt_pk_bf16_f32 v16, v{ACC}, v{ACC+1}")
    e(f"v_cvt_pk_bf16_f32 v17, v{ACC+2}, v{ACC+3}")
    e("ds_write_b64 v5, v[16:17]")
    e("s_mov_b32 exec_hi, -1")
    e("s_waitcnt lgkmcnt(0)")
    stamp(e, 5)
    e("s_barrier")
    e(f"ds_read_b128 v[16:19], v4 offset:{ACT}")
    e("s_waitcnt lgkmcnt(0)")
    for i in range(7):
        e(f"v_mfma_f32_16x16x32_bf16 {vr(A+4*i,4)}, {vr(AD_+4*i,4)}, v[16:19], 0")
    e("s_nop 1")
    for i in range(7):
        e(f"buffer_store_dwordx4 {vr(A+4*i,4)}, v6, s[24:27], s{44+(i>>1)} offen offset:{2048*(i&1)} sc1")
    stamp(e, 6)
    B4 = OPT.get("b4", 0)
    if B4 >= 0:
        e(f"s_waitcnt vmcnt({B4})")
        e("s_barrier")
    stamp_flush(e, 1, 24, 7, 28)
    e("s_endpgm")

    e("L_f_poll:")
    PFL = ["sc1", "sc0 sc1"][OPT.get("pfl", 0)]
    e("s_setprio 3")
    e("v_lshrrev_b32 v4, 2, v1")
    e("v_lshlrev_b32 v4, 7, v4")
    e("v_and_b32 v5, 3, v1")
    e("v_lshl_add_u32 v4, v5, 4, v4")
    e("s_mov_b32 s46, 0")
    e("s_mov_b32 s47, 0")
    e("v_lshrrev_b32 v5, 3, v1")
    e("v_and_b32 v6, 7, v1")
    e("v_lshlrev_b32 v13, 2, v6")
    e("v_and_b32 v7, 6, v5")
    e("v_xor_b32 v6, v6, v7")
    e("v_lshlrev_b32 v6, 4, v6")
    e("v_lshlrev_b32 v5, 2, v5")
    e("v_bfe_u32 v14, v1, 3, 1")
    e("s_lshl_b32 s42, s39, 4")
    e("v_lshl_add_u32 v14, v14, 3, s42")
    e("v_mul_u32_u24 v24, 14336, v3")
    e("v_lshl_add_u32 v24, v2, 4, v24")
    e("v_add_u32 v25, 57344, v24")
    e("v_add_u32 v26, 57344, v25")
    e("v_add_u32 v27, 57344, v26")
    e("s_lshl_b32 s52, s39, 8")
    e(f"s_add_u32 s52, s52, {WS_PART}")
    for j in range(1, 4):
        e(f"s_add_u32 s{52+j}, s52, {4*57344*j}")
    e("v_mov_b32 v8, 0")
    e("v_mov_b32 v9, 0")
    e("v_mov_b32 v10, 0")
    e("v_lshlrev_b32 v7, 12, v1")
    e("v_lshlrev_b32 v19, 7, v1")
    e("v_lshlrev_b32 v30, 2, v1")
    e("s_movk_i32 s44, 896")
    e("s_mov_b32 s45, 0xffff0000")
    e("s_waitcnt lgkmcnt(0)")
    stamp(e, 1)
    srd(e, 24, 20, WS_SIZE)
    srd(e, 48, 16, XBYTES)
    if not OPT.get("b0late", 1): e("s_barrier")
    if OPT.get("sall", 1):
        sync_all(e)
    else:
        e(f"s_mov_b32 s62, {WS_FL1:#x}")
        sync1(e, "f", 8, "s62")
    if OPT.get("b0late", 1): e("s_barrier")
    for j in range(4):
        e(f"s_mov_b32 s{58+j}, {WS_KEY+4096*j:#x}")
    e(f"s_mov_b32 s56, {WS_FLAG:#x}")
    e(f"s_mov_b32 s57, {WS_FLAG+8192:#x}")
    e("s_mov_b64 exec, 0xf")
    e("L_f_p0:")
    e("s_sleep 2")
    e("buffer_load_dword v11, v7, s[24:27], s58 offen offset:3968 " + PFL)
    e("s_add_u32 s47, s47, 1")
    e("s_waitcnt vmcnt(0)")
    e("v_cmp_ne_u32 vcc, 0, v11")
    e("s_cbranch_vccnz L_f_p1")
    e("s_cmp_lt_u32 s47, 0x40000")
    e("s_cbranch_scc1 L_f_p0")
    e("L_f_p1:")
    e("s_mov_b64 exec, -1")
    e("L_f_pk:")
    for i in range(8):
        e(f"s_bitcmp1_b32 s46, {i}")
        e(f"s_cbranch_scc1 L_f_sl{i}")
        e(f"buffer_load_dwordx4 {vr(K+4*i,4)}, v4, s[24:27], s{58+(i>>1)} offen offset:{(i&1)*2048} " + PFL)
        e(f"L_f_sl{i}:")
    e("s_add_u32 s47, s47, 1")
    e("s_waitcnt vmcnt(0)")
    for i in range(8):
        e(f"s_bitcmp1_b32 s46, {i}")
        e(f"s_cbranch_scc1 L_f_sf{i}")
        e(f"v_min3_u32 v11, v{K+4*i}, v{K+4*i+1}, v{K+4*i+2}")
        e(f"v_min_u32 v11, v11, v{K+4*i+3}")
        e("v_cmp_eq_u32 vcc, 0, v11")
        e(f"s_cbranch_vccnz L_f_sf{i}")
        e(f"s_bitset1_b32 s46, {i}")
        for j in range(4):
            e(f"v_med3_u32 v10, v9, v10, v{K+4*i+j}")
            e(f"v_med3_u32 v9, v8, v9, v{K+4*i+j}")
            e(f"v_max_u32 v8, v8, v{K+4*i+j}")
        e(f"L_f_sf{i}:")
    e("s_cmp_eq_u32 s46, 0xff")
    e("s_cbranch_scc1 L_f_keys")
    e("s_cmp_lt_u32 s47, 0x40000")
    e("s_cbranch_scc1 L_f_pk")
    e("L_f_keys:")
    stamp(e, 2)
    FR = OPT.get("fr", 2)
    def flagloads():
        e("buffer_load_dword v28, v19, s[24:27], s56 offen sc1")
        e("buffer_load_dword v29, v19, s[24:27], s57 offen sc1")
    for rd in range(8):
        for si, st in enumerate(DPP6):
            if si == 0:
                e(f"v_max_u32_dpp v11, v8, v8 {st} bank_mask:0xf bound_ctrl:0")
            else:
                e(f"v_max_u32_dpp v11, v11, v11 {st} bank_mask:0xf")
            if si < 5:
                if rd == FR and si == 0:
                    flagloads()
                else:
                    e("s_nop 1")
        e("s_nop 0")
        e("v_readlane_b32 s42, v11, 63")
        e("s_nop 1")
        e("v_cmp_eq_u32 vcc, s42, v8")
        e(f"v_writelane_b32 v12, s42, {rd}")
        e("s_nop 0")
        e("v_cndmask_b32 v8, v8, v9, vcc")
        e("v_cndmask_b32 v9, v9, v10, vcc")
        e("v_cndmask_b32 v10, v10, 0, vcc")
    e("v_cmp_eq_u32 vcc, 0, v8")
    e("s_cbranch_vccz L_f_topdone")
    e("s_mov_b32 m0, 0")
    e("s_mov_b32 s42, -1")
    e("L_f_slow:")
    e(f"v_sub_u32 v8, s42, v{K}")
    e(f"v_sub_u32 v9, s42, v{K+1}")
    e("v_min_u32 v8, v8, v9")
    for i in range(2, 32, 2):
        e(f"v_sub_u32 v9, s42, v{K+i}")
        e(f"v_sub_u32 v10, s42, v{K+i+1}")
        e("v_min3_u32 v8, v8, v9, v10")
    for st in DPP6:
        e("s_nop 1")
        e(f"v_min_u32_dpp v8, v8, v8 {st} bank_mask:0xf")
    e("s_nop 0")
    e("v_readlane_b32 s47, v8, 63")
    e("s_nop 3")
    e("s_sub_u32 s42, s42, s47")
    e("v_writelane_b32 v12, s42, m0")
    e("s_sub_u32 s42, s42, 1")
    e("s_add_u32 m0, m0, 1")
    e("s_cmp_lt_u32 m0, 8")
    e("s_cbranch_scc1 L_f_slow")
    e("L_f_topdone:")
    stamp(e, 3)
    e("ds_bpermute_b32 v8, v5, v12")
    e("ds_bpermute_b32 v15, v13, v12")
    e("s_mov_b32 s47, 0")
    e("s_waitcnt lgkmcnt(1)")
    e("v_not_b32 v8, v8")
    e("v_and_b32 v8, 0x7ff, v8")
    e("v_mad_u32_u24 v31, v8, s44, v6")
    e("L_f_gather:")
    e(f"s_mov_b32 m0, {XS}")
    e("v_mov_b32 v8, v31")
    e("s_waitcnt vmcnt(0)")
    for j in range(7):
        e(f"buffer_load_dwordx4 v8, s[48:51], 0 offen sc1 lds")
        if j < 6:
            e(f"s_mov_b32 m0, {XS + 1024*(j+1)}")
            e("v_add_u32 v8, 128, v8")
    e("s_waitcnt lgkmcnt(0)")
    e("v_not_b32 v9, v15")
    e("v_and_b32 v9, 0x7ff, v9")
    e("v_mad_u32_u24 v20, v9, s44, v14")
    e("v_and_b32 v21, 63, v9")
    e("v_sub_u32 v22, 64, v21")
    e("v_min_u32 v22, v21, v22")
    e("v_and_b32 v22, 31, v22")
    e("v_lshrrev_b32 v23, 10, v9")
    e("v_lshl_add_u32 v22, v23, 5, v22")
    e("v_lshrrev_b32 v23, 5, v21")
    e("v_lshl_add_u32 v10, v23, 6, v22")
    e("v_bfe_u32 v23, v9, 6, 4")
    e("v_lshlrev_b32 v10, 7, v10")
    e("v_lshl_add_u32 v10, v23, 2, v10")
    e("buffer_load_dword v11, v10, s[24:27], s58 offen offset:64 sc1")
    e("buffer_load_dwordx2 v[16:17], v20, s[48:51], 0 offen sc1")
    e("v_lshlrev_b32 v22, 2, v22")
    e("ds_bpermute_b32 v23, v22, v28")
    e("ds_bpermute_b32 v22, v22, v29")
    e("v_cmp_gt_u32 vcc, 32, v21")
    e("s_add_u32 s47, s47, 1")
    e("s_waitcnt lgkmcnt(0)")
    e("v_cndmask_b32 v22, v22, v23, vcc")
    e("v_cmp_eq_u32 vcc, 0, v22")
    e("s_cbranch_vccz L_f_flagok")
    flagloads()
    e("s_cmp_lt_u32 s47, 0x40000")
    e("s_cbranch_scc1 L_f_gather")
    e("L_f_flagok:")
    e("s_waitcnt vmcnt(1)")
    e("s_mov_b64 exec, 0xff")
    e(f"ds_write_b32 v30, v11 offset:{MISC+64}")
    e("s_mov_b64 exec, -1")
    e("s_waitcnt lgkmcnt(0)")
    stamp(e, 4)
    e("s_barrier")
    e("v_ashrrev_i32 v9, 31, v15")
    e("v_not_b32 v9, v9")
    e("v_or_b32 v9, 0x80000000, v9")
    e("v_xor_b32 v15, v15, v9")
    e("v_and_b32 v15, s45, v15")
    e(f"v_mul_f32 v18, {fbits(-1.4426950408889634)}, v15")
    e("v_exp_f32 v18, v18")
    e("v_mov_b32 v10, 1.0")
    e("v_add_f32 v18, 1.0, v18")
    e("v_rcp_f32 v18, v18")
    e("s_mov_b32 s47, 0")
    e("v_cvt_pk_bf16_f32 v18, v18, v18")
    e("v_and_b32 v18, s45, v18")
    e("v_mov_b32 v14, v20")
    e("s_waitcnt vmcnt(0)")
    e("v_lshlrev_b32 v20, 16, v16")
    e("v_and_b32 v21, s45, v16")
    e("v_lshlrev_b32 v22, 16, v17")
    e("v_and_b32 v23, s45, v17")
    e("s_barrier")
    if B4 >= 0:
        e("s_barrier")
    stamp(e, 5)
    P = 64
    e("L_f_pp:")
    for i in range(14):
        e(f"buffer_load_dwordx4 {vr(P+4*i,4)}, v{24+(i&3)}, s[24:27], s{52+(i>>2)} offen sc1")
    e("s_add_u32 s47, s47, 1")
    e("s_waitcnt vmcnt(12)")
    e(f"v_pk_add_f32 v[28:29], {vr(P,2)}, {vr(P+4,2)}")
    e(f"v_pk_add_f32 v[30:31], {vr(P+2,2)}, {vr(P+6,2)}")
    for i in range(2, 14):
        e(f"s_waitcnt vmcnt({13-i})")
        e(f"v_pk_add_f32 v[28:29], v[28:29], {vr(P+4*i,2)}")
        e(f"v_pk_add_f32 v[30:31], v[30:31], {vr(P+4*i+2,2)}")
    e("v_add_f32 v8, v28, v29")
    e("v_add_f32 v9, v30, v31")
    e("v_cmp_u_f32 vcc, v8, v9")
    e("s_cbranch_vccz L_f_got")
    e(f"v_max3_u32 v8, v{P}, v{P+1}, v{P+2}")
    for i in range(3, 55, 2):
        e(f"v_max3_u32 v8, v8, v{P+i}, v{P+i+1}")
    e(f"v_max_u32 v8, v8, v{P+55}")
    e("v_cmp_eq_u32 vcc, -1, v8")
    e("s_cbranch_vccz L_f_got")
    e("s_cmp_lt_u32 s47, 0x40000")
    e("s_cbranch_scc1 L_f_pp")
    e("L_f_got:")
    stamp(e, 6)
    for r in range(4):
        e(f"v_mfma_f32_16x16x4_f32 {vr(32+4*r,4)}, v10, v{28+r}, 0")
    e("s_nop 7")
    e("s_nop 0")
    e("v_cvt_pk_bf16_f32 v16, v32, v36")
    e("v_cvt_pk_bf16_f32 v17, v40, v44")
    e("v_lshlrev_b32 v24, 16, v16")
    e("v_and_b32 v25, s45, v16")
    e("v_lshlrev_b32 v26, 16, v17")
    e("v_and_b32 v27, s45, v17")
    for r in range(4):
        e(f"v_mul_f32 v{24+r}, v{24+r}, v18")
    e("v_cvt_pk_bf16_f32 v16, v24, v25")
    e("v_cvt_pk_bf16_f32 v17, v26, v27")
    e("v_lshlrev_b32 v24, 16, v16")
    e("v_and_b32 v25, s45, v16")
    e("v_lshlrev_b32 v26, 16, v17")
    e("v_and_b32 v27, s45, v17")
    for r in range(4):
        e(f"v_add_f32 v{24+r}, v{24+r}, v{20+r}")
    e("v_cvt_pk_bf16_f32 v16, v24, v25")
    e("v_cvt_pk_bf16_f32 v17, v26, v27")
    e("s_mov_b64 exec, 0xffff")
    e("buffer_store_dwordx2 v[16:17], v14, s[48:51], 0 offen" + (" sc1" if OPT.get("fsc1", 1) else ""))
    stamp_flush(e, 1, 24, 7, 28)

if __name__ == "__main__":
    for a in sys.argv[2:]:
        if a == "diag":
            DIAG = True; gen.DIAG = True
        else:
            k, v = a.split("=")
            OPT[k] = int(v)
    build([ka], sys.argv[1])
    if not OPT.get("aslist", 0):
        t = open(sys.argv[1]).read().replace("; @launch kernel=" + NAME + "_kernel grid", "; @launch grid")
        open(sys.argv[1], "w").write(t)
```

```python
import struct, sys
from gen import E, fbits, vr, ar, srd, header, build, NAME
import gen

WS_V    = 0x000000
WS_KEY  = 0x300000
WS_FLAG = 0x304000
WS_PART = 0x308000
WS_FL1  = 0x3E0000
WS_SIZE = 0x10000000
XBYTES  = 2048*896
WBYTES  = 448*1792*2
WS_DIAG = 0x800000
LDS_XROW = 140288
DIAG = False
OPT = {}
DPP6 = ["row_shr:1 row_mask:0xf", "row_shr:2 row_mask:0xf", "row_shr:4 row_mask:0xf", "row_shr:8 row_mask:0xf",
        "row_bcast:15 row_mask:0xa", "row_bcast:31 row_mask:0xc"]

def stamp(e, i):
    if DIAG:
        e(f"s_mem{'time' if OPT.get('cyc', 0) and i in (4, 5) else 'realtime'} s[{64+2*i}:{65+2*i}]")
        e("s_waitcnt lgkmcnt(0)")
def stamp_flush(e, kid, srdreg, nst, wavereg):
    if DIAG:
        e("s_mov_b64 exec, -1")
        e(f"s_memrealtime s[{64+2*nst}:{65+2*nst}]")
        e("s_waitcnt lgkmcnt(0)")
        for i in range(nst+1):
            e(f"v_writelane_b32 v230, s{64+2*i}, {i}")
        e(f"s_lshl_b32 s90, s2, 3")
        e(f"s_add_u32 s90, s90, s{wavereg}")
        e(f"s_lshl_b32 s90, s90, 6")
        e(f"s_add_u32 s90, s90, {WS_DIAG + kid*0x40000}")
        e("v_mbcnt_lo_u32_b32 v231, -1, 0")
        e("v_lshlrev_b32 v231, 2, v231")
        e("s_mov_b32 exec_lo, 0xffff")
        e("s_mov_b32 exec_hi, 0")
        e(f"buffer_store_dword v230, v231, s[{srdreg}:{srdreg+3}], s90 offen")
        e("s_mov_b64 exec, -1")

class Lds:
    def __init__(self, e):
        self.e = e; self.q = []
    def issue(self, tag, ins):
        self.e(ins); self.q.append(tag)
    def need(self, tag):
        if tag not in self.q: return
        last = max(i for i, t in enumerate(self.q) if t == tag)
        n = len(self.q) - 1 - last
        assert n <= 15, n
        self.e(f"s_waitcnt lgkmcnt({n})")
        self.q = self.q[last+1:]

def tagcheck(e, u):
    e("s_mov_b32 s63, 0")
    e(f"L_tag{u}:")
    e("v_cmp_ne_u32 vcc, 0, v224")
    e(f"s_cbranch_vccnz L_tagok{u}")
    if u != "a": srd(e, 56, 18, 256)
    e("buffer_load_dwordx2 v[224:225], off, s[56:59], 0 sc1")
    e("s_add_u32 s63, s63, 1")
    e("s_waitcnt vmcnt(0)")
    e("s_cmp_lt_u32 s63, 0x40000")
    e(f"s_cbranch_scc1 L_tag{u}")
    e(f"L_tagok{u}:")

def ka(e):
    header(e, NAME + "_kernel")
    X, ACC, CUR, PRV, PK, RF, BB = 64, 32, 16, 24, 48, 56, 120
    SUM, GRM = 32, 36
    LDS_X, LDS_Z = 57344, 114688
    LDS_R = LDS_Z + 8192
    LDS_ST = LDS_R + 8192
    LDS_CS = LDS_ST + 512
    LDS_TB = LDS_CS + 512
    LDS_XR = LDS_XROW
    assert LDS_TB + 8192 == LDS_XROW
    e("s_cmp_ge_u32 s2, 256")
    e("s_cbranch_scc1 L_ka_end")
    stamp(e, 0)
    e("s_load_dwordx2 s[4:5], s[0:1], 0")
    e("s_load_dwordx2 s[6:7], s[0:1], 96")
    e("s_load_dwordx8 s[44:51], s[0:1], 48")
    e("s_load_dwordx2 s[60:61], s[0:1], 88")
    e("v_lshrrev_b32 v1, 6, v0")
    e("v_and_b32 v2, 15, v0")
    e("v_readfirstlane_b32 s43, v1")
    e("v_bfe_u32 v3, v0, 4, 2")
    e("v_and_b32 v1, 63, v0")
    e("s_cmp_ge_u32 s2, 224")
    e("s_cbranch_scc1 L_ka_spare")
    e("s_and_b32 s16, s43, 3")
    e("s_and_b32 s20, s2, 31")
    e("s_lshr_b32 s19, s2, 5")
    e("s_lshr_b32 s21, s16, 1")
    e("s_and_b32 s22, s16, 1")
    e("s_mul_i32 s29, s16, 14336")
    e(f"s_add_u32 s41, s29, {LDS_X}")
    e("s_mov_b32 s28, 0x3f803f80")
    e("s_cmp_ge_u32 s43, 4")
    e("s_cbranch_scc1 L_ka_help")

    def common_addr():
        e("v_lshlrev_b32 v11, 4, v1")
        e("v_and_b32 v12, 6, v2")
        e("v_xor_b32 v12, v12, v3")
        e("v_and_b32 v14, 7, v2")
        e("v_lshlrev_b32 v14, 7, v14")
        e("v_lshl_add_u32 v14, v12, 4, v14")
        e("v_lshrrev_b32 v12, 3, v2")
        e("v_lshl_add_u32 v14, v12, 10, v14")
        e("v_add_u32 v14, s41, v14")
        e("v_xor_b32 v15, 64, v14")
        e("v_lshrrev_b32 v12, 2, v1")
        e("v_and_b32 v53, 3, v1")
        e("v_bfe_u32 v10, v1, 3, 2")
        e("v_xor_b32 v10, v10, v53")
        e("v_lshlrev_b32 v10, 4, v10")
        e("v_lshl_add_u32 v10, v12, 6, v10")
        e("v_mul_u32_u24 v12, 57344, v12")
        e("v_lshl_add_u32 v53, v53, 4, v12")
        e("s_lshl_b32 s24, s43, 10")
        e(f"s_add_u32 s24, s24, {LDS_TB}")
        e("v_add_u32 v10, s24, v10")
        e("v_bfe_u32 v12, v2, 1, 2")
        e("v_xor_b32 v12, v12, v3")
        e("v_lshlrev_b32 v12, 4, v12")
        e("v_lshl_add_u32 v12, v2, 6, v12")
        e("v_add_u32 v8, s24, v12")
        e("s_mul_i32 s24, s22, 917504")
        e("s_mul_i32 s25, s21, 28672")
        e("s_add_u32 s24, s24, s25")
        e("s_lshl_b32 s25, s19, 7")
        e("s_add_u32 s24, s24, s25")
        e("s_mul_i32 s25, s20, 896")
        e("s_add_u32 s30, s24, s25")
        e("s_lshl_b32 s24, s16, 11")
        e(f"s_add_u32 s24, s24, {LDS_R}")
        e("v_add_u32 v52, s24, v11")
    def gemm2(hh):
        e(f"v_add_u32 v54, {LDS_Z + hh*4096}, v11")
        e("s_barrier")
        for j in range(4):
            e(f"ds_read_b128 {vr(X+4*j,4)}, v54 offset:{j*1024}")
        for n in range(2):
            e(f"s_waitcnt lgkmcnt({2-2*n})")
            e(f"v_mfma_f32_16x16x32_bf16 {vr(40+4*n,4)}, {vr(X+8*n,4)}, {vr(RF,4)}, 0")
            e(f"v_mfma_f32_16x16x32_bf16 {vr(40+4*n,4)}, {vr(X+8*n+4,4)}, {vr(RF+4,4)}, {vr(40+4*n,4)}")
        e("s_nop 4")
        e("v_cvt_pk_bf16_f32 v16, v40, v41")
        e("v_cvt_pk_bf16_f32 v17, v42, v43")
        e("s_nop 0")
        e("v_cvt_pk_bf16_f32 v18, v44, v45")
        e("v_cvt_pk_bf16_f32 v19, v46, v47")
        e("ds_write_b128 v8, v[16:19]")
        e("s_waitcnt lgkmcnt(0)")
        e("ds_read_b128 v[20:23], v10")
        e("s_waitcnt lgkmcnt(0)")
        e(f"buffer_store_dwordx4 v[20:23], v53, s[12:15], s30 offen offset:{64*hh} sc1")
        stamp(e, 7)
        e("v_lshlrev_b32 v226, 6, v1")
        e("s_waitcnt vmcnt(0)")
        stamp(e, 8)
        e("s_barrier")
        if hh:
            e("s_cmp_lg_u32 s43, 4")
            e("s_cbranch_scc1 L_ka_noflag")
            tagcheck(e, "a")
            e("s_lshl_b32 s24, s2, 6")
            e(f"s_add_u32 s24, s24, {WS_FL1}")
            e("s_mov_b64 exec, 1")
            e("buffer_store_dwordx2 v[224:225], off, s[12:15], s24 sc1")
            e("s_mov_b64 exec, -1")
            e("L_ka_noflag:")
        stamp_flush(e, 0, 12, 9, 43)
        e("s_branch L_kb_entry")

    MACC, AR, CS, MB = 16, 32, 44, 64
    FC, FP, FK = 64, 72, 80
    e("v_lshrrev_b32 v4, 2, v2")
    e("v_and_b32 v5, 3, v2")
    e("s_lshl_b32 s24, s19, 6")
    e("s_lshl_b32 s25, s21, 5")
    e("s_add_u32 s25, s24, s25")
    e("s_lshl_b32 s26, s22, 2")
    e("s_add_u32 s25, s25, s26")
    e("v_lshl_add_u32 v7, v4, 3, v5")
    e("v_add_u32 v7, s25, v7")
    e("v_lshrrev_b32 v8, 5, v7")
    e("v_and_b32 v9, 15, v7")
    e("v_lshl_add_u32 v8, v8, 4, v9")
    e("v_cmp_eq_u32 vcc, 0, v7")
    e("v_bfe_u32 v10, v7, 4, 1")
    e("v_mov_b32 v9, 224")
    e("v_cndmask_b32 v7, v8, v9, vcc")
    e("v_mul_u32_u24 v10, 0x3e80, v10")
    e("v_lshlrev_b32 v10, 16, v10")
    e("v_lshl_add_u32 v8, v3, 3, s24")
    e("v_mul_u32_u24 v8, v8, v7")
    e("v_cvt_f32_u32 v7, v7")
    e("v_cvt_f32_u32 v8, v8")
    e(f"s_mov_b32 s24, {fbits(1.0/448)}")
    e("v_mul_f32 v9, s24, v8")
    e("v_floor_f32 v9, v9")
    e(f"v_fmamk_f32 v8, v9, {fbits(-448.0)}, v8")
    e("v_mul_f32 v7, s24, v7")
    e("v_fma_f32 v8, v8, s24, v10")
    e("v_mul_f32 v9, 0x42000000, v7")
    e("v_cos_f32 v88, v9")
    for j in range(8):
        e(f"v_cos_f32 v{FC+j}, v8")
        e(f"v_sub_f32 v11, v8, v9")
        if j < 7:
            e(f"v_add_f32 v8, v8, v7")
        e(f"v_cos_f32 v{FP+j}, v11")
    e("v_add_f32 v88, v88, v88")
    e("v_lshl_add_u32 v91, v1, 4, s29")
    e("v_mov_b32 v89, v88")
    stamp(e, 1)
    e(".p2align 3")
    for st in range(14):
        A, B = (FC, FP) if st % 2 == 0 else (FP, FC)
        P = FK + 4*(st % 2)
        for j in range(4):
            e(f"v_cvt_pk_bf16_f32 v{P+j}, v{A+2*j}, v{A+2*j+1}")
        e(f"ds_write_b128 v91, {vr(P,4)} offset:{st*1024}")
        if st < 13:
            for j in range(4):
                e(f"v_pk_fma_f32 {vr(B+2*j,2)}, v[88:89], {vr(A+2*j,2)}, {vr(B+2*j,2)} neg_lo:[0,0,1] neg_hi:[0,0,1]")
    common_addr()
    e("s_lshl_b32 s24, s21, 10")
    e("s_lshl_b32 s25, s22, 3")
    e("s_add_u32 s24, s24, s25")
    e(f"s_add_u32 s24, s24, {LDS_Z}")
    e("v_add_u32 v55, s24, v11")
    e(f"v_lshlrev_b32 v12, 2, v2")
    e(f"v_add_u32 v12, {LDS_CS}, v12")
    e("s_lshl_b32 s25, s16, 7")
    e(f"s_add_u32 s25, s25, {LDS_ST}")
    e("v_lshl_add_u32 v13, v3, 4, s25")
    e("s_waitcnt lgkmcnt(0)")
    srd(e, 12, 6, WS_SIZE)
    srd(e, 56, 60, 256)
    stamp(e, 2)
    e("s_barrier")
    L = Lds(e)
    def rB(k, n):
        L.issue(("B", k), f"ds_read_b128 {vr(MB+32+((k+6)%8)*16+4*n,4)}, v11 offset:{(n*14+k)*1024}")
    def Breg(k, n): return vr(MB+32+((k+6)%8)*16+4*n, 4)
    PRE = OPT.get("pre", 4)
    for k in range(PRE):
        for n in range(4): rB(k, n)
    stamp(e, 3)
    e("s_barrier")
    stamp(e, 4)
    if DIAG: L.q = []
    def rA(k):
        L.issue(("A", k), f"ds_read_b128 {vr(AR+4*(k%3),4)}, v{14+(k&1)} offset:{(k>>1)*2048}")
    L.q = L.q[-13:]
    rA(0); rA(1)
    ST, U = 64, 72
    CK = OPT.get("ck", 11)
    sh = []
    for k in range(14):
        if k == 2: e("s_barrier")
        if k == 6:
            e("s_barrier")
            e("buffer_load_dwordx2 v[224:225], off, s[56:59], 0 sc1")
        if k == CK:
            e("s_barrier")
            L.issue("st", f"ds_read_b128 {vr(ST,4)}, v13")
            L.issue("st", f"ds_read_b128 {vr(ST+4,4)}, v13 offset:64")
        if k == CK + 1:
            L.need("st")
            for n in range(4):
                for r in range(4): sh.append(f"v_mul_f32 v{U+4*n+r}, v{ST+r}, v{CS+n}")
        L.need(("A", k))
        L.need(("B", k))
        for n in range(4):
            c = "0" if k == 0 else vr(MACC+4*n, 4)
            e(f"v_mfma_f32_16x16x32_bf16 {vr(MACC+4*n,4)}, {vr(AR+4*(k%3),4)}, {Breg(k,n)}, {c}")
            if n == 0 and k + 2 < 14: rA(k + 2)
            if k + PRE < 14: rB(k + PRE, n)
            elif k == 14 - PRE: L.issue("cs", f"ds_read_b32 v{CS+n}, v12 offset:{64*n}")
            elif k == 15 - PRE and n < 2: L.issue("R", f"ds_read_b128 {vr(RF+4*n,4)}, v52 offset:{1024*n}")
            for _ in range(3):
                if sh: e(sh.pop(0))
    if CK == 13:
        L.need("st")
        for n in range(4):
            for r in range(4): sh.append(f"v_mul_f32 v{U+4*n+r}, v{ST+r}, v{CS+n}")
    stamp(e, 5)
    nl = len(sh)
    while sh: e(sh.pop(0))
    if nl < 5: e(f"s_nop {4-nl}")
    for n in range(4):
        a = MACC + 4*n
        e(f"v_pk_fma_f32 {vr(a,2)}, {vr(a,2)}, {vr(ST+4,2)}, {vr(U+4*n,2)}")
        e(f"v_pk_fma_f32 {vr(a+2,2)}, {vr(a+2,2)}, {vr(ST+6,2)}, {vr(U+4*n+2,2)}")
        e(f"v_cvt_pk_bf16_f32 v{32+2*n}, v{a}, v{a+1}")
        e(f"v_cvt_pk_bf16_f32 v{33+2*n}, v{a+2}, v{a+3}")
        e(f"ds_write_b64 v55, {vr(32+2*n,2)} offset:{n*2048}")
    e("s_waitcnt lgkmcnt(0)")
    stamp(e, 6)
    gemm2(0)

    e("L_ka_help:")
    e("s_setprio 2")
    e("v_lshrrev_b32 v4, 3, v1")
    e("v_and_b32 v5, 7, v1")
    e("v_and_b32 v6, 6, v4")
    e("v_xor_b32 v5, v5, v6")
    e("v_lshrrev_b32 v6, 2, v4")
    e("v_and_b32 v4, 3, v4")
    e("v_lshl_add_u32 v6, v6, 3, v4")
    e("v_mul_u32_u24 v6, 28672, v6")
    e("v_lshl_add_u32 v6, v5, 4, v6")
    e(f"v_add_u32 v13, {16*28672}, v6")
    e("s_lshl_b32 s23, s21, 10")
    e("s_lshl_b32 s24, s22, 7")
    e("s_add_u32 s23, s23, s24")
    e("s_add_u32 s23, s23, s20")
    e("s_mul_i32 s23, s23, 896")
    e("s_lshl_b32 s31, s19, 7")
    e("s_add_u32 s32, s23, 896")
    e("s_add_u32 s31, s31, s23")
    e("s_waitcnt lgkmcnt(0)")
    stamp(e, 1)
    srd(e, 8, 4, XBYTES)
    XNT = " nt" if OPT.get("xnt", 1) else ""
    def xpair(c):
        e(f"s_add_u32 m0, s41, {c*2048}")
        e("s_add_u32 s33, s31, 128")
        e(f"buffer_load_dwordx4 v6, s[8:11], s31 offen{XNT} lds")
        e(f"s_add_u32 m0, s41, {c*2048+1024}")
        e("s_cmp_eq_u32 s33, s32")
        e(f"buffer_load_dwordx4 v13, s[8:11], s31 offen{XNT} lds")
        e("s_cselect_b32 s31, s23, s33")
    NF = OPT.get("nf", 4)
    for c in range(NF): xpair(c)
    e("s_setprio 0")
    srd(e, 12, 6, WS_SIZE)
    e("s_cmp_ge_u32 s2, 8")
    e("s_cselect_b32 s34, -1, 0")
    e("s_lshl_b32 s35, s2, 12")
    e(f"s_add_u32 s35, s35, {WS_KEY - 4096}")
    e("s_cmp_ge_u32 s2, 204")
    e("s_cselect_b32 s36, 0x7ff00000, 0")
    e("v_lshl_add_u32 v12, v0, 4, s36")
    for j in range(4):
        e(f"v_mov_b32 v{200+j}, s34")
    e("v_mov_b32 v217, v12")
    e("s_mov_b32 s56, s60")
    e("s_mov_b32 s57, s61")
    e("s_movk_i32 s58, 256")
    e("s_mov_b32 s59, 0x20000")
    e("s_or_b32 s24, s2, s16")
    e("s_cmp_lg_u32 s24, 0")
    e("s_cbranch_scc1 L_ka_notag")
    e("s_memrealtime s[24:25]")
    e("s_waitcnt lgkmcnt(0)")
    e("s_or_b32 s24, s24, 1")
    e("v_mov_b32 v44, s24")
    e("v_mov_b32 v45, s25")
    e("s_mov_b64 exec, 1")
    e("buffer_store_dwordx2 v[44:45], off, s[56:59], 0 sc1")
    e("s_mov_b64 exec, -1")
    e("L_ka_notag:")
    e("s_lshl_b32 s24, s22, 4")
    e("v_add_u32 v7, s24, v2")
    e("s_mul_i32 s25, s21, 0x3e800000")
    e("v_mov_b32 v10, s25")
    e("s_cmp_eq_u32 s16, 2")
    e("s_cselect_b32 s24, 0, -1")
    e("v_cmp_eq_u32 vcc, s24, v7")
    e("v_mov_b32 v12, 32")
    e("v_lshlrev_b32 v8, 3, v3")
    e("v_cndmask_b32 v7, v7, v12, vcc")
    e("v_cndmask_b32 v10, v10, 0, vcc")
    e("v_cvt_f32_u32 v7, v7")
    e("v_cvt_f32_u32 v8, v8")
    e(f"v_mul_f32 v7, {fbits(1.0/64)}, v7")
    e("v_fma_f32 v8, v8, v7, v10")
    e("v_mul_f32 v10, 0x42000000, v7")
    for j in range(8):
        e(f"v_cos_f32 v{CUR+j}, v8")
        e(f"v_add_f32 v12, v8, v10")
        if j < 7:
            e(f"v_add_f32 v8, v8, v7")
        e(f"v_cos_f32 v{PRV+j}, v12")
    common_addr()
    for j in range(4):
        e(f"v_cvt_pk_bf16_f32 v{RF+j}, v{CUR+2*j}, v{CUR+2*j+1}")
        e(f"v_cvt_pk_bf16_f32 v{RF+4+j}, v{PRV+2*j}, v{PRV+2*j+1}")
    e(f"ds_write_b128 v52, {vr(RF,4)}")
    e(f"ds_write_b128 v52, {vr(RF+4,4)} offset:1024")
    for j in range(4):
        e(f"v_mov_b32 v{48+j}, s28")
    e(f"s_mov_b32 s24, {fbits(1.0/448)}")
    e(f"s_mov_b32 s26, {fbits(1e-5)}")
    e(f"s_mov_b32 s27, 0xffff0000")
    stamp(e, 2)
    vq = [c for c in range(NF) for h in range(2)] + ["clr"]
    def vwait(c):
        last = max(i for i, t in enumerate(vq) if t == c)
        e(f"s_waitcnt vmcnt({len(vq)-1-last})")
        del vq[:last+1]
    e("s_bfe_u32 s17, s2, 0x10006")
    e("s_lshl_b32 s17, s17, 5")
    e("s_add_u32 s17, s17, s20")
    e("s_bfe_u32 s18, s2, 0x10005")
    e("s_lshl_b32 s18, s18, 10")
    e("s_add_u32 s18, s18, s17")
    e("s_lshl_b32 s17, s16, 8")
    e("s_add_u32 s18, s18, s17")
    e("s_mul_i32 s18, s18, 896")
    e("s_lshl_b32 s17, s16, 12")
    e(f"s_add_u32 s17, s17, {LDS_XR}")
    e("s_cmp_lt_u32 s2, 128")
    e("s_cselect_b32 s25, 56, 0")
    e("v_cmp_gt_u32 vcc, s25, v1")
    e("v_mov_b32 v218, 0x7ff00000")
    e("s_nop 0")
    e("v_cndmask_b32 v218, v218, v11, vcc")
    e("v_and_b32 v4, 3, v2")
    e("v_lshrrev_b32 v5, 2, v2")
    e("v_cmp_eq_u32 s[52:53], 1, v4")
    e("v_cmp_eq_u32 s[54:55], 2, v4")
    e("v_cmp_eq_u32 s[62:63], 3, v4")
    e("v_cmp_eq_u32 s[60:61], v5, v3")
    e("s_lshl_b32 s25, s16, 7")
    e(f"s_add_u32 s25, s25, {LDS_ST}")
    e("v_lshl_add_u32 v4, v2, 2, s25")
    e("v_add_u32 v5, s29, v11")
    e("s_lshl_b32 s25, s16, 6")
    e(f"s_add_u32 s25, s25, {LDS_CS}")
    e("v_lshl_add_u32 v7, v2, 2, s25")
    e("s_waitcnt lgkmcnt(0)")
    e(f"s_setprio {OPT.get('csp', 2)}")
    e("s_barrier")
    nx = [NF]
    def land(c):
        vwait(c)
        if nx[0] < 7:
            xpair(nx[0]); vq.extend([nx[0]]*2); nx[0] += 1
    def stat(k):
        c = "0" if k == 0 else vr(GRM, 4)
        e(f"v_mfma_f32_16x16x32_bf16 {vr(GRM,4)}, {vr(X+4*k,4)}, {vr(X+4*k,4)}, {c}")
        c = "0" if k == 0 else vr(SUM, 4)
        e(f"v_mfma_f32_16x16x32_bf16 {vr(SUM,4)}, {vr(X+4*k,4)}, v[48:51], {c}")
    def rdx(k0, k1):
        for k in range(k0, k1):
            e(f"ds_read_b128 {vr(X+4*k,4)}, v{14+(k&1)} offset:{(k>>1)*2048}")
    def stats(k0, k1, kend):
        for k in range(k0, k1):
            e(f"s_waitcnt lgkmcnt({kend-1-k})")
            stat(k)
    vq.remove("clr")
    for k in range(14):
        e(f"ds_read_b128 {vr(120+4*k,4)}, v5 offset:{k*1024}")
    for k in range(14):
        e(f"s_waitcnt lgkmcnt({13-k})")
        e(f"v_mfma_f32_16x16x32_bf16 v[40:43], v[48:51], {vr(120+4*k,4)}, {'0' if k == 0 else 'v[40:43]'}")
    e("s_setprio 2")
    land(0); land(1)
    e("ds_write_b32 v7, v40")
    rdx(0, 4)
    stamp(e, 3)
    e("s_barrier")
    stamp(e, 4)
    stats(0, 2, 4)
    land(2)
    stats(2, 4, 4)
    land(3)
    assert nx[0] == 7
    rdx(4, 8)
    e("s_barrier")
    e("buffer_load_dwordx2 v[224:225], off, s[56:59], 0 sc1")
    for j in range(4):
        e(f"s_add_u32 m0, s17, {j*1024}")
        e(f"s_add_u32 s33, s18, {j*64*896}")
        e(f"buffer_load_dwordx4 v218, s[8:11], s33 offen lds")
    e(f"s_mov_b32 m0, {LDS_XR + 16384}")
    srd(e, 8, 44, 896)
    e(f"buffer_load_dwordx4 v11, s[8:11], 0 offen lds")
    stats(4, 8, 8)
    e("s_waitcnt vmcnt(6)")
    rdx(8, 14)
    e("buffer_store_dwordx4 v[200:203], v217, s[12:15], s35 offen sc1")
    if OPT.get("sb", 0): stamp(e, 2)
    BE = OPT.get("be", 0)
    if BE: e("s_barrier")
    stats(8, 14, 14)
    if not BE: e("s_barrier")
    e("s_nop 6")
    e(f"v_cndmask_b32 v20, v{GRM}, v{GRM+1}, s[52:53]")
    e(f"v_cndmask_b32 v16, v{SUM}, v{SUM+1}, s[52:53]")
    e(f"v_cndmask_b32 v20, v20, v{GRM+2}, s[54:55]")
    e(f"v_cndmask_b32 v16, v16, v{SUM+2}, s[54:55]")
    e(f"v_cndmask_b32 v20, v20, v{GRM+3}, s[62:63]")
    e(f"v_cndmask_b32 v16, v16, v{SUM+3}, s[62:63]")
    e("v_mul_f32 v20, s24, v20")
    e("v_mul_f32 v16, s24, v16")
    e("v_fma_f32 v20, -v16, v16, v20")
    e("v_max_f32 v20, 0, v20")
    e("v_cvt_pk_bf16_f32 v20, v20, v20")
    e("v_and_b32 v20, s27, v20")
    e("v_add_f32 v20, s26, v20")
    e("v_cvt_pk_bf16_f32 v20, v20, v20")
    e("v_and_b32 v20, s27, v20")
    e("v_sqrt_f32 v20, v20")
    e("s_mov_b64 exec, s[60:61]")
    e("v_cvt_pk_bf16_f32 v20, v20, v20")
    e("v_and_b32 v20, s27, v20")
    e("v_rcp_f32 v20, v20")
    e("s_nop 0")
    e("v_mul_f32 v16, -v16, v20")
    e("ds_write2_b32 v4, v16, v20 offset0:0 offset1:16")
    e("s_mov_b64 exec, -1")
    e("s_waitcnt lgkmcnt(0)")
    stamp(e, 5)
    e("s_barrier")
    stamp(e, 6)
    gemm2(1)

    e("L_ka_spare:")
    e("s_sub_u32 s19, s2, 224")
    e("s_lshl_b32 s19, s19, 16")
    e("v_lshlrev_b32 v8, 7, v0")
    e("v_add_u32 v9, s19, v8")
    e(f"v_subrev_u32 v10, {WBYTES}, v9")
    e("s_waitcnt lgkmcnt(0)")
    srd(e, 24, 44, 896)
    e(f"buffer_load_dword v16, v8, s[24:27], 0 offen")
    srd(e, 28, 46, WBYTES)
    srd(e, 32, 48, WBYTES)
    e("s_waitcnt vmcnt(0)")
    for _ in range(OPT.get("spw", 1)):
        e(f"buffer_load_dword v16, off, s[28:31], s19")
        e("s_add_u32 s19, s19, 128")
        e("s_waitcnt vmcnt(0)")
    e(f"buffer_load_dword v11, v9, s[28:31], 0 offen")
    e(f"buffer_load_dword v13, v10, s[32:35], 0 offen")
    e("L_ka_end:")
    e("s_endpgm")
    kb(e)
    return dict(name=NAME + "_kernel", vgpr=232, accum=232, sgpr=64, grid=256, block=512, lds=LDS_XROW+17408)

def sync1(e, u, nl, soff, pre=False):
    e("s_waitcnt vmcnt(0)")
    tagcheck(e, u)
    e("s_mov_b32 s63, 0")
    e(f"s_mov_b64 exec, {(1 << nl) - 1:#x}" if nl < 32 else "s_mov_b32 exec_hi, 0")
    if pre: e(f"s_branch L_s1c{u}")
    e(f"L_s1{u}:")
    if u in "fg": e("s_sleep 4")
    e(f"buffer_load_dwordx2 v[228:229], v226, s[24:27], {soff} offen sc1")
    e("s_add_u32 s63, s63, 1")
    e("s_waitcnt vmcnt(0)")
    e(f"L_s1c{u}:")
    e("v_cmpx_ne_u64 s[60:61], v[228:229], v[224:225]")
    e(f"s_cbranch_execz L_s1d{u}")
    e("s_cmp_lt_u32 s63, 0x40000")
    e(f"s_cbranch_scc1 L_s1{u}")
    e(f"L_s1d{u}:")
    e("s_mov_b64 exec, -1")

def sync_all(e):
    tagcheck(e, "f")
    e("v_lshlrev_b32 v80, 6, v1")
    e("v_mov_b32 v81, 0x7ff00000")
    e("v_cmp_gt_u32 vcc, 32, v1")
    for j in range(4):
        e(f"s_mov_b32 s{56+j}, {WS_FL1 + 4096*j:#x}")
    e("v_cndmask_b32 v81, v81, v80, vcc")
    e("s_mov_b32 s63, 0")
    e("L_sa:")
    e(f"s_sleep {OPT.get('sasl', 4)}")
    for j in range(4):
        e(f"buffer_load_dwordx2 {vr(82+2*j,2)}, v{81 if j == 3 else 80}, s[24:27], s{56+j} offen sc1")
    e("s_add_u32 s63, s63, 1")
    e("s_waitcnt vmcnt(0)")
    e("v_cndmask_b32 v88, v224, v88, vcc")
    e("v_cndmask_b32 v89, v225, v89, vcc")
    for j in range(4):
        e(f"v_xor_b32 v{82+2*j}, v{82+2*j}, v224")
        e(f"v_xor_b32 v{83+2*j}, v{83+2*j}, v225")
    e("v_or3_b32 v82, v82, v83, v84")
    e("v_or3_b32 v85, v85, v86, v87")
    e("v_or3_b32 v82, v82, v88, v89")
    e("v_or_b32 v82, v82, v85")
    e("v_cmpx_ne_u32 s[60:61], 0, v82")
    e("s_cbranch_execz L_sad")
    e("s_cmp_lt_u32 s63, 0x40000")
    e("s_cbranch_scc1 L_sa")
    e("L_sad:")
    e("s_mov_b64 exec, -1")

def kb(e):
    e("L_kb_entry:")
    e("s_cmp_ge_u32 s2, 184")
    e("s_cbranch_scc1 L_kb_warm")
    stamp(e, 0)
    e("s_setprio 0")
    e("s_load_dwordx2 s[20:21], s[0:1], 96")
    e("s_load_dwordx2 s[4:5], s[0:1], 0")
    e("s_load_dwordx8 s[8:15], s[0:1], 48")
    e("s_load_dwordx4 s[16:19], s[0:1], 80")
    e("s_mov_b32 s28, s43")
    e("v_lshlrev_b32 v4, 4, v1")
    e("s_cmp_ge_u32 s2, 128")
    e("s_cbranch_scc1 L_kb_ffn")
    p2(e)
    e("L_kb_ffn:")
    ffn(e)
    e("s_endpgm")
    e("L_kb_warm:")
    e("s_load_dwordx4 s[4:7], s[0:1], 64")
    e("s_sub_u32 s19, s2, 184")
    e("s_lshl_b32 s19, s19, 16")
    e("v_lshlrev_b32 v8, 7, v0")
    e("v_add_u32 v9, s19, v8")
    e(f"v_add_u32 v9, {32*65536 - WBYTES}, v9")
    e(f"v_subrev_u32 v10, {WBYTES}, v9")
    e(f"v_add_u32 v12, {40*65536}, v10")
    e("s_waitcnt lgkmcnt(0)")
    srd(e, 8, 4, WBYTES)
    srd(e, 12, 6, WBYTES)
    e(f"buffer_load_dword v11, v9, s[8:11], 0 offen")
    e(f"buffer_load_dword v13, v10, s[12:15], 0 offen")
    e(f"buffer_load_dword v14, v12, s[12:15], 0 offen")
    e("L_kb_end:")
    e("s_endpgm")

def p2(e):
    YB, RS, KBUF = 57344, 1808, 57344 + 16*1808
    C, S, F1, F3 = 16, 20, 24, 28
    A, ACC = 64, 32
    XR, WR = 48, 56
    H, T = 96, 104
    Y = 16
    e("s_and_b32 s29, s2, 31")
    e("s_bfe_u32 s30, s2, 0x10005")
    e("s_lshr_b32 s31, s2, 6")
    e("s_lshl_b32 s32, s31, 5")
    e("s_add_u32 s32, s32, s29")
    e("s_sub_u32 s33, 32, s29")
    e("s_and_b32 s33, s33, 31")
    e("s_cmp_eq_u32 s31, 0")
    e("s_cselect_b32 s29, s29, s33")
    e("s_lshl_b32 s33, s30, 10")
    e("s_add_u32 s33, s33, s32")
    e("s_lshl_b32 s34, s28, 7")
    e("s_add_u32 s34, s34, s33")
    e("s_mul_i32 s35, s34, 896")
    e("v_and_b32 v5, 31, v1")
    e("v_lshrrev_b32 v6, 5, v1")
    e("v_cmp_gt_u32 s[40:41], 28, v5")
    e("v_lshlrev_b32 v9, 4, v5")
    e("v_mov_b32 v10, 0x7ff00000")
    e("v_mul_u32_u24 v11, 57344, v6")
    e("v_cndmask_b32 v10, v10, v9, s[40:41]")
    e("v_add_u32 v10, v10, v11")
    e(f"v_add_u32 v125, {LDS_XROW + 16384}, v9")
    e("s_lshl_b32 s38, s28, 11")
    e(f"s_add_u32 s38, s38, {LDS_XROW}")
    e("v_lshl_add_u32 v11, v6, 10, s38")
    e("v_add_u32 v11, v11, v9")
    e("v_mov_b32 v127, v11")
    e("s_waitcnt lgkmcnt(0)")
    srd(e, 44, 16, XBYTES)
    srd(e, 24, 20, WS_SIZE)
    e(f"s_mul_i32 s38, s28, {2*RS}")
    e(f"s_add_u32 s38, s38, {YB}")
    e(f"v_mul_u32_u24 v7, {RS}, v6")
    e("v_lshl_add_u32 v7, v5, 5, v7")
    e("v_add_u32 v7, s38, v7")
    e("s_mov_b32 s43, 0xffff0000")
    e("s_mov_b32 s52, 0x3f803f80")
    e("v_lshl_add_u32 v11, v6, 6, s34")
    e("v_sub_u32 v121, 0xfff, v11")
    e("s_lshl_b32 s38, s28, 3")
    e(f"s_add_u32 s38, s38, {KBUF}")
    e("v_lshl_add_u32 v120, v6, 2, s38")
    e(f"s_mov_b32 s38, {fbits(1.0/448)}")
    e("s_lshl_b32 s53, s2, 7")
    e(f"s_add_u32 s53, s53, {WS_KEY}")
    for r in (122, 123):
        e(f"v_mov_b32 v{r}, 0")
    e("s_cmp_eq_u32 s28, 7")
    e("s_cbranch_scc1 L_p2_w7")
    e("s_mul_i32 s36, s29, 57344")
    e("s_lshl_b32 s37, s28, 7")
    e("s_add_u32 s36, s36, s37")
    e("s_lshl_b32 s37, s28, 13")
    e("v_lshl_add_u32 v9, v2, 6, s33")
    e("v_cvt_f32_u32 v9, v9")
    e(f"v_mul_f32 v9, {fbits(1.0/2048)}, v9")
    e("v_lshlrev_b32 v8, 3, v3")
    e("v_cvt_f32_u32 v8, v8")
    e("v_mul_f32 v8, v8, v9")
    for j in range(8):
        e(f"v_cos_f32 v{A+j}, v8")
        e(f"v_sin_f32 v{A+8+j}, v8")
        if j < 7:
            e("v_add_f32 v8, v8, v9")
    e("v_lshrrev_b32 v4, 2, v1")
    e("v_mul_u32_u24 v4, 896, v4")
    e("v_lshlrev_b32 v8, 1, v6")
    e("v_and_b32 v9, 3, v1")
    e("v_xor_b32 v8, v8, v9")
    e("v_lshl_add_u32 v4, v8, 4, v4")
    for j in range(4):
        e(f"v_cvt_pk_bf16_f32 v{C+j}, v{A+2*j}, v{A+2*j+1}")
        e(f"v_cvt_pk_bf16_f32 v{S+j}, v{A+8+2*j}, v{A+8+2*j+1}")
    e("s_cmp_gt_u32 s32, 32")
    e("s_cselect_b32 s39, 0x80008000, 0")
    e("s_xor_b32 s42, s39, 0x80008000")
    for j in range(4):
        e(f"v_xor_b32 v{F1+j}, s39, v{S+j}")
        e(f"v_xor_b32 v{F3+j}, s42, v{C+j}")
    e("s_cmp_lg_u32 s29, 0")
    e("s_cbranch_scc1 L_p2_nospecial")
    e("s_cmp_eq_u32 s32, 0")
    e("s_cbranch_scc1 L_p2_t0")
    for j in range(4):
        e(f"v_mov_b32 v{F1+j}, v{C+j}")
        e(f"v_mov_b32 v{F3+j}, v{S+j}")
        e(f"v_mov_b32 v{C+j}, 0")
        e(f"v_mov_b32 v{S+j}, 0")
    e("s_branch L_p2_nospecial")
    e("L_p2_t0:")
    for j in range(4):
        e(f"v_mov_b32 v{F1+j}, 0")
        e(f"v_mov_b32 v{F3+j}, 0")
    e("L_p2_nospecial:")
    e("v_and_b32 v13, 1, v3")
    e("v_lshrrev_b32 v12, 2, v2")
    e("v_lshl_add_u32 v12, v13, 3, v12")
    e("v_lshlrev_b32 v12, 6, v12")
    e("v_lshrrev_b32 v14, 1, v3")
    e("v_lshl_add_u32 v12, v14, 10, v12")
    e("v_bfe_u32 v14, v2, 1, 1")
    e("v_lshl_add_u32 v14, v13, 1, v14")
    e("v_lshl_add_u32 v12, v14, 4, v12")
    e("v_and_b32 v14, 1, v2")
    e("v_lshl_add_u32 v12, v14, 3, v12")
    e("v_add_u32 v12, s37, v12")
    e("v_xor_b32 v126, 32, v12")
    e("s_lshl_b32 s42, s28, 7")
    e("v_lshl_add_u32 v13, v3, 4, s42")
    e("v_cmp_eq_u32 vcc, 0, v13")
    e(f"v_mul_u32_u24 v14, {RS}, v2")
    e(f"v_add_u32 v14, {YB}, v14")
    e("v_sub_u32 v15, v14, v13")
    e(f"v_add_u32 v15, {(448-19)*4}, v15")
    e("v_add_u32 v13, v13, v14")
    e(f"v_add_u32 v9, {19*4}, v15")
    e(f"v_add_u32 v8, {224*4}, v14")
    e("v_cndmask_b32 v14, v9, v8, vcc")
    def rowprep():
        e(f"ds_read_b128 {vr(WR,4)}, v125")
        e(f"ds_read_b128 {vr(WR+4,4)}, v125 offset:448")
        e(f"ds_read_b128 {vr(XR,4)}, v127")
        e(f"ds_read_b128 {vr(XR+4,4)}, v127 offset:448")
        e("v_mov_b32 v8, 0")
        e("v_mov_b32 v9, 0")
        e("s_waitcnt lgkmcnt(0)")
        e("s_mov_b64 exec, s[40:41]")
        for j in range(8):
            e(f"v_dot2c_f32_bf16 v123, s52, v{WR+j}")
        e("s_mov_b64 exec, -1")
        un = []
        for j in range(8):
            un.append(f"v_lshlrev_b32 v{T+2*j}, 16, v{XR+j}")
            un.append(f"v_and_b32 v{T+2*j+1}, s43, v{XR+j}")
        for _ in range(3): e(un.pop(0))
        for ror in (8, 4, 2, 1):
            e(f"v_add_f32_dpp v123, v123, v123 row_ror:{ror} row_mask:0xf bank_mask:0xf")
            e(un.pop(0)); e(un.pop(0))
        e("v_mov_b32 v124, v123")
        e(un.pop(0)); e(un.pop(0))
        e("v_permlane16_swap_b32 v123, v124")
        while un: e(un.pop(0))
        e("v_add_f32 v123, v123, v124")
    e("s_branch L_p2_s1")
    e("L_p2_w7:")
    rowprep()
    e("s_branch L_p2_join")
    e("L_p2_s1:")
    e("s_lshl_b32 s54, s28, 11")
    e(f"s_add_u32 s54, s54, {WS_FL1}")
    stamp(e, 1)
    sync1(e, "p", 32, "s54")
    e("s_lshl_b32 s54, s28, 7")
    e("v_lshl_add_u32 v80, v3, 4, s54")
    e("v_cmp_eq_u32 s[62:63], 0, v80")
    stamp(e, 2)
    for mm in range(2):
        for hf in range(2):
            for rb in range(2):
                e(f"s_add_u32 m0, s37, {((mm*2+hf)*2+rb)*1024}")
                e(f"s_add_u32 s54, s36, {hf*28672 + rb*14336 + mm*64}")
                e(f"buffer_load_dwordx4 v4, s[24:27], s54 offen sc1 lds")
    rowprep()
    for mm in range(2):
        e(f"s_waitcnt vmcnt({4-4*mm})")
        if mm == 1: stamp(e, 3)
        order = [(0, 0, C), (0, 1, F1), (1, 0, S), (1, 1, F3)]
        for i, (kd, hf, fr) in enumerate(order):
            for io in range(2):
                e(f"ds_read_b64_tr_b16 {vr(A+(mm*4+i)*4+2*io,2)}, v{126 if kd else 12} offset:{(mm*2+hf)*2048+io*256}")
        for i, (kd, hf, fr) in enumerate(order):
            e(f"s_waitcnt lgkmcnt({6-2*i})")
            acc = ACC + 8*mm + 4*kd
            c = "0" if hf == 0 else vr(acc, 4)
            e(f"v_mfma_f32_16x16x32_bf16 {vr(acc,4)}, {vr(A+(mm*4+i)*4,4)}, {vr(fr,4)}, {c}")
        E_, O_ = ACC + 8*mm, ACC + 8*mm + 4
        D_ = 128 + 8*mm
        e("s_nop 7")
        for r in range(4):
            e(f"v_add_f32 v{D_+r}, v{E_+r}, v{O_+r}")
        for r in range(4):
            e(f"v_sub_f32 v{D_+4+r}, v{E_+r}, v{O_+r}")
        if mm == 0:
            e(f"v_cndmask_b32 v{D_}, v{D_}, 0, s[62:63]")
        e(f"ds_write_b128 v13, {vr(D_,4)} offset:{64*mm}")
        o = 16*(1-mm)
        if mm == 0:
            e(f"ds_write_b32 v14, v{D_+4}")
            e(f"ds_write_b32 v15, v{D_+5} offset:{(o+2)*4}")
        else:
            e(f"ds_write2_b32 v15, v{D_+4}, v{D_+5} offset0:{o+3} offset1:{o+2}")
        e(f"ds_write2_b32 v15, v{D_+6}, v{D_+7} offset0:{o+1} offset1:{o}")
    e("L_p2_got:")
    if OPT.get("fl2", 0):
        e("s_lshl_b32 s54, s28, 3")
        e("s_or_b32 s54, s54, s2")
        e("s_cmp_ge_u32 s54, 8")
        e("s_cbranch_scc1 L_p2_nofl2")
        e("s_lshl_b32 s54, s54, 6")
        e(f"s_add_u32 s54, s54, {WS_FL1 + 0x4000}")
        e("s_mov_b64 exec, 1")
        e("buffer_store_dwordx2 v[224:225], off, s[24:27], s54 sc1")
        e("s_mov_b64 exec, -1")
        e("L_p2_nofl2:")
    e("s_waitcnt lgkmcnt(0)")
    e("L_p2_join:")
    stamp(e, 4)
    e("s_barrier")
    e("s_mov_b64 exec, s[40:41]")
    e(f"ds_read_b128 {vr(Y,4)}, v7")
    e(f"ds_read_b128 {vr(Y+4,4)}, v7 offset:16")
    e(f"ds_read_b128 {vr(Y+8,4)}, v7 offset:896")
    e(f"ds_read_b128 {vr(Y+12,4)}, v7 offset:912")
    for j in range(8):
        if j % 2 == 0:
            e(f"s_waitcnt lgkmcnt({3-j//2})")
        e(f"v_pk_add_f32 {vr(T+2*j,2)}, {vr(Y+2*j,2)}, {vr(T+2*j,2)}")
        if j % 2 == 1:
            e(f"v_cvt_pk_bf16_f32 v{H+j-1}, v{T+2*j-2}, v{T+2*j-1}")
            e(f"v_cvt_pk_bf16_f32 v{H+j}, v{T+2*j}, v{T+2*j+1}")
    for j in range(8):
        e(f"v_dot2c_f32_bf16 v8, s52, v{H+j}")
        e(f"v_dot2c_f32_bf16 v9, v{H+j}, v{H+j}")
        e(f"v_dot2c_f32_bf16 v122, v{H+j}, v{WR+j}")
    e("s_mov_b64 exec, -1")
    for ror in (8, 4, 2, 1):
        for r in (8, 9, 122):
            e(f"v_add_f32_dpp v{r}, v{r}, v{r} row_ror:{ror} row_mask:0xf bank_mask:0xf")
    e("v_mov_b32 v13, v8")
    e("v_mov_b32 v14, v9")
    e("v_mov_b32 v15, v122")
    e("v_permlane16_swap_b32 v8, v13")
    e("v_permlane16_swap_b32 v9, v14")
    e("v_permlane16_swap_b32 v122, v15")
    e("v_add_f32 v8, v8, v13")
    e("v_add_f32 v9, v9, v14")
    e("v_add_f32 v12, v122, v15")
    e("v_mul_f32 v8, s38, v8")
    e("v_mul_f32 v9, s38, v9")
    e("v_fma_f32 v9, -v8, v8, v9")
    e("v_max_f32 v9, 0, v9")
    e("v_cvt_pk_bf16_f32 v8, v9, v8")
    e("v_lshlrev_b32 v9, 16, v8")
    e(f"v_add_f32 v9, {fbits(1e-5)}, v9")
    e("v_cvt_pk_bf16_f32 v9, v9, v9")
    e("v_and_b32 v9, s43, v9")
    e("v_sqrt_f32 v9, v9")
    e("v_and_b32 v8, s43, v8")
    e("v_cvt_pk_bf16_f32 v13, v9, v8")
    e("v_lshlrev_b32 v9, 16, v13")
    e("v_rcp_f32 v9, v9")
    e("v_fma_f32 v12, -v8, v123, v12")
    e("v_mul_f32 v12, v12, v9")
    e("v_add_f32 v4, 1.0, v9")
    e("v_cvt_pk_bf16_f32 v12, v12, v12")
    e("v_mul_f32 v14, -v8, v9")
    e("v_ashrrev_i32 v6, 31, v12")
    e("v_mov_b32 v5, v4")
    e("v_or_b32 v6, 0x80000000, v6")
    e("v_mov_b32 v15, v14")
    e("v_xor_b32 v12, v12, v6")
    e("v_and_or_b32 v12, v12, s43, v121")
    e("ds_write2_b32 v120, v12, v13 offset0:0 offset1:16")
    def outs(lo, hi):
        for j in range(lo, hi):
            e(f"v_pk_fma_f32 {vr(T+2*j,2)}, {vr(T+2*j,2)}, v[4:5], v[14:15]")
            if j % 2 == 1:
                e(f"v_cvt_pk_bf16_f32 v{XR+j-1}, v{T+2*j-2}, v{T+2*j-1}")
                e(f"v_cvt_pk_bf16_f32 v{XR+j}, v{T+2*j}, v{T+2*j+1}")
    e("v_lshlrev_b32 v6, 2, v1")
    e(f"v_add_u32 v7, {KBUF}, v6")
    e("s_waitcnt lgkmcnt(0)")
    stamp(e, 5)
    e("s_barrier")
    e("s_cmp_lg_u32 s28, 0")
    e("s_cbranch_scc1 L_p2_nokey")
    e("ds_read_b32 v12, v7")
    e("s_mov_b32 exec_hi, 0")
    e("s_waitcnt lgkmcnt(0)")
    e("buffer_store_dword v12, v6, s[24:27], s53 offen sc1")
    e("s_mov_b64 exec, -1")
    e("L_p2_nokey:")
    outs(0, 8)
    e(f"buffer_store_dwordx4 {vr(XR,4)}, v10, s[44:47], s35 offen sc1")
    e(f"buffer_store_dwordx4 {vr(XR+4,4)}, v10, s[44:47], s35 offen offset:448 sc1")
    e("s_waitcnt vmcnt(0)")
    stamp(e, 6)
    e("s_barrier")
    e("s_cmp_lg_u32 s28, 0")
    e("s_cbranch_scc1 L_p2_end")
    e("s_mov_b64 exec, 1")
    e("v_mov_b32 v12, 1")
    e(f"s_add_u32 s53, s53, {WS_FLAG - WS_KEY}")
    e(f"buffer_store_dword v12, off, s[24:27], s53 sc1")
    e("L_p2_end:")
    stamp_flush(e, 1, 24, 7, 28)
    e("s_endpgm")

def ffn(e):
    XS, ONES, ACT, MISC, GB = 0, 7168, 14336, 15360, 16384
    DB = GB + 57344
    A, AD_, ACC = 64, 36, 32
    K = 64
    e("s_sub_u32 s29, s2, 128")
    e("s_and_b32 s37, s29, 7")
    e("s_lshr_b32 s38, s29, 3")
    e("s_mul_i32 s39, s37, 7")
    e("s_add_u32 s39, s39, s38")
    e("s_cmp_eq_u32 s28, 7")
    e("s_cbranch_scc1 L_f_poll")
    e("s_cmp_lt_u32 s28, 4")
    e("s_cbranch_scc1 L_f_comp")
    e("v_lshrrev_b32 v5, 2, v1")
    e("v_and_b32 v6, 3, v1")
    e("v_lshrrev_b32 v7, 4, v1")
    e("v_and_b32 v7, 2, v7")
    e("v_xor_b32 v6, v6, v7")
    e("s_cmp_eq_u32 s28, 5")
    e("s_cselect_b32 s40, 1, 0")
    e("v_xor_b32 v6, s40, v6")
    e("s_cmp_eq_u32 s28, 6")
    e("s_movk_i32 s41, 896")
    e("s_cselect_b32 s41, s41, 3584")
    e("s_cselect_b32 s42, 64, 114688")
    e("s_cselect_b32 s43, 28672, 64")
    e("v_mul_u32_u24 v5, s41, v5")
    e("v_lshl_add_u32 v5, v6, 4, v5")
    e("s_lshl_b32 s44, s41, 4")
    e("v_add_u32 v6, s44, v5")
    e("s_mul_i32 s43, s43, s39")
    e("s_sub_u32 s44, s28, 4")
    e("s_mul_i32 s44, s44, 28672")
    e(f"s_add_u32 s44, s44, {GB}")
    e("s_waitcnt lgkmcnt(0)")
    stamp(e, 1)
    e("s_cmp_eq_u32 s28, 5")
    e("s_cselect_b32 s48, s12, s10")
    e("s_cselect_b32 s49, s13, s11")
    e("s_cmp_eq_u32 s28, 6")
    e("s_cselect_b32 s48, s14, s48")
    e("s_cselect_b32 s49, s15, s49")
    e(f"s_mov_b32 s50, {WBYTES:#x}")
    e("s_mov_b32 s51, 0x20000")
    e("s_add_u32 s45, s44, 28672")
    e("s_barrier")
    if OPT.get("seq", 1):
        e(f"v_mov_b32 v8, {MISC}")
        e("s_sub_u32 s46, s28, 4")
        e("L_f_turn:")
        e("ds_read_b32 v9, v8")
        e("s_waitcnt lgkmcnt(0)")
        e("v_cmp_le_u32 vcc, s46, v9")
        e("s_cbranch_vccnz L_f_dma")
        e("s_sleep 2")
        e("s_branch L_f_turn")
    e("L_f_dma:")
    e("s_mov_b32 m0, s44")
    e("s_add_u32 s44, s44, 2048")
    e("buffer_load_dwordx4 v5, s[48:51], s43 offen lds")
    e("s_add_u32 m0, m0, 1024")
    e("s_nop 0")
    e("buffer_load_dwordx4 v6, s[48:51], s43 offen lds")
    e("s_add_u32 s43, s43, s42")
    e("s_cmp_lt_u32 s44, s45")
    e("s_cbranch_scc1 L_f_dma")
    stamp(e, 2)
    e(f"v_mov_b32 v5, {MISC}")
    e("v_mov_b32 v6, 1")
    e("s_mov_b64 exec, 1")
    e("s_waitcnt vmcnt(0)")
    e("ds_add_u32 v5, v6")
    e("s_waitcnt lgkmcnt(0)")
    if DIAG:
        srd(e, 24, 20, WS_SIZE)
        stamp_flush(e, 1, 24, 3, 28)
    e("s_endpgm")

    e("L_f_comp:")
    e("v_mov_b32 v8, 0x3f803f80")
    e("v_mov_b32 v9, v8")
    e("v_mov_b32 v10, v8")
    e("v_mov_b32 v11, v8")
    e("v_lshlrev_b32 v5, 4, v0")
    e(f"ds_write_b128 v5, v[8:11] offset:{ONES}")
    e(f"ds_write_b128 v5, v[8:11] offset:{ONES+3072}")
    e("v_mov_b32 v6, 0")
    e(f"v_mov_b32 v7, {MISC}")
    e("ds_write_b32 v7, v6")
    e("s_waitcnt lgkmcnt(0)")
    stamp(e, 1)
    e("s_barrier")
    srd(e, 24, 20, WS_SIZE)
    e("v_lshrrev_b32 v8, 2, v2")
    e("v_bfe_u32 v9, v2, 1, 1")
    e("v_and_b32 v10, 1, v3")
    e("v_and_b32 v13, 1, v2")
    e("v_lshlrev_b32 v13, 3, v13")
    e("v_lshl_add_u32 v11, v10, 1, v9")
    e("v_xor_b32 v11, s28, v11")
    e("v_lshl_add_u32 v14, v3, 3, v8")
    e("v_lshl_add_u32 v14, v14, 6, v13")
    e("v_lshl_add_u32 v14, v11, 4, v14")
    e("v_mul_u32_u24 v11, 28672, v9")
    e(f"s_movk_i32 s42, {GB}")
    e("v_add3_u32 v14, v14, v11, s42")
    e("v_lshl_add_u32 v8, v10, 3, v8")
    e("v_lshl_add_u32 v15, v8, 6, v13")
    e("s_and_b32 s42, s28, 1")
    e("v_xor_b32 v10, s42, v10")
    e("v_lshl_add_u32 v10, v10, 1, v9")
    e("v_lshl_add_u32 v15, v10, 4, v15")
    e("v_lshrrev_b32 v10, 1, v3")
    e("v_lshl_add_u32 v15, v10, 10, v15")
    e("s_lshr_b32 s42, s28, 1")
    e("s_lshl_b32 s42, s42, 11")
    e(f"s_add_u32 s42, s42, {DB}")
    e("v_add_u32 v15, s42, v15")
    e("v_and_b32 v8, 7, v2")
    e("v_and_b32 v9, 6, v2")
    e("v_xor_b32 v9, v9, v3")
    e("v_lshlrev_b32 v8, 7, v8")
    e("v_lshl_add_u32 v12, v9, 4, v8")
    e("v_cmp_gt_u32 vcc, 8, v2")
    e(f"v_mov_b32 v8, {ONES}")
    e("v_lshlrev_b32 v6, 4, v2")
    e("v_cndmask_b32 v12, v8, v12, vcc")
    e("v_xor_b32 v13, 64, v12")
    e("v_lshl_add_u32 v6, v3, 7, v6")
    e("v_mov_b32 v8, 0x7ff00000")
    e("v_cndmask_b32 v6, v8, v6, vcc")
    e("s_lshl_b32 s42, s28, 8")
    e(f"s_add_u32 s42, s42, {ACT}")
    e("v_lshl_add_u32 v5, v2, 4, s42")
    e("v_lshl_add_u32 v5, v3, 3, v5")
    e("s_mul_i32 s44, s39, 14336")
    e("s_lshl_b32 s42, s28, 9")
    e("s_add_u32 s44, s44, s42")
    e(f"s_add_u32 s44, s44, {WS_PART}")
    for j in range(1, 4):
        e(f"s_add_u32 s{44+j}, s44, {4096*j}")
    e(f"s_mov_b32 s42, {fbits(-1.4426950408889634)}")
    e("v_and_b32 v11, 7, v2")
    e("v_lshlrev_b32 v11, 2, v11")
    e("L_f_wait:")
    e("s_sleep 2")
    e("ds_read_b32 v8, v7")
    e("s_waitcnt lgkmcnt(0)")
    e("v_cmp_ne_u32 vcc, 3, v8")
    e("s_cbranch_vccnz L_f_wait")
    stamp(e, 2)
    for k in range(14):
        for io in range(2):
            e(f"ds_read_b64_tr_b16 {vr(A+4*k+2*io,2)}, v14 offset:{k*2048+io*256}")
    for i in range(7):
        for io in range(2):
            e(f"ds_read_b64_tr_b16 {vr(AD_+4*i+2*io,2)}, v15 offset:{i*4096+io*256}")
    e("s_waitcnt lgkmcnt(0)")
    stamp(e, 3)
    e("s_barrier")
    stamp(e, 4)
    BR = [16, 20, 24, 28, 120, 124]
    def rdx(k):
        e(f"ds_read_b128 {vr(BR[k%6],4)}, v{12 + (k&1)} offset:{XS + (k>>1)*1024}")
    for k in range(5): rdx(k)
    e(f"ds_read_b32 v10, v11 offset:{MISC+64}")
    for k in range(14):
        if k + 5 < 14:
            rdx(k + 5)
        n_after = min(k + 5, 13) - k + (1 if k < 5 else 0)
        e(f"s_waitcnt lgkmcnt({n_after})")
        c = "0" if k == 0 else vr(ACC, 4)
        e(f"v_mfma_f32_16x16x32_bf16 {vr(ACC,4)}, {vr(A+4*k,4)}, {vr(BR[k%6],4)}, {c}")
        if k == 6:
            e("v_lshlrev_b32 v9, 16, v10")
            e("v_add_f32 v9, 1.0, v9")
        if k == 8:
            e("v_and_b32 v10, 0xffff0000, v10")
            e("v_rcp_f32 v9, v9")
    e("s_nop 7")
    for r in range(4):
        e(f"v_mov_b32_dpp v{16+r}, v{ACC+r} row_newbcast:8 row_mask:0xf bank_mask:0xf")
    for r in range(4):
        e(f"v_fma_f32 v{ACC+r}, -v10, v{16+r}, v{ACC+r}")
    for r in range(4):
        e(f"v_mul_f32 v{ACC+r}, v{ACC+r}, v9")
    e("s_nop 0")
    for r in range(4):
        e(f"v_permlane32_swap_b32 v{ACC+r}, v{20+r}")
    for r in range(4):
        e(f"v_mul_f32 v{16+r}, s42, v{ACC+r}")
    for r in range(4):
        e(f"v_exp_f32 v{16+r}, v{16+r}")
    for r in range(4):
        e(f"v_mul_f32 v{ACC+r}, v{ACC+r}, v{20+r}")
    for r in range(4):
        e(f"v_add_f32 v{16+r}, 1.0, v{16+r}")
    for r in range(4):
        e(f"v_rcp_f32 v{16+r}, v{16+r}")
    e("s_mov_b32 exec_hi, 0")
    for r in range(4):
        e(f"v_mul_f32 v{ACC+r}, v{ACC+r}, v{16+r}")
    e(f"v_cvt_pk_bf16_f32 v16, v{ACC}, v{ACC+1}")
    e(f"v_cvt_pk_bf16_f32 v17, v{ACC+2}, v{ACC+3}")
    e("ds_write_b64 v5, v[16:17]")
    e("s_mov_b32 exec_hi, -1")
    e("s_waitcnt lgkmcnt(0)")
    stamp(e, 5)
    e("s_barrier")
    e(f"ds_read_b128 v[16:19], v4 offset:{ACT}")
    e("s_waitcnt lgkmcnt(0)")
    for i in range(7):
        e(f"v_mfma_f32_16x16x32_bf16 {vr(A+4*i,4)}, {vr(AD_+4*i,4)}, v[16:19], 0")
    e("s_nop 1")
    for i in range(7):
        e(f"buffer_store_dwordx4 {vr(A+4*i,4)}, v6, s[24:27], s{44+(i>>1)} offen offset:{2048*(i&1)} sc1")
    stamp(e, 6)
    B4 = OPT.get("b4", 0)
    if B4 >= 0:
        e(f"s_waitcnt vmcnt({B4})")
        e("s_barrier")
    stamp_flush(e, 1, 24, 7, 28)
    e("s_endpgm")

    e("L_f_poll:")
    PFL = ["sc1", "sc0 sc1"][OPT.get("pfl", 0)]
    e("s_setprio 3")
    e("v_lshrrev_b32 v4, 2, v1")
    e("v_lshlrev_b32 v4, 7, v4")
    e("v_and_b32 v5, 3, v1")
    e("v_lshl_add_u32 v4, v5, 4, v4")
    e("s_mov_b32 s46, 0")
    e("s_mov_b32 s47, 0")
    e("v_lshrrev_b32 v5, 3, v1")
    e("v_and_b32 v6, 7, v1")
    e("v_lshlrev_b32 v13, 2, v6")
    e("v_and_b32 v7, 6, v5")
    e("v_xor_b32 v6, v6, v7")
    e("v_lshlrev_b32 v6, 4, v6")
    e("v_lshlrev_b32 v5, 2, v5")
    e("v_bfe_u32 v14, v1, 3, 1")
    e("s_lshl_b32 s42, s39, 4")
    e("v_lshl_add_u32 v14, v14, 3, s42")
    e("v_mul_u32_u24 v24, 14336, v3")
    e("v_lshl_add_u32 v24, v2, 4, v24")
    e("v_add_u32 v25, 57344, v24")
    e("v_add_u32 v26, 57344, v25")
    e("v_add_u32 v27, 57344, v26")
    e("s_lshl_b32 s52, s39, 8")
    e(f"s_add_u32 s52, s52, {WS_PART}")
    for j in range(1, 4):
        e(f"s_add_u32 s{52+j}, s52, {4*57344*j}")
    e("v_mov_b32 v8, 0")
    e("v_mov_b32 v9, 0")
    e("v_mov_b32 v10, 0")
    e("v_lshlrev_b32 v7, 12, v1")
    e("v_lshlrev_b32 v19, 7, v1")
    e("v_lshlrev_b32 v30, 2, v1")
    e("s_movk_i32 s44, 896")
    e("s_mov_b32 s45, 0xffff0000")
    e("s_waitcnt lgkmcnt(0)")
    stamp(e, 1)
    srd(e, 24, 20, WS_SIZE)
    srd(e, 48, 16, XBYTES)
    if not OPT.get("b0late", 1): e("s_barrier")
    if OPT.get("sall", 0):
        sync_all(e)
    else:
        e(f"s_mov_b32 s62, {WS_FL1:#x}")
        sync1(e, "f", 8, "s62")
        if OPT.get("fl2", 0):
            e("s_lshl_b32 s62, s37, 6")
            e(f"s_add_u32 s62, s62, {WS_FL1 + 0x4000}")
            sync1(e, "g", 1, "s62")
    if OPT.get("b0late", 1): e("s_barrier")
    for j in range(4):
        e(f"s_mov_b32 s{58+j}, {WS_KEY+4096*j:#x}")
    e(f"s_mov_b32 s56, {WS_FLAG:#x}")
    e(f"s_mov_b32 s57, {WS_FLAG+8192:#x}")
    e("s_mov_b64 exec, 0xf")
    e("L_f_p0:")
    e("s_sleep 2")
    e("buffer_load_dword v11, v7, s[24:27], s58 offen offset:3968 " + PFL)
    e("s_add_u32 s47, s47, 1")
    e("s_waitcnt vmcnt(0)")
    e("v_cmp_ne_u32 vcc, 0, v11")
    e("s_cbranch_vccnz L_f_p1")
    e("s_cmp_lt_u32 s47, 0x40000")
    e("s_cbranch_scc1 L_f_p0")
    e("L_f_p1:")
    e("s_mov_b64 exec, -1")
    e("L_f_pk:")
    for i in range(8):
        e(f"s_bitcmp1_b32 s46, {i}")
        e(f"s_cbranch_scc1 L_f_sl{i}")
        e(f"buffer_load_dwordx4 {vr(K+4*i,4)}, v4, s[24:27], s{58+(i>>1)} offen offset:{(i&1)*2048} " + PFL)
        e(f"L_f_sl{i}:")
    e("s_add_u32 s47, s47, 1")
    e("s_waitcnt vmcnt(0)")
    for i in range(8):
        e(f"s_bitcmp1_b32 s46, {i}")
        e(f"s_cbranch_scc1 L_f_sf{i}")
        e(f"v_min3_u32 v11, v{K+4*i}, v{K+4*i+1}, v{K+4*i+2}")
        e(f"v_min_u32 v11, v11, v{K+4*i+3}")
        e("v_cmp_eq_u32 vcc, 0, v11")
        e(f"s_cbranch_vccnz L_f_sf{i}")
        e(f"s_bitset1_b32 s46, {i}")
        for j in range(4):
            e(f"v_med3_u32 v10, v9, v10, v{K+4*i+j}")
            e(f"v_med3_u32 v9, v8, v9, v{K+4*i+j}")
            e(f"v_max_u32 v8, v8, v{K+4*i+j}")
        e(f"L_f_sf{i}:")
    e("s_cmp_eq_u32 s46, 0xff")
    e("s_cbranch_scc1 L_f_keys")
    e("s_cmp_lt_u32 s47, 0x40000")
    e("s_cbranch_scc1 L_f_pk")
    e("L_f_keys:")
    stamp(e, 2)
    FR = OPT.get("fr", 2)
    def flagloads():
        e("buffer_load_dword v28, v19, s[24:27], s56 offen sc1")
        e("buffer_load_dword v29, v19, s[24:27], s57 offen sc1")
    for rd in range(8):
        for si, st in enumerate(DPP6):
            if si == 0:
                e(f"v_max_u32_dpp v11, v8, v8 {st} bank_mask:0xf bound_ctrl:0")
            else:
                e(f"v_max_u32_dpp v11, v11, v11 {st} bank_mask:0xf")
            if si < 5:
                if rd == FR and si == 0:
                    flagloads()
                else:
                    e("s_nop 1")
        e("s_nop 0")
        e("v_readlane_b32 s42, v11, 63")
        e("s_nop 1")
        e("v_cmp_eq_u32 vcc, s42, v8")
        e(f"v_writelane_b32 v12, s42, {rd}")
        e("s_nop 0")
        e("v_cndmask_b32 v8, v8, v9, vcc")
        e("v_cndmask_b32 v9, v9, v10, vcc")
        e("v_cndmask_b32 v10, v10, 0, vcc")
    e("v_cmp_eq_u32 vcc, 0, v8")
    e("s_cbranch_vccz L_f_topdone")
    e("s_mov_b32 m0, 0")
    e("s_mov_b32 s42, -1")
    e("L_f_slow:")
    e(f"v_sub_u32 v8, s42, v{K}")
    e(f"v_sub_u32 v9, s42, v{K+1}")
    e("v_min_u32 v8, v8, v9")
    for i in range(2, 32, 2):
        e(f"v_sub_u32 v9, s42, v{K+i}")
        e(f"v_sub_u32 v10, s42, v{K+i+1}")
        e("v_min3_u32 v8, v8, v9, v10")
    for st in DPP6:
        e("s_nop 1")
        e(f"v_min_u32_dpp v8, v8, v8 {st} bank_mask:0xf")
    e("s_nop 0")
    e("v_readlane_b32 s47, v8, 63")
    e("s_nop 3")
    e("s_sub_u32 s42, s42, s47")
    e("v_writelane_b32 v12, s42, m0")
    e("s_sub_u32 s42, s42, 1")
    e("s_add_u32 m0, m0, 1")
    e("s_cmp_lt_u32 m0, 8")
    e("s_cbranch_scc1 L_f_slow")
    e("L_f_topdone:")
    stamp(e, 3)
    e("ds_bpermute_b32 v8, v5, v12")
    e("ds_bpermute_b32 v15, v13, v12")
    e("s_mov_b32 s47, 0")
    e("s_waitcnt lgkmcnt(1)")
    e("v_not_b32 v8, v8")
    e("v_and_b32 v8, 0x7ff, v8")
    e("v_mad_u32_u24 v31, v8, s44, v6")
    e("L_f_gather:")
    e(f"s_mov_b32 m0, {XS}")
    e("v_mov_b32 v8, v31")
    e("s_waitcnt vmcnt(0)")
    for j in range(7):
        e(f"buffer_load_dwordx4 v8, s[48:51], 0 offen sc1 lds")
        if j < 6:
            e(f"s_mov_b32 m0, {XS + 1024*(j+1)}")
            e("v_add_u32 v8, 128, v8")
    e("s_waitcnt lgkmcnt(0)")
    e("v_not_b32 v9, v15")
    e("v_and_b32 v9, 0x7ff, v9")
    e("v_mad_u32_u24 v20, v9, s44, v14")
    e("v_and_b32 v21, 63, v9")
    e("v_and_b32 v22, 31, v9")
    e("v_lshrrev_b32 v23, 10, v9")
    e("v_lshl_add_u32 v22, v23, 5, v22")
    e("v_lshrrev_b32 v23, 5, v21")
    e("v_lshl_add_u32 v10, v23, 6, v22")
    e("v_bfe_u32 v23, v9, 6, 4")
    e("v_lshlrev_b32 v10, 7, v10")
    e("v_lshl_add_u32 v10, v23, 2, v10")
    e("buffer_load_dword v11, v10, s[24:27], s58 offen offset:64 sc1")
    e("buffer_load_dwordx2 v[16:17], v20, s[48:51], 0 offen sc1")
    e("v_lshlrev_b32 v22, 2, v22")
    e("ds_bpermute_b32 v23, v22, v28")
    e("ds_bpermute_b32 v22, v22, v29")
    e("v_cmp_gt_u32 vcc, 32, v21")
    e("s_add_u32 s47, s47, 1")
    e("s_waitcnt lgkmcnt(0)")
    e("v_cndmask_b32 v22, v22, v23, vcc")
    e("v_cmp_eq_u32 vcc, 0, v22")
    e("s_cbranch_vccz L_f_flagok")
    flagloads()
    e("s_cmp_lt_u32 s47, 0x40000")
    e("s_cbranch_scc1 L_f_gather")
    e("L_f_flagok:")
    e("s_waitcnt vmcnt(1)")
    e("s_mov_b64 exec, 0xff")
    e(f"ds_write_b32 v30, v11 offset:{MISC+64}")
    e("s_mov_b64 exec, -1")
    e("s_waitcnt lgkmcnt(0)")
    stamp(e, 4)
    e("s_barrier")
    e("v_ashrrev_i32 v9, 31, v15")
    e("v_not_b32 v9, v9")
    e("v_or_b32 v9, 0x80000000, v9")
    e("v_xor_b32 v15, v15, v9")
    e("v_and_b32 v15, s45, v15")
    e(f"v_mul_f32 v18, {fbits(-1.4426950408889634)}, v15")
    e("v_exp_f32 v18, v18")
    e("v_mov_b32 v10, 1.0")
    e("v_add_f32 v18, 1.0, v18")
    e("v_rcp_f32 v18, v18")
    e("s_mov_b32 s47, 0")
    e("v_cvt_pk_bf16_f32 v18, v18, v18")
    e("v_and_b32 v18, s45, v18")
    e("v_mov_b32 v14, v20")
    e("s_waitcnt vmcnt(0)")
    e("v_lshlrev_b32 v20, 16, v16")
    e("v_and_b32 v21, s45, v16")
    e("v_lshlrev_b32 v22, 16, v17")
    e("v_and_b32 v23, s45, v17")
    e("s_barrier")
    if B4 >= 0:
        e("s_barrier")
    stamp(e, 5)
    P = 64
    e("L_f_pp:")
    for i in range(14):
        e(f"buffer_load_dwordx4 {vr(P+4*i,4)}, v{24+(i&3)}, s[24:27], s{52+(i>>2)} offen sc1")
    e("s_add_u32 s47, s47, 1")
    e("s_waitcnt vmcnt(12)")
    e(f"v_pk_add_f32 v[28:29], {vr(P,2)}, {vr(P+4,2)}")
    e(f"v_pk_add_f32 v[30:31], {vr(P+2,2)}, {vr(P+6,2)}")
    for i in range(2, 14):
        e(f"s_waitcnt vmcnt({13-i})")
        e(f"v_pk_add_f32 v[28:29], v[28:29], {vr(P+4*i,2)}")
        e(f"v_pk_add_f32 v[30:31], v[30:31], {vr(P+4*i+2,2)}")
    e("v_add_f32 v8, v28, v29")
    e("v_add_f32 v9, v30, v31")
    e("v_cmp_u_f32 vcc, v8, v9")
    e("s_cbranch_vccz L_f_got")
    e(f"v_max3_u32 v8, v{P}, v{P+1}, v{P+2}")
    for i in range(3, 55, 2):
        e(f"v_max3_u32 v8, v8, v{P+i}, v{P+i+1}")
    e(f"v_max_u32 v8, v8, v{P+55}")
    e("v_cmp_eq_u32 vcc, -1, v8")
    e("s_cbranch_vccz L_f_got")
    e("s_cmp_lt_u32 s47, 0x40000")
    e("s_cbranch_scc1 L_f_pp")
    e("L_f_got:")
    stamp(e, 6)
    for r in range(4):
        e(f"v_mfma_f32_16x16x4_f32 {vr(32+4*r,4)}, v10, v{28+r}, 0")
    e("s_nop 7")
    e("s_nop 0")
    e("v_cvt_pk_bf16_f32 v16, v32, v36")
    e("v_cvt_pk_bf16_f32 v17, v40, v44")
    e("v_lshlrev_b32 v24, 16, v16")
    e("v_and_b32 v25, s45, v16")
    e("v_lshlrev_b32 v26, 16, v17")
    e("v_and_b32 v27, s45, v17")
    for r in range(4):
        e(f"v_mul_f32 v{24+r}, v{24+r}, v18")
    e("v_cvt_pk_bf16_f32 v16, v24, v25")
    e("v_cvt_pk_bf16_f32 v17, v26, v27")
    e("v_lshlrev_b32 v24, 16, v16")
    e("v_and_b32 v25, s45, v16")
    e("v_lshlrev_b32 v26, 16, v17")
    e("v_and_b32 v27, s45, v17")
    for r in range(4):
        e(f"v_add_f32 v{24+r}, v{24+r}, v{20+r}")
    e("v_cvt_pk_bf16_f32 v16, v24, v25")
    e("v_cvt_pk_bf16_f32 v17, v26, v27")
    e("s_mov_b64 exec, 0xffff")
    e("buffer_store_dwordx2 v[16:17], v14, s[48:51], 0 offen" + (" sc1" if OPT.get("fsc1", 1) else ""))
    stamp_flush(e, 1, 24, 7, 28)

if __name__ == "__main__":
    for a in sys.argv[2:]:
        if a == "diag":
            DIAG = True; gen.DIAG = True
        else:
            k, v = a.split("=")
            OPT[k] = int(v)
    build([ka], sys.argv[1])
    if not OPT.get("aslist", 0):
        t = open(sys.argv[1]).read().replace("; @launch kernel=" + NAME + "_kernel grid", "; @launch grid")
        open(sys.argv[1], "w").write(t)
```

```python
import struct, sys
from gen import E, fbits, vr, ar, srd, header, build, NAME
import gen

WS_V    = 0x000000
WS_KEY  = 0x300000
WS_FLAG = 0x304000
WS_PART = 0x308000
WS_FL1  = 0x3E0000
WS_SIZE = 0x10000000
XBYTES  = 2048*896
WBYTES  = 448*1792*2
WS_DIAG = 0x800000
LDS_XROW = 140288
DIAG = False
OPT = {}
DPP6 = ["row_shr:1 row_mask:0xf", "row_shr:2 row_mask:0xf", "row_shr:4 row_mask:0xf", "row_shr:8 row_mask:0xf",
        "row_bcast:15 row_mask:0xa", "row_bcast:31 row_mask:0xc"]

def stamp(e, i):
    if DIAG:
        e(f"s_mem{'time' if OPT.get('cyc', 0) and i in (4, 5) else 'realtime'} s[{64+2*i}:{65+2*i}]")
        e("s_waitcnt lgkmcnt(0)")
def stamp_flush(e, kid, srdreg, nst, wavereg):
    if DIAG:
        e("s_mov_b64 exec, -1")
        e(f"s_memrealtime s[{64+2*nst}:{65+2*nst}]")
        e("s_waitcnt lgkmcnt(0)")
        for i in range(nst+1):
            e(f"v_writelane_b32 v230, s{64+2*i}, {i}")
        e(f"s_lshl_b32 s90, s2, 3")
        e(f"s_add_u32 s90, s90, s{wavereg}")
        e(f"s_lshl_b32 s90, s90, 6")
        e(f"s_add_u32 s90, s90, {WS_DIAG + kid*0x40000}")
        e("v_mbcnt_lo_u32_b32 v231, -1, 0")
        e("v_lshlrev_b32 v231, 2, v231")
        e("s_mov_b32 exec_lo, 0xffff")
        e("s_mov_b32 exec_hi, 0")
        e(f"buffer_store_dword v230, v231, s[{srdreg}:{srdreg+3}], s90 offen")
        e("s_mov_b64 exec, -1")

class Lds:
    def __init__(self, e):
        self.e = e; self.q = []
    def issue(self, tag, ins):
        self.e(ins); self.q.append(tag)
    def need(self, tag):
        if tag not in self.q: return
        last = max(i for i, t in enumerate(self.q) if t == tag)
        n = len(self.q) - 1 - last
        assert n <= 15, n
        self.e(f"s_waitcnt lgkmcnt({n})")
        self.q = self.q[last+1:]

def tagcheck(e, u):
    e("s_mov_b32 s63, 0")
    e(f"L_tag{u}:")
    e("v_cmp_ne_u32 vcc, 0, v224")
    e(f"s_cbranch_vccnz L_tagok{u}")
    if u != "a": srd(e, 56, 18, 256)
    e("buffer_load_dwordx2 v[224:225], off, s[56:59], 0 sc1")
    e("s_add_u32 s63, s63, 1")
    e("s_waitcnt vmcnt(0)")
    e("s_cmp_lt_u32 s63, 0x40000")
    e(f"s_cbranch_scc1 L_tag{u}")
    e(f"L_tagok{u}:")

def ka(e):
    header(e, NAME + "_kernel")
    X, ACC, CUR, PRV, PK, RF, BB = 64, 32, 16, 24, 48, 56, 120
    SUM, GRM = 32, 36
    LDS_X, LDS_Z = 57344, 114688
    LDS_R = LDS_Z + 8192
    LDS_ST = LDS_R + 8192
    LDS_CS = LDS_ST + 512
    LDS_TB = LDS_CS + 512
    LDS_XR = LDS_XROW
    assert LDS_TB + 8192 == LDS_XROW
    e("s_cmp_ge_u32 s2, 256")
    e("s_cbranch_scc1 L_ka_end")
    stamp(e, 0)
    e("s_load_dwordx2 s[4:5], s[0:1], 0")
    e("s_load_dwordx2 s[6:7], s[0:1], 96")
    e("s_load_dwordx8 s[44:51], s[0:1], 48")
    e("s_load_dwordx2 s[60:61], s[0:1], 88")
    e("v_lshrrev_b32 v1, 6, v0")
    e("v_and_b32 v2, 15, v0")
    e("v_readfirstlane_b32 s43, v1")
    e("v_bfe_u32 v3, v0, 4, 2")
    e("v_and_b32 v1, 63, v0")
    e("s_cmp_ge_u32 s2, 224")
    e("s_cbranch_scc1 L_ka_spare")
    e("s_and_b32 s16, s43, 3")
    e("s_and_b32 s20, s2, 31")
    e("s_lshr_b32 s19, s2, 5")
    e("s_lshr_b32 s21, s16, 1")
    e("s_and_b32 s22, s16, 1")
    e("s_mul_i32 s29, s16, 14336")
    e(f"s_add_u32 s41, s29, {LDS_X}")
    e("s_mov_b32 s28, 0x3f803f80")
    e("s_cmp_ge_u32 s43, 4")
    e("s_cbranch_scc1 L_ka_help")

    def common_addr():
        e("v_lshlrev_b32 v11, 4, v1")
        e("v_and_b32 v12, 6, v2")
        e("v_xor_b32 v12, v12, v3")
        e("v_and_b32 v14, 7, v2")
        e("v_lshlrev_b32 v14, 7, v14")
        e("v_lshl_add_u32 v14, v12, 4, v14")
        e("v_lshrrev_b32 v12, 3, v2")
        e("v_lshl_add_u32 v14, v12, 10, v14")
        e("v_add_u32 v14, s41, v14")
        e("v_xor_b32 v15, 64, v14")
        e("v_lshrrev_b32 v12, 2, v1")
        e("v_and_b32 v53, 3, v1")
        e("v_bfe_u32 v10, v1, 3, 2")
        e("v_xor_b32 v10, v10, v53")
        e("v_lshlrev_b32 v10, 4, v10")
        e("v_lshl_add_u32 v10, v12, 6, v10")
        e("v_mul_u32_u24 v12, 57344, v12")
        e("v_lshl_add_u32 v53, v53, 4, v12")
        e("s_lshl_b32 s24, s43, 10")
        e(f"s_add_u32 s24, s24, {LDS_TB}")
        e("v_add_u32 v10, s24, v10")
        e("v_bfe_u32 v12, v2, 1, 2")
        e("v_xor_b32 v12, v12, v3")
        e("v_lshlrev_b32 v12, 4, v12")
        e("v_lshl_add_u32 v12, v2, 6, v12")
        e("v_add_u32 v8, s24, v12")
        e("s_mul_i32 s24, s22, 917504")
        e("s_mul_i32 s25, s21, 28672")
        e("s_add_u32 s24, s24, s25")
        e("s_lshl_b32 s25, s19, 7")
        e("s_add_u32 s24, s24, s25")
        e("s_mul_i32 s25, s20, 896")
        e("s_add_u32 s30, s24, s25")
        e("s_lshl_b32 s24, s16, 11")
        e(f"s_add_u32 s24, s24, {LDS_R}")
        e("v_add_u32 v52, s24, v11")
    def gemm2(hh):
        e(f"v_add_u32 v54, {LDS_Z + hh*4096}, v11")
        e("s_barrier")
        for j in range(4):
            e(f"ds_read_b128 {vr(X+4*j,4)}, v54 offset:{j*1024}")
        for n in range(2):
            e(f"s_waitcnt lgkmcnt({2-2*n})")
            e(f"v_mfma_f32_16x16x32_bf16 {vr(40+4*n,4)}, {vr(X+8*n,4)}, {vr(RF,4)}, 0")
            e(f"v_mfma_f32_16x16x32_bf16 {vr(40+4*n,4)}, {vr(X+8*n+4,4)}, {vr(RF+4,4)}, {vr(40+4*n,4)}")
        e("s_nop 4")
        e("v_cvt_pk_bf16_f32 v16, v40, v41")
        e("v_cvt_pk_bf16_f32 v17, v42, v43")
        e("s_nop 0")
        e("v_cvt_pk_bf16_f32 v18, v44, v45")
        e("v_cvt_pk_bf16_f32 v19, v46, v47")
        e("ds_write_b128 v8, v[16:19]")
        e("s_waitcnt lgkmcnt(0)")
        e("ds_read_b128 v[20:23], v10")
        e("s_waitcnt lgkmcnt(0)")
        e(f"buffer_store_dwordx4 v[20:23], v53, s[12:15], s30 offen offset:{64*hh} sc1")
        stamp(e, 7)
        e("v_lshlrev_b32 v226, 6, v1")
        e("s_waitcnt vmcnt(0)")
        stamp(e, 8)
        e("s_barrier")
        if hh:
            e("s_cmp_lg_u32 s43, 4")
            e("s_cbranch_scc1 L_ka_noflag")
            tagcheck(e, "a")
            e("s_lshl_b32 s24, s2, 6")
            e(f"s_add_u32 s24, s24, {WS_FL1}")
            e("s_mov_b64 exec, 1")
            e("buffer_store_dwordx2 v[224:225], off, s[12:15], s24 sc1")
            e("s_mov_b64 exec, -1")
            e("L_ka_noflag:")
        stamp_flush(e, 0, 12, 9, 43)
        e("s_branch L_kb_entry")

    MACC, AR, CS, MB = 16, 32, 44, 64
    FC, FP, FK = 64, 72, 80
    e("v_lshrrev_b32 v4, 2, v2")
    e("v_and_b32 v5, 3, v2")
    e("s_lshl_b32 s24, s19, 6")
    e("s_lshl_b32 s25, s21, 5")
    e("s_add_u32 s25, s24, s25")
    e("s_lshl_b32 s26, s22, 2")
    e("s_add_u32 s25, s25, s26")
    e("v_lshl_add_u32 v7, v4, 3, v5")
    e("v_add_u32 v7, s25, v7")
    e("v_lshrrev_b32 v8, 5, v7")
    e("v_and_b32 v9, 15, v7")
    e("v_lshl_add_u32 v8, v8, 4, v9")
    e("v_cmp_eq_u32 vcc, 0, v7")
    e("v_bfe_u32 v10, v7, 4, 1")
    e("v_mov_b32 v9, 224")
    e("v_cndmask_b32 v7, v8, v9, vcc")
    e("v_mul_u32_u24 v10, 0x3e80, v10")
    e("v_lshlrev_b32 v10, 16, v10")
    e("v_lshl_add_u32 v8, v3, 3, s24")
    e("v_mul_u32_u24 v8, v8, v7")
    e("v_cvt_f32_u32 v7, v7")
    e("v_cvt_f32_u32 v8, v8")
    e(f"s_mov_b32 s24, {fbits(1.0/448)}")
    e("v_mul_f32 v9, s24, v8")
    e("v_floor_f32 v9, v9")
    e(f"v_fmamk_f32 v8, v9, {fbits(-448.0)}, v8")
    e("v_mul_f32 v7, s24, v7")
    e("v_fma_f32 v8, v8, s24, v10")
    e("v_mul_f32 v9, 0x42000000, v7")
    e("v_cos_f32 v88, v9")
    for j in range(8):
        e(f"v_cos_f32 v{FC+j}, v8")
        e(f"v_sub_f32 v11, v8, v9")
        if j < 7:
            e(f"v_add_f32 v8, v8, v7")
        e(f"v_cos_f32 v{FP+j}, v11")
    e("v_add_f32 v88, v88, v88")
    e("v_lshl_add_u32 v91, v1, 4, s29")
    e("v_mov_b32 v89, v88")
    stamp(e, 1)
    e(".p2align 3")
    for st in range(14):
        A, B = (FC, FP) if st % 2 == 0 else (FP, FC)
        P = FK + 4*(st % 2)
        for j in range(4):
            e(f"v_cvt_pk_bf16_f32 v{P+j}, v{A+2*j}, v{A+2*j+1}")
        e(f"ds_write_b128 v91, {vr(P,4)} offset:{st*1024}")
        if st < 13:
            for j in range(4):
                e(f"v_pk_fma_f32 {vr(B+2*j,2)}, v[88:89], {vr(A+2*j,2)}, {vr(B+2*j,2)} neg_lo:[0,0,1] neg_hi:[0,0,1]")
    common_addr()
    e("s_lshl_b32 s24, s21, 10")
    e("s_lshl_b32 s25, s22, 3")
    e("s_add_u32 s24, s24, s25")
    e(f"s_add_u32 s24, s24, {LDS_Z}")
    e("v_add_u32 v55, s24, v11")
    e(f"v_lshlrev_b32 v12, 2, v2")
    e(f"v_add_u32 v12, {LDS_CS}, v12")
    e("s_lshl_b32 s25, s16, 7")
    e(f"s_add_u32 s25, s25, {LDS_ST}")
    e("v_lshl_add_u32 v13, v3, 4, s25")
    e("s_waitcnt lgkmcnt(0)")
    srd(e, 12, 6, WS_SIZE)
    srd(e, 56, 60, 256)
    stamp(e, 2)
    e("s_barrier")
    L = Lds(e)
    def rB(k, n):
        L.issue(("B", k), f"ds_read_b128 {vr(MB+32+((k+6)%8)*16+4*n,4)}, v11 offset:{(n*14+k)*1024}")
    def Breg(k, n): return vr(MB+32+((k+6)%8)*16+4*n, 4)
    PRE = OPT.get("pre", 4)
    for k in range(PRE):
        for n in range(4): rB(k, n)
    stamp(e, 3)
    e("s_barrier")
    stamp(e, 4)
    if DIAG: L.q = []
    def rA(k):
        L.issue(("A", k), f"ds_read_b128 {vr(AR+4*(k%3),4)}, v{14+(k&1)} offset:{(k>>1)*2048}")
    L.q = L.q[-13:]
    rA(0); rA(1)
    ST, U = 64, 72
    CK = OPT.get("ck", 11)
    sh = []
    for k in range(14):
        if k == 2: e("s_barrier")
        if k == 6:
            e("s_barrier")
            e("buffer_load_dwordx2 v[224:225], off, s[56:59], 0 sc1")
        if k == CK:
            e("s_barrier")
            L.issue("st", f"ds_read_b128 {vr(ST,4)}, v13")
            L.issue("st", f"ds_read_b128 {vr(ST+4,4)}, v13 offset:64")
        if k == CK + 1:
            L.need("st")
            for n in range(4):
                for r in range(4): sh.append(f"v_mul_f32 v{U+4*n+r}, v{ST+r}, v{CS+n}")
        L.need(("A", k))
        L.need(("B", k))
        for n in range(4):
            c = "0" if k == 0 else vr(MACC+4*n, 4)
            e(f"v_mfma_f32_16x16x32_bf16 {vr(MACC+4*n,4)}, {vr(AR+4*(k%3),4)}, {Breg(k,n)}, {c}")
            if n == 0 and k + 2 < 14: rA(k + 2)
            if k + PRE < 14: rB(k + PRE, n)
            elif k == 14 - PRE: L.issue("cs", f"ds_read_b32 v{CS+n}, v12 offset:{64*n}")
            elif k == 15 - PRE and n < 2: L.issue("R", f"ds_read_b128 {vr(RF+4*n,4)}, v52 offset:{1024*n}")
            for _ in range(3):
                if sh: e(sh.pop(0))
    if CK == 13:
        L.need("st")
        for n in range(4):
            for r in range(4): sh.append(f"v_mul_f32 v{U+4*n+r}, v{ST+r}, v{CS+n}")
    stamp(e, 5)
    nl = len(sh)
    while sh: e(sh.pop(0))
    if nl < 5: e(f"s_nop {4-nl}")
    for n in range(4):
        a = MACC + 4*n
        e(f"v_pk_fma_f32 {vr(a,2)}, {vr(a,2)}, {vr(ST+4,2)}, {vr(U+4*n,2)}")
        e(f"v_pk_fma_f32 {vr(a+2,2)}, {vr(a+2,2)}, {vr(ST+6,2)}, {vr(U+4*n+2,2)}")
        e(f"v_cvt_pk_bf16_f32 v{32+2*n}, v{a}, v{a+1}")
        e(f"v_cvt_pk_bf16_f32 v{33+2*n}, v{a+2}, v{a+3}")
        e(f"ds_write_b64 v55, {vr(32+2*n,2)} offset:{n*2048}")
    e("s_waitcnt lgkmcnt(0)")
    stamp(e, 6)
    gemm2(0)

    e("L_ka_help:")
    e("s_setprio 2")
    e("v_lshrrev_b32 v4, 3, v1")
    e("v_and_b32 v5, 7, v1")
    e("v_and_b32 v6, 6, v4")
    e("v_xor_b32 v5, v5, v6")
    e("v_lshrrev_b32 v6, 2, v4")
    e("v_and_b32 v4, 3, v4")
    e("v_lshl_add_u32 v6, v6, 3, v4")
    e("v_mul_u32_u24 v6, 28672, v6")
    e("v_lshl_add_u32 v6, v5, 4, v6")
    e(f"v_add_u32 v13, {16*28672}, v6")
    e("s_lshl_b32 s23, s21, 10")
    e("s_lshl_b32 s24, s22, 7")
    e("s_add_u32 s23, s23, s24")
    e("s_add_u32 s23, s23, s20")
    e("s_mul_i32 s23, s23, 896")
    e("s_lshl_b32 s31, s19, 7")
    e("s_add_u32 s32, s23, 896")
    e("s_add_u32 s31, s31, s23")
    e("s_waitcnt lgkmcnt(0)")
    stamp(e, 1)
    srd(e, 8, 4, XBYTES)
    XNT = " nt" if OPT.get("xnt", 1) else ""
    def xpair(c):
        e(f"s_add_u32 m0, s41, {c*2048}")
        e("s_add_u32 s33, s31, 128")
        e(f"buffer_load_dwordx4 v6, s[8:11], s31 offen{XNT} lds")
        e(f"s_add_u32 m0, s41, {c*2048+1024}")
        e("s_cmp_eq_u32 s33, s32")
        e(f"buffer_load_dwordx4 v13, s[8:11], s31 offen{XNT} lds")
        e("s_cselect_b32 s31, s23, s33")
    NF = OPT.get("nf", 4)
    for c in range(NF): xpair(c)
    e("s_setprio 0")
    srd(e, 12, 6, WS_SIZE)
    e("s_cmp_ge_u32 s2, 8")
    e("s_cselect_b32 s34, -1, 0")
    e("s_lshl_b32 s35, s2, 12")
    e(f"s_add_u32 s35, s35, {WS_KEY - 4096}")
    e("s_cmp_ge_u32 s2, 204")
    e("s_cselect_b32 s36, 0x7ff00000, 0")
    e("v_lshl_add_u32 v12, v0, 4, s36")
    for j in range(4):
        e(f"v_mov_b32 v{200+j}, s34")
    e("v_mov_b32 v217, v12")
    e("s_mov_b32 s56, s60")
    e("s_mov_b32 s57, s61")
    e("s_movk_i32 s58, 256")
    e("s_mov_b32 s59, 0x20000")
    e("s_or_b32 s24, s2, s16")
    e("s_cmp_lg_u32 s24, 0")
    e("s_cbranch_scc1 L_ka_notag")
    e("s_memrealtime s[24:25]")
    e("s_waitcnt lgkmcnt(0)")
    e("s_or_b32 s24, s24, 1")
    e("v_mov_b32 v44, s24")
    e("v_mov_b32 v45, s25")
    e("s_mov_b64 exec, 1")
    e("buffer_store_dwordx2 v[44:45], off, s[56:59], 0 sc1")
    e("s_mov_b64 exec, -1")
    e("L_ka_notag:")
    e("s_lshl_b32 s24, s22, 4")
    e("v_add_u32 v7, s24, v2")
    e("s_mul_i32 s25, s21, 0x3e800000")
    e("v_mov_b32 v10, s25")
    e("s_cmp_eq_u32 s16, 2")
    e("s_cselect_b32 s24, 0, -1")
    e("v_cmp_eq_u32 vcc, s24, v7")
    e("v_mov_b32 v12, 32")
    e("v_lshlrev_b32 v8, 3, v3")
    e("v_cndmask_b32 v7, v7, v12, vcc")
    e("v_cndmask_b32 v10, v10, 0, vcc")
    e("v_cvt_f32_u32 v7, v7")
    e("v_cvt_f32_u32 v8, v8")
    e(f"v_mul_f32 v7, {fbits(1.0/64)}, v7")
    e("v_fma_f32 v8, v8, v7, v10")
    e("v_mul_f32 v10, 0x42000000, v7")
    for j in range(8):
        e(f"v_cos_f32 v{CUR+j}, v8")
        e(f"v_add_f32 v12, v8, v10")
        if j < 7:
            e(f"v_add_f32 v8, v8, v7")
        e(f"v_cos_f32 v{PRV+j}, v12")
    common_addr()
    for j in range(4):
        e(f"v_cvt_pk_bf16_f32 v{RF+j}, v{CUR+2*j}, v{CUR+2*j+1}")
        e(f"v_cvt_pk_bf16_f32 v{RF+4+j}, v{PRV+2*j}, v{PRV+2*j+1}")
    e(f"ds_write_b128 v52, {vr(RF,4)}")
    e(f"ds_write_b128 v52, {vr(RF+4,4)} offset:1024")
    for j in range(4):
        e(f"v_mov_b32 v{48+j}, s28")
    e(f"s_mov_b32 s24, {fbits(1.0/448)}")
    e(f"s_mov_b32 s26, {fbits(1e-5)}")
    e(f"s_mov_b32 s27, 0xffff0000")
    stamp(e, 2)
    vq = [c for c in range(NF) for h in range(2)] + ["clr"]
    def vwait(c):
        last = max(i for i, t in enumerate(vq) if t == c)
        e(f"s_waitcnt vmcnt({len(vq)-1-last})")
        del vq[:last+1]
    e("s_bfe_u32 s17, s2, 0x10006")
    e("s_lshl_b32 s17, s17, 5")
    e("s_add_u32 s17, s17, s20")
    e("s_bfe_u32 s18, s2, 0x10005")
    e("s_lshl_b32 s18, s18, 10")
    e("s_add_u32 s18, s18, s17")
    e("s_lshl_b32 s17, s16, 8")
    e("s_add_u32 s18, s18, s17")
    e("s_mul_i32 s18, s18, 896")
    e("s_lshl_b32 s17, s16, 12")
    e(f"s_add_u32 s17, s17, {LDS_XR}")
    e("s_cmp_lt_u32 s2, 128")
    e("s_cselect_b32 s25, 56, 0")
    e("v_cmp_gt_u32 vcc, s25, v1")
    e("v_mov_b32 v218, 0x7ff00000")
    e("s_nop 0")
    e("v_cndmask_b32 v218, v218, v11, vcc")
    e("v_and_b32 v4, 3, v2")
    e("v_lshrrev_b32 v5, 2, v2")
    e("v_cmp_eq_u32 s[52:53], 1, v4")
    e("v_cmp_eq_u32 s[54:55], 2, v4")
    e("v_cmp_eq_u32 s[62:63], 3, v4")
    e("v_cmp_eq_u32 s[60:61], v5, v3")
    e("s_lshl_b32 s25, s16, 7")
    e(f"s_add_u32 s25, s25, {LDS_ST}")
    e("v_lshl_add_u32 v4, v2, 2, s25")
    e("v_add_u32 v5, s29, v11")
    e("s_lshl_b32 s25, s16, 6")
    e(f"s_add_u32 s25, s25, {LDS_CS}")
    e("v_lshl_add_u32 v7, v2, 2, s25")
    e("s_waitcnt lgkmcnt(0)")
    e(f"s_setprio {OPT.get('csp', 2)}")
    e("s_barrier")
    nx = [NF]
    def land(c):
        vwait(c)
        if nx[0] < 7:
            xpair(nx[0]); vq.extend([nx[0]]*2); nx[0] += 1
    def stat(k):
        c = "0" if k == 0 else vr(GRM, 4)
        e(f"v_mfma_f32_16x16x32_bf16 {vr(GRM,4)}, {vr(X+4*k,4)}, {vr(X+4*k,4)}, {c}")
        c = "0" if k == 0 else vr(SUM, 4)
        e(f"v_mfma_f32_16x16x32_bf16 {vr(SUM,4)}, {vr(X+4*k,4)}, v[48:51], {c}")
    def rdx(k0, k1):
        for k in range(k0, k1):
            e(f"ds_read_b128 {vr(X+4*k,4)}, v{14+(k&1)} offset:{(k>>1)*2048}")
    def stats(k0, k1, kend):
        for k in range(k0, k1):
            e(f"s_waitcnt lgkmcnt({kend-1-k})")
            stat(k)
    vq.remove("clr")
    for k in range(14):
        e(f"ds_read_b128 {vr(120+4*k,4)}, v5 offset:{k*1024}")
    for k in range(14):
        e(f"s_waitcnt lgkmcnt({13-k})")
        e(f"v_mfma_f32_16x16x32_bf16 v[40:43], v[48:51], {vr(120+4*k,4)}, {'0' if k == 0 else 'v[40:43]'}")
    e("s_setprio 2")
    land(0); land(1)
    e("ds_write_b32 v7, v40")
    rdx(0, 4)
    stamp(e, 3)
    e("s_barrier")
    stamp(e, 4)
    stats(0, 2, 4)
    land(2)
    stats(2, 4, 4)
    land(3)
    assert nx[0] == 7
    rdx(4, 8)
    e("s_barrier")
    e("buffer_load_dwordx2 v[224:225], off, s[56:59], 0 sc1")
    for j in range(4):
        e(f"s_add_u32 m0, s17, {j*1024}")
        e(f"s_add_u32 s33, s18, {j*64*896}")
        e(f"buffer_load_dwordx4 v218, s[8:11], s33 offen lds")
    e(f"s_mov_b32 m0, {LDS_XR + 16384}")
    srd(e, 8, 44, 896)
    e(f"buffer_load_dwordx4 v11, s[8:11], 0 offen lds")
    stats(4, 8, 8)
    e("s_waitcnt vmcnt(6)")
    rdx(8, 14)
    e("buffer_store_dwordx4 v[200:203], v217, s[12:15], s35 offen sc1")
    if OPT.get("sb", 0): stamp(e, 2)
    BE = OPT.get("be", 0)
    if BE: e("s_barrier")
    stats(8, 14, 14)
    if not BE: e("s_barrier")
    e("s_nop 6")
    e(f"v_cndmask_b32 v20, v{GRM}, v{GRM+1}, s[52:53]")
    e(f"v_cndmask_b32 v16, v{SUM}, v{SUM+1}, s[52:53]")
    e(f"v_cndmask_b32 v20, v20, v{GRM+2}, s[54:55]")
    e(f"v_cndmask_b32 v16, v16, v{SUM+2}, s[54:55]")
    e(f"v_cndmask_b32 v20, v20, v{GRM+3}, s[62:63]")
    e(f"v_cndmask_b32 v16, v16, v{SUM+3}, s[62:63]")
    e("v_mul_f32 v20, s24, v20")
    e("v_mul_f32 v16, s24, v16")
    e("v_fma_f32 v20, -v16, v16, v20")
    e("v_max_f32 v20, 0, v20")
    e("v_cvt_pk_bf16_f32 v20, v20, v20")
    e("v_and_b32 v20, s27, v20")
    e("v_add_f32 v20, s26, v20")
    e("v_cvt_pk_bf16_f32 v20, v20, v20")
    e("v_and_b32 v20, s27, v20")
    e("v_sqrt_f32 v20, v20")
    e("s_mov_b64 exec, s[60:61]")
    e("v_cvt_pk_bf16_f32 v20, v20, v20")
    e("v_and_b32 v20, s27, v20")
    e("v_rcp_f32 v20, v20")
    e("s_nop 0")
    e("v_mul_f32 v16, -v16, v20")
    e("ds_write2_b32 v4, v16, v20 offset0:0 offset1:16")
    e("s_mov_b64 exec, -1")
    e("s_waitcnt lgkmcnt(0)")
    stamp(e, 5)
    e("s_barrier")
    stamp(e, 6)
    gemm2(1)

    e("L_ka_spare:")
    e("s_sub_u32 s19, s2, 224")
    e("s_lshl_b32 s19, s19, 16")
    e("v_lshlrev_b32 v8, 7, v0")
    e("v_add_u32 v9, s19, v8")
    e(f"v_subrev_u32 v10, {WBYTES}, v9")
    e("s_waitcnt lgkmcnt(0)")
    srd(e, 24, 44, 896)
    e(f"buffer_load_dword v16, v8, s[24:27], 0 offen")
    srd(e, 28, 46, WBYTES)
    srd(e, 32, 48, WBYTES)
    e("s_waitcnt vmcnt(0)")
    for _ in range(OPT.get("spw", 0)):
        e(f"buffer_load_dword v16, off, s[28:31], s19")
        e("s_add_u32 s19, s19, 128")
        e("s_waitcnt vmcnt(0)")
    e(f"buffer_load_dword v11, v9, s[28:31], 0 offen")
    e(f"buffer_load_dword v13, v10, s[32:35], 0 offen")
    e("L_ka_end:")
    e("s_endpgm")
    kb(e)
    return dict(name=NAME + "_kernel", vgpr=232, accum=232, sgpr=64, grid=256, block=512, lds=LDS_XROW+17408)

def sync1(e, u, nl, soff, pre=False):
    e("s_waitcnt vmcnt(0)")
    tagcheck(e, u)
    e("s_mov_b32 s63, 0")
    e(f"s_mov_b64 exec, {(1 << nl) - 1:#x}" if nl < 32 else "s_mov_b32 exec_hi, 0")
    if pre: e(f"s_branch L_s1c{u}")
    e(f"L_s1{u}:")
    if u in "fg": e("s_sleep 4")
    e(f"buffer_load_dwordx2 v[228:229], v226, s[24:27], {soff} offen sc1")
    e("s_add_u32 s63, s63, 1")
    e("s_waitcnt vmcnt(0)")
    e(f"L_s1c{u}:")
    e("v_cmpx_ne_u64 s[60:61], v[228:229], v[224:225]")
    e(f"s_cbranch_execz L_s1d{u}")
    e("s_cmp_lt_u32 s63, 0x40000")
    e(f"s_cbranch_scc1 L_s1{u}")
    e(f"L_s1d{u}:")
    e("s_mov_b64 exec, -1")

def sync_all(e):
    tagcheck(e, "f")
    e("v_lshlrev_b32 v80, 6, v1")
    e("v_mov_b32 v81, 0x7ff00000")
    e("v_cmp_gt_u32 vcc, 32, v1")
    for j in range(4):
        e(f"s_mov_b32 s{56+j}, {WS_FL1 + 4096*j:#x}")
    e("v_cndmask_b32 v81, v81, v80, vcc")
    e("s_mov_b32 s63, 0")
    e("L_sa:")
    e(f"s_sleep {OPT.get('sasl', 4)}")
    for j in range(4):
        e(f"buffer_load_dwordx2 {vr(82+2*j,2)}, v{81 if j == 3 else 80}, s[24:27], s{56+j} offen sc1")
    e("s_add_u32 s63, s63, 1")
    e("s_waitcnt vmcnt(0)")
    e("v_cndmask_b32 v88, v224, v88, vcc")
    e("v_cndmask_b32 v89, v225, v89, vcc")
    for j in range(4):
        e(f"v_xor_b32 v{82+2*j}, v{82+2*j}, v224")
        e(f"v_xor_b32 v{83+2*j}, v{83+2*j}, v225")
    e("v_or3_b32 v82, v82, v83, v84")
    e("v_or3_b32 v85, v85, v86, v87")
    e("v_or3_b32 v82, v82, v88, v89")
    e("v_or_b32 v82, v82, v85")
    e("v_cmpx_ne_u32 s[60:61], 0, v82")
    e("s_cbranch_execz L_sad")
    e("s_cmp_lt_u32 s63, 0x40000")
    e("s_cbranch_scc1 L_sa")
    e("L_sad:")
    e("s_mov_b64 exec, -1")

def kb(e):
    e("L_kb_entry:")
    e("s_cmp_ge_u32 s2, 184")
    e("s_cbranch_scc1 L_kb_warm")
    stamp(e, 0)
    e("s_setprio 0")
    e("s_load_dwordx2 s[20:21], s[0:1], 96")
    e("s_load_dwordx2 s[4:5], s[0:1], 0")
    e("s_load_dwordx8 s[8:15], s[0:1], 48")
    e("s_load_dwordx4 s[16:19], s[0:1], 80")
    e("s_mov_b32 s28, s43")
    e("v_lshlrev_b32 v4, 4, v1")
    e("s_cmp_ge_u32 s2, 128")
    e("s_cbranch_scc1 L_kb_ffn")
    p2(e)
    e("L_kb_ffn:")
    ffn(e)
    e("s_endpgm")
    e("L_kb_warm:")
    e("s_load_dwordx4 s[4:7], s[0:1], 64")
    e("s_sub_u32 s19, s2, 184")
    e("s_lshl_b32 s19, s19, 16")
    e("v_lshlrev_b32 v8, 7, v0")
    e("v_add_u32 v9, s19, v8")
    e(f"v_add_u32 v9, {32*65536 - WBYTES}, v9")
    e(f"v_subrev_u32 v10, {WBYTES}, v9")
    e(f"v_add_u32 v12, {40*65536}, v10")
    e("s_waitcnt lgkmcnt(0)")
    srd(e, 8, 4, WBYTES)
    srd(e, 12, 6, WBYTES)
    e(f"buffer_load_dword v11, v9, s[8:11], 0 offen")
    e(f"buffer_load_dword v13, v10, s[12:15], 0 offen")
    e(f"buffer_load_dword v14, v12, s[12:15], 0 offen")
    e("L_kb_end:")
    e("s_endpgm")

def p2(e):
    YB, RS, KBUF = 57344, 1808, 57344 + 16*1808
    C, S, F1, F3 = 16, 20, 24, 28
    A, ACC = 64, 32
    XR, WR = 48, 56
    H, T = 96, 104
    Y = 16
    e("s_and_b32 s29, s2, 31")
    e("s_bfe_u32 s30, s2, 0x10005")
    e("s_lshr_b32 s31, s2, 6")
    e("s_lshl_b32 s32, s31, 5")
    e("s_add_u32 s32, s32, s29")
    e("s_sub_u32 s33, 32, s29")
    e("s_and_b32 s33, s33, 31")
    e("s_cmp_eq_u32 s31, 0")
    e("s_cselect_b32 s29, s29, s33")
    e("s_lshl_b32 s33, s30, 10")
    e("s_add_u32 s33, s33, s32")
    e("s_lshl_b32 s34, s28, 7")
    e("s_add_u32 s34, s34, s33")
    e("s_mul_i32 s35, s34, 896")
    e("v_and_b32 v5, 31, v1")
    e("v_lshrrev_b32 v6, 5, v1")
    e("v_cmp_gt_u32 s[40:41], 28, v5")
    e("v_lshlrev_b32 v9, 4, v5")
    e("v_mov_b32 v10, 0x7ff00000")
    e("v_mul_u32_u24 v11, 57344, v6")
    e("v_cndmask_b32 v10, v10, v9, s[40:41]")
    e("v_add_u32 v10, v10, v11")
    e(f"v_add_u32 v125, {LDS_XROW + 16384}, v9")
    e("s_lshl_b32 s38, s28, 11")
    e(f"s_add_u32 s38, s38, {LDS_XROW}")
    e("v_lshl_add_u32 v11, v6, 10, s38")
    e("v_add_u32 v11, v11, v9")
    e("v_mov_b32 v127, v11")
    e("s_waitcnt lgkmcnt(0)")
    srd(e, 44, 16, XBYTES)
    srd(e, 24, 20, WS_SIZE)
    e(f"s_mul_i32 s38, s28, {2*RS}")
    e(f"s_add_u32 s38, s38, {YB}")
    e(f"v_mul_u32_u24 v7, {RS}, v6")
    e("v_lshl_add_u32 v7, v5, 5, v7")
    e("v_add_u32 v7, s38, v7")
    e("s_mov_b32 s43, 0xffff0000")
    e("s_mov_b32 s52, 0x3f803f80")
    e("v_lshl_add_u32 v11, v6, 6, s34")
    e("v_sub_u32 v121, 0xfff, v11")
    e("s_lshl_b32 s38, s28, 3")
    e(f"s_add_u32 s38, s38, {KBUF}")
    e("v_lshl_add_u32 v120, v6, 2, s38")
    e(f"s_mov_b32 s38, {fbits(1.0/448)}")
    e("s_lshl_b32 s53, s2, 7")
    e(f"s_add_u32 s53, s53, {WS_KEY}")
    for r in (122, 123):
        e(f"v_mov_b32 v{r}, 0")
    e("s_cmp_eq_u32 s28, 7")
    e("s_cbranch_scc1 L_p2_w7")
    e("s_mul_i32 s36, s29, 57344")
    e("s_lshl_b32 s37, s28, 7")
    e("s_add_u32 s36, s36, s37")
    e("s_lshl_b32 s37, s28, 13")
    e("v_lshl_add_u32 v9, v2, 6, s33")
    e("v_cvt_f32_u32 v9, v9")
    e(f"v_mul_f32 v9, {fbits(1.0/2048)}, v9")
    e("v_lshlrev_b32 v8, 3, v3")
    e("v_cvt_f32_u32 v8, v8")
    e("v_mul_f32 v8, v8, v9")
    for j in range(8):
        e(f"v_cos_f32 v{A+j}, v8")
        e(f"v_sin_f32 v{A+8+j}, v8")
        if j < 7:
            e("v_add_f32 v8, v8, v9")
    e("v_lshrrev_b32 v4, 2, v1")
    e("v_mul_u32_u24 v4, 896, v4")
    e("v_lshlrev_b32 v8, 1, v6")
    e("v_and_b32 v9, 3, v1")
    e("v_xor_b32 v8, v8, v9")
    e("v_lshl_add_u32 v4, v8, 4, v4")
    for j in range(4):
        e(f"v_cvt_pk_bf16_f32 v{C+j}, v{A+2*j}, v{A+2*j+1}")
        e(f"v_cvt_pk_bf16_f32 v{S+j}, v{A+8+2*j}, v{A+8+2*j+1}")
    e("s_cmp_gt_u32 s32, 32")
    e("s_cselect_b32 s39, 0x80008000, 0")
    e("s_xor_b32 s42, s39, 0x80008000")
    for j in range(4):
        e(f"v_xor_b32 v{F1+j}, s39, v{S+j}")
        e(f"v_xor_b32 v{F3+j}, s42, v{C+j}")
    e("s_cmp_lg_u32 s29, 0")
    e("s_cbranch_scc1 L_p2_nospecial")
    e("s_cmp_eq_u32 s32, 0")
    e("s_cbranch_scc1 L_p2_t0")
    for j in range(4):
        e(f"v_mov_b32 v{F1+j}, v{C+j}")
        e(f"v_mov_b32 v{F3+j}, v{S+j}")
        e(f"v_mov_b32 v{C+j}, 0")
        e(f"v_mov_b32 v{S+j}, 0")
    e("s_branch L_p2_nospecial")
    e("L_p2_t0:")
    for j in range(4):
        e(f"v_mov_b32 v{F1+j}, 0")
        e(f"v_mov_b32 v{F3+j}, 0")
    e("L_p2_nospecial:")
    e("v_and_b32 v13, 1, v3")
    e("v_lshrrev_b32 v12, 2, v2")
    e("v_lshl_add_u32 v12, v13, 3, v12")
    e("v_lshlrev_b32 v12, 6, v12")
    e("v_lshrrev_b32 v14, 1, v3")
    e("v_lshl_add_u32 v12, v14, 10, v12")
    e("v_bfe_u32 v14, v2, 1, 1")
    e("v_lshl_add_u32 v14, v13, 1, v14")
    e("v_lshl_add_u32 v12, v14, 4, v12")
    e("v_and_b32 v14, 1, v2")
    e("v_lshl_add_u32 v12, v14, 3, v12")
    e("v_add_u32 v12, s37, v12")
    e("v_xor_b32 v126, 32, v12")
    e("s_lshl_b32 s42, s28, 7")
    e("v_lshl_add_u32 v13, v3, 4, s42")
    e("v_cmp_eq_u32 vcc, 0, v13")
    e(f"v_mul_u32_u24 v14, {RS}, v2")
    e(f"v_add_u32 v14, {YB}, v14")
    e("v_sub_u32 v15, v14, v13")
    e(f"v_add_u32 v15, {(448-19)*4}, v15")
    e("v_add_u32 v13, v13, v14")
    e(f"v_add_u32 v9, {19*4}, v15")
    e(f"v_add_u32 v8, {224*4}, v14")
    e("v_cndmask_b32 v14, v9, v8, vcc")
    def rowprep():
        e(f"ds_read_b128 {vr(WR,4)}, v125")
        e(f"ds_read_b128 {vr(WR+4,4)}, v125 offset:448")
        e(f"ds_read_b128 {vr(XR,4)}, v127")
        e(f"ds_read_b128 {vr(XR+4,4)}, v127 offset:448")
        e("v_mov_b32 v8, 0")
        e("v_mov_b32 v9, 0")
        e("s_waitcnt lgkmcnt(0)")
        e("s_mov_b64 exec, s[40:41]")
        for j in range(8):
            e(f"v_dot2c_f32_bf16 v123, s52, v{WR+j}")
        e("s_mov_b64 exec, -1")
        un = []
        for j in range(8):
            un.append(f"v_lshlrev_b32 v{T+2*j}, 16, v{XR+j}")
            un.append(f"v_and_b32 v{T+2*j+1}, s43, v{XR+j}")
        for _ in range(3): e(un.pop(0))
        for ror in (8, 4, 2, 1):
            e(f"v_add_f32_dpp v123, v123, v123 row_ror:{ror} row_mask:0xf bank_mask:0xf")
            e(un.pop(0)); e(un.pop(0))
        e("v_mov_b32 v124, v123")
        e(un.pop(0)); e(un.pop(0))
        e("v_permlane16_swap_b32 v123, v124")
        while un: e(un.pop(0))
        e("v_add_f32 v123, v123, v124")
    e("s_branch L_p2_s1")
    e("L_p2_w7:")
    rowprep()
    e("s_branch L_p2_join")
    e("L_p2_s1:")
    e("s_lshl_b32 s54, s28, 11")
    e(f"s_add_u32 s54, s54, {WS_FL1}")
    stamp(e, 1)
    sync1(e, "p", 32, "s54")
    e("s_lshl_b32 s54, s28, 7")
    e("v_lshl_add_u32 v80, v3, 4, s54")
    e("v_cmp_eq_u32 s[62:63], 0, v80")
    stamp(e, 2)
    for mm in range(2):
        for hf in range(2):
            for rb in range(2):
                e(f"s_add_u32 m0, s37, {((mm*2+hf)*2+rb)*1024}")
                e(f"s_add_u32 s54, s36, {hf*28672 + rb*14336 + mm*64}")
                e(f"buffer_load_dwordx4 v4, s[24:27], s54 offen sc1 lds")
    rowprep()
    for mm in range(2):
        e(f"s_waitcnt vmcnt({4-4*mm})")
        if mm == 1: stamp(e, 3)
        order = [(0, 0, C), (0, 1, F1), (1, 0, S), (1, 1, F3)]
        for i, (kd, hf, fr) in enumerate(order):
            for io in range(2):
                e(f"ds_read_b64_tr_b16 {vr(A+(mm*4+i)*4+2*io,2)}, v{126 if kd else 12} offset:{(mm*2+hf)*2048+io*256}")
        for i, (kd, hf, fr) in enumerate(order):
            e(f"s_waitcnt lgkmcnt({6-2*i})")
            acc = ACC + 8*mm + 4*kd
            c = "0" if hf == 0 else vr(acc, 4)
            e(f"v_mfma_f32_16x16x32_bf16 {vr(acc,4)}, {vr(A+(mm*4+i)*4,4)}, {vr(fr,4)}, {c}")
        E_, O_ = ACC + 8*mm, ACC + 8*mm + 4
        D_ = 128 + 8*mm
        e("s_nop 7")
        for r in range(4):
            e(f"v_add_f32 v{D_+r}, v{E_+r}, v{O_+r}")
        for r in range(4):
            e(f"v_sub_f32 v{D_+4+r}, v{E_+r}, v{O_+r}")
        if mm == 0:
            e(f"v_cndmask_b32 v{D_}, v{D_}, 0, s[62:63]")
        e(f"ds_write_b128 v13, {vr(D_,4)} offset:{64*mm}")
        o = 16*(1-mm)
        if mm == 0:
            e(f"ds_write_b32 v14, v{D_+4}")
            e(f"ds_write_b32 v15, v{D_+5} offset:{(o+2)*4}")
        else:
            e(f"ds_write2_b32 v15, v{D_+4}, v{D_+5} offset0:{o+3} offset1:{o+2}")
        e(f"ds_write2_b32 v15, v{D_+6}, v{D_+7} offset0:{o+1} offset1:{o}")
    e("L_p2_got:")
    if OPT.get("fl2", 0):
        e("s_lshl_b32 s54, s28, 3")
        e("s_or_b32 s54, s54, s2")
        e("s_cmp_ge_u32 s54, 8")
        e("s_cbranch_scc1 L_p2_nofl2")
        e("s_lshl_b32 s54, s54, 6")
        e(f"s_add_u32 s54, s54, {WS_FL1 + 0x4000}")
        e("s_mov_b64 exec, 1")
        e("buffer_store_dwordx2 v[224:225], off, s[24:27], s54 sc1")
        e("s_mov_b64 exec, -1")
        e("L_p2_nofl2:")
    e("s_waitcnt lgkmcnt(0)")
    e("L_p2_join:")
    stamp(e, 4)
    e("s_barrier")
    e("s_mov_b64 exec, s[40:41]")
    e(f"ds_read_b128 {vr(Y,4)}, v7")
    e(f"ds_read_b128 {vr(Y+4,4)}, v7 offset:16")
    e(f"ds_read_b128 {vr(Y+8,4)}, v7 offset:896")
    e(f"ds_read_b128 {vr(Y+12,4)}, v7 offset:912")
    for j in range(8):
        if j % 2 == 0:
            e(f"s_waitcnt lgkmcnt({3-j//2})")
        e(f"v_pk_add_f32 {vr(T+2*j,2)}, {vr(Y+2*j,2)}, {vr(T+2*j,2)}")
        if j % 2 == 1:
            e(f"v_cvt_pk_bf16_f32 v{H+j-1}, v{T+2*j-2}, v{T+2*j-1}")
            e(f"v_cvt_pk_bf16_f32 v{H+j}, v{T+2*j}, v{T+2*j+1}")
    for j in range(8):
        e(f"v_dot2c_f32_bf16 v8, s52, v{H+j}")
        e(f"v_dot2c_f32_bf16 v9, v{H+j}, v{H+j}")
        e(f"v_dot2c_f32_bf16 v122, v{H+j}, v{WR+j}")
    e("s_mov_b64 exec, -1")
    for ror in (8, 4, 2, 1):
        for r in (8, 9, 122):
            e(f"v_add_f32_dpp v{r}, v{r}, v{r} row_ror:{ror} row_mask:0xf bank_mask:0xf")
    e("v_mov_b32 v13, v8")
    e("v_mov_b32 v14, v9")
    e("v_mov_b32 v15, v122")
    e("v_permlane16_swap_b32 v8, v13")
    e("v_permlane16_swap_b32 v9, v14")
    e("v_permlane16_swap_b32 v122, v15")
    e("v_add_f32 v8, v8, v13")
    e("v_add_f32 v9, v9, v14")
    e("v_add_f32 v12, v122, v15")
    e("v_mul_f32 v8, s38, v8")
    e("v_mul_f32 v9, s38, v9")
    e("v_fma_f32 v9, -v8, v8, v9")
    e("v_max_f32 v9, 0, v9")
    e("v_cvt_pk_bf16_f32 v8, v9, v8")
    e("v_lshlrev_b32 v9, 16, v8")
    e(f"v_add_f32 v9, {fbits(1e-5)}, v9")
    e("v_cvt_pk_bf16_f32 v9, v9, v9")
    e("v_and_b32 v9, s43, v9")
    e("v_sqrt_f32 v9, v9")
    e("v_and_b32 v8, s43, v8")
    e("v_cvt_pk_bf16_f32 v13, v9, v8")
    e("v_lshlrev_b32 v9, 16, v13")
    e("v_rcp_f32 v9, v9")
    e("v_fma_f32 v12, -v8, v123, v12")
    e("v_mul_f32 v12, v12, v9")
    e("v_add_f32 v4, 1.0, v9")
    e("v_cvt_pk_bf16_f32 v12, v12, v12")
    e("v_mul_f32 v14, -v8, v9")
    e("v_ashrrev_i32 v6, 31, v12")
    e("v_mov_b32 v5, v4")
    e("v_or_b32 v6, 0x80000000, v6")
    e("v_mov_b32 v15, v14")
    e("v_xor_b32 v12, v12, v6")
    e("v_and_or_b32 v12, v12, s43, v121")
    e("ds_write2_b32 v120, v12, v13 offset0:0 offset1:16")
    def outs(lo, hi):
        for j in range(lo, hi):
            e(f"v_pk_fma_f32 {vr(T+2*j,2)}, {vr(T+2*j,2)}, v[4:5], v[14:15]")
            if j % 2 == 1:
                e(f"v_cvt_pk_bf16_f32 v{XR+j-1}, v{T+2*j-2}, v{T+2*j-1}")
                e(f"v_cvt_pk_bf16_f32 v{XR+j}, v{T+2*j}, v{T+2*j+1}")
    e("v_lshlrev_b32 v6, 2, v1")
    e(f"v_add_u32 v7, {KBUF}, v6")
    e("s_waitcnt lgkmcnt(0)")
    stamp(e, 5)
    e("s_barrier")
    e("s_cmp_lg_u32 s28, 0")
    e("s_cbranch_scc1 L_p2_nokey")
    e("ds_read_b32 v12, v7")
    e("s_mov_b32 exec_hi, 0")
    e("s_waitcnt lgkmcnt(0)")
    e("buffer_store_dword v12, v6, s[24:27], s53 offen sc1")
    e("s_mov_b64 exec, -1")
    e("L_p2_nokey:")
    outs(0, 8)
    e(f"buffer_store_dwordx4 {vr(XR,4)}, v10, s[44:47], s35 offen sc1")
    e(f"buffer_store_dwordx4 {vr(XR+4,4)}, v10, s[44:47], s35 offen offset:448 sc1")
    e("s_waitcnt vmcnt(0)")
    stamp(e, 6)
    e("s_barrier")
    e("s_cmp_lg_u32 s28, 0")
    e("s_cbranch_scc1 L_p2_end")
    e("s_mov_b64 exec, 1")
    e("v_mov_b32 v12, 1")
    e(f"s_add_u32 s53, s53, {WS_FLAG - WS_KEY}")
    e(f"buffer_store_dword v12, off, s[24:27], s53 sc1")
    e("L_p2_end:")
    stamp_flush(e, 1, 24, 7, 28)
    e("s_endpgm")

def ffn(e):
    XS, ONES, ACT, MISC, GB = 0, 7168, 14336, 15360, 16384
    DB = GB + 57344
    A, AD_, ACC = 64, 36, 32
    K = 64
    e("s_sub_u32 s29, s2, 128")
    e("s_and_b32 s37, s29, 7")
    e("s_lshr_b32 s38, s29, 3")
    e("s_mul_i32 s39, s37, 7")
    e("s_add_u32 s39, s39, s38")
    e("s_cmp_eq_u32 s28, 7")
    e("s_cbranch_scc1 L_f_poll")
    e("s_cmp_lt_u32 s28, 4")
    e("s_cbranch_scc1 L_f_comp")
    e("v_lshrrev_b32 v5, 2, v1")
    e("v_and_b32 v6, 3, v1")
    e("v_lshrrev_b32 v7, 4, v1")
    e("v_and_b32 v7, 2, v7")
    e("v_xor_b32 v6, v6, v7")
    e("s_cmp_eq_u32 s28, 5")
    e("s_cselect_b32 s40, 1, 0")
    e("v_xor_b32 v6, s40, v6")
    e("s_cmp_eq_u32 s28, 6")
    e("s_movk_i32 s41, 896")
    e("s_cselect_b32 s41, s41, 3584")
    e("s_cselect_b32 s42, 64, 114688")
    e("s_cselect_b32 s43, 28672, 64")
    e("v_mul_u32_u24 v5, s41, v5")
    e("v_lshl_add_u32 v5, v6, 4, v5")
    e("s_lshl_b32 s44, s41, 4")
    e("v_add_u32 v6, s44, v5")
    e("s_mul_i32 s43, s43, s39")
    e("s_sub_u32 s44, s28, 4")
    e("s_mul_i32 s44, s44, 28672")
    e(f"s_add_u32 s44, s44, {GB}")
    e("s_waitcnt lgkmcnt(0)")
    stamp(e, 1)
    e("s_cmp_eq_u32 s28, 5")
    e("s_cselect_b32 s48, s12, s10")
    e("s_cselect_b32 s49, s13, s11")
    e("s_cmp_eq_u32 s28, 6")
    e("s_cselect_b32 s48, s14, s48")
    e("s_cselect_b32 s49, s15, s49")
    e(f"s_mov_b32 s50, {WBYTES:#x}")
    e("s_mov_b32 s51, 0x20000")
    e("s_add_u32 s45, s44, 28672")
    e("s_barrier")
    if OPT.get("seq", 0):
        e(f"v_mov_b32 v8, {MISC}")
        e("s_sub_u32 s46, s28, 4")
        e("L_f_turn:")
        e("ds_read_b32 v9, v8")
        e("s_waitcnt lgkmcnt(0)")
        e("v_cmp_le_u32 vcc, s46, v9")
        e("s_cbranch_vccnz L_f_dma")
        e("s_sleep 2")
        e("s_branch L_f_turn")
    e("L_f_dma:")
    e("s_mov_b32 m0, s44")
    e("s_add_u32 s44, s44, 2048")
    e("buffer_load_dwordx4 v5, s[48:51], s43 offen lds")
    e("s_add_u32 m0, m0, 1024")
    e("s_nop 0")
    e("buffer_load_dwordx4 v6, s[48:51], s43 offen lds")
    e("s_add_u32 s43, s43, s42")
    e("s_cmp_lt_u32 s44, s45")
    e("s_cbranch_scc1 L_f_dma")
    stamp(e, 2)
    e(f"v_mov_b32 v5, {MISC}")
    e("v_mov_b32 v6, 1")
    e("s_mov_b64 exec, 1")
    e("s_waitcnt vmcnt(0)")
    e("ds_add_u32 v5, v6")
    e("s_waitcnt lgkmcnt(0)")
    if DIAG:
        srd(e, 24, 20, WS_SIZE)
        stamp_flush(e, 1, 24, 3, 28)
    e("s_endpgm")

    e("L_f_comp:")
    e("v_mov_b32 v8, 0x3f803f80")
    e("v_mov_b32 v9, v8")
    e("v_mov_b32 v10, v8")
    e("v_mov_b32 v11, v8")
    e("v_lshlrev_b32 v5, 4, v0")
    e(f"ds_write_b128 v5, v[8:11] offset:{ONES}")
    e(f"ds_write_b128 v5, v[8:11] offset:{ONES+3072}")
    e("v_mov_b32 v6, 0")
    e(f"v_mov_b32 v7, {MISC}")
    e("ds_write_b32 v7, v6")
    e("s_waitcnt lgkmcnt(0)")
    stamp(e, 1)
    e("s_barrier")
    srd(e, 24, 20, WS_SIZE)
    e("v_lshrrev_b32 v8, 2, v2")
    e("v_bfe_u32 v9, v2, 1, 1")
    e("v_and_b32 v10, 1, v3")
    e("v_and_b32 v13, 1, v2")
    e("v_lshlrev_b32 v13, 3, v13")
    e("v_lshl_add_u32 v11, v10, 1, v9")
    e("v_xor_b32 v11, s28, v11")
    e("v_lshl_add_u32 v14, v3, 3, v8")
    e("v_lshl_add_u32 v14, v14, 6, v13")
    e("v_lshl_add_u32 v14, v11, 4, v14")
    e("v_mul_u32_u24 v11, 28672, v9")
    e(f"s_movk_i32 s42, {GB}")
    e("v_add3_u32 v14, v14, v11, s42")
    e("v_lshl_add_u32 v8, v10, 3, v8")
    e("v_lshl_add_u32 v15, v8, 6, v13")
    e("s_and_b32 s42, s28, 1")
    e("v_xor_b32 v10, s42, v10")
    e("v_lshl_add_u32 v10, v10, 1, v9")
    e("v_lshl_add_u32 v15, v10, 4, v15")
    e("v_lshrrev_b32 v10, 1, v3")
    e("v_lshl_add_u32 v15, v10, 10, v15")
    e("s_lshr_b32 s42, s28, 1")
    e("s_lshl_b32 s42, s42, 11")
    e(f"s_add_u32 s42, s42, {DB}")
    e("v_add_u32 v15, s42, v15")
    e("v_and_b32 v8, 7, v2")
    e("v_and_b32 v9, 6, v2")
    e("v_xor_b32 v9, v9, v3")
    e("v_lshlrev_b32 v8, 7, v8")
    e("v_lshl_add_u32 v12, v9, 4, v8")
    e("v_cmp_gt_u32 vcc, 8, v2")
    e(f"v_mov_b32 v8, {ONES}")
    e("v_lshlrev_b32 v6, 4, v2")
    e("v_cndmask_b32 v12, v8, v12, vcc")
    e("v_xor_b32 v13, 64, v12")
    e("v_lshl_add_u32 v6, v3, 7, v6")
    e("v_mov_b32 v8, 0x7ff00000")
    e("v_cndmask_b32 v6, v8, v6, vcc")
    e("s_lshl_b32 s42, s28, 8")
    e(f"s_add_u32 s42, s42, {ACT}")
    e("v_lshl_add_u32 v5, v2, 4, s42")
    e("v_lshl_add_u32 v5, v3, 3, v5")
    e("s_mul_i32 s44, s39, 14336")
    e("s_lshl_b32 s42, s28, 9")
    e("s_add_u32 s44, s44, s42")
    e(f"s_add_u32 s44, s44, {WS_PART}")
    for j in range(1, 4):
        e(f"s_add_u32 s{44+j}, s44, {4096*j}")
    e(f"s_mov_b32 s42, {fbits(-1.4426950408889634)}")
    e("v_and_b32 v11, 7, v2")
    e("v_lshlrev_b32 v11, 2, v11")
    e("L_f_wait:")
    e("s_sleep 2")
    e("ds_read_b32 v8, v7")
    e("s_waitcnt lgkmcnt(0)")
    e("v_cmp_ne_u32 vcc, 3, v8")
    e("s_cbranch_vccnz L_f_wait")
    stamp(e, 2)
    for k in range(14):
        for io in range(2):
            e(f"ds_read_b64_tr_b16 {vr(A+4*k+2*io,2)}, v14 offset:{k*2048+io*256}")
    for i in range(7):
        for io in range(2):
            e(f"ds_read_b64_tr_b16 {vr(AD_+4*i+2*io,2)}, v15 offset:{i*4096+io*256}")
    e("s_waitcnt lgkmcnt(0)")
    stamp(e, 3)
    e("s_barrier")
    stamp(e, 4)
    BR = [16, 20, 24, 28, 120, 124]
    def rdx(k):
        e(f"ds_read_b128 {vr(BR[k%6],4)}, v{12 + (k&1)} offset:{XS + (k>>1)*1024}")
    for k in range(5): rdx(k)
    e(f"ds_read_b32 v10, v11 offset:{MISC+64}")
    for k in range(14):
        if k + 5 < 14:
            rdx(k + 5)
        n_after = min(k + 5, 13) - k + (1 if k < 5 else 0)
        e(f"s_waitcnt lgkmcnt({n_after})")
        c = "0" if k == 0 else vr(ACC, 4)
        e(f"v_mfma_f32_16x16x32_bf16 {vr(ACC,4)}, {vr(A+4*k,4)}, {vr(BR[k%6],4)}, {c}")
        if k == 6:
            e("v_lshlrev_b32 v9, 16, v10")
            e("v_add_f32 v9, 1.0, v9")
        if k == 8:
            e("v_and_b32 v10, 0xffff0000, v10")
            e("v_rcp_f32 v9, v9")
    e("s_nop 7")
    for r in range(4):
        e(f"v_mov_b32_dpp v{16+r}, v{ACC+r} row_newbcast:8 row_mask:0xf bank_mask:0xf")
    for r in range(4):
        e(f"v_fma_f32 v{ACC+r}, -v10, v{16+r}, v{ACC+r}")
    for r in range(4):
        e(f"v_mul_f32 v{ACC+r}, v{ACC+r}, v9")
    e("s_nop 0")
    for r in range(4):
        e(f"v_permlane32_swap_b32 v{ACC+r}, v{20+r}")
    for r in range(4):
        e(f"v_mul_f32 v{16+r}, s42, v{ACC+r}")
    for r in range(4):
        e(f"v_exp_f32 v{16+r}, v{16+r}")
    for r in range(4):
        e(f"v_mul_f32 v{ACC+r}, v{ACC+r}, v{20+r}")
    for r in range(4):
        e(f"v_add_f32 v{16+r}, 1.0, v{16+r}")
    for r in range(4):
        e(f"v_rcp_f32 v{16+r}, v{16+r}")
    e("s_mov_b32 exec_hi, 0")
    for r in range(4):
        e(f"v_mul_f32 v{ACC+r}, v{ACC+r}, v{16+r}")
    e(f"v_cvt_pk_bf16_f32 v16, v{ACC}, v{ACC+1}")
    e(f"v_cvt_pk_bf16_f32 v17, v{ACC+2}, v{ACC+3}")
    e("ds_write_b64 v5, v[16:17]")
    e("s_mov_b32 exec_hi, -1")
    e("s_waitcnt lgkmcnt(0)")
    stamp(e, 5)
    e("s_barrier")
    e(f"ds_read_b128 v[16:19], v4 offset:{ACT}")
    e("s_waitcnt lgkmcnt(0)")
    for i in range(7):
        e(f"v_mfma_f32_16x16x32_bf16 {vr(A+4*i,4)}, {vr(AD_+4*i,4)}, v[16:19], 0")
    e("s_nop 1")
    for i in range(7):
        e(f"buffer_store_dwordx4 {vr(A+4*i,4)}, v6, s[24:27], s{44+(i>>1)} offen offset:{2048*(i&1)} sc1")
    stamp(e, 6)
    B4 = OPT.get("b4", 0)
    if B4 >= 0:
        e(f"s_waitcnt vmcnt({B4})")
        e("s_barrier")
    stamp_flush(e, 1, 24, 7, 28)
    e("s_endpgm")

    e("L_f_poll:")
    PFL = ["sc1", "sc0 sc1"][OPT.get("pfl", 0)]
    e("s_setprio 3")
    e("v_lshrrev_b32 v4, 2, v1")
    e("v_lshlrev_b32 v4, 7, v4")
    e("v_and_b32 v5, 3, v1")
    e("v_lshl_add_u32 v4, v5, 4, v4")
    e("s_mov_b32 s46, 0")
    e("s_mov_b32 s47, 0")
    e("v_lshrrev_b32 v5, 3, v1")
    e("v_and_b32 v6, 7, v1")
    e("v_lshlrev_b32 v13, 2, v6")
    e("v_and_b32 v7, 6, v5")
    e("v_xor_b32 v6, v6, v7")
    e("v_lshlrev_b32 v6, 4, v6")
    e("v_lshlrev_b32 v5, 2, v5")
    e("v_bfe_u32 v14, v1, 3, 1")
    e("s_lshl_b32 s42, s39, 4")
    e("v_lshl_add_u32 v14, v14, 3, s42")
    e("v_mul_u32_u24 v24, 14336, v3")
    e("v_lshl_add_u32 v24, v2, 4, v24")
    e("v_add_u32 v25, 57344, v24")
    e("v_add_u32 v26, 57344, v25")
    e("v_add_u32 v27, 57344, v26")
    e("s_lshl_b32 s52, s39, 8")
    e(f"s_add_u32 s52, s52, {WS_PART}")
    for j in range(1, 4):
        e(f"s_add_u32 s{52+j}, s52, {4*57344*j}")
    e("v_mov_b32 v8, 0")
    e("v_mov_b32 v9, 0")
    e("v_mov_b32 v10, 0")
    e("v_lshlrev_b32 v7, 12, v1")
    e("v_lshlrev_b32 v19, 7, v1")
    e("s_movk_i32 s44, 896")
    e("s_mov_b32 s45, 0xffff0000")
    e("s_waitcnt lgkmcnt(0)")
    stamp(e, 1)
    srd(e, 24, 20, WS_SIZE)
    srd(e, 48, 16, XBYTES)
    if not OPT.get("b0late", 1): e("s_barrier")
    if OPT.get("sall", 0):
        sync_all(e)
    else:
        e(f"s_mov_b32 s62, {WS_FL1:#x}")
        sync1(e, "f", 8, "s62")
        if OPT.get("fl2", 0):
            e("s_lshl_b32 s62, s37, 6")
            e(f"s_add_u32 s62, s62, {WS_FL1 + 0x4000}")
            sync1(e, "g", 1, "s62")
    if OPT.get("b0late", 1): e("s_barrier")
    for j in range(4):
        e(f"s_mov_b32 s{58+j}, {WS_KEY+4096*j:#x}")
    e(f"s_mov_b32 s56, {WS_FLAG:#x}")
    e(f"s_mov_b32 s57, {WS_FLAG+8192:#x}")
    e("s_mov_b64 exec, 0xf")
    e("L_f_p0:")
    e("s_sleep 2")
    e("buffer_load_dword v11, v7, s[24:27], s58 offen offset:3968 " + PFL)
    e("s_add_u32 s47, s47, 1")
    e("s_waitcnt vmcnt(0)")
    e("v_cmp_ne_u32 vcc, 0, v11")
    e("s_cbranch_vccnz L_f_p1")
    e("s_cmp_lt_u32 s47, 0x40000")
    e("s_cbranch_scc1 L_f_p0")
    e("L_f_p1:")
    e("s_mov_b64 exec, -1")
    e("L_f_pk:")
    for i in range(8):
        e(f"buffer_load_dwordx4 {vr(K+4*i,4)}, v4, s[24:27], s{58+(i>>1)} offen offset:{(i&1)*2048} " + PFL)
    e("s_add_u32 s47, s47, 1")
    e(".p2align 3")
    for i in range(8):
        e(f"s_waitcnt vmcnt({7-i})")
        e("s_nop 0")
        k0 = K + 4*i
        if i == 0:
            e(f"v_max3_u32 v8, v{k0}, v{k0+1}, v{k0+2}")
            e(f"v_med3_u32 v9, v{k0}, v{k0+1}, v{k0+2}")
            e(f"v_min3_u32 v10, v{k0}, v{k0+1}, v{k0+2}")
            e(f"v_min3_u32 v11, v10, v{k0+3}, v{k0+3}")
            rest = [k0+3]
        else:
            e(f"v_min3_u32 v11, v11, v{k0}, v{k0+1}")
            e(f"v_min3_u32 v11, v11, v{k0+2}, v{k0+3}")
            rest = [k0, k0+1, k0+2, k0+3]
        for k in rest:
            e(f"v_med3_u32 v10, v9, v10, v{k}")
            e(f"v_med3_u32 v9, v8, v9, v{k}")
            e(f"v_max_u32_e64 v8, v8, v{k}")
    e("v_cmp_eq_u32 vcc, 0, v11")
    e("s_cbranch_vccz L_f_keys")
    e("s_cmp_lt_u32 s47, 0x40000")
    e("s_cbranch_scc1 L_f_pk")
    e("L_f_keys:")
    stamp(e, 2)
    FR = OPT.get("fr", 2)
    def flagloads():
        e("buffer_load_dword v28, v19, s[24:27], s56 offen sc1")
        e("buffer_load_dword v29, v19, s[24:27], s57 offen sc1")
    side = []
    WARM = OPT.get("warm", 1)
    flagloads()
    if WARM:
        side += ["v_max_u32_dpp v21, v8, v8 quad_perm:[1,0,3,2] row_mask:0xf bank_mask:0xf\nv_not_b32 v22, v8",
                 "v_max_u32_dpp v21, v21, v21 quad_perm:[2,3,0,1] row_mask:0xf bank_mask:0xf\nv_not_b32 v23, v9",
                 "v_max_u32_dpp v21, v21, v21 row_half_mirror row_mask:0xf bank_mask:0xf\nv_and_b32 v22, 0x7ff, v22",
                 "v_min_u32_dpp v21, v21, v21 row_mirror row_mask:0xf bank_mask:0xf\nv_and_b32 v23, 0x7ff, v23",
                 "v_min_u32_dpp v21, v21, v21 row_bcast:15 row_mask:0xa bank_mask:0xf\nv_mul_u32_u24 v22, s44, v22",
                 "v_min_u32_dpp v21, v21, v21 row_bcast:31 row_mask:0xc bank_mask:0xf\nv_mul_u32_u24 v23, s44, v23",
                 "v_readlane_b32 s43, v21, 63\nv_mov_b32 v20, 0x7ff00000",
                 "v_cmp_le_u32 s[62:63], s43, v30\nv_cmp_le_u32 s[40:41], s43, v31",
                 "s_nop 0\nv_cndmask_b32 v22, v20, v22, s[62:63]",
                 "v_cndmask_b32 v23, v20, v23, s[40:41]\nbuffer_load_dword v17, v22, s[48:51], 0 offen sc1"]
        tl = [f"buffer_load_dword v17, v22, s[48:51], 0 offen offset:{128*j} sc1" for j in range(1, 7)] + \
             [f"buffer_load_dword v16, v23, s[48:51], 0 offen offset:{128*j} sc1" for j in range(7)]
        while tl:
            side.append("\n".join(tl[:3])); tl = tl[3:]
        e("v_mov_b32 v30, v8")
        e("v_mov_b32 v31, v9")
    for rd in range(8):
        for si, st in enumerate(DPP6):
            if si == 0:
                e(f"v_max_u32_dpp v11, v8, v8 {st} bank_mask:0xf bound_ctrl:0")
            else:
                e(f"v_max_u32_dpp v11, v11, v11 {st} bank_mask:0xf")
            if si < 5:
                if side:
                    x = side.pop(0)
                    e(x)
                    if "\n" not in x: e("s_nop 0")
                else:
                    e("s_nop 1")
        e("s_nop 0")
        e("v_readlane_b32 s42, v11, 63")
        e("s_nop 1")
        e("v_cmp_eq_u32 vcc, s42, v8")
        e(f"v_writelane_b32 v12, s42, {rd}")
        e("s_nop 0")
        e("v_cndmask_b32 v8, v8, v9, vcc")
        e("v_cndmask_b32 v9, v9, v10, vcc")
        e("v_cndmask_b32 v10, v10, 0, vcc")
    e("v_cmp_eq_u32 vcc, 0, v8")
    e("s_cbranch_vccz L_f_topdone")
    e("s_mov_b32 m0, 0")
    e("s_mov_b32 s42, -1")
    e("L_f_slow:")
    e(f"v_sub_u32 v8, s42, v{K}")
    e(f"v_sub_u32 v9, s42, v{K+1}")
    e("v_min_u32 v8, v8, v9")
    for i in range(2, 32, 2):
        e(f"v_sub_u32 v9, s42, v{K+i}")
        e(f"v_sub_u32 v10, s42, v{K+i+1}")
        e("v_min3_u32 v8, v8, v9, v10")
    for st in DPP6:
        e("s_nop 1")
        e(f"v_min_u32_dpp v8, v8, v8 {st} bank_mask:0xf")
    e("s_nop 0")
    e("v_readlane_b32 s47, v8, 63")
    e("s_nop 3")
    e("s_sub_u32 s42, s42, s47")
    e("v_writelane_b32 v12, s42, m0")
    e("s_sub_u32 s42, s42, 1")
    e("s_add_u32 m0, m0, 1")
    e("s_cmp_lt_u32 m0, 8")
    e("s_cbranch_scc1 L_f_slow")
    e("L_f_topdone:")
    stamp(e, 3)
    e("ds_bpermute_b32 v8, v5, v12")
    e("ds_bpermute_b32 v15, v13, v12")
    e("s_mov_b32 s47, 0")
    e("s_waitcnt lgkmcnt(1)")
    e("v_not_b32 v8, v8")
    e("v_and_b32 v8, 0x7ff, v8")
    e("v_mad_u32_u24 v31, v8, s44, v6")
    e(f"s_waitcnt vmcnt({14 if WARM else 0})")
    e("L_f_gather:")
    e(f"s_mov_b32 m0, {XS}")
    e("v_mov_b32 v8, v31")
    for j in range(7):
        e(f"buffer_load_dwordx4 v8, s[48:51], 0 offen sc1 lds")
        if j < 6:
            e(f"s_mov_b32 m0, {XS + 1024*(j+1)}")
            e("v_add_u32 v8, 128, v8")
    e("s_waitcnt lgkmcnt(0)")
    e("v_not_b32 v9, v15")
    e("v_and_b32 v9, 0x7ff, v9")
    e("v_mad_u32_u24 v20, v9, s44, v14")
    e("v_and_b32 v21, 63, v9")
    e("v_and_b32 v22, 31, v9")
    e("v_lshrrev_b32 v23, 10, v9")
    e("v_lshl_add_u32 v22, v23, 5, v22")
    e("v_lshrrev_b32 v23, 5, v21")
    e("v_lshl_add_u32 v10, v23, 6, v22")
    e("v_bfe_u32 v23, v9, 6, 4")
    e("v_lshlrev_b32 v10, 7, v10")
    e("v_lshl_add_u32 v10, v23, 2, v10")
    e("buffer_load_dword v11, v10, s[24:27], s58 offen offset:64 sc1")
    e("buffer_load_dwordx2 v[16:17], v20, s[48:51], 0 offen sc1")
    e("v_lshlrev_b32 v22, 2, v22")
    e("ds_bpermute_b32 v23, v22, v28")
    e("ds_bpermute_b32 v22, v22, v29")
    e("v_cmp_gt_u32 vcc, 32, v21")
    e("s_add_u32 s47, s47, 1")
    e("s_waitcnt lgkmcnt(0)")
    e("v_cndmask_b32 v22, v22, v23, vcc")
    e("v_cmp_eq_u32 vcc, 0, v22")
    e("s_cbranch_vccz L_f_flagok")
    flagloads()
    e("s_waitcnt vmcnt(0)")
    e("s_cmp_lt_u32 s47, 0x40000")
    e("s_cbranch_scc1 L_f_gather")
    e("L_f_flagok:")
    e("v_lshlrev_b32 v30, 2, v1")
    e("s_waitcnt vmcnt(1)")
    e("s_mov_b64 exec, 0xff")
    e(f"ds_write_b32 v30, v11 offset:{MISC+64}")
    e("s_mov_b64 exec, -1")
    e("s_waitcnt lgkmcnt(0)")
    stamp(e, 4)
    e("s_barrier")
    e("v_ashrrev_i32 v9, 31, v15")
    e("v_not_b32 v9, v9")
    e("v_or_b32 v9, 0x80000000, v9")
    e("v_xor_b32 v15, v15, v9")
    e("v_and_b32 v15, s45, v15")
    e(f"v_mul_f32 v18, {fbits(-1.4426950408889634)}, v15")
    e("v_exp_f32 v18, v18")
    e("v_mov_b32 v10, 1.0")
    e("v_add_f32 v18, 1.0, v18")
    e("v_rcp_f32 v18, v18")
    e("s_mov_b32 s47, 0")
    e("v_cvt_pk_bf16_f32 v18, v18, v18")
    e("v_and_b32 v18, s45, v18")
    e("v_mov_b32 v14, v20")
    e("s_waitcnt vmcnt(0)")
    e("v_lshlrev_b32 v20, 16, v16")
    e("v_and_b32 v21, s45, v16")
    e("v_lshlrev_b32 v22, 16, v17")
    e("v_and_b32 v23, s45, v17")
    e("s_barrier")
    if B4 >= 0:
        e("s_barrier")
    stamp(e, 5)
    P = 64
    e("L_f_pp:")
    for i in range(14):
        e(f"buffer_load_dwordx4 {vr(P+4*i,4)}, v{24+(i&3)}, s[24:27], s{52+(i>>2)} offen sc1")
    e("s_add_u32 s47, s47, 1")
    e("s_waitcnt vmcnt(12)")
    e(f"v_pk_add_f32 v[28:29], {vr(P,2)}, {vr(P+4,2)}")
    e(f"v_pk_add_f32 v[30:31], {vr(P+2,2)}, {vr(P+6,2)}")
    for i in range(2, 14):
        e(f"s_waitcnt vmcnt({13-i})")
        e(f"v_pk_add_f32 v[28:29], v[28:29], {vr(P+4*i,2)}")
        e(f"v_pk_add_f32 v[30:31], v[30:31], {vr(P+4*i+2,2)}")
    e("v_add_f32 v8, v28, v29")
    e("v_add_f32 v9, v30, v31")
    e("v_cmp_u_f32 vcc, v8, v9")
    e("s_cbranch_vccz L_f_got")
    e(f"v_max3_u32 v8, v{P}, v{P+1}, v{P+2}")
    for i in range(3, 55, 2):
        e(f"v_max3_u32 v8, v8, v{P+i}, v{P+i+1}")
    e(f"v_max_u32 v8, v8, v{P+55}")
    e("v_cmp_eq_u32 vcc, -1, v8")
    e("s_cbranch_vccz L_f_got")
    e("s_cmp_lt_u32 s47, 0x40000")
    e("s_cbranch_scc1 L_f_pp")
    e("L_f_got:")
    stamp(e, 6)
    for r in range(4):
        e(f"v_mfma_f32_16x16x4_f32 {vr(32+4*r,4)}, v10, v{28+r}, 0")
    e("s_nop 7")
    e("s_nop 0")
    e("v_cvt_pk_bf16_f32 v16, v32, v36")
    e("v_cvt_pk_bf16_f32 v17, v40, v44")
    e("v_lshlrev_b32 v24, 16, v16")
    e("v_and_b32 v25, s45, v16")
    e("v_lshlrev_b32 v26, 16, v17")
    e("v_and_b32 v27, s45, v17")
    for r in range(4):
        e(f"v_mul_f32 v{24+r}, v{24+r}, v18")
    e("v_cvt_pk_bf16_f32 v16, v24, v25")
    e("v_cvt_pk_bf16_f32 v17, v26, v27")
    e("v_lshlrev_b32 v24, 16, v16")
    e("v_and_b32 v25, s45, v16")
    e("v_lshlrev_b32 v26, 16, v17")
    e("v_and_b32 v27, s45, v17")
    for r in range(4):
        e(f"v_add_f32 v{24+r}, v{24+r}, v{20+r}")
    e("v_cvt_pk_bf16_f32 v16, v24, v25")
    e("v_cvt_pk_bf16_f32 v17, v26, v27")
    e("s_mov_b64 exec, 0xffff")
    e("buffer_store_dwordx2 v[16:17], v14, s[48:51], 0 offen" + (" sc1" if OPT.get("fsc1", 1) else ""))
    stamp_flush(e, 1, 24, 7, 28)

if __name__ == "__main__":
    for a in sys.argv[2:]:
        if a == "diag":
            DIAG = True; gen.DIAG = True
        else:
            k, v = a.split("=")
            OPT[k] = int(v)
    build([ka], sys.argv[1])
    if not OPT.get("aslist", 0):
        t = open(sys.argv[1]).read().replace("; @launch kernel=" + NAME + "_kernel grid", "; @launch grid")
        open(sys.argv[1], "w").write(t)
```

```python
import struct, sys
from gen import E, fbits, vr, ar, srd, header, build, NAME
import gen

WS_V    = 0x000000
WS_KEY  = 0x300000
WS_FLAG = 0x304000
WS_PART = 0x308000
WS_FL1  = 0x3E0000
WS_SIZE = 0x10000000
XBYTES  = 2048*896
WBYTES  = 448*1792*2
WS_DIAG = 0x800000
LDS_XROW = 140288
XRS = 1040
DIAG = False
OPT = {}
DPP6 = ["row_shr:1 row_mask:0xf", "row_shr:2 row_mask:0xf", "row_shr:4 row_mask:0xf", "row_shr:8 row_mask:0xf",
        "row_bcast:15 row_mask:0xa", "row_bcast:31 row_mask:0xc"]

def stamp(e, i):
    if DIAG:
        e(f"s_mem{'time' if OPT.get('cyc', 0) and i in (4, 5) else 'realtime'} s[{64+2*i}:{65+2*i}]")
        e("s_waitcnt lgkmcnt(0)")
def stamp_flush(e, kid, srdreg, nst, wavereg):
    if DIAG:
        e("s_mov_b64 exec, -1")
        e(f"s_memrealtime s[{64+2*nst}:{65+2*nst}]")
        e("s_waitcnt lgkmcnt(0)")
        for i in range(nst+1):
            e(f"v_writelane_b32 v230, s{64+2*i}, {i}")
        e(f"s_lshl_b32 s90, s2, 3")
        e(f"s_add_u32 s90, s90, s{wavereg}")
        e(f"s_lshl_b32 s90, s90, 6")
        e(f"s_add_u32 s90, s90, {WS_DIAG + kid*0x40000}")
        e("v_mbcnt_lo_u32_b32 v231, -1, 0")
        e("v_lshlrev_b32 v231, 2, v231")
        e("s_mov_b32 exec_lo, 0xffff")
        e("s_mov_b32 exec_hi, 0")
        e(f"buffer_store_dword v230, v231, s[{srdreg}:{srdreg+3}], s90 offen")
        e("s_mov_b64 exec, -1")

class Lds:
    def __init__(self, e):
        self.e = e; self.q = []
    def issue(self, tag, ins):
        self.e(ins); self.q.append(tag)
    def need(self, tag):
        if tag not in self.q: return
        last = max(i for i, t in enumerate(self.q) if t == tag)
        n = len(self.q) - 1 - last
        assert n <= 15, n
        self.e(f"s_waitcnt lgkmcnt({n})")
        self.q = self.q[last+1:]

def tagcheck(e, u):
    e("s_mov_b32 s63, 0")
    e(f"L_tag{u}:")
    e("v_cmp_ne_u32 vcc, 0, v224")
    e(f"s_cbranch_vccnz L_tagok{u}")
    if u != "a": srd(e, 56, 18, 256)
    e("buffer_load_dwordx2 v[224:225], off, s[56:59], 0 sc1")
    e("s_add_u32 s63, s63, 1")
    e("s_waitcnt vmcnt(0)")
    e("s_cmp_lt_u32 s63, 0x40000")
    e(f"s_cbranch_scc1 L_tag{u}")
    e(f"L_tagok{u}:")

def touch_setup(e, nch):
    e(f"s_cmp_lt_u32 s42, {nch}")
    e(f"s_cselect_b32 s38, {WBYTES:#x}, 0")
    e("s_cmp_ge_u32 s42, 196")
    e("s_cselect_b32 s36, s48, s46")
    e("s_cselect_b32 s37, s49, s47")
    e("s_cselect_b32 s34, 196, 0")
    e("s_cmp_ge_u32 s42, 392")
    e("s_cselect_b32 s36, s50, s36")
    e("s_cselect_b32 s37, s51, s37")
    e("s_cselect_b32 s34, 392, s34")
    e("s_sub_u32 s42, s42, s34")
    e("s_lshl_b32 s42, s42, 13")
    e("s_mov_b32 s39, 0x20000")
    e("v_lshlrev_b32 v216, 7, v1")
    e("v_add_u32 v216, s42, v216")

def xtouch(e, u, unit, gp, dst):
    e("s_and_b32 s30, s2, 7")
    e(f"s_cmp_ge_u32 s{unit}, 56")
    e(f"s_cbranch_scc1 L_xt_d{u}")
    e(f"s_cmp_ge_u32 s{unit}, 28")
    e("s_cselect_b32 s31, 28, 0")
    e(f"s_cselect_b32 s24, s{gp+2}, s{gp}")
    e(f"s_cselect_b32 s25, s{gp+3}, s{gp+1}")
    e(f"s_sub_u32 s29, s{unit}, s31")
    e("s_mul_i32 s29, s29, 57344")
    e("s_mul_i32 s30, s30, 448")
    e("s_and_b32 s30, s30, 0xffffff80")
    e("s_add_u32 s29, s29, s30")
    e("v_lshrrev_b32 v8, 2, v1")
    e("v_mul_u32_u24 v8, 3584, v8")
    e("v_and_b32 v9, 3, v1")
    e("v_lshl_add_u32 v8, v9, 7, v8")
    e(f"s_branch L_xt_go{u}")
    e(f"L_xt_d{u}:")
    e(f"s_mov_b32 s24, s{gp+4}")
    e(f"s_mov_b32 s25, s{gp+5}")
    e(f"s_sub_u32 s29, s{unit}, 56")
    e("s_lshl_b32 s29, s29, 13")
    e(f"s_mul_i32 s30, s30, {224*896}")
    e("s_add_u32 s29, s29, s30")
    e(f"s_cmp_ge_u32 s{unit}, 81")
    e("s_cselect_b32 s29, 0x7ff00000, s29")
    e("v_lshlrev_b32 v8, 7, v1")
    e(f"L_xt_go{u}:")
    e("v_add_u32 v8, s29, v8")
    e(f"s_mov_b32 s26, {WBYTES:#x}")
    e("s_mov_b32 s27, 0x20000")
    e(f"buffer_load_dword v{dst}, v8, s[24:27], 0 offen")

def ka(e):
    header(e, NAME + "_kernel")
    X, ACC, CUR, PRV, PK, RF, BB = 64, 32, 16, 24, 48, 56, 120
    SUM, GRM = 32, 36
    LDS_X, LDS_Z = 57344, 114688
    LDS_R = LDS_Z + 8192
    LDS_ST = LDS_R + 8192
    LDS_CS = LDS_ST + 512
    LDS_TB = LDS_CS + 512
    LDS_XR = LDS_XROW
    assert LDS_TB + 8192 == LDS_XROW
    e("s_cmp_ge_u32 s2, 256")
    e("s_cbranch_scc1 L_ka_end")
    stamp(e, 0)
    e("s_load_dwordx2 s[4:5], s[0:1], 0")
    e("s_load_dwordx2 s[6:7], s[0:1], 96")
    e("s_load_dwordx8 s[44:51], s[0:1], 48")
    e("s_load_dwordx2 s[60:61], s[0:1], 88")
    e("v_lshrrev_b32 v1, 6, v0")
    e("v_and_b32 v2, 15, v0")
    e("v_readfirstlane_b32 s43, v1")
    e("v_bfe_u32 v3, v0, 4, 2")
    e("v_and_b32 v1, 63, v0")
    e("s_cmp_ge_u32 s2, 224")
    e("s_cbranch_scc1 L_ka_spare")
    e("s_and_b32 s16, s43, 3")
    e("s_and_b32 s20, s2, 31")
    e("s_lshr_b32 s19, s2, 5")
    e("s_lshr_b32 s21, s16, 1")
    e("s_and_b32 s22, s16, 1")
    e("s_mul_i32 s29, s16, 14336")
    e(f"s_add_u32 s41, s29, {LDS_X}")
    e("s_mov_b32 s28, 0x3f803f80")
    e("s_cmp_ge_u32 s43, 4")
    e("s_cbranch_scc1 L_ka_help")

    def common_addr():
        e("v_lshlrev_b32 v11, 4, v1")
        e("v_and_b32 v12, 6, v2")
        e("v_xor_b32 v12, v12, v3")
        e("v_and_b32 v14, 7, v2")
        e("v_lshlrev_b32 v14, 7, v14")
        e("v_lshl_add_u32 v14, v12, 4, v14")
        e("v_lshrrev_b32 v12, 3, v2")
        e("v_lshl_add_u32 v14, v12, 10, v14")
        e("v_add_u32 v14, s41, v14")
        e("v_xor_b32 v15, 64, v14")
        e("v_lshrrev_b32 v12, 2, v1")
        e("v_and_b32 v53, 3, v1")
        e("v_bfe_u32 v10, v1, 3, 2")
        e("v_xor_b32 v10, v10, v53")
        e("v_lshlrev_b32 v10, 4, v10")
        e("v_lshl_add_u32 v10, v12, 6, v10")
        e("v_mul_u32_u24 v12, 57344, v12")
        e("v_lshl_add_u32 v53, v53, 4, v12")
        e("s_lshl_b32 s24, s43, 10")
        e(f"s_add_u32 s24, s24, {LDS_TB}")
        e("v_add_u32 v10, s24, v10")
        e("v_bfe_u32 v12, v2, 1, 2")
        e("v_xor_b32 v12, v12, v3")
        e("v_lshlrev_b32 v12, 4, v12")
        e("v_lshl_add_u32 v12, v2, 6, v12")
        e("v_add_u32 v8, s24, v12")
        e("s_mul_i32 s24, s22, 917504")
        e("s_mul_i32 s25, s21, 28672")
        e("s_add_u32 s24, s24, s25")
        e("s_lshl_b32 s25, s19, 7")
        e("s_add_u32 s24, s24, s25")
        e("s_mul_i32 s25, s20, 896")
        e("s_add_u32 s30, s24, s25")
        e("s_lshl_b32 s24, s16, 11")
        e(f"s_add_u32 s24, s24, {LDS_R}")
        e("v_add_u32 v52, s24, v11")
    def gemm2(hh):
        e(f"v_add_u32 v54, {LDS_Z + hh*4096}, v11")
        e("s_barrier")
        for j in range(4):
            e(f"ds_read_b128 {vr(X+4*j,4)}, v54 offset:{j*1024}")
        for n in range(2):
            e(f"s_waitcnt lgkmcnt({2-2*n})")
            e(f"v_mfma_f32_16x16x32_bf16 {vr(40+4*n,4)}, {vr(X+8*n,4)}, {vr(RF,4)}, 0")
            e(f"v_mfma_f32_16x16x32_bf16 {vr(40+4*n,4)}, {vr(X+8*n+4,4)}, {vr(RF+4,4)}, {vr(40+4*n,4)}")
        e("s_nop 4")
        e("v_cvt_pk_bf16_f32 v16, v40, v41")
        e("v_cvt_pk_bf16_f32 v17, v42, v43")
        e("s_nop 0")
        e("v_cvt_pk_bf16_f32 v18, v44, v45")
        e("v_cvt_pk_bf16_f32 v19, v46, v47")
        e("ds_write_b128 v8, v[16:19]")
        e("s_waitcnt lgkmcnt(0)")
        e("ds_read_b128 v[20:23], v10")
        e("s_waitcnt lgkmcnt(0)")
        e(f"buffer_store_dwordx4 v[20:23], v53, s[12:15], s30 offen offset:{64*hh} sc1")
        stamp(e, 7)
        e("v_lshlrev_b32 v226, 6, v1")
        e("s_waitcnt vmcnt(0)")
        stamp(e, 8)
        e("s_barrier")
        if hh:
            e("s_cmp_lg_u32 s43, 4")
            e("s_cbranch_scc1 L_ka_noflag")
            tagcheck(e, "a")
            e("s_lshl_b32 s24, s2, 6")
            e(f"s_add_u32 s24, s24, {WS_FL1}")
            e("s_mov_b64 exec, 1")
            e("buffer_store_dwordx2 v[224:225], off, s[12:15], s24 sc1")
            e("s_mov_b64 exec, -1")
            e("L_ka_noflag:")
            if OPT.get("pfm", 3) == 2: e("buffer_load_dword v219, v216, s[36:39], 0 offen")
        stamp_flush(e, 0, 12, 9, 43)
        e("s_branch L_kb_entry")

    MACC, AR, CS, MB = 16, 32, 44, 64
    FC, FP, FK = 64, 72, 80
    e("v_lshrrev_b32 v4, 2, v2")
    e("v_and_b32 v5, 3, v2")
    e("s_lshl_b32 s24, s19, 6")
    e("s_lshl_b32 s25, s21, 5")
    e("s_add_u32 s25, s24, s25")
    e("s_lshl_b32 s26, s22, 2")
    e("s_add_u32 s25, s25, s26")
    e("v_lshl_add_u32 v7, v4, 3, v5")
    e("v_add_u32 v7, s25, v7")
    e("v_lshrrev_b32 v8, 5, v7")
    e("v_and_b32 v9, 15, v7")
    e("v_lshl_add_u32 v8, v8, 4, v9")
    e("v_cmp_eq_u32 vcc, 0, v7")
    e("v_bfe_u32 v10, v7, 4, 1")
    e("v_mov_b32 v9, 224")
    e("v_cndmask_b32 v7, v8, v9, vcc")
    e("v_mul_u32_u24 v10, 0x3e80, v10")
    e("v_lshlrev_b32 v10, 16, v10")
    e("v_lshl_add_u32 v8, v3, 3, s24")
    e("v_mul_u32_u24 v8, v8, v7")
    e("v_cvt_f32_u32 v7, v7")
    e("v_cvt_f32_u32 v8, v8")
    e(f"s_mov_b32 s24, {fbits(1.0/448)}")
    e("v_mul_f32 v9, s24, v8")
    e("v_floor_f32 v9, v9")
    e(f"v_fmamk_f32 v8, v9, {fbits(-448.0)}, v8")
    e("v_mul_f32 v7, s24, v7")
    e("v_fma_f32 v8, v8, s24, v10")
    e("v_mul_f32 v9, 0x42000000, v7")
    e("v_cos_f32 v88, v9")
    for j in range(8):
        e(f"v_cos_f32 v{FC+j}, v8")
        e(f"v_sub_f32 v11, v8, v9")
        if j < 7:
            e(f"v_add_f32 v8, v8, v7")
        e(f"v_cos_f32 v{FP+j}, v11")
    e("v_add_f32 v88, v88, v88")
    e("v_lshl_add_u32 v91, v1, 4, s29")
    e("v_mov_b32 v89, v88")
    stamp(e, 1)
    e(".p2align 3")
    for st in range(14):
        A, B = (FC, FP) if st % 2 == 0 else (FP, FC)
        P = FK + 4*(st % 2)
        for j in range(4):
            e(f"v_cvt_pk_bf16_f32 v{P+j}, v{A+2*j}, v{A+2*j+1}")
        e(f"ds_write_b128 v91, {vr(P,4)} offset:{st*1024}")
        if st < 13:
            for j in range(4):
                e(f"v_pk_fma_f32 {vr(B+2*j,2)}, v[88:89], {vr(A+2*j,2)}, {vr(B+2*j,2)} neg_lo:[0,0,1] neg_hi:[0,0,1]")
    common_addr()
    e("s_lshl_b32 s24, s21, 10")
    e("s_lshl_b32 s25, s22, 3")
    e("s_add_u32 s24, s24, s25")
    e(f"s_add_u32 s24, s24, {LDS_Z}")
    e("v_add_u32 v55, s24, v11")
    e(f"v_lshlrev_b32 v12, 2, v2")
    e(f"v_add_u32 v12, {LDS_CS}, v12")
    e("s_lshl_b32 s25, s16, 7")
    e(f"s_add_u32 s25, s25, {LDS_ST}")
    e("v_lshl_add_u32 v13, v3, 4, s25")
    e("s_waitcnt lgkmcnt(0)")
    srd(e, 12, 6, WS_SIZE)
    srd(e, 56, 60, 256)
    stamp(e, 2)
    e("s_barrier")
    L = Lds(e)
    def rB(k, n):
        L.issue(("B", k), f"ds_read_b128 {vr(MB+32+((k+6)%8)*16+4*n,4)}, v11 offset:{(n*14+k)*1024}")
    def Breg(k, n): return vr(MB+32+((k+6)%8)*16+4*n, 4)
    PRE = OPT.get("pre", 4)
    for k in range(PRE):
        for n in range(4): rB(k, n)
    stamp(e, 3)
    e("s_barrier")
    stamp(e, 4)
    if DIAG: L.q = []
    def rA(k):
        L.issue(("A", k), f"ds_read_b128 {vr(AR+4*(k%3),4)}, v{14+(k&1)} offset:{(k>>1)*2048}")
    L.q = L.q[-13:]
    rA(0); rA(1)
    ST, U = 64, 72
    CK = OPT.get("ck", 11)
    sh = []
    for k in range(14):
        if k == 2: e("s_barrier")
        if k == 6:
            e("s_barrier")
            e("buffer_load_dwordx2 v[224:225], off, s[56:59], 0 sc1")
        if k == CK:
            e("s_barrier")
            L.issue("st", f"ds_read_b128 {vr(ST,4)}, v13")
            L.issue("st", f"ds_read_b128 {vr(ST+4,4)}, v13 offset:64")
        if k == CK + 1:
            L.need("st")
            for n in range(4):
                for r in range(4): sh.append(f"v_mul_f32 v{U+4*n+r}, v{ST+r}, v{CS+n}")
        L.need(("A", k))
        L.need(("B", k))
        for n in range(4):
            c = "0" if k == 0 else vr(MACC+4*n, 4)
            e(f"v_mfma_f32_16x16x32_bf16 {vr(MACC+4*n,4)}, {vr(AR+4*(k%3),4)}, {Breg(k,n)}, {c}")
            if n == 0 and k + 2 < 14: rA(k + 2)
            if k + PRE < 14: rB(k + PRE, n)
            elif k == 14 - PRE: L.issue("cs", f"ds_read_b32 v{CS+n}, v12 offset:{64*n}")
            elif k == 15 - PRE and n < 2: L.issue("R", f"ds_read_b128 {vr(RF+4*n,4)}, v52 offset:{1024*n}")
            for _ in range(3):
                if sh: e(sh.pop(0))
    if CK == 13:
        L.need("st")
        for n in range(4):
            for r in range(4): sh.append(f"v_mul_f32 v{U+4*n+r}, v{ST+r}, v{CS+n}")
    stamp(e, 5)
    nl = len(sh)
    while sh: e(sh.pop(0))
    if nl < 5: e(f"s_nop {4-nl}")
    for n in range(4):
        a = MACC + 4*n
        e(f"v_pk_fma_f32 {vr(a,2)}, {vr(a,2)}, {vr(ST+4,2)}, {vr(U+4*n,2)}")
        e(f"v_pk_fma_f32 {vr(a+2,2)}, {vr(a+2,2)}, {vr(ST+6,2)}, {vr(U+4*n+2,2)}")
        e(f"v_cvt_pk_bf16_f32 v{32+2*n}, v{a}, v{a+1}")
        e(f"v_cvt_pk_bf16_f32 v{33+2*n}, v{a+2}, v{a+3}")
        e(f"ds_write_b64 v55, {vr(32+2*n,2)} offset:{n*2048}")
    e("s_waitcnt lgkmcnt(0)")
    stamp(e, 6)
    gemm2(0)

    e("L_ka_help:")
    e("s_setprio 2")
    e("v_lshrrev_b32 v4, 3, v1")
    e("v_and_b32 v5, 7, v1")
    e("v_and_b32 v6, 6, v4")
    e("v_xor_b32 v5, v5, v6")
    e("v_lshrrev_b32 v6, 2, v4")
    e("v_and_b32 v4, 3, v4")
    e("v_lshl_add_u32 v6, v6, 3, v4")
    e("v_mul_u32_u24 v6, 28672, v6")
    e("v_lshl_add_u32 v6, v5, 4, v6")
    e(f"v_add_u32 v13, {16*28672}, v6")
    e("s_lshl_b32 s23, s21, 10")
    e("s_lshl_b32 s24, s22, 7")
    e("s_add_u32 s23, s23, s24")
    e("s_add_u32 s23, s23, s20")
    e("s_mul_i32 s23, s23, 896")
    e("s_lshl_b32 s31, s19, 7")
    e("s_add_u32 s32, s23, 896")
    e("s_add_u32 s31, s31, s23")
    e("s_waitcnt lgkmcnt(0)")
    stamp(e, 1)
    srd(e, 8, 4, XBYTES)
    XNT = " nt" if OPT.get("xnt", 1) else ""
    def xpair(c):
        e(f"s_add_u32 m0, s41, {c*2048}")
        e("s_add_u32 s33, s31, 128")
        e(f"buffer_load_dwordx4 v6, s[8:11], s31 offen{XNT} lds")
        e(f"s_add_u32 m0, s41, {c*2048+1024}")
        e("s_cmp_eq_u32 s33, s32")
        e(f"buffer_load_dwordx4 v13, s[8:11], s31 offen{XNT} lds")
        e("s_cselect_b32 s31, s23, s33")
    NF = OPT.get("nf", 4)
    for c in range(NF): xpair(c)
    e("s_setprio 0")
    srd(e, 12, 6, WS_SIZE)
    e("s_cmp_ge_u32 s2, 8")
    e("s_cselect_b32 s34, -1, 0")
    e("s_lshl_b32 s35, s2, 12")
    e(f"s_add_u32 s35, s35, {WS_KEY - 4096}")
    e("s_cmp_ge_u32 s2, 204")
    e("s_cselect_b32 s36, 0x7ff00000, 0")
    e("v_lshl_add_u32 v12, v0, 4, s36")
    for j in range(4):
        e(f"v_mov_b32 v{200+j}, s34")
    e("v_mov_b32 v217, v12")
    e("s_mov_b32 s56, s60")
    e("s_mov_b32 s57, s61")
    e("s_movk_i32 s58, 256")
    e("s_mov_b32 s59, 0x20000")
    e("s_or_b32 s24, s2, s16")
    e("s_cmp_lg_u32 s24, 0")
    e("s_cbranch_scc1 L_ka_notag")
    e("s_memrealtime s[24:25]")
    e("s_waitcnt lgkmcnt(0)")
    e("s_or_b32 s24, s24, 1")
    e("v_mov_b32 v44, s24")
    e("v_mov_b32 v45, s25")
    e("s_mov_b64 exec, 1")
    e("buffer_store_dwordx2 v[44:45], off, s[56:59], 0 sc1")
    e("s_mov_b64 exec, -1")
    e("L_ka_notag:")
    e("s_lshl_b32 s24, s22, 4")
    e("v_add_u32 v7, s24, v2")
    e("s_mul_i32 s25, s21, 0x3e800000")
    e("v_mov_b32 v10, s25")
    e("s_cmp_eq_u32 s16, 2")
    e("s_cselect_b32 s24, 0, -1")
    e("v_cmp_eq_u32 vcc, s24, v7")
    e("v_mov_b32 v12, 32")
    e("v_lshlrev_b32 v8, 3, v3")
    e("v_cndmask_b32 v7, v7, v12, vcc")
    e("v_cndmask_b32 v10, v10, 0, vcc")
    e("v_cvt_f32_u32 v7, v7")
    e("v_cvt_f32_u32 v8, v8")
    e(f"v_mul_f32 v7, {fbits(1.0/64)}, v7")
    e("v_fma_f32 v8, v8, v7, v10")
    e("v_mul_f32 v10, 0x42000000, v7")
    for j in range(8):
        e(f"v_cos_f32 v{CUR+j}, v8")
        e(f"v_add_f32 v12, v8, v10")
        if j < 7:
            e(f"v_add_f32 v8, v8, v7")
        e(f"v_cos_f32 v{PRV+j}, v12")
    common_addr()
    for j in range(4):
        e(f"v_cvt_pk_bf16_f32 v{RF+j}, v{CUR+2*j}, v{CUR+2*j+1}")
        e(f"v_cvt_pk_bf16_f32 v{RF+4+j}, v{PRV+2*j}, v{PRV+2*j+1}")
    e(f"ds_write_b128 v52, {vr(RF,4)}")
    e(f"ds_write_b128 v52, {vr(RF+4,4)} offset:1024")
    for j in range(4):
        e(f"v_mov_b32 v{48+j}, s28")
    e(f"s_mov_b32 s24, {fbits(1.0/448)}")
    e(f"s_mov_b32 s26, {fbits(1e-5)}")
    e(f"s_mov_b32 s27, 0xffff0000")
    stamp(e, 2)
    vq = [c for c in range(NF) for h in range(2)] + ["clr"]
    def vwait(c):
        last = max(i for i, t in enumerate(vq) if t == c)
        e(f"s_waitcnt vmcnt({len(vq)-1-last})")
        del vq[:last+1]
    PFM = OPT.get("pfm", 3)
    if PFM in (1, 2):
        e("s_mul_i32 s42, s16, 224")
        e("s_add_u32 s42, s42, s2")
        touch_setup(e, 392 if PFM == 1 else 588)
    e("s_bfe_u32 s17, s2, 0x10006")
    e("s_lshl_b32 s17, s17, 5")
    e("s_add_u32 s17, s17, s20")
    e("s_bfe_u32 s18, s2, 0x10005")
    e("s_lshl_b32 s18, s18, 10")
    e("s_add_u32 s18, s18, s17")
    e("s_lshl_b32 s17, s16, 8")
    e("s_add_u32 s18, s18, s17")
    e("s_mul_i32 s18, s18, 896")
    e(f"s_mul_i32 s17, s16, {4*XRS}")
    e(f"s_add_u32 s17, s17, {LDS_XR}")
    e("s_cmp_lt_u32 s2, 128")
    e("s_cselect_b32 s25, 56, 0")
    e("v_cmp_gt_u32 vcc, s25, v1")
    e("v_mov_b32 v218, 0x7ff00000")
    e("s_nop 0")
    e("v_cndmask_b32 v218, v218, v11, vcc")
    e("v_and_b32 v4, 3, v2")
    e("v_lshrrev_b32 v5, 2, v2")
    e("v_cmp_eq_u32 s[52:53], 1, v4")
    e("v_cmp_eq_u32 s[54:55], 2, v4")
    e("v_cmp_eq_u32 s[62:63], 3, v4")
    e("v_cmp_eq_u32 s[60:61], v5, v3")
    e("s_lshl_b32 s25, s16, 7")
    e(f"s_add_u32 s25, s25, {LDS_ST}")
    e("v_lshl_add_u32 v4, v2, 2, s25")
    e("v_add_u32 v5, s29, v11")
    e("s_lshl_b32 s25, s16, 6")
    e(f"s_add_u32 s25, s25, {LDS_CS}")
    e("v_lshl_add_u32 v7, v2, 2, s25")
    e("s_waitcnt lgkmcnt(0)")
    e(f"s_setprio {OPT.get('csp', 2)}")
    e("s_barrier")
    nx = [NF]
    def land(c):
        vwait(c)
        if nx[0] < 7:
            xpair(nx[0]); vq.extend([nx[0]]*2); nx[0] += 1
    def stat(k):
        c = "0" if k == 0 else vr(GRM, 4)
        e(f"v_mfma_f32_16x16x32_bf16 {vr(GRM,4)}, {vr(X+4*k,4)}, {vr(X+4*k,4)}, {c}")
        c = "0" if k == 0 else vr(SUM, 4)
        e(f"v_mfma_f32_16x16x32_bf16 {vr(SUM,4)}, {vr(X+4*k,4)}, v[48:51], {c}")
    def rdx(k0, k1):
        for k in range(k0, k1):
            e(f"ds_read_b128 {vr(X+4*k,4)}, v{14+(k&1)} offset:{(k>>1)*2048}")
    def stats(k0, k1, kend):
        for k in range(k0, k1):
            e(f"s_waitcnt lgkmcnt({kend-1-k})")
            stat(k)
    vq.remove("clr")
    for k in range(14):
        e(f"ds_read_b128 {vr(120+4*k,4)}, v5 offset:{k*1024}")
    for k in range(14):
        e(f"s_waitcnt lgkmcnt({13-k})")
        e(f"v_mfma_f32_16x16x32_bf16 v[40:43], v[48:51], {vr(120+4*k,4)}, {'0' if k == 0 else 'v[40:43]'}")
    e("s_setprio 2")
    land(0); land(1)
    e("ds_write_b32 v7, v40")
    rdx(0, 4)
    stamp(e, 3)
    e("s_barrier")
    stamp(e, 4)
    stats(0, 2, 4)
    land(2)
    stats(2, 4, 4)
    land(3)
    assert nx[0] == 7
    rdx(4, 8)
    e("s_barrier")
    e("buffer_load_dwordx2 v[224:225], off, s[56:59], 0 sc1")
    for j in range(4):
        e(f"s_add_u32 m0, s17, {j*XRS}")
        e(f"s_add_u32 s33, s18, {j*64*896}")
        e(f"buffer_load_dwordx4 v218, s[8:11], s33 offen lds")
    e(f"s_mov_b32 m0, {LDS_XR + 16*XRS}")
    srd(e, 8, 44, 896)
    e(f"buffer_load_dwordx4 v11, s[8:11], 0 offen lds")
    stats(4, 8, 8)
    e("s_waitcnt vmcnt(6)")
    rdx(8, 14)
    e("buffer_store_dwordx4 v[200:203], v217, s[12:15], s35 offen sc1")
    if PFM == 1: e("buffer_load_dword v219, v216, s[36:39], 0 offen")
    if OPT.get("sb", 0): stamp(e, 2)
    BE = OPT.get("be", 0)
    if BE: e("s_barrier")
    stats(8, 14, 14)
    if not BE: e("s_barrier")
    e("s_nop 6")
    e(f"v_cndmask_b32 v20, v{GRM}, v{GRM+1}, s[52:53]")
    e(f"v_cndmask_b32 v16, v{SUM}, v{SUM+1}, s[52:53]")
    e(f"v_cndmask_b32 v20, v20, v{GRM+2}, s[54:55]")
    e(f"v_cndmask_b32 v16, v16, v{SUM+2}, s[54:55]")
    e(f"v_cndmask_b32 v20, v20, v{GRM+3}, s[62:63]")
    e(f"v_cndmask_b32 v16, v16, v{SUM+3}, s[62:63]")
    e("v_mul_f32 v20, s24, v20")
    e("v_mul_f32 v16, s24, v16")
    e("v_fma_f32 v20, -v16, v16, v20")
    e("v_max_f32 v20, 0, v20")
    e("v_cvt_pk_bf16_f32 v20, v20, v20")
    e("v_and_b32 v20, s27, v20")
    e("v_add_f32 v20, s26, v20")
    e("v_cvt_pk_bf16_f32 v20, v20, v20")
    e("v_and_b32 v20, s27, v20")
    e("v_sqrt_f32 v20, v20")
    e("s_mov_b64 exec, s[60:61]")
    e("v_cvt_pk_bf16_f32 v20, v20, v20")
    e("v_and_b32 v20, s27, v20")
    e("v_rcp_f32 v20, v20")
    e("s_nop 0")
    e("v_mul_f32 v16, -v16, v20")
    e("ds_write2_b32 v4, v16, v20 offset0:0 offset1:16")
    e("s_mov_b64 exec, -1")
    e("s_waitcnt lgkmcnt(0)")
    stamp(e, 5)
    e("s_barrier")
    stamp(e, 6)
    gemm2(1)

    e("L_ka_spare:")
    if OPT.get("pfm", 3) == 3:
        e("s_sub_u32 s19, s2, 224")
        e("s_and_b32 s19, s19, 0xf8")
        e("s_add_u32 s19, s19, s43")
        e("v_lshlrev_b32 v8, 7, v0")
        e("s_waitcnt lgkmcnt(0)")
        srd(e, 24, 44, 896)
        e(f"buffer_load_dword v16, v8, s[24:27], 0 offen")
        if OPT.get("spw3", 1): e("s_waitcnt vmcnt(0)")
        xtouch(e, "a", 19, 46, 11)
        e("s_add_u32 s19, s19, 32")
        e(f"s_cmp_ge_u32 s19, {OPT.get('xsp', 41)}")
        e("s_cbranch_scc1 L_ka_end")
        xtouch(e, "b", 19, 46, 12)
        e("s_endpgm")
    e("s_sub_u32 s19, s2, 224")
    e("s_lshl_b32 s19, s19, 16")
    e("v_lshlrev_b32 v8, 7, v0")
    e("v_add_u32 v9, s19, v8")
    e(f"v_subrev_u32 v10, {WBYTES}, v9")
    e("s_waitcnt lgkmcnt(0)")
    srd(e, 24, 44, 896)
    e(f"buffer_load_dword v16, v8, s[24:27], 0 offen")
    srd(e, 28, 46, WBYTES)
    srd(e, 32, 48, WBYTES)
    e("s_waitcnt vmcnt(0)")
    for _ in range(OPT.get("spw", 0)):
        e(f"buffer_load_dword v16, off, s[28:31], s19")
        e("s_add_u32 s19, s19, 128")
        e("s_waitcnt vmcnt(0)")
    if OPT.get("pfm", 3) == 1:
        srd(e, 28, 50, WBYTES)
        e(f"buffer_load_dword v11, v9, s[28:31], 0 offen")
    else:
        e(f"buffer_load_dword v11, v9, s[28:31], 0 offen")
        e(f"buffer_load_dword v13, v10, s[32:35], 0 offen")
    e("L_ka_end:")
    e("s_endpgm")
    kb(e)
    return dict(name=NAME + "_kernel", vgpr=232, accum=232, sgpr=64, grid=256, block=512, lds=LDS_XROW+16*XRS+1024)

def sync1(e, u, nl, soff, pre=False):
    e("s_waitcnt vmcnt(0)")
    tagcheck(e, u)
    e("s_mov_b32 s63, 0")
    e(f"s_mov_b64 exec, {(1 << nl) - 1:#x}" if nl < 32 else "s_mov_b32 exec_hi, 0")
    if pre: e(f"s_branch L_s1c{u}")
    e(f"L_s1{u}:")
    if u in "fg": e("s_sleep 4")
    e(f"buffer_load_dwordx2 v[228:229], v226, s[24:27], {soff} offen sc1")
    e("s_add_u32 s63, s63, 1")
    e("s_waitcnt vmcnt(0)")
    e(f"L_s1c{u}:")
    e("v_cmpx_ne_u64 s[60:61], v[228:229], v[224:225]")
    e(f"s_cbranch_execz L_s1d{u}")
    e("s_cmp_lt_u32 s63, 0x40000")
    e(f"s_cbranch_scc1 L_s1{u}")
    e(f"L_s1d{u}:")
    e("s_mov_b64 exec, -1")

def sync_all(e):
    tagcheck(e, "f")
    e("v_lshlrev_b32 v80, 6, v1")
    e("v_mov_b32 v81, 0x7ff00000")
    e("v_cmp_gt_u32 vcc, 32, v1")
    for j in range(4):
        e(f"s_mov_b32 s{56+j}, {WS_FL1 + 4096*j:#x}")
    e("v_cndmask_b32 v81, v81, v80, vcc")
    e("s_mov_b32 s63, 0")
    e("L_sa:")
    e(f"s_sleep {OPT.get('sasl', 4)}")
    for j in range(4):
        e(f"buffer_load_dwordx2 {vr(82+2*j,2)}, v{81 if j == 3 else 80}, s[24:27], s{56+j} offen sc1")
    e("s_add_u32 s63, s63, 1")
    e("s_waitcnt vmcnt(0)")
    e("v_cndmask_b32 v88, v224, v88, vcc")
    e("v_cndmask_b32 v89, v225, v89, vcc")
    for j in range(4):
        e(f"v_xor_b32 v{82+2*j}, v{82+2*j}, v224")
        e(f"v_xor_b32 v{83+2*j}, v{83+2*j}, v225")
    e("v_or3_b32 v82, v82, v83, v84")
    e("v_or3_b32 v85, v85, v86, v87")
    e("v_or3_b32 v82, v82, v88, v89")
    e("v_or_b32 v82, v82, v85")
    e("v_cmpx_ne_u32 s[60:61], 0, v82")
    e("s_cbranch_execz L_sad")
    e("s_cmp_lt_u32 s63, 0x40000")
    e("s_cbranch_scc1 L_sa")
    e("L_sad:")
    e("s_mov_b64 exec, -1")

def kb(e):
    e("L_kb_entry:")
    e("s_cmp_ge_u32 s2, 184")
    e("s_cbranch_scc1 L_kb_warm")
    stamp(e, 0)
    e("s_setprio 0")
    e("s_load_dwordx2 s[20:21], s[0:1], 96")
    e("s_load_dwordx2 s[4:5], s[0:1], 0")
    e("s_load_dwordx8 s[8:15], s[0:1], 48")
    e("s_load_dwordx4 s[16:19], s[0:1], 80")
    e("s_mov_b32 s28, s43")
    e("v_lshlrev_b32 v4, 4, v1")
    e("s_cmp_ge_u32 s2, 128")
    e("s_cbranch_scc1 L_kb_ffn")
    p2(e)
    e("L_kb_ffn:")
    ffn(e)
    e("s_endpgm")
    e("L_kb_warm:")
    if OPT.get("pfm", 3) == 3:
        e("s_load_dwordx4 s[4:7], s[0:1], 56")
        e("s_load_dwordx2 s[8:9], s[0:1], 72")
        e("s_sub_u32 s19, s2, 184")
        e("s_and_b32 s19, s19, 0xf8")
        e("s_add_u32 s19, s19, s43")
        e("s_add_u32 s19, s19, 41")
        e("s_waitcnt lgkmcnt(0)")
        xtouch(e, "c", 19, 4, 11)
    if OPT.get("pfm", 3): e("s_endpgm")
    e("s_load_dwordx4 s[4:7], s[0:1], 64")
    e("s_sub_u32 s19, s2, 184")
    e("s_lshl_b32 s19, s19, 16")
    e("v_lshlrev_b32 v8, 7, v0")
    e("v_add_u32 v9, s19, v8")
    e(f"v_add_u32 v9, {32*65536 - WBYTES}, v9")
    e(f"v_subrev_u32 v10, {WBYTES}, v9")
    e(f"v_add_u32 v12, {40*65536}, v10")
    e("s_waitcnt lgkmcnt(0)")
    srd(e, 8, 4, WBYTES)
    srd(e, 12, 6, WBYTES)
    e(f"buffer_load_dword v11, v9, s[8:11], 0 offen")
    e(f"buffer_load_dword v13, v10, s[12:15], 0 offen")
    e(f"buffer_load_dword v14, v12, s[12:15], 0 offen")
    e("L_kb_end:")
    e("s_endpgm")

def p2(e):
    YB, RS = 57344, 1808
    PA, PAS = 86528, 464
    SC = PA + 16*PAS
    C, S, F1, F3 = 16, 20, 24, 28
    A, ACC = 64, 32
    XC, WC, SM = 144, 160, 176
    H = 96
    WRL = LDS_XROW + 16*XRS
    e("s_and_b32 s29, s2, 31")
    e("s_bfe_u32 s30, s2, 0x10005")
    e("s_lshr_b32 s31, s2, 6")
    e("s_lshl_b32 s32, s31, 5")
    e("s_add_u32 s32, s32, s29")
    e("s_sub_u32 s33, 32, s29")
    e("s_and_b32 s33, s33, 31")
    e("s_cmp_eq_u32 s31, 0")
    e("s_cselect_b32 s29, s29, s33")
    e("s_lshl_b32 s33, s30, 10")
    e("s_add_u32 s33, s33, s32")
    e("s_lshl_b32 s34, s28, 7")
    e("s_add_u32 s34, s34, s33")
    e("s_mul_i32 s35, s34, 896")
    e("v_and_b32 v5, 31, v1")
    e("v_lshrrev_b32 v6, 5, v1")
    e("v_cmp_gt_u32 vcc, 28, v5")
    e("v_lshlrev_b32 v9, 4, v5")
    e("v_mov_b32 v10, 0x7ff00000")
    e("v_mul_u32_u24 v11, 57344, v6")
    e("v_cndmask_b32 v10, v10, v9, vcc")
    e("v_add_u32 v10, v10, v11")
    e(f"s_mul_i32 s38, s28, {2*RS}")
    e(f"s_add_u32 s38, s38, {YB}")
    e(f"v_mul_u32_u24 v7, {RS}, v6")
    e("v_lshl_add_u32 v7, v5, 5, v7")
    e("v_add_u32 v7, s38, v7")
    e("s_lshl_b32 s38, s28, 4")
    e(f"s_add_u32 s38, s38, {SC}")
    e("v_lshl_add_u32 v120, v6, 3, s38")
    e("s_mov_b32 s43, 0xffff0000")
    e("s_lshl_b32 s53, s2, 7")
    e(f"s_add_u32 s53, s53, {WS_KEY}")
    e("s_waitcnt lgkmcnt(0)")
    srd(e, 44, 16, XBYTES)
    srd(e, 24, 20, WS_SIZE)
    e("s_cmp_eq_u32 s28, 7")
    e("s_cbranch_scc1 L_p2_w7")
    e("s_mul_i32 s36, s29, 57344")
    e("s_lshl_b32 s37, s28, 7")
    e("s_add_u32 s36, s36, s37")
    e("s_lshl_b32 s42, s28, 6")
    e("v_lshl_add_u32 v13, v3, 3, s42")
    e(f"v_mul_u32_u24 v14, {XRS}, v2")
    e(f"v_add_u32 v14, {LDS_XROW}, v14")
    e("v_add_u32 v121, v14, v13")
    e("v_sub_u32 v122, v14, v13")
    e(f"v_add_u32 v123, {WRL}, v13")
    e(f"v_sub_u32 v124, {WRL}, v13")
    T = 182
    for (ad, am, r0) in ((121, 122, T), (123, 124, T+10)):
        for mm in range(2):
            e(f"ds_read_b64 {vr(r0+2*mm,2)}, v{ad} offset:{32*mm}")
            e(f"ds_read_b64 {vr(r0+4+2*mm,2)}, v{am} offset:{888-32*mm}")
            e(f"ds_read_b32 v{r0+8+mm}, v{am} offset:{896-32*mm}")
    e(f"ds_read_u16 v{T+20}, v14 offset:448")
    e(f"v_mov_b32 v125, {WRL}")
    e(f"ds_read_u16 v{T+21}, v125 offset:448")
    e("v_cmp_eq_u32 s[40:41], 0, v13")
    e("s_lshl_b32 s37, s28, 13")
    e("v_lshl_add_u32 v9, v2, 6, s33")
    e("v_cvt_f32_u32 v9, v9")
    e(f"v_mul_f32 v9, {fbits(1.0/2048)}, v9")
    e("v_lshlrev_b32 v8, 3, v3")
    e("v_cvt_f32_u32 v8, v8")
    e("v_mul_f32 v8, v8, v9")
    for j in range(8):
        e(f"v_cos_f32 v{A+j}, v8")
        e(f"v_sin_f32 v{A+8+j}, v8")
        if j < 7:
            e("v_add_f32 v8, v8, v9")
    e("v_lshrrev_b32 v4, 2, v1")
    e("v_mul_u32_u24 v4, 896, v4")
    e("v_lshlrev_b32 v8, 1, v6")
    e("v_and_b32 v9, 3, v1")
    e("v_xor_b32 v8, v8, v9")
    e("v_lshl_add_u32 v4, v8, 4, v4")
    for j in range(4):
        e(f"v_cvt_pk_bf16_f32 v{C+j}, v{A+2*j}, v{A+2*j+1}")
        e(f"v_cvt_pk_bf16_f32 v{S+j}, v{A+8+2*j}, v{A+8+2*j+1}")
    e("s_cmp_gt_u32 s32, 32")
    e("s_cselect_b32 s39, 0x80008000, 0")
    e("s_xor_b32 s42, s39, 0x80008000")
    for j in range(4):
        e(f"v_xor_b32 v{F1+j}, s39, v{S+j}")
        e(f"v_xor_b32 v{F3+j}, s42, v{C+j}")
    e("s_cmp_lg_u32 s29, 0")
    e("s_cbranch_scc1 L_p2_nospecial")
    e("s_cmp_eq_u32 s32, 0")
    e("s_cbranch_scc1 L_p2_t0")
    for j in range(4):
        e(f"v_mov_b32 v{F1+j}, v{C+j}")
        e(f"v_mov_b32 v{F3+j}, v{S+j}")
        e(f"v_mov_b32 v{C+j}, 0")
        e(f"v_mov_b32 v{S+j}, 0")
    e("s_branch L_p2_nospecial")
    e("L_p2_t0:")
    for j in range(4):
        e(f"v_mov_b32 v{F1+j}, 0")
        e(f"v_mov_b32 v{F3+j}, 0")
    e("L_p2_nospecial:")
    e("v_and_b32 v13, 1, v3")
    e("v_lshrrev_b32 v12, 2, v2")
    e("v_lshl_add_u32 v12, v13, 3, v12")
    e("v_lshlrev_b32 v12, 6, v12")
    e("v_lshrrev_b32 v14, 1, v3")
    e("v_lshl_add_u32 v12, v14, 10, v12")
    e("v_bfe_u32 v14, v2, 1, 1")
    e("v_lshl_add_u32 v14, v13, 1, v14")
    e("v_lshl_add_u32 v12, v14, 4, v12")
    e("v_and_b32 v14, 1, v2")
    e("v_lshl_add_u32 v12, v14, 3, v12")
    e("v_add_u32 v12, s37, v12")
    e("v_xor_b32 v126, 32, v12")
    e("s_lshl_b32 s54, s28, 11")
    e(f"s_add_u32 s54, s54, {WS_FL1}")
    stamp(e, 1)
    sync1(e, "p", 32, "s54")
    stamp(e, 2)
    for mm in range(2):
        for hf in range(2):
            for rb in range(2):
                e(f"s_add_u32 m0, s37, {((mm*2+hf)*2+rb)*1024}")
                e(f"s_add_u32 s54, s36, {hf*28672 + rb*14336 + mm*64}")
                e(f"buffer_load_dwordx4 v4, s[24:27], s54 offen sc1 lds")
    e("s_lshl_b32 s42, s28, 7")
    e("v_lshl_add_u32 v13, v3, 4, s42")
    e(f"v_mul_u32_u24 v14, {RS}, v2")
    e(f"v_add_u32 v14, {YB}, v14")
    e("v_sub_u32 v15, v14, v13")
    e(f"v_add_u32 v15, {(448-19)*4}, v15")
    e("v_add_u32 v13, v13, v14")
    e(f"v_add_u32 v9, {19*4}, v15")
    e(f"v_add_u32 v8, {224*4}, v14")
    e("v_cndmask_b32 v14, v9, v8, s[40:41]")
    e("s_lshl_b32 s42, s28, 6")
    e(f"s_add_u32 s42, s42, {PA}")
    e(f"v_mul_u32_u24 v127, {PAS}, v2")
    e("v_lshl_add_u32 v127, v3, 4, v127")
    e("v_add_u32 v127, s42, v127")
    e("s_waitcnt lgkmcnt(0)")
    for (dst, r0, sp) in ((XC, T, T+20), (WC, T+10, T+21)):
        for mm in range(2):
            d = dst + 8*mm
            e(f"v_lshlrev_b32 v{d}, 16, v{r0+2*mm}")
            e(f"v_and_b32 v{d+1}, s43, v{r0+2*mm}")
            e(f"v_lshlrev_b32 v{d+2}, 16, v{r0+2*mm+1}")
            e(f"v_and_b32 v{d+3}, s43, v{r0+2*mm+1}")
            if mm == 0:
                e(f"v_cndmask_b32 v{r0+8}, v{r0+8}, v{sp}, s[40:41]")
            e(f"v_lshlrev_b32 v{d+4}, 16, v{r0+8+mm}")
            e(f"v_and_b32 v{d+5}, s43, v{r0+4+2*mm+1}")
            e(f"v_lshlrev_b32 v{d+6}, 16, v{r0+4+2*mm+1}")
            e(f"v_and_b32 v{d+7}, s43, v{r0+4+2*mm}")
    e(f"v_mov_b32 v125, v{XC}")
    for mm in range(2):
        for r in range(4):
            d, m_ = XC+8*mm+r, XC+8*mm+4+r
            e(f"v_add_f32 v{T}, v{d}, v{m_}")
            e(f"v_sub_f32 v{m_}, v{d}, v{m_}")
            e(f"v_mul_f32 v{d}, 0.5, v{T}")
            e(f"v_mul_f32 v{m_}, 0.5, v{m_}")
    for mm in range(2):
        e(f"s_waitcnt vmcnt({4-4*mm})")
        if mm == 1: stamp(e, 3)
        order = [(0, 0, C), (0, 1, F1), (1, 0, S), (1, 1, F3)]
        for i, (kd, hf, fr) in enumerate(order):
            for io in range(2):
                e(f"ds_read_b64_tr_b16 {vr(A+(mm*4+i)*4+2*io,2)}, v{126 if kd else 12} offset:{(mm*2+hf)*2048+io*256}")
        for i, (kd, hf, fr) in enumerate(order):
            e(f"s_waitcnt lgkmcnt({6-2*i})")
            acc = ACC + 8*mm + 4*kd
            c = vr(XC+8*mm+4*kd, 4) if hf == 0 else vr(acc, 4)
            e(f"v_mfma_f32_16x16x32_bf16 {vr(acc,4)}, {vr(A+(mm*4+i)*4,4)}, {vr(fr,4)}, {c}")
        E_, O_ = ACC + 8*mm, ACC + 8*mm + 4
        D_ = 128 + 8*mm
        e("s_nop 7")
        for r in range(4):
            e(f"v_add_f32 v{D_+r}, v{E_+r}, v{O_+r}")
        for r in range(4):
            e(f"v_sub_f32 v{D_+4+r}, v{E_+r}, v{O_+r}")
        if mm == 0:
            e(f"v_cndmask_b32 v{D_}, v{D_}, v125, s[40:41]")
        def wr():
            e(f"ds_write_b128 v13, {vr(D_,4)} offset:{64*mm}")
            o = 16*(1-mm)
            if mm == 0:
                e(f"ds_write_b32 v14, v{D_+4}")
                e(f"ds_write_b32 v15, v{D_+5} offset:{(o+2)*4}")
            else:
                e(f"ds_write2_b32 v15, v{D_+4}, v{D_+5} offset0:{o+3} offset1:{o+2}")
            e(f"ds_write2_b32 v15, v{D_+6}, v{D_+7} offset0:{o+1} offset1:{o}")
        if mm == 0: wr()
        for j in range(4):
            h_ = vr(D_+2*j, 2); w_ = vr(WC+8*mm+2*j, 2)
            if mm == 0 and j == 0:
                e(f"v_pk_mul_f32 {vr(SM+2,2)}, {h_}, {h_}")
                e(f"v_pk_mul_f32 {vr(SM+4,2)}, {h_}, {w_}")
            else:
                if mm == 0 and j == 1:
                    e(f"v_pk_add_f32 {vr(SM,2)}, {vr(D_,2)}, {h_}")
                else:
                    e(f"v_pk_add_f32 {vr(SM,2)}, {vr(SM,2)}, {h_}")
                e(f"v_pk_fma_f32 {vr(SM+2,2)}, {h_}, {h_}, {vr(SM+2,2)}")
                e(f"v_pk_fma_f32 {vr(SM+4,2)}, {h_}, {w_}, {vr(SM+4,2)}")
        if mm == 1:
            e(f"v_add_f32 v{T}, v{SM}, v{SM+1}")
            e(f"v_add_f32 v{T+1}, v{SM+2}, v{SM+3}")
            e(f"v_add_f32 v{T+2}, v{SM+4}, v{SM+5}")
            e(f"ds_write_b128 v127, {vr(T,4)}")
            wr()
    e("s_waitcnt lgkmcnt(0)")
    stamp(e, 4)
    e("s_barrier")
    def hreads():
        for j, o in enumerate((0, 16, 896, 912)):
            e(f"ds_read_b128 {vr(H+4*j,4)}, v7 offset:{o}")
    hreads()
    e("s_branch L_p2_k")

    e("L_p2_w7:")
    e("s_setprio 3")
    e("v_lshlrev_b32 v9, 4, v1")
    e(f"v_add_u32 v9, {WRL}, v9")
    e("ds_read_b128 v[16:19], v9")
    e("s_mov_b32 s52, 0x3f803f80")
    e("v_mov_b32 v123, 0")
    e(f"v_mul_u32_u24 v127, {PAS}, v2")
    e("v_mul_u32_u24 v9, 112, v3")
    e(f"v_add3_u32 v127, v127, v9, 0")
    e(f"v_add_u32 v127, {PA}, v127")
    e("v_lshl_add_u32 v11, v2, 6, s33")
    e("v_sub_u32 v121, 0xfff, v11")
    e("v_lshlrev_b32 v122, 3, v2")
    e(f"v_add_u32 v122, {SC}, v122")
    e("v_lshlrev_b32 v124, 2, v1")
    e(f"s_mov_b32 s38, {fbits(1.0/448)}")
    e("v_cmp_gt_u32 s[40:41], 16, v1")
    e("s_waitcnt lgkmcnt(0)")
    for j in range(4):
        e(f"v_dot2c_f32_bf16 v123, s52, v{16+j}")
    e("s_nop 2")
    for ror in (8, 4, 2, 1):
        e(f"v_add_f32_dpp v123, v123, v123 row_ror:{ror} row_mask:0xf bank_mask:0xf")
        e("s_nop 1")
    for sw in ("16", "32"):
        e("v_mov_b32 v9, v123")
        e("s_nop 1")
        e(f"v_permlane{sw}_swap_b32 v123, v9")
        e("v_add_f32 v123, v123, v9")
    stamp(e, 4)
    e("s_barrier")
    for i in range(7):
        e(f"ds_read_b128 {vr(16+4*i,4)}, v127 offset:{16*i}")
    hreads()
    for i in range(1, 7):
        e(f"s_waitcnt lgkmcnt({10-i})")
        e(f"v_pk_add_f32 v[16:17], v[16:17], {vr(16+4*i,2)}")
        e(f"v_add_f32 v18, v18, v{18+4*i}")
    for sw in ("16", "32"):
        e("v_mov_b32 v20, v16")
        e("v_mov_b32 v21, v17")
        e("v_mov_b32 v22, v18")
        e(f"v_permlane{sw}_swap_b32 v16, v20")
        e(f"v_permlane{sw}_swap_b32 v17, v21")
        e(f"v_permlane{sw}_swap_b32 v18, v22")
        e("v_pk_add_f32 v[16:17], v[16:17], v[20:21]")
        e("v_add_f32 v18, v18, v22")
    e("v_mul_f32 v8, s38, v16")
    e("v_mul_f32 v9, s38, v17")
    e("v_fma_f32 v9, -v8, v8, v9")
    e("v_max_f32 v9, 0, v9")
    e("v_cvt_pk_bf16_f32 v8, v9, v8")
    e("v_lshlrev_b32 v9, 16, v8")
    e(f"v_add_f32 v9, {fbits(1e-5)}, v9")
    e("v_cvt_pk_bf16_f32 v9, v9, v9")
    e("v_and_b32 v9, s43, v9")
    e("v_sqrt_f32 v9, v9")
    e("v_and_b32 v8, s43, v8")
    e("v_cvt_pk_bf16_f32 v13, v9, v8")
    e("v_lshlrev_b32 v9, 16, v13")
    e("v_rcp_f32 v9, v9")
    e("v_fma_f32 v12, -v8, v123, v18")
    e("v_mul_f32 v12, v12, v9")
    e("v_add_f32 v14, 1.0, v9")
    e("v_cvt_pk_bf16_f32 v12, v12, v12")
    e("v_mul_f32 v15, -v8, v9")
    e("v_ashrrev_i32 v11, 31, v12")
    e("ds_write_b64 v122, v[14:15]")
    e("v_or_b32 v11, 0x80000000, v11")
    e("v_xor_b32 v12, v12, v11")
    e("v_and_or_b32 v12, v12, s43, v121")
    e("v_cndmask_b32 v12, v13, v12, s[40:41]")
    e("s_mov_b32 exec_hi, 0")
    e("buffer_store_dword v12, v124, s[24:27], s53 offen sc1")
    e("s_mov_b32 exec_hi, -1")
    e("s_waitcnt lgkmcnt(0)")
    e("L_p2_k:")
    stamp(e, 5)
    e("s_barrier")
    e("ds_read_b64 v[14:15], v120")
    e("s_waitcnt lgkmcnt(0)")
    for j in range(8):
        e(f"v_pk_fma_f32 {vr(H+2*j,2)}, {vr(H+2*j,2)}, v[14:15], v[14:15] op_sel:[0,0,1] op_sel_hi:[1,0,1]")
        if j % 2 == 1:
            e(f"v_cvt_pk_bf16_f32 v{48+j-1}, v{H+2*j-2}, v{H+2*j-1}")
            e(f"v_cvt_pk_bf16_f32 v{48+j}, v{H+2*j}, v{H+2*j+1}")
        if j == 3:
            e(f"buffer_store_dwordx4 v[48:51], v10, s[44:47], s35 offen sc1")
    e(f"buffer_store_dwordx4 v[52:55], v10, s[44:47], s35 offen offset:448 sc1")
    e("s_waitcnt vmcnt(0)")
    stamp(e, 6)
    e("s_barrier")
    e("s_cmp_lg_u32 s28, 0")
    e("s_cbranch_scc1 L_p2_end")
    e("s_mov_b64 exec, 1")
    e("v_mov_b32 v12, 1")
    e(f"s_add_u32 s53, s53, {WS_FLAG - WS_KEY}")
    e(f"buffer_store_dword v12, off, s[24:27], s53 sc1")
    e("L_p2_end:")
    stamp_flush(e, 1, 24, 7, 28)
    e("s_endpgm")

def ffn(e):
    XS, ONES, ACT, MISC, GB = 0, 7168, 14336, 15360, 16384
    DB = GB + 57344
    A, AD_, ACC = 64, 36, 32
    K = 64
    e("s_sub_u32 s29, s2, 128")
    e("s_and_b32 s37, s29, 7")
    e("s_lshr_b32 s38, s29, 3")
    e("s_mul_i32 s39, s37, 7")
    e("s_add_u32 s39, s39, s38")
    e("s_cmp_eq_u32 s28, 7")
    e("s_cbranch_scc1 L_f_poll")
    e("s_cmp_lt_u32 s28, 4")
    e("s_cbranch_scc1 L_f_comp")
    e("v_lshrrev_b32 v5, 2, v1")
    e("v_and_b32 v6, 3, v1")
    e("v_lshrrev_b32 v7, 4, v1")
    e("v_and_b32 v7, 2, v7")
    e("v_xor_b32 v6, v6, v7")
    e("s_cmp_eq_u32 s28, 5")
    e("s_cselect_b32 s40, 1, 0")
    e("v_xor_b32 v6, s40, v6")
    e("s_cmp_eq_u32 s28, 6")
    e("s_movk_i32 s41, 896")
    e("s_cselect_b32 s41, s41, 3584")
    e("s_cselect_b32 s42, 64, 114688")
    e("s_cselect_b32 s43, 28672, 64")
    e("v_mul_u32_u24 v5, s41, v5")
    e("v_lshl_add_u32 v5, v6, 4, v5")
    e("s_lshl_b32 s44, s41, 4")
    e("v_add_u32 v6, s44, v5")
    e("s_mul_i32 s43, s43, s39")
    e("s_sub_u32 s44, s28, 4")
    e("s_mul_i32 s44, s44, 28672")
    e(f"s_add_u32 s44, s44, {GB}")
    e("s_waitcnt lgkmcnt(0)")
    stamp(e, 1)
    e("s_cmp_eq_u32 s28, 5")
    e("s_cselect_b32 s48, s12, s10")
    e("s_cselect_b32 s49, s13, s11")
    e("s_cmp_eq_u32 s28, 6")
    e("s_cselect_b32 s48, s14, s48")
    e("s_cselect_b32 s49, s15, s49")
    e(f"s_mov_b32 s50, {WBYTES:#x}")
    e("s_mov_b32 s51, 0x20000")
    e("s_add_u32 s45, s44, 28672")
    e("s_barrier")
    if OPT.get("seq", 0):
        e(f"v_mov_b32 v8, {MISC}")
        e("s_sub_u32 s46, s28, 4")
        e("L_f_turn:")
        e("ds_read_b32 v9, v8")
        e("s_waitcnt lgkmcnt(0)")
        e("v_cmp_le_u32 vcc, s46, v9")
        e("s_cbranch_vccnz L_f_dma")
        e("s_sleep 2")
        e("s_branch L_f_turn")
    e("L_f_dma:")
    e("s_mov_b32 m0, s44")
    e("s_add_u32 s44, s44, 2048")
    e("buffer_load_dwordx4 v5, s[48:51], s43 offen lds")
    e("s_add_u32 m0, m0, 1024")
    e("s_nop 0")
    e("buffer_load_dwordx4 v6, s[48:51], s43 offen lds")
    e("s_add_u32 s43, s43, s42")
    e("s_cmp_lt_u32 s44, s45")
    e("s_cbranch_scc1 L_f_dma")
    stamp(e, 2)
    e(f"v_mov_b32 v5, {MISC}")
    e("v_mov_b32 v6, 1")
    e("s_mov_b64 exec, 1")
    e("s_waitcnt vmcnt(0)")
    e("ds_add_u32 v5, v6")
    e("s_waitcnt lgkmcnt(0)")
    if DIAG:
        srd(e, 24, 20, WS_SIZE)
        stamp_flush(e, 1, 24, 3, 28)
    e("s_endpgm")

    e("L_f_comp:")
    e("v_mov_b32 v8, 0x3f803f80")
    e("v_mov_b32 v9, v8")
    e("v_mov_b32 v10, v8")
    e("v_mov_b32 v11, v8")
    e("v_lshlrev_b32 v5, 4, v0")
    e(f"ds_write_b128 v5, v[8:11] offset:{ONES}")
    e(f"ds_write_b128 v5, v[8:11] offset:{ONES+3072}")
    e("v_mov_b32 v6, 0")
    e(f"v_mov_b32 v7, {MISC}")
    e("ds_write_b32 v7, v6")
    e("s_waitcnt lgkmcnt(0)")
    stamp(e, 1)
    e("s_barrier")
    srd(e, 24, 20, WS_SIZE)
    e("v_lshrrev_b32 v8, 2, v2")
    e("v_bfe_u32 v9, v2, 1, 1")
    e("v_and_b32 v10, 1, v3")
    e("v_and_b32 v13, 1, v2")
    e("v_lshlrev_b32 v13, 3, v13")
    e("v_lshl_add_u32 v11, v10, 1, v9")
    e("v_xor_b32 v11, s28, v11")
    e("v_lshl_add_u32 v14, v3, 3, v8")
    e("v_lshl_add_u32 v14, v14, 6, v13")
    e("v_lshl_add_u32 v14, v11, 4, v14")
    e("v_mul_u32_u24 v11, 28672, v9")
    e(f"s_movk_i32 s42, {GB}")
    e("v_add3_u32 v14, v14, v11, s42")
    e("v_lshl_add_u32 v8, v10, 3, v8")
    e("v_lshl_add_u32 v15, v8, 6, v13")
    e("s_and_b32 s42, s28, 1")
    e("v_xor_b32 v10, s42, v10")
    e("v_lshl_add_u32 v10, v10, 1, v9")
    e("v_lshl_add_u32 v15, v10, 4, v15")
    e("v_lshrrev_b32 v10, 1, v3")
    e("v_lshl_add_u32 v15, v10, 10, v15")
    e("s_lshr_b32 s42, s28, 1")
    e("s_lshl_b32 s42, s42, 11")
    e(f"s_add_u32 s42, s42, {DB}")
    e("v_add_u32 v15, s42, v15")
    e("v_and_b32 v8, 7, v2")
    e("v_and_b32 v9, 6, v2")
    e("v_xor_b32 v9, v9, v3")
    e("v_lshlrev_b32 v8, 7, v8")
    e("v_lshl_add_u32 v12, v9, 4, v8")
    e("v_cmp_gt_u32 vcc, 8, v2")
    e(f"v_mov_b32 v8, {ONES}")
    e("v_lshlrev_b32 v6, 4, v2")
    e("v_cndmask_b32 v12, v8, v12, vcc")
    e("v_xor_b32 v13, 64, v12")
    e("v_lshl_add_u32 v6, v3, 7, v6")
    e("v_mov_b32 v8, 0x7ff00000")
    e("v_cndmask_b32 v6, v8, v6, vcc")
    e("s_lshl_b32 s42, s28, 8")
    e(f"s_add_u32 s42, s42, {ACT}")
    e("v_lshl_add_u32 v5, v2, 4, s42")
    e("v_lshl_add_u32 v5, v3, 3, v5")
    e("s_mul_i32 s44, s39, 14336")
    e("s_lshl_b32 s42, s28, 9")
    e("s_add_u32 s44, s44, s42")
    e(f"s_add_u32 s44, s44, {WS_PART}")
    for j in range(1, 4):
        e(f"s_add_u32 s{44+j}, s44, {4096*j}")
    e(f"s_mov_b32 s42, {fbits(-1.4426950408889634)}")
    e("v_and_b32 v11, 7, v2")
    e("v_lshlrev_b32 v11, 2, v11")
    e("L_f_wait:")
    e("s_sleep 2")
    e("ds_read_b32 v8, v7")
    e("s_waitcnt lgkmcnt(0)")
    e("v_cmp_ne_u32 vcc, 3, v8")
    e("s_cbranch_vccnz L_f_wait")
    stamp(e, 2)
    for k in range(14):
        for io in range(2):
            e(f"ds_read_b64_tr_b16 {vr(A+4*k+2*io,2)}, v14 offset:{k*2048+io*256}")
    for i in range(7):
        for io in range(2):
            e(f"ds_read_b64_tr_b16 {vr(AD_+4*i+2*io,2)}, v15 offset:{i*4096+io*256}")
    e("s_waitcnt lgkmcnt(0)")
    stamp(e, 3)
    e("s_barrier")
    stamp(e, 4)
    BR = [16, 20, 24, 28, 120, 124]
    def rdx(k):
        e(f"ds_read_b128 {vr(BR[k%6],4)}, v{12 + (k&1)} offset:{XS + (k>>1)*1024}")
    for k in range(5): rdx(k)
    e(f"ds_read_b32 v10, v11 offset:{MISC+64}")
    for k in range(14):
        if k + 5 < 14:
            rdx(k + 5)
        n_after = min(k + 5, 13) - k + (1 if k < 5 else 0)
        e(f"s_waitcnt lgkmcnt({n_after})")
        c = "0" if k == 0 else vr(ACC, 4)
        e(f"v_mfma_f32_16x16x32_bf16 {vr(ACC,4)}, {vr(A+4*k,4)}, {vr(BR[k%6],4)}, {c}")
        if k == 6:
            e("v_lshlrev_b32 v9, 16, v10")
            e("v_add_f32 v9, 1.0, v9")
        if k == 8:
            e("v_and_b32 v10, 0xffff0000, v10")
            e("v_rcp_f32 v9, v9")
    e("s_nop 7")
    for r in range(4):
        e(f"v_mov_b32_dpp v{16+r}, v{ACC+r} row_newbcast:8 row_mask:0xf bank_mask:0xf")
    for r in range(4):
        e(f"v_fma_f32 v{ACC+r}, -v10, v{16+r}, v{ACC+r}")
    for r in range(4):
        e(f"v_mul_f32 v{ACC+r}, v{ACC+r}, v9")
    e("s_nop 0")
    for r in range(4):
        e(f"v_permlane32_swap_b32 v{ACC+r}, v{20+r}")
    for r in range(4):
        e(f"v_mul_f32 v{16+r}, s42, v{ACC+r}")
    for r in range(4):
        e(f"v_exp_f32 v{16+r}, v{16+r}")
    for r in range(4):
        e(f"v_mul_f32 v{ACC+r}, v{ACC+r}, v{20+r}")
    for r in range(4):
        e(f"v_add_f32 v{16+r}, 1.0, v{16+r}")
    for r in range(4):
        e(f"v_rcp_f32 v{16+r}, v{16+r}")
    e("s_mov_b32 exec_hi, 0")
    for r in range(4):
        e(f"v_mul_f32 v{ACC+r}, v{ACC+r}, v{16+r}")
    e(f"v_cvt_pk_bf16_f32 v16, v{ACC}, v{ACC+1}")
    e(f"v_cvt_pk_bf16_f32 v17, v{ACC+2}, v{ACC+3}")
    e("ds_write_b64 v5, v[16:17]")
    e("s_mov_b32 exec_hi, -1")
    e("s_waitcnt lgkmcnt(0)")
    stamp(e, 5)
    e("s_barrier")
    e(f"ds_read_b128 v[16:19], v4 offset:{ACT}")
    e("s_waitcnt lgkmcnt(0)")
    for i in range(7):
        e(f"v_mfma_f32_16x16x32_bf16 {vr(A+4*i,4)}, {vr(AD_+4*i,4)}, v[16:19], 0")
    e("s_nop 1")
    for i in range(7):
        e(f"buffer_store_dwordx4 {vr(A+4*i,4)}, v6, s[24:27], s{44+(i>>1)} offen offset:{2048*(i&1)} sc1")
    stamp(e, 6)
    B4 = OPT.get("b4", 0)
    if B4 >= 0:
        e(f"s_waitcnt vmcnt({B4})")
        e("s_barrier")
    stamp_flush(e, 1, 24, 7, 28)
    e("s_endpgm")

    e("L_f_poll:")
    PFL = ["sc1", "sc0 sc1"][OPT.get("pfl", 0)]
    e("s_setprio 3")
    e("v_lshrrev_b32 v4, 2, v1")
    e("v_lshlrev_b32 v4, 7, v4")
    e("v_and_b32 v5, 3, v1")
    e("v_lshl_add_u32 v4, v5, 4, v4")
    e("s_mov_b32 s46, 0")
    e("s_mov_b32 s47, 0")
    e("v_lshrrev_b32 v5, 3, v1")
    e("v_and_b32 v6, 7, v1")
    e("v_lshlrev_b32 v13, 2, v6")
    e("v_and_b32 v7, 6, v5")
    e("v_xor_b32 v6, v6, v7")
    e("v_lshlrev_b32 v6, 4, v6")
    e("v_lshlrev_b32 v5, 2, v5")
    e("v_bfe_u32 v14, v1, 3, 1")
    e("s_lshl_b32 s42, s39, 4")
    e("v_lshl_add_u32 v14, v14, 3, s42")
    e("v_mul_u32_u24 v24, 14336, v3")
    e("v_lshl_add_u32 v24, v2, 4, v24")
    e("v_add_u32 v25, 57344, v24")
    e("v_add_u32 v26, 57344, v25")
    e("v_add_u32 v27, 57344, v26")
    e("s_lshl_b32 s52, s39, 8")
    e(f"s_add_u32 s52, s52, {WS_PART}")
    for j in range(1, 4):
        e(f"s_add_u32 s{52+j}, s52, {4*57344*j}")
    e("v_mov_b32 v8, 0")
    e("v_mov_b32 v9, 0")
    e("v_mov_b32 v10, 0")
    e("v_lshlrev_b32 v7, 12, v1")
    e("v_lshlrev_b32 v19, 7, v1")
    e("s_movk_i32 s44, 896")
    e("s_mov_b32 s45, 0xffff0000")
    e("s_waitcnt lgkmcnt(0)")
    stamp(e, 1)
    srd(e, 24, 20, WS_SIZE)
    srd(e, 48, 16, XBYTES)
    if not OPT.get("b0late", 1): e("s_barrier")
    if OPT.get("sall", 0):
        sync_all(e)
    else:
        e(f"s_mov_b32 s62, {WS_FL1:#x}")
        sync1(e, "f", 8, "s62")
        if OPT.get("fl2", 0):
            e("s_lshl_b32 s62, s37, 6")
            e(f"s_add_u32 s62, s62, {WS_FL1 + 0x4000}")
            sync1(e, "g", 1, "s62")
    if OPT.get("b0late", 1): e("s_barrier")
    for j in range(4):
        e(f"s_mov_b32 s{58+j}, {WS_KEY+4096*j:#x}")
    e(f"s_mov_b32 s56, {WS_FLAG:#x}")
    e(f"s_mov_b32 s57, {WS_FLAG+8192:#x}")
    e("s_mov_b64 exec, 0xf")
    e("L_f_p0:")
    e("s_sleep 2")
    e("buffer_load_dword v11, v7, s[24:27], s58 offen offset:3968 " + PFL)
    e("s_add_u32 s47, s47, 1")
    e("s_waitcnt vmcnt(0)")
    e("v_cmp_ne_u32 vcc, 0, v11")
    e("s_cbranch_vccnz L_f_p1")
    e("s_cmp_lt_u32 s47, 0x40000")
    e("s_cbranch_scc1 L_f_p0")
    e("L_f_p1:")
    e("s_mov_b64 exec, -1")
    e("L_f_pk:")
    for i in range(8):
        e(f"buffer_load_dwordx4 {vr(K+4*i,4)}, v4, s[24:27], s{58+(i>>1)} offen offset:{(i&1)*2048} " + PFL)
    e("s_add_u32 s47, s47, 1")
    e(".p2align 3")
    for i in range(8):
        e(f"s_waitcnt vmcnt({7-i})")
        e("s_nop 0")
        k0 = K + 4*i
        if i == 0:
            e(f"v_max3_u32 v8, v{k0}, v{k0+1}, v{k0+2}")
            e(f"v_med3_u32 v9, v{k0}, v{k0+1}, v{k0+2}")
            e(f"v_min3_u32 v10, v{k0}, v{k0+1}, v{k0+2}")
            e(f"v_min3_u32 v11, v10, v{k0+3}, v{k0+3}")
            rest = [k0+3]
        else:
            e(f"v_min3_u32 v11, v11, v{k0}, v{k0+1}")
            e(f"v_min3_u32 v11, v11, v{k0+2}, v{k0+3}")
            rest = [k0, k0+1, k0+2, k0+3]
        for k in rest:
            e(f"v_med3_u32 v10, v9, v10, v{k}")
            e(f"v_med3_u32 v9, v8, v9, v{k}")
            e(f"v_max_u32_e64 v8, v8, v{k}")
    e("v_cmp_eq_u32 vcc, 0, v11")
    e("s_cbranch_vccz L_f_keys")
    e("s_cmp_lt_u32 s47, 0x40000")
    e("s_cbranch_scc1 L_f_pk")
    e("L_f_keys:")
    stamp(e, 2)
    FR = OPT.get("fr", 2)
    def flagloads():
        e("buffer_load_dword v28, v19, s[24:27], s56 offen sc1")
        e("buffer_load_dword v29, v19, s[24:27], s57 offen sc1")
    side = []
    WARM = OPT.get("warm", 0)
    flagloads()
    if WARM:
        side += ["v_max_u32_dpp v21, v8, v8 quad_perm:[1,0,3,2] row_mask:0xf bank_mask:0xf\nv_not_b32 v22, v8",
                 "v_max_u32_dpp v21, v21, v21 quad_perm:[2,3,0,1] row_mask:0xf bank_mask:0xf\nv_not_b32 v23, v9",
                 "v_max_u32_dpp v21, v21, v21 row_half_mirror row_mask:0xf bank_mask:0xf\nv_and_b32 v22, 0x7ff, v22",
                 "v_min_u32_dpp v21, v21, v21 row_mirror row_mask:0xf bank_mask:0xf\nv_and_b32 v23, 0x7ff, v23",
                 "v_min_u32_dpp v21, v21, v21 row_bcast:15 row_mask:0xa bank_mask:0xf\nv_mul_u32_u24 v22, s44, v22",
                 "v_min_u32_dpp v21, v21, v21 row_bcast:31 row_mask:0xc bank_mask:0xf\nv_mul_u32_u24 v23, s44, v23",
                 "v_readlane_b32 s43, v21, 63\nv_mov_b32 v20, 0x7ff00000",
                 "v_cmp_le_u32 s[62:63], s43, v30\nv_cmp_le_u32 s[40:41], s43, v31",
                 "s_nop 0\nv_cndmask_b32 v22, v20, v22, s[62:63]",
                 "v_cndmask_b32 v23, v20, v23, s[40:41]\nbuffer_load_dword v17, v22, s[48:51], 0 offen sc1"]
        tl = [f"buffer_load_dword v17, v22, s[48:51], 0 offen offset:{128*j} sc1" for j in range(1, 7)] + \
             [f"buffer_load_dword v16, v23, s[48:51], 0 offen offset:{128*j} sc1" for j in range(7)]
        while tl:
            side.append("\n".join(tl[:3])); tl = tl[3:]
        e("v_mov_b32 v30, v8")
        e("v_mov_b32 v31, v9")
    for rd in range(8):
        for si, st in enumerate(DPP6):
            if si == 0:
                e(f"v_max_u32_dpp v11, v8, v8 {st} bank_mask:0xf bound_ctrl:0")
            else:
                e(f"v_max_u32_dpp v11, v11, v11 {st} bank_mask:0xf")
            if si < 5:
                if side:
                    x = side.pop(0)
                    e(x)
                    if "\n" not in x: e("s_nop 0")
                else:
                    e("s_nop 1")
        e("s_nop 0")
        e("v_readlane_b32 s42, v11, 63")
        e("s_nop 1")
        e("v_cmp_eq_u32 vcc, s42, v8")
        e(f"v_writelane_b32 v12, s42, {rd}")
        e("s_nop 0")
        e("v_cndmask_b32 v8, v8, v9, vcc")
        e("v_cndmask_b32 v9, v9, v10, vcc")
        e("v_cndmask_b32 v10, v10, 0, vcc")
    e("v_cmp_eq_u32 vcc, 0, v8")
    e("s_cbranch_vccz L_f_topdone")
    e("s_mov_b32 m0, 0")
    e("s_mov_b32 s42, -1")
    e("L_f_slow:")
    e(f"v_sub_u32 v8, s42, v{K}")
    e(f"v_sub_u32 v9, s42, v{K+1}")
    e("v_min_u32 v8, v8, v9")
    for i in range(2, 32, 2):
        e(f"v_sub_u32 v9, s42, v{K+i}")
        e(f"v_sub_u32 v10, s42, v{K+i+1}")
        e("v_min3_u32 v8, v8, v9, v10")
    for st in DPP6:
        e("s_nop 1")
        e(f"v_min_u32_dpp v8, v8, v8 {st} bank_mask:0xf")
    e("s_nop 0")
    e("v_readlane_b32 s47, v8, 63")
    e("s_nop 3")
    e("s_sub_u32 s42, s42, s47")
    e("v_writelane_b32 v12, s42, m0")
    e("s_sub_u32 s42, s42, 1")
    e("s_add_u32 m0, m0, 1")
    e("s_cmp_lt_u32 m0, 8")
    e("s_cbranch_scc1 L_f_slow")
    e("L_f_topdone:")
    stamp(e, 3)
    e("ds_bpermute_b32 v8, v5, v12")
    e("ds_bpermute_b32 v15, v13, v12")
    e("s_mov_b32 s47, 0")
    e("s_waitcnt lgkmcnt(1)")
    e("v_not_b32 v8, v8")
    e("v_and_b32 v8, 0x7ff, v8")
    e("v_mad_u32_u24 v31, v8, s44, v6")
    e(f"s_waitcnt vmcnt({14 if WARM else 0})")
    e("L_f_gather:")
    e(f"s_mov_b32 m0, {XS}")
    e("v_mov_b32 v8, v31")
    for j in range(7):
        e(f"buffer_load_dwordx4 v8, s[48:51], 0 offen sc1 lds")
        if j < 6:
            e(f"s_mov_b32 m0, {XS + 1024*(j+1)}")
            e("v_add_u32 v8, 128, v8")
    e("s_waitcnt lgkmcnt(0)")
    e("v_not_b32 v9, v15")
    e("v_and_b32 v9, 0x7ff, v9")
    e("v_mad_u32_u24 v20, v9, s44, v14")
    e("v_and_b32 v21, 63, v9")
    e("v_and_b32 v22, 31, v9")
    e("v_lshrrev_b32 v23, 10, v9")
    e("v_lshl_add_u32 v22, v23, 5, v22")
    e("v_lshrrev_b32 v23, 5, v21")
    e("v_lshl_add_u32 v10, v23, 6, v22")
    e("v_bfe_u32 v23, v9, 6, 4")
    e("v_lshlrev_b32 v10, 7, v10")
    e("v_lshl_add_u32 v10, v23, 2, v10")
    e("buffer_load_dword v11, v10, s[24:27], s58 offen offset:64 sc1")
    e("buffer_load_dwordx2 v[16:17], v20, s[48:51], 0 offen sc1")
    e("v_lshlrev_b32 v22, 2, v22")
    e("ds_bpermute_b32 v23, v22, v28")
    e("ds_bpermute_b32 v22, v22, v29")
    e("v_cmp_gt_u32 vcc, 32, v21")
    e("s_add_u32 s47, s47, 1")
    e("s_waitcnt lgkmcnt(0)")
    e("v_cndmask_b32 v22, v22, v23, vcc")
    e("v_cmp_eq_u32 vcc, 0, v22")
    e("s_cbranch_vccz L_f_flagok")
    flagloads()
    e("s_waitcnt vmcnt(0)")
    e("s_cmp_lt_u32 s47, 0x40000")
    e("s_cbranch_scc1 L_f_gather")
    e("L_f_flagok:")
    e("v_lshlrev_b32 v30, 2, v1")
    e("s_waitcnt vmcnt(1)")
    e("s_mov_b64 exec, 0xff")
    e(f"ds_write_b32 v30, v11 offset:{MISC+64}")
    e("s_mov_b64 exec, -1")
    e("s_waitcnt lgkmcnt(0)")
    stamp(e, 4)
    e("s_barrier")
    e("v_ashrrev_i32 v9, 31, v15")
    e("v_not_b32 v9, v9")
    e("v_or_b32 v9, 0x80000000, v9")
    e("v_xor_b32 v15, v15, v9")
    e("v_and_b32 v15, s45, v15")
    e(f"v_mul_f32 v18, {fbits(-1.4426950408889634)}, v15")
    e("v_exp_f32 v18, v18")
    e("v_mov_b32 v10, 1.0")
    e("v_add_f32 v18, 1.0, v18")
    e("v_rcp_f32 v18, v18")
    e("s_mov_b32 s47, 0")
    e("v_cvt_pk_bf16_f32 v18, v18, v18")
    e("v_and_b32 v18, s45, v18")
    e("v_mov_b32 v14, v20")
    e("s_waitcnt vmcnt(0)")
    e("v_lshlrev_b32 v20, 16, v16")
    e("v_and_b32 v21, s45, v16")
    e("v_lshlrev_b32 v22, 16, v17")
    e("v_and_b32 v23, s45, v17")
    e("s_barrier")
    if B4 >= 0:
        e("s_barrier")
    stamp(e, 5)
    P = 64
    e("L_f_pp:")
    for i in range(14):
        e(f"buffer_load_dwordx4 {vr(P+4*i,4)}, v{24+(i&3)}, s[24:27], s{52+(i>>2)} offen sc1")
    e("s_add_u32 s47, s47, 1")
    e("s_waitcnt vmcnt(12)")
    e(f"v_pk_add_f32 v[28:29], {vr(P,2)}, {vr(P+4,2)}")
    e(f"v_pk_add_f32 v[30:31], {vr(P+2,2)}, {vr(P+6,2)}")
    for i in range(2, 14):
        e(f"s_waitcnt vmcnt({13-i})")
        e(f"v_pk_add_f32 v[28:29], v[28:29], {vr(P+4*i,2)}")
        e(f"v_pk_add_f32 v[30:31], v[30:31], {vr(P+4*i+2,2)}")
    e("v_add_f32 v8, v28, v29")
    e("v_add_f32 v9, v30, v31")
    e("v_cmp_u_f32 vcc, v8, v9")
    e("s_cbranch_vccz L_f_got")
    e(f"v_max3_u32 v8, v{P}, v{P+1}, v{P+2}")
    for i in range(3, 55, 2):
        e(f"v_max3_u32 v8, v8, v{P+i}, v{P+i+1}")
    e(f"v_max_u32 v8, v8, v{P+55}")
    e("v_cmp_eq_u32 vcc, -1, v8")
    e("s_cbranch_vccz L_f_got")
    e("s_cmp_lt_u32 s47, 0x40000")
    e("s_cbranch_scc1 L_f_pp")
    e("L_f_got:")
    stamp(e, 6)
    for r in range(4):
        e(f"v_mfma_f32_16x16x4_f32 {vr(32+4*r,4)}, v10, v{28+r}, 0")
    e("s_nop 7")
    e("s_nop 0")
    e("v_cvt_pk_bf16_f32 v16, v32, v36")
    e("v_cvt_pk_bf16_f32 v17, v40, v44")
    e("v_lshlrev_b32 v24, 16, v16")
    e("v_and_b32 v25, s45, v16")
    e("v_lshlrev_b32 v26, 16, v17")
    e("v_and_b32 v27, s45, v17")
    for r in range(4):
        e(f"v_mul_f32 v{24+r}, v{24+r}, v18")
    e("v_cvt_pk_bf16_f32 v16, v24, v25")
    e("v_cvt_pk_bf16_f32 v17, v26, v27")
    e("v_lshlrev_b32 v24, 16, v16")
    e("v_and_b32 v25, s45, v16")
    e("v_lshlrev_b32 v26, 16, v17")
    e("v_and_b32 v27, s45, v17")
    for r in range(4):
        e(f"v_add_f32 v{24+r}, v{24+r}, v{20+r}")
    e("v_cvt_pk_bf16_f32 v16, v24, v25")
    e("v_cvt_pk_bf16_f32 v17, v26, v27")
    e("s_mov_b64 exec, 0xffff")
    e("buffer_store_dwordx2 v[16:17], v14, s[48:51], 0 offen" + (" sc1" if OPT.get("fsc1", 1) else ""))
    stamp_flush(e, 1, 24, 7, 28)

if __name__ == "__main__":
    for a in sys.argv[2:]:
        if a == "diag":
            DIAG = True; gen.DIAG = True
        else:
            k, v = a.split("=")
            OPT[k] = int(v)
    build([ka], sys.argv[1])
    if not OPT.get("aslist", 0):
        t = open(sys.argv[1]).read().replace("; @launch kernel=" + NAME + "_kernel grid", "; @launch grid")
        open(sys.argv[1], "w").write(t)
```

```python
import sys, importlib; sys.path.insert(0, "work")
import gen
from gen import header, srd, build
G = importlib.import_module(sys.argv[1])
gen.DIAG = True; G.DIAG = True
for a in sys.argv[4:]:
    k, v = a.split("="); G.OPT[k] = int(v)
def addr(kid, wg, wave, st): return G.WS_DIAG + kid*0x40000 + ((wg*8 + wave)*16 + st)*4
def probe(a, b, mult):
    def f(e):
        header(e, "fnet_pr_kernel")
        e("s_cmp_ge_u32 s2, 1"); e("s_cbranch_scc1 L_pr_end")
        e("s_load_dwordx2 s[4:5], s[0:1], 96"); e("s_load_dwordx2 s[14:15], s[0:1], 88"); e("s_waitcnt lgkmcnt(0)")
        srd(e, 8, 4, G.WS_SIZE)
        e(f"s_mov_b32 s12, {addr(*a)}"); e(f"s_mov_b32 s13, {addr(*b)}")
        e("buffer_load_dword v1, off, s[8:11], s12"); e("buffer_load_dword v2, off, s[8:11], s13"); e("s_waitcnt vmcnt(0)")
        e("v_sub_u32 v1, v2, v1"); e("s_nop 1"); e("v_readfirstlane_b32 s16, v1")
        srd(e, 8, 14, 256)
        e("buffer_store_dword v1, off, s[8:11], 0")
        e("s_min_u32 s16, s16, 5000"); e(f"s_mul_i32 s16, s16, {mult}")
        e("s_memrealtime s[20:21]"); e("s_waitcnt lgkmcnt(0)")
        e("L_pr_spin:"); e("s_memrealtime s[22:23]"); e("s_waitcnt lgkmcnt(0)"); e("s_sub_u32 s24, s22, s20"); e("s_cmp_lt_u32 s24, s16"); e("s_cbranch_scc1 L_pr_spin")
        e("L_pr_end:"); e("s_endpgm")
        return dict(name="fnet_pr_kernel", vgpr=8, accum=8, sgpr=32, grid=1, block=64, lds=0)
    return f
build([G.ka, probe(*eval(sys.argv[2]))], sys.argv[3])
```

```python
import struct, sys
from gen import E, fbits, vr, ar, srd, header, build, NAME
import gen

WS_V    = 0x000000
WS_KEY  = 0x300000
WS_FLAG = 0x304000
WS_PART = 0x308000
WS_FL1  = 0x3E0000
WS_SIZE = 0x10000000
XBYTES  = 2048*896
WBYTES  = 448*1792*2
WS_DIAG = 0x800000
LDS_XROW = 140288
XRS = 1040
VH = 28672
VS = 57344
DIAG = False
OPT = {}
DPP6 = ["row_shr:1 row_mask:0xf", "row_shr:2 row_mask:0xf", "row_shr:4 row_mask:0xf", "row_shr:8 row_mask:0xf",
        "row_bcast:15 row_mask:0xa", "row_bcast:31 row_mask:0xc"]

def stamp(e, i):
    if DIAG:
        e(f"s_mem{'time' if OPT.get('cyc', 0) and i in (4, 5) else 'realtime'} s[{64+2*i}:{65+2*i}]")
        e("s_waitcnt lgkmcnt(0)")
def stamp_flush(e, kid, srdreg, nst, wavereg):
    if DIAG:
        e("s_mov_b64 exec, -1")
        e(f"s_memrealtime s[{64+2*nst}:{65+2*nst}]")
        e("s_waitcnt lgkmcnt(0)")
        for i in range(nst+1):
            e(f"v_writelane_b32 v230, s{64+2*i}, {i}")
        e(f"s_lshl_b32 s90, s2, 3")
        e(f"s_add_u32 s90, s90, s{wavereg}")
        e(f"s_lshl_b32 s90, s90, 6")
        e(f"s_add_u32 s90, s90, {WS_DIAG + kid*0x40000}")
        e("v_mbcnt_lo_u32_b32 v231, -1, 0")
        e("v_lshlrev_b32 v231, 2, v231")
        e("s_mov_b32 exec_lo, 0xffff")
        e("s_mov_b32 exec_hi, 0")
        e(f"buffer_store_dword v230, v231, s[{srdreg}:{srdreg+3}], s90 offen")
        e("s_mov_b64 exec, -1")

class Lds:
    def __init__(self, e):
        self.e = e; self.q = []
    def issue(self, tag, ins):
        self.e(ins); self.q.append(tag)
    def need(self, tag):
        if tag not in self.q: return
        last = max(i for i, t in enumerate(self.q) if t == tag)
        n = len(self.q) - 1 - last
        assert n <= 15, n
        self.e(f"s_waitcnt lgkmcnt({n})")
        self.q = self.q[last+1:]

def tagcheck(e, u):
    e("s_mov_b32 s63, 0")
    e(f"L_tag{u}:")
    e("v_cmp_ne_u32 vcc, 0, v224")
    e(f"s_cbranch_vccnz L_tagok{u}")
    if u != "a": srd(e, 56, 18, 256)
    e("buffer_load_dwordx2 v[224:225], off, s[56:59], 0 sc1")
    e("s_add_u32 s63, s63, 1")
    e("s_waitcnt vmcnt(0)")
    e("s_cmp_lt_u32 s63, 0x40000")
    e(f"s_cbranch_scc1 L_tag{u}")
    e(f"L_tagok{u}:")

def touch_setup(e, nch):
    e(f"s_cmp_lt_u32 s42, {nch}")
    e(f"s_cselect_b32 s38, {WBYTES:#x}, 0")
    e("s_cmp_ge_u32 s42, 196")
    e("s_cselect_b32 s36, s48, s46")
    e("s_cselect_b32 s37, s49, s47")
    e("s_cselect_b32 s34, 196, 0")
    e("s_cmp_ge_u32 s42, 392")
    e("s_cselect_b32 s36, s50, s36")
    e("s_cselect_b32 s37, s51, s37")
    e("s_cselect_b32 s34, 392, s34")
    e("s_sub_u32 s42, s42, s34")
    e("s_lshl_b32 s42, s42, 13")
    e("s_mov_b32 s39, 0x20000")
    e("v_lshlrev_b32 v216, 7, v1")
    e("v_add_u32 v216, s42, v216")

def xtouch(e, u, unit, gp, dst):
    e("s_and_b32 s30, s2, 7")
    e(f"s_cmp_ge_u32 s{unit}, 56")
    e(f"s_cbranch_scc1 L_xt_d{u}")
    e(f"s_cmp_ge_u32 s{unit}, 28")
    e("s_cselect_b32 s31, 28, 0")
    e(f"s_cselect_b32 s24, s{gp+2}, s{gp}")
    e(f"s_cselect_b32 s25, s{gp+3}, s{gp+1}")
    e(f"s_sub_u32 s29, s{unit}, s31")
    e("s_mul_i32 s29, s29, 57344")
    e("s_mul_i32 s30, s30, 448")
    e("s_and_b32 s30, s30, 0xffffff80")
    e("s_add_u32 s29, s29, s30")
    e("v_lshrrev_b32 v8, 2, v1")
    e("v_mul_u32_u24 v8, 3584, v8")
    e("v_and_b32 v9, 3, v1")
    e("v_lshl_add_u32 v8, v9, 7, v8")
    e(f"s_branch L_xt_go{u}")
    e(f"L_xt_d{u}:")
    e(f"s_mov_b32 s24, s{gp+4}")
    e(f"s_mov_b32 s25, s{gp+5}")
    e(f"s_sub_u32 s29, s{unit}, 56")
    e("s_lshl_b32 s29, s29, 13")
    e(f"s_mul_i32 s30, s30, {224*896}")
    e("s_add_u32 s29, s29, s30")
    e(f"s_cmp_ge_u32 s{unit}, 81")
    e("s_cselect_b32 s29, 0x7ff00000, s29")
    e("v_lshlrev_b32 v8, 7, v1")
    e(f"L_xt_go{u}:")
    e("v_add_u32 v8, s29, v8")
    e(f"s_mov_b32 s26, {WBYTES:#x}")
    e("s_mov_b32 s27, 0x20000")
    e(f"buffer_load_dword v{dst}, v8, s[24:27], 0 offen")

def ka(e):
    header(e, NAME + "_kernel")
    X, ACC, CUR, PRV, PK, RF, BB = 64, 32, 16, 24, 48, 56, 120
    SUM, GRM = 32, 36
    LDS_X, LDS_Z = 57344, 114688
    LDS_R = LDS_Z + 8192
    LDS_ST = LDS_R + 8192
    LDS_CS = LDS_ST + 512
    LDS_TB = LDS_CS + 512
    LDS_XR = LDS_XROW
    assert LDS_TB + 8192 == LDS_XROW
    e("s_cmp_ge_u32 s2, 256")
    e("s_cbranch_scc1 L_ka_end")
    stamp(e, 0)
    e("s_load_dwordx2 s[4:5], s[0:1], 0")
    e("s_load_dwordx2 s[6:7], s[0:1], 96")
    e("s_load_dwordx8 s[44:51], s[0:1], 48")
    e("s_load_dwordx2 s[60:61], s[0:1], 88")
    e("v_lshrrev_b32 v1, 6, v0")
    e("v_and_b32 v2, 15, v0")
    e("v_readfirstlane_b32 s43, v1")
    e("v_bfe_u32 v3, v0, 4, 2")
    e("v_and_b32 v1, 63, v0")
    e("s_cmp_ge_u32 s2, 224")
    e("s_cbranch_scc1 L_ka_spare")
    e("s_and_b32 s16, s43, 3")
    e("s_and_b32 s20, s2, 31")
    e("s_lshr_b32 s19, s2, 5")
    e("s_lshr_b32 s21, s16, 1")
    e("s_and_b32 s22, s16, 1")
    e("s_mul_i32 s29, s16, 14336")
    e(f"s_add_u32 s41, s29, {LDS_X}")
    e("s_mov_b32 s28, 0x3f803f80")
    e("s_cmp_ge_u32 s43, 4")
    e("s_cbranch_scc1 L_ka_help")

    def common_addr():
        e("v_lshlrev_b32 v11, 4, v1")
        e("v_and_b32 v12, 6, v2")
        e("v_xor_b32 v12, v12, v3")
        e("v_and_b32 v14, 7, v2")
        e("v_lshlrev_b32 v14, 7, v14")
        e("v_lshl_add_u32 v14, v12, 4, v14")
        e("v_lshrrev_b32 v12, 3, v2")
        e("v_lshl_add_u32 v14, v12, 10, v14")
        e("v_add_u32 v14, s41, v14")
        e("v_xor_b32 v15, 64, v14")
        e("v_lshrrev_b32 v12, 2, v1")
        e("v_and_b32 v53, 3, v1")
        e("v_bfe_u32 v10, v1, 3, 2")
        e("v_xor_b32 v10, v10, v53")
        e("v_lshlrev_b32 v10, 4, v10")
        e("v_lshl_add_u32 v10, v12, 6, v10")
        e(f"v_mul_u32_u24 v12, {VS}, v12")
        e("v_lshl_add_u32 v53, v53, 4, v12")
        e("s_lshl_b32 s24, s43, 10")
        e(f"s_add_u32 s24, s24, {LDS_TB}")
        e("v_add_u32 v10, s24, v10")
        e("v_bfe_u32 v12, v2, 1, 2")
        e("v_xor_b32 v12, v12, v3")
        e("v_lshlrev_b32 v12, 4, v12")
        e("v_lshl_add_u32 v12, v2, 6, v12")
        e("v_add_u32 v8, s24, v12")
        e(f"s_mul_i32 s24, s22, {16*VS}")
        e(f"s_mul_i32 s25, s21, {VH}")
        e("s_add_u32 s24, s24, s25")
        e("s_lshl_b32 s25, s19, 7")
        e("s_add_u32 s24, s24, s25")
        e("s_mul_i32 s25, s20, 896")
        e("s_add_u32 s30, s24, s25")
        e("s_lshl_b32 s24, s16, 11")
        e(f"s_add_u32 s24, s24, {LDS_R}")
        e("v_add_u32 v52, s24, v11")
    def gemm2(hh):
        e(f"v_add_u32 v54, {LDS_Z + hh*4096}, v11")
        e("s_barrier")
        for j in range(4):
            e(f"ds_read_b128 {vr(X+4*j,4)}, v54 offset:{j*1024}")
        for n in range(2):
            e(f"s_waitcnt lgkmcnt({2-2*n})")
            e(f"v_mfma_f32_16x16x32_bf16 {vr(40+4*n,4)}, {vr(X+8*n,4)}, {vr(RF,4)}, 0")
            e(f"v_mfma_f32_16x16x32_bf16 {vr(40+4*n,4)}, {vr(X+8*n+4,4)}, {vr(RF+4,4)}, {vr(40+4*n,4)}")
        e("s_nop 4")
        e("v_cvt_pk_bf16_f32 v16, v40, v41")
        e("v_cvt_pk_bf16_f32 v17, v42, v43")
        e("s_nop 0")
        e("v_cvt_pk_bf16_f32 v18, v44, v45")
        e("v_cvt_pk_bf16_f32 v19, v46, v47")
        e("ds_write_b128 v8, v[16:19]")
        e("s_waitcnt lgkmcnt(0)")
        e("ds_read_b128 v[20:23], v10")
        e("s_waitcnt lgkmcnt(0)")
        e(f"buffer_store_dwordx4 v[20:23], v53, s[12:15], s30 offen offset:{64*hh} sc1")
        stamp(e, 7)
        e("v_lshlrev_b32 v226, 6, v1")
        e("s_waitcnt vmcnt(0)")
        stamp(e, 8)
        e("s_barrier")
        if hh:
            e("s_cmp_lg_u32 s43, 4")
            e("s_cbranch_scc1 L_ka_noflag")
            tagcheck(e, "a")
            e("s_lshl_b32 s24, s2, 6")
            e(f"s_add_u32 s24, s24, {WS_FL1}")
            e("s_mov_b64 exec, 1")
            e("buffer_store_dwordx2 v[224:225], off, s[12:15], s24 sc1")
            e("s_mov_b64 exec, -1")
            e("L_ka_noflag:")
            if OPT.get("pfm", 3) == 2: e("buffer_load_dword v219, v216, s[36:39], 0 offen")
        stamp_flush(e, 0, 12, 9, 43)
        e("s_branch L_kb_entry")

    MACC, AR, CS, MB = 16, 32, 44, 64
    FC, FP, FK = 64, 72, 80
    e("v_lshrrev_b32 v4, 2, v2")
    e("v_and_b32 v5, 3, v2")
    e("s_lshl_b32 s24, s19, 6")
    e("s_lshl_b32 s25, s21, 5")
    e("s_add_u32 s25, s24, s25")
    e("s_lshl_b32 s26, s22, 2")
    e("s_add_u32 s25, s25, s26")
    e("v_lshl_add_u32 v7, v4, 3, v5")
    e("v_add_u32 v7, s25, v7")
    e("v_lshrrev_b32 v8, 5, v7")
    e("v_and_b32 v9, 15, v7")
    e("v_lshl_add_u32 v8, v8, 4, v9")
    e("v_cmp_eq_u32 vcc, 0, v7")
    e("v_bfe_u32 v10, v7, 4, 1")
    e("v_mov_b32 v9, 224")
    e("v_cndmask_b32 v7, v8, v9, vcc")
    e("v_mul_u32_u24 v10, 0x3e80, v10")
    e("v_lshlrev_b32 v10, 16, v10")
    e("v_lshl_add_u32 v8, v3, 3, s24")
    e("v_mul_u32_u24 v8, v8, v7")
    e("v_cvt_f32_u32 v7, v7")
    e("v_cvt_f32_u32 v8, v8")
    e(f"s_mov_b32 s24, {fbits(1.0/448)}")
    e("v_mul_f32 v9, s24, v8")
    e("v_floor_f32 v9, v9")
    e(f"v_fmamk_f32 v8, v9, {fbits(-448.0)}, v8")
    e("v_mul_f32 v7, s24, v7")
    e("v_fma_f32 v8, v8, s24, v10")
    e("v_mul_f32 v9, 0x42000000, v7")
    e("v_cos_f32 v88, v9")
    for j in range(8):
        e(f"v_cos_f32 v{FC+j}, v8")
        e(f"v_sub_f32 v11, v8, v9")
        if j < 7:
            e(f"v_add_f32 v8, v8, v7")
        e(f"v_cos_f32 v{FP+j}, v11")
    e("v_add_f32 v88, v88, v88")
    e("v_lshl_add_u32 v91, v1, 4, s29")
    e("v_mov_b32 v89, v88")
    stamp(e, 1)
    e(".p2align 3")
    for st in range(14):
        A, B = (FC, FP) if st % 2 == 0 else (FP, FC)
        P = FK + 4*(st % 2)
        for j in range(4):
            e(f"v_cvt_pk_bf16_f32 v{P+j}, v{A+2*j}, v{A+2*j+1}")
        e(f"ds_write_b128 v91, {vr(P,4)} offset:{st*1024}")
        if st < 13:
            for j in range(4):
                e(f"v_pk_fma_f32 {vr(B+2*j,2)}, v[88:89], {vr(A+2*j,2)}, {vr(B+2*j,2)} neg_lo:[0,0,1] neg_hi:[0,0,1]")
    common_addr()
    e("s_lshl_b32 s24, s21, 10")
    e("s_lshl_b32 s25, s22, 3")
    e("s_add_u32 s24, s24, s25")
    e(f"s_add_u32 s24, s24, {LDS_Z}")
    e("v_add_u32 v55, s24, v11")
    e(f"v_lshlrev_b32 v12, 2, v2")
    e(f"v_add_u32 v12, {LDS_CS}, v12")
    e("s_lshl_b32 s25, s16, 7")
    e(f"s_add_u32 s25, s25, {LDS_ST}")
    e("v_lshl_add_u32 v13, v3, 4, s25")
    e("s_waitcnt lgkmcnt(0)")
    srd(e, 12, 6, WS_SIZE)
    srd(e, 56, 60, 256)
    stamp(e, 2)
    e("s_barrier")
    L = Lds(e)
    def rB(k, n):
        L.issue(("B", k), f"ds_read_b128 {vr(MB+32+((k+6)%8)*16+4*n,4)}, v11 offset:{(n*14+k)*1024}")
    def Breg(k, n): return vr(MB+32+((k+6)%8)*16+4*n, 4)
    PRE = OPT.get("pre", 4)
    for k in range(PRE):
        for n in range(4): rB(k, n)
    stamp(e, 3)
    e("s_barrier")
    stamp(e, 4)
    if DIAG: L.q = []
    def rA(k):
        L.issue(("A", k), f"ds_read_b128 {vr(AR+4*(k%3),4)}, v{14+(k&1)} offset:{(k>>1)*2048}")
    L.q = L.q[-13:]
    rA(0); rA(1)
    ST, U = 64, 72
    CK = OPT.get("ck", 11)
    sh = []
    for k in range(14):
        if k == 2: e("s_barrier")
        if k == 6:
            e("s_barrier")
            e("buffer_load_dwordx2 v[224:225], off, s[56:59], 0 sc1")
        if k == CK:
            e("s_barrier")
            L.issue("st", f"ds_read_b128 {vr(ST,4)}, v13")
            L.issue("st", f"ds_read_b128 {vr(ST+4,4)}, v13 offset:64")
        if k == CK + 1:
            L.need("st")
            for n in range(4):
                for r in range(4): sh.append(f"v_mul_f32 v{U+4*n+r}, v{ST+r}, v{CS+n}")
        L.need(("A", k))
        L.need(("B", k))
        for n in range(4):
            c = "0" if k == 0 else vr(MACC+4*n, 4)
            e(f"v_mfma_f32_16x16x32_bf16 {vr(MACC+4*n,4)}, {vr(AR+4*(k%3),4)}, {Breg(k,n)}, {c}")
            if n == 0 and k + 2 < 14: rA(k + 2)
            if k + PRE < 14: rB(k + PRE, n)
            elif k == 14 - PRE: L.issue("cs", f"ds_read_b32 v{CS+n}, v12 offset:{64*n}")
            elif k == 15 - PRE and n < 2: L.issue("R", f"ds_read_b128 {vr(RF+4*n,4)}, v52 offset:{1024*n}")
            for _ in range(3):
                if sh: e(sh.pop(0))
    if CK == 13:
        L.need("st")
        for n in range(4):
            for r in range(4): sh.append(f"v_mul_f32 v{U+4*n+r}, v{ST+r}, v{CS+n}")
    stamp(e, 5)
    nl = len(sh)
    while sh: e(sh.pop(0))
    if nl < 5: e(f"s_nop {4-nl}")
    for n in range(4):
        a = MACC + 4*n
        e(f"v_pk_fma_f32 {vr(a,2)}, {vr(a,2)}, {vr(ST+4,2)}, {vr(U+4*n,2)}")
        e(f"v_pk_fma_f32 {vr(a+2,2)}, {vr(a+2,2)}, {vr(ST+6,2)}, {vr(U+4*n+2,2)}")
        e(f"v_cvt_pk_bf16_f32 v{32+2*n}, v{a}, v{a+1}")
        e(f"v_cvt_pk_bf16_f32 v{33+2*n}, v{a+2}, v{a+3}")
        e(f"ds_write_b64 v55, {vr(32+2*n,2)} offset:{n*2048}")
    e("s_waitcnt lgkmcnt(0)")
    stamp(e, 6)
    gemm2(0)

    e("L_ka_help:")
    e("s_setprio 2")
    e("v_lshrrev_b32 v4, 3, v1")
    e("v_and_b32 v5, 7, v1")
    e("v_and_b32 v6, 6, v4")
    e("v_xor_b32 v5, v5, v6")
    e("v_lshrrev_b32 v6, 2, v4")
    e("v_and_b32 v4, 3, v4")
    e("v_lshl_add_u32 v6, v6, 3, v4")
    e("v_mul_u32_u24 v6, 28672, v6")
    e("v_lshl_add_u32 v6, v5, 4, v6")
    e(f"v_add_u32 v13, {16*28672}, v6")
    e("s_lshl_b32 s23, s21, 10")
    e("s_lshl_b32 s24, s22, 7")
    e("s_add_u32 s23, s23, s24")
    e("s_add_u32 s23, s23, s20")
    e("s_mul_i32 s23, s23, 896")
    e("s_lshl_b32 s31, s19, 7")
    e("s_add_u32 s32, s23, 896")
    e("s_add_u32 s31, s31, s23")
    e("s_waitcnt lgkmcnt(0)")
    stamp(e, 1)
    srd(e, 8, 4, XBYTES)
    XNT = " nt" if OPT.get("xnt", 1) else ""
    def xpair(c):
        e(f"s_add_u32 m0, s41, {c*2048}")
        e("s_add_u32 s33, s31, 128")
        e(f"buffer_load_dwordx4 v6, s[8:11], s31 offen{XNT} lds")
        e(f"s_add_u32 m0, s41, {c*2048+1024}")
        e("s_cmp_eq_u32 s33, s32")
        e(f"buffer_load_dwordx4 v13, s[8:11], s31 offen{XNT} lds")
        e("s_cselect_b32 s31, s23, s33")
    NF = OPT.get("nf", 4)
    for c in range(NF): xpair(c)
    e("s_setprio 0")
    srd(e, 12, 6, WS_SIZE)
    e("s_cmp_ge_u32 s2, 8")
    e("s_cselect_b32 s34, -1, 0")
    e("s_lshl_b32 s35, s2, 12")
    e(f"s_add_u32 s35, s35, {WS_KEY - 4096}")
    e("s_cmp_ge_u32 s2, 204")
    e("s_cselect_b32 s36, 0x7ff00000, 0")
    e("v_lshl_add_u32 v12, v0, 4, s36")
    for j in range(4):
        e(f"v_mov_b32 v{200+j}, s34")
    e("v_mov_b32 v217, v12")
    e("s_mov_b32 s56, s60")
    e("s_mov_b32 s57, s61")
    e("s_movk_i32 s58, 256")
    e("s_mov_b32 s59, 0x20000")
    e("s_or_b32 s24, s2, s16")
    e("s_cmp_lg_u32 s24, 0")
    e("s_cbranch_scc1 L_ka_notag")
    e("s_memrealtime s[24:25]")
    e("s_waitcnt lgkmcnt(0)")
    e("s_or_b32 s24, s24, 1")
    e("v_mov_b32 v44, s24")
    e("v_mov_b32 v45, s25")
    e("s_mov_b64 exec, 1")
    e("buffer_store_dwordx2 v[44:45], off, s[56:59], 0 sc1")
    e("s_mov_b64 exec, -1")
    e("L_ka_notag:")
    e("s_lshl_b32 s24, s22, 4")
    e("v_add_u32 v7, s24, v2")
    e("s_mul_i32 s25, s21, 0x3e800000")
    e("v_mov_b32 v10, s25")
    e("s_cmp_eq_u32 s16, 2")
    e("s_cselect_b32 s24, 0, -1")
    e("v_cmp_eq_u32 vcc, s24, v7")
    e("v_mov_b32 v12, 32")
    e("v_lshlrev_b32 v8, 3, v3")
    e("v_cndmask_b32 v7, v7, v12, vcc")
    e("v_cndmask_b32 v10, v10, 0, vcc")
    e("v_cvt_f32_u32 v7, v7")
    e("v_cvt_f32_u32 v8, v8")
    e(f"v_mul_f32 v7, {fbits(1.0/64)}, v7")
    e("v_fma_f32 v8, v8, v7, v10")
    e("v_mul_f32 v10, 0x42000000, v7")
    for j in range(8):
        e(f"v_cos_f32 v{CUR+j}, v8")
        e(f"v_add_f32 v12, v8, v10")
        if j < 7:
            e(f"v_add_f32 v8, v8, v7")
        e(f"v_cos_f32 v{PRV+j}, v12")
    common_addr()
    for j in range(4):
        e(f"v_cvt_pk_bf16_f32 v{RF+j}, v{CUR+2*j}, v{CUR+2*j+1}")
        e(f"v_cvt_pk_bf16_f32 v{RF+4+j}, v{PRV+2*j}, v{PRV+2*j+1}")
    e(f"ds_write_b128 v52, {vr(RF,4)}")
    e(f"ds_write_b128 v52, {vr(RF+4,4)} offset:1024")
    for j in range(4):
        e(f"v_mov_b32 v{48+j}, s28")
    e(f"s_mov_b32 s24, {fbits(1.0/448)}")
    e(f"s_mov_b32 s26, {fbits(1e-5)}")
    e(f"s_mov_b32 s27, 0xffff0000")
    stamp(e, 2)
    vq = [c for c in range(NF) for h in range(2)] + ["clr"]
    def vwait(c):
        last = max(i for i, t in enumerate(vq) if t == c)
        e(f"s_waitcnt vmcnt({len(vq)-1-last})")
        del vq[:last+1]
    PFM = OPT.get("pfm", 3)
    if PFM in (1, 2):
        e("s_mul_i32 s42, s16, 224")
        e("s_add_u32 s42, s42, s2")
        touch_setup(e, 392 if PFM == 1 else 588)
    e("s_bfe_u32 s17, s2, 0x10006")
    e("s_lshl_b32 s17, s17, 5")
    e("s_add_u32 s17, s17, s20")
    e("s_bfe_u32 s18, s2, 0x10005")
    e("s_lshl_b32 s18, s18, 10")
    e("s_add_u32 s18, s18, s17")
    e("s_lshl_b32 s17, s16, 8")
    e("s_add_u32 s18, s18, s17")
    e("s_mul_i32 s18, s18, 896")
    e(f"s_mul_i32 s17, s16, {4*XRS}")
    e(f"s_add_u32 s17, s17, {LDS_XR}")
    e("s_cmp_lt_u32 s2, 128")
    e("s_cselect_b32 s25, 56, 0")
    e("v_cmp_gt_u32 vcc, s25, v1")
    e("v_mov_b32 v218, 0x7ff00000")
    e("s_nop 0")
    e("v_cndmask_b32 v218, v218, v11, vcc")
    e("v_and_b32 v4, 3, v2")
    e("v_lshrrev_b32 v5, 2, v2")
    e("v_cmp_eq_u32 s[52:53], 1, v4")
    e("v_cmp_eq_u32 s[54:55], 2, v4")
    e("v_cmp_eq_u32 s[62:63], 3, v4")
    e("v_cmp_eq_u32 s[60:61], v5, v3")
    e("s_lshl_b32 s25, s16, 7")
    e(f"s_add_u32 s25, s25, {LDS_ST}")
    e("v_lshl_add_u32 v4, v2, 2, s25")
    e("v_add_u32 v5, s29, v11")
    e("s_lshl_b32 s25, s16, 6")
    e(f"s_add_u32 s25, s25, {LDS_CS}")
    e("v_lshl_add_u32 v7, v2, 2, s25")
    e("s_waitcnt lgkmcnt(0)")
    e(f"s_setprio {OPT.get('csp', 2)}")
    e("s_barrier")
    nx = [NF]
    def land(c):
        vwait(c)
        if nx[0] < 7:
            xpair(nx[0]); vq.extend([nx[0]]*2); nx[0] += 1
    def stat(k):
        c = "0" if k == 0 else vr(GRM, 4)
        e(f"v_mfma_f32_16x16x32_bf16 {vr(GRM,4)}, {vr(X+4*k,4)}, {vr(X+4*k,4)}, {c}")
        c = "0" if k == 0 else vr(SUM, 4)
        e(f"v_mfma_f32_16x16x32_bf16 {vr(SUM,4)}, {vr(X+4*k,4)}, v[48:51], {c}")
    def rdx(k0, k1):
        for k in range(k0, k1):
            e(f"ds_read_b128 {vr(X+4*k,4)}, v{14+(k&1)} offset:{(k>>1)*2048}")
    def stats(k0, k1, kend):
        for k in range(k0, k1):
            e(f"s_waitcnt lgkmcnt({kend-1-k})")
            stat(k)
    vq.remove("clr")
    for k in range(14):
        e(f"ds_read_b128 {vr(120+4*k,4)}, v5 offset:{k*1024}")
    for k in range(14):
        e(f"s_waitcnt lgkmcnt({13-k})")
        e(f"v_mfma_f32_16x16x32_bf16 v[40:43], v[48:51], {vr(120+4*k,4)}, {'0' if k == 0 else 'v[40:43]'}")
    e(f"s_setprio {OPT.get('hp2', 2)}")
    land(0); land(1)
    e("ds_write_b32 v7, v40")
    rdx(0, 4)
    stamp(e, 3)
    e("s_barrier")
    stamp(e, 4)
    stats(0, 2, 4)
    land(2)
    stats(2, 4, 4)
    land(3)
    assert nx[0] == 7
    rdx(4, 8)
    e("s_barrier")
    e("buffer_load_dwordx2 v[224:225], off, s[56:59], 0 sc1")
    for j in range(4):
        e(f"s_add_u32 m0, s17, {j*XRS}")
        e(f"s_add_u32 s33, s18, {j*64*896}")
        e(f"buffer_load_dwordx4 v218, s[8:11], s33 offen lds")
    e(f"s_mov_b32 m0, {LDS_XR + 16*XRS}")
    srd(e, 8, 44, 896)
    e(f"buffer_load_dwordx4 v11, s[8:11], 0 offen lds")
    stats(4, 8, 8)
    e("s_waitcnt vmcnt(6)")
    rdx(8, 14)
    e("buffer_store_dwordx4 v[200:203], v217, s[12:15], s35 offen sc1")
    if PFM == 1: e("buffer_load_dword v219, v216, s[36:39], 0 offen")
    if OPT.get("sb", 0): stamp(e, 2)
    BE = OPT.get("be", 0)
    if BE: e("s_barrier")
    stats(8, 14, 14)
    if not BE: e("s_barrier")
    e("s_nop 6")
    e(f"v_cndmask_b32 v20, v{GRM}, v{GRM+1}, s[52:53]")
    e(f"v_cndmask_b32 v16, v{SUM}, v{SUM+1}, s[52:53]")
    e(f"v_cndmask_b32 v20, v20, v{GRM+2}, s[54:55]")
    e(f"v_cndmask_b32 v16, v16, v{SUM+2}, s[54:55]")
    e(f"v_cndmask_b32 v20, v20, v{GRM+3}, s[62:63]")
    e(f"v_cndmask_b32 v16, v16, v{SUM+3}, s[62:63]")
    e("v_mul_f32 v20, s24, v20")
    e("v_mul_f32 v16, s24, v16")
    e("v_fma_f32 v20, -v16, v16, v20")
    e("v_max_f32 v20, 0, v20")
    e("v_cvt_pk_bf16_f32 v20, v20, v20")
    e("v_and_b32 v20, s27, v20")
    e("v_add_f32 v20, s26, v20")
    e("v_cvt_pk_bf16_f32 v20, v20, v20")
    e("v_and_b32 v20, s27, v20")
    e("v_sqrt_f32 v20, v20")
    e("s_mov_b64 exec, s[60:61]")
    e("v_cvt_pk_bf16_f32 v20, v20, v20")
    e("v_and_b32 v20, s27, v20")
    e("v_rcp_f32 v20, v20")
    e("s_nop 0")
    e("v_mul_f32 v16, -v16, v20")
    e("ds_write2_b32 v4, v16, v20 offset0:0 offset1:16")
    e("s_mov_b64 exec, -1")
    e("s_waitcnt lgkmcnt(0)")
    stamp(e, 5)
    e("s_barrier")
    stamp(e, 6)
    gemm2(1)

    e("L_ka_spare:")
    if OPT.get("pfm", 3) == 3:
        e("s_sub_u32 s19, s2, 224")
        e("s_and_b32 s19, s19, 0xf8")
        e("s_add_u32 s19, s19, s43")
        e("v_lshlrev_b32 v8, 7, v0")
        e("s_waitcnt lgkmcnt(0)")
        srd(e, 24, 44, 896)
        e(f"buffer_load_dword v16, v8, s[24:27], 0 offen")
        if OPT.get("spw3", 1): e("s_waitcnt vmcnt(0)")
        xtouch(e, "a", 19, 46, 11)
        e("s_add_u32 s19, s19, 32")
        e(f"s_cmp_ge_u32 s19, {OPT.get('xsp', 41)}")
        e("s_cbranch_scc1 L_ka_end")
        xtouch(e, "b", 19, 46, 12)
        e("s_endpgm")
    e("s_sub_u32 s19, s2, 224")
    e("s_lshl_b32 s19, s19, 16")
    e("v_lshlrev_b32 v8, 7, v0")
    e("v_add_u32 v9, s19, v8")
    e(f"v_subrev_u32 v10, {WBYTES}, v9")
    e("s_waitcnt lgkmcnt(0)")
    srd(e, 24, 44, 896)
    e(f"buffer_load_dword v16, v8, s[24:27], 0 offen")
    srd(e, 28, 46, WBYTES)
    srd(e, 32, 48, WBYTES)
    e("s_waitcnt vmcnt(0)")
    for _ in range(OPT.get("spw", 0)):
        e(f"buffer_load_dword v16, off, s[28:31], s19")
        e("s_add_u32 s19, s19, 128")
        e("s_waitcnt vmcnt(0)")
    if OPT.get("pfm", 3) == 1:
        srd(e, 28, 50, WBYTES)
        e(f"buffer_load_dword v11, v9, s[28:31], 0 offen")
    else:
        e(f"buffer_load_dword v11, v9, s[28:31], 0 offen")
        e(f"buffer_load_dword v13, v10, s[32:35], 0 offen")
    e("L_ka_end:")
    e("s_endpgm")
    kb(e)
    return dict(name=NAME + "_kernel", vgpr=232, accum=232, sgpr=64, grid=256, block=512, lds=LDS_XROW+16*XRS+1024)

def sync1(e, u, nl, soff, pre=False):
    e("s_waitcnt vmcnt(0)")
    tagcheck(e, u)
    e("s_mov_b32 s63, 0")
    e(f"s_mov_b64 exec, {(1 << nl) - 1:#x}" if nl < 32 else "s_mov_b32 exec_hi, 0")
    if pre: e(f"s_branch L_s1c{u}")
    e(f"L_s1{u}:")
    if u in "fg": e("s_sleep 4")
    e(f"buffer_load_dwordx2 v[228:229], v226, s[24:27], {soff} offen sc1")
    e("s_add_u32 s63, s63, 1")
    e("s_waitcnt vmcnt(0)")
    e(f"L_s1c{u}:")
    e("v_cmpx_ne_u64 s[60:61], v[228:229], v[224:225]")
    e(f"s_cbranch_execz L_s1d{u}")
    e("s_cmp_lt_u32 s63, 0x40000")
    e(f"s_cbranch_scc1 L_s1{u}")
    e(f"L_s1d{u}:")
    e("s_mov_b64 exec, -1")

def sync_all(e):
    tagcheck(e, "f")
    e("v_lshlrev_b32 v80, 6, v1")
    e("v_mov_b32 v81, 0x7ff00000")
    e("v_cmp_gt_u32 vcc, 32, v1")
    for j in range(4):
        e(f"s_mov_b32 s{56+j}, {WS_FL1 + 4096*j:#x}")
    e("v_cndmask_b32 v81, v81, v80, vcc")
    e("s_mov_b32 s63, 0")
    e("L_sa:")
    e(f"s_sleep {OPT.get('sasl', 4)}")
    for j in range(4):
        e(f"buffer_load_dwordx2 {vr(82+2*j,2)}, v{81 if j == 3 else 80}, s[24:27], s{56+j} offen sc1")
    e("s_add_u32 s63, s63, 1")
    e("s_waitcnt vmcnt(0)")
    e("v_cndmask_b32 v88, v224, v88, vcc")
    e("v_cndmask_b32 v89, v225, v89, vcc")
    for j in range(4):
        e(f"v_xor_b32 v{82+2*j}, v{82+2*j}, v224")
        e(f"v_xor_b32 v{83+2*j}, v{83+2*j}, v225")
    e("v_or3_b32 v82, v82, v83, v84")
    e("v_or3_b32 v85, v85, v86, v87")
    e("v_or3_b32 v82, v82, v88, v89")
    e("v_or_b32 v82, v82, v85")
    e("v_cmpx_ne_u32 s[60:61], 0, v82")
    e("s_cbranch_execz L_sad")
    e("s_cmp_lt_u32 s63, 0x40000")
    e("s_cbranch_scc1 L_sa")
    e("L_sad:")
    e("s_mov_b64 exec, -1")

def kb(e):
    e("L_kb_entry:")
    e("s_cmp_ge_u32 s2, 184")
    e("s_cbranch_scc1 L_kb_warm")
    stamp(e, 0)
    e("s_setprio 0")
    e("s_load_dwordx2 s[20:21], s[0:1], 96")
    e("s_load_dwordx2 s[4:5], s[0:1], 0")
    e("s_load_dwordx8 s[8:15], s[0:1], 48")
    e("s_load_dwordx4 s[16:19], s[0:1], 80")
    e("s_mov_b32 s28, s43")
    e("v_lshlrev_b32 v4, 4, v1")
    e("s_cmp_ge_u32 s2, 128")
    e("s_cbranch_scc1 L_kb_ffn")
    p2(e)
    e("L_kb_ffn:")
    ffn(e)
    e("s_endpgm")
    e("L_kb_warm:")
    if OPT.get("pfm", 3) == 3:
        e("s_load_dwordx4 s[4:7], s[0:1], 56")
        e("s_load_dwordx2 s[8:9], s[0:1], 72")
        e("s_sub_u32 s19, s2, 184")
        e("s_and_b32 s19, s19, 0xf8")
        e("s_add_u32 s19, s19, s43")
        e("s_add_u32 s19, s19, 41")
        e("s_waitcnt lgkmcnt(0)")
        xtouch(e, "c", 19, 4, 11)
    if OPT.get("pfm", 3): e("s_endpgm")
    e("s_load_dwordx4 s[4:7], s[0:1], 64")
    e("s_sub_u32 s19, s2, 184")
    e("s_lshl_b32 s19, s19, 16")
    e("v_lshlrev_b32 v8, 7, v0")
    e("v_add_u32 v9, s19, v8")
    e(f"v_add_u32 v9, {32*65536 - WBYTES}, v9")
    e(f"v_subrev_u32 v10, {WBYTES}, v9")
    e(f"v_add_u32 v12, {40*65536}, v10")
    e("s_waitcnt lgkmcnt(0)")
    srd(e, 8, 4, WBYTES)
    srd(e, 12, 6, WBYTES)
    e(f"buffer_load_dword v11, v9, s[8:11], 0 offen")
    e(f"buffer_load_dword v13, v10, s[12:15], 0 offen")
    e(f"buffer_load_dword v14, v12, s[12:15], 0 offen")
    e("L_kb_end:")
    e("s_endpgm")

def p2(e):
    YB, RS = 57344, 1808
    PA, PAS = 86528, 464
    SC = PA + 16*PAS
    C, S, F1, F3 = 16, 20, 24, 28
    A, ACC = 64, 32
    XC, WC, SM = 144, 160, 176
    H = 96
    WRL = LDS_XROW + 16*XRS
    e("s_and_b32 s29, s2, 31")
    e("s_bfe_u32 s30, s2, 0x10005")
    e("s_lshr_b32 s31, s2, 6")
    e("s_lshl_b32 s32, s31, 5")
    e("s_add_u32 s32, s32, s29")
    e("s_sub_u32 s33, 32, s29")
    e("s_and_b32 s33, s33, 31")
    e("s_cmp_eq_u32 s31, 0")
    e("s_cselect_b32 s29, s29, s33")
    e("s_lshl_b32 s33, s30, 10")
    e("s_add_u32 s33, s33, s32")
    e("s_lshl_b32 s34, s28, 7")
    e("s_add_u32 s34, s34, s33")
    e("s_mul_i32 s35, s34, 896")
    e("v_and_b32 v5, 31, v1")
    e("v_lshrrev_b32 v6, 5, v1")
    e("v_cmp_gt_u32 vcc, 28, v5")
    e("v_lshlrev_b32 v9, 4, v5")
    e("v_mov_b32 v10, 0x7ff00000")
    e("v_mul_u32_u24 v11, 57344, v6")
    e("v_cndmask_b32 v10, v10, v9, vcc")
    e("v_add_u32 v10, v10, v11")
    e(f"s_mul_i32 s38, s28, {2*RS}")
    e(f"s_add_u32 s38, s38, {YB}")
    e(f"v_mul_u32_u24 v7, {RS}, v6")
    e("v_lshl_add_u32 v7, v5, 5, v7")
    e("v_add_u32 v7, s38, v7")
    e("s_lshl_b32 s38, s28, 4")
    e(f"s_add_u32 s38, s38, {SC}")
    e("v_lshl_add_u32 v120, v6, 3, s38")
    e("s_mov_b32 s43, 0xffff0000")
    e("s_lshl_b32 s53, s2, 7")
    e(f"s_add_u32 s53, s53, {WS_KEY}")
    e("s_waitcnt lgkmcnt(0)")
    srd(e, 44, 16, XBYTES)
    srd(e, 24, 20, WS_SIZE)
    e("s_cmp_eq_u32 s28, 7")
    e("s_cbranch_scc1 L_p2_w7")
    e(f"s_mul_i32 s36, s29, {VS}")
    e("s_lshl_b32 s37, s28, 7")
    e("s_add_u32 s36, s36, s37")
    e("s_lshl_b32 s42, s28, 6")
    e("v_lshl_add_u32 v13, v3, 3, s42")
    e(f"v_mul_u32_u24 v14, {XRS}, v2")
    e(f"v_add_u32 v14, {LDS_XROW}, v14")
    e("v_add_u32 v121, v14, v13")
    e("v_sub_u32 v122, v14, v13")
    e(f"v_add_u32 v123, {WRL}, v13")
    e(f"v_sub_u32 v124, {WRL}, v13")
    T = 182
    for (ad, am, r0) in ((121, 122, T), (123, 124, T+10)):
        for mm in range(2):
            e(f"ds_read_b64 {vr(r0+2*mm,2)}, v{ad} offset:{32*mm}")
            e(f"ds_read_b64 {vr(r0+4+2*mm,2)}, v{am} offset:{888-32*mm}")
            e(f"ds_read_b32 v{r0+8+mm}, v{am} offset:{896-32*mm}")
    e(f"ds_read_u16 v{T+20}, v14 offset:448")
    e(f"v_mov_b32 v125, {WRL}")
    e(f"ds_read_u16 v{T+21}, v125 offset:448")
    e("v_cmp_eq_u32 s[40:41], 0, v13")
    e("s_lshl_b32 s37, s28, 13")
    e("v_lshl_add_u32 v9, v2, 6, s33")
    e("v_cvt_f32_u32 v9, v9")
    e(f"v_mul_f32 v9, {fbits(1.0/2048)}, v9")
    e("v_lshlrev_b32 v8, 3, v3")
    e("v_cvt_f32_u32 v8, v8")
    e("v_mul_f32 v8, v8, v9")
    for j in range(8):
        e(f"v_cos_f32 v{A+j}, v8")
        e(f"v_sin_f32 v{A+8+j}, v8")
        if j < 7:
            e("v_add_f32 v8, v8, v9")
    e("v_lshrrev_b32 v4, 3, v1")
    e("v_mul_u32_u24 v4, 896, v4")
    e("v_lshlrev_b32 v8, 1, v3")
    e("v_and_b32 v8, 2, v8")
    e("v_and_b32 v9, 7, v1")
    e("v_xor_b32 v8, v8, v9")
    e("v_lshl_add_u32 v4, v8, 4, v4")
    e("v_xor_b32 v11, 64, v4")
    for j in range(4):
        e(f"v_cvt_pk_bf16_f32 v{C+j}, v{A+2*j}, v{A+2*j+1}")
        e(f"v_cvt_pk_bf16_f32 v{S+j}, v{A+8+2*j}, v{A+8+2*j+1}")
    e("s_cmp_gt_u32 s32, 32")
    e("s_cselect_b32 s39, 0x80008000, 0")
    e("s_xor_b32 s42, s39, 0x80008000")
    for j in range(4):
        e(f"v_xor_b32 v{F1+j}, s39, v{S+j}")
        e(f"v_xor_b32 v{F3+j}, s42, v{C+j}")
    e("s_cmp_lg_u32 s29, 0")
    e("s_cbranch_scc1 L_p2_nospecial")
    e("s_cmp_eq_u32 s32, 0")
    e("s_cbranch_scc1 L_p2_t0")
    for j in range(4):
        e(f"v_mov_b32 v{F1+j}, v{C+j}")
        e(f"v_mov_b32 v{F3+j}, v{S+j}")
        e(f"v_mov_b32 v{C+j}, 0")
        e(f"v_mov_b32 v{S+j}, 0")
    e("s_branch L_p2_nospecial")
    e("L_p2_t0:")
    for j in range(4):
        e(f"v_mov_b32 v{F1+j}, 0")
        e(f"v_mov_b32 v{F3+j}, 0")
    e("L_p2_nospecial:")
    e("v_lshrrev_b32 v12, 2, v2")
    e("v_lshlrev_b32 v12, 7, v12")
    e("v_lshl_add_u32 v12, v3, 10, v12")
    e("v_bfe_u32 v13, v2, 1, 1")
    e("v_bfe_u32 v14, v2, 3, 1")
    e("v_lshl_add_u32 v13, v14, 1, v13")
    e("v_and_b32 v14, 1, v3")
    e("v_lshl_add_u32 v13, v14, 2, v13")
    e("v_lshl_add_u32 v12, v13, 4, v12")
    e("v_and_b32 v14, 1, v2")
    e("v_lshl_add_u32 v12, v14, 3, v12")
    e("v_add_u32 v12, s37, v12")
    e("v_xor_b32 v126, 32, v12")
    e("v_xor_b32 v118, 64, v12")
    e("v_xor_b32 v119, 0x60, v12")
    e("s_lshl_b32 s54, s28, 11")
    e(f"s_add_u32 s54, s54, {WS_FL1}")
    stamp(e, 1)
    sync1(e, "p", 32, "s54")
    if OPT.get("s1bar", 0): e("s_barrier")
    stamp(e, 2)
    for hf in range(2):
        for bb in range(4):
            e(f"s_add_u32 m0, s37, {(hf*4+bb)*1024}")
            e(f"s_add_u32 s54, s36, {hf*VH + bb*7168}")
            e(f"buffer_load_dwordx4 v{11 if bb & 1 else 4}, s[24:27], s54 offen sc1 lds")
    if OPT.get("fl2", 0):
        e("s_lshl_b32 s54, s28, 3")
        e("s_or_b32 s54, s54, s2")
        e("s_cmp_ge_u32 s54, 8")
        e(f"s_cselect_b32 s55, 0x7ff00000, 0")
        e("s_lshl_b32 s54, s54, 6")
        e(f"s_add_u32 s54, s54, {WS_FL1 + 0x4000}")
        e("v_mov_b32 v8, s55")
        e("s_mov_b64 exec, 1")
        e("buffer_store_dwordx2 v[224:225], v8, s[24:27], s54 offen sc1")
        e("s_mov_b64 exec, -1")
    e("s_lshl_b32 s42, s28, 7")
    e("v_lshl_add_u32 v13, v3, 4, s42")
    e(f"v_mul_u32_u24 v14, {RS}, v2")
    e(f"v_add_u32 v14, {YB}, v14")
    e("v_sub_u32 v15, v14, v13")
    e(f"v_add_u32 v15, {(448-19)*4}, v15")
    e("v_add_u32 v13, v13, v14")
    e(f"v_add_u32 v9, {19*4}, v15")
    e(f"v_add_u32 v8, {224*4}, v14")
    e("v_cndmask_b32 v14, v9, v8, s[40:41]")
    e("s_lshl_b32 s42, s28, 6")
    e(f"s_add_u32 s42, s42, {PA}")
    e(f"v_mul_u32_u24 v127, {PAS}, v2")
    e("v_lshl_add_u32 v127, v3, 4, v127")
    e("v_add_u32 v127, s42, v127")
    e("s_waitcnt lgkmcnt(0)")
    for (dst, r0, sp) in ((XC, T, T+20), (WC, T+10, T+21)):
        for mm in range(2):
            d = dst + 8*mm
            e(f"v_lshlrev_b32 v{d}, 16, v{r0+2*mm}")
            e(f"v_and_b32 v{d+1}, s43, v{r0+2*mm}")
            e(f"v_lshlrev_b32 v{d+2}, 16, v{r0+2*mm+1}")
            e(f"v_and_b32 v{d+3}, s43, v{r0+2*mm+1}")
            if mm == 0:
                e(f"v_cndmask_b32 v{r0+8}, v{r0+8}, v{sp}, s[40:41]")
            e(f"v_lshlrev_b32 v{d+4}, 16, v{r0+8+mm}")
            e(f"v_and_b32 v{d+5}, s43, v{r0+4+2*mm+1}")
            e(f"v_lshlrev_b32 v{d+6}, 16, v{r0+4+2*mm+1}")
            e(f"v_and_b32 v{d+7}, s43, v{r0+4+2*mm}")
    e(f"v_mov_b32 v125, v{XC}")
    for mm in range(2):
        for r in range(4):
            d, m_ = XC+8*mm+r, XC+8*mm+4+r
            e(f"v_add_f32 v{T}, v{d}, v{m_}")
            e(f"v_sub_f32 v{m_}, v{d}, v{m_}")
            e(f"v_mul_f32 v{d}, 0.5, v{T}")
            e(f"v_mul_f32 v{m_}, 0.5, v{m_}")
    wrs = []
    tb = {(0, 0): 12, (0, 1): 126, (1, 0): 118, (1, 1): 119}
    for hf in range(2):
        e(f"s_waitcnt vmcnt({4-4*hf + (1 if OPT.get('fl2', 0) else 0)})")
        if hf == 1: stamp(e, 3)
        order = [(0, 0), (0, 1), (1, 0), (1, 1)]
        for i, (mm, kd) in enumerate(order):
            for io in range(2):
                e(f"ds_read_b64_tr_b16 {vr(A+(hf*4+i)*4+2*io,2)}, v{tb[(mm,kd)]} offset:{hf*4096+io*512}")
        for i, (mm, kd) in enumerate(order):
            e(f"s_waitcnt lgkmcnt({6-2*i})")
            acc = ACC + 8*mm + 4*kd
            c = vr(XC+8*mm+4*kd, 4) if hf == 0 else vr(acc, 4)
            fr = [[C, S], [F1, F3]][hf][kd]
            e(f"v_mfma_f32_16x16x32_bf16 {vr(acc,4)}, {vr(A+(hf*4+i)*4,4)}, {vr(fr,4)}, {c}")
    for mm in range(2):
        E_, O_ = ACC + 8*mm, ACC + 8*mm + 4
        D_ = 128 + 8*mm
        if mm == 0: e("s_nop 3")
        for r in range(4):
            e(f"v_add_f32 v{D_+r}, v{E_+r}, v{O_+r}")
        for r in range(4):
            e(f"v_sub_f32 v{D_+4+r}, v{E_+r}, v{O_+r}")
        if mm == 0:
            e(f"v_cndmask_b32 v{D_}, v{D_}, v125, s[40:41]")
        def wr(mm=mm, D_=D_):
            e(f"ds_write_b128 v13, {vr(D_,4)} offset:{64*mm}")
            o = 16*(1-mm)
            if mm == 0:
                e(f"ds_write_b32 v14, v{D_+4}")
                e(f"ds_write_b32 v15, v{D_+5} offset:{(o+2)*4}")
            else:
                e(f"ds_write2_b32 v15, v{D_+4}, v{D_+5} offset0:{o+3} offset1:{o+2}")
            e(f"ds_write2_b32 v15, v{D_+6}, v{D_+7} offset0:{o+1} offset1:{o}")
        wrs.append(wr)
        for j in range(4):
            h_ = vr(D_+2*j, 2); w_ = vr(WC+8*mm+2*j, 2)
            if mm == 0 and j == 0:
                e(f"v_pk_mul_f32 {vr(SM+2,2)}, {h_}, {h_}")
                e(f"v_pk_mul_f32 {vr(SM+4,2)}, {h_}, {w_}")
            else:
                if mm == 0 and j == 1:
                    e(f"v_pk_add_f32 {vr(SM,2)}, {vr(D_,2)}, {h_}")
                else:
                    e(f"v_pk_add_f32 {vr(SM,2)}, {vr(SM,2)}, {h_}")
                e(f"v_pk_fma_f32 {vr(SM+2,2)}, {h_}, {h_}, {vr(SM+2,2)}")
                e(f"v_pk_fma_f32 {vr(SM+4,2)}, {h_}, {w_}, {vr(SM+4,2)}")
        if mm == 1:
            e(f"v_add_f32 v{T}, v{SM}, v{SM+1}")
            e(f"v_add_f32 v{T+1}, v{SM+2}, v{SM+3}")
            e(f"v_add_f32 v{T+2}, v{SM+4}, v{SM+5}")
            e(f"ds_write_b128 v127, {vr(T,4)}")
    e("s_waitcnt lgkmcnt(0)")
    stamp(e, 4)
    e("s_barrier")
    for w_ in wrs: w_()
    e("s_waitcnt lgkmcnt(0)")
    def hreads():
        for j, o in enumerate((0, 16, 896, 912)):
            e(f"ds_read_b128 {vr(H+4*j,4)}, v7 offset:{o}")
    e("s_branch L_p2_k")

    e("L_p2_w7:")
    e("s_setprio 3")
    e("v_lshlrev_b32 v9, 4, v1")
    e(f"v_add_u32 v9, {WRL}, v9")
    e("ds_read_b128 v[16:19], v9")
    e("s_mov_b32 s52, 0x3f803f80")
    e("v_mov_b32 v123, 0")
    e(f"v_mul_u32_u24 v127, {PAS}, v2")
    e("v_mul_u32_u24 v9, 112, v3")
    e(f"v_add3_u32 v127, v127, v9, 0")
    e(f"v_add_u32 v127, {PA}, v127")
    e("v_lshl_add_u32 v11, v2, 6, s33")
    e("v_sub_u32 v121, 0xfff, v11")
    e("v_lshlrev_b32 v122, 3, v2")
    e(f"v_add_u32 v122, {SC}, v122")
    e("v_lshlrev_b32 v124, 2, v1")
    e(f"s_mov_b32 s38, {fbits(1.0/448)}")
    e("v_cmp_gt_u32 s[40:41], 16, v1")
    e("s_waitcnt lgkmcnt(0)")
    for j in range(4):
        e(f"v_dot2c_f32_bf16 v123, s52, v{16+j}")
    e("s_nop 2")
    for ror in (8, 4, 2, 1):
        e(f"v_add_f32_dpp v123, v123, v123 row_ror:{ror} row_mask:0xf bank_mask:0xf")
        e("s_nop 1")
    for sw in ("16", "32"):
        e("v_mov_b32 v9, v123")
        e("s_nop 1")
        e(f"v_permlane{sw}_swap_b32 v123, v9")
        e("v_add_f32 v123, v123, v9")
    if OPT.get("s1bar", 0): e("s_barrier")
    stamp(e, 4)
    e("s_barrier")
    for i in range(7):
        e(f"ds_read_b128 {vr(16+4*i,4)}, v127 offset:{16*i}")
    for i in range(1, 7):
        e(f"s_waitcnt lgkmcnt({6-i})")
        e(f"v_pk_add_f32 v[16:17], v[16:17], {vr(16+4*i,2)}")
        e(f"v_add_f32 v18, v18, v{18+4*i}")
    for sw in ("16", "32"):
        e("v_mov_b32 v20, v16")
        e("v_mov_b32 v21, v17")
        e("v_mov_b32 v22, v18")
        e(f"v_permlane{sw}_swap_b32 v16, v20")
        e(f"v_permlane{sw}_swap_b32 v17, v21")
        e(f"v_permlane{sw}_swap_b32 v18, v22")
        e("v_pk_add_f32 v[16:17], v[16:17], v[20:21]")
        e("v_add_f32 v18, v18, v22")
    e("v_mul_f32 v8, s38, v16")
    e("v_mul_f32 v9, s38, v17")
    e("v_fma_f32 v9, -v8, v8, v9")
    e("v_max_f32 v9, 0, v9")
    e("v_cvt_pk_bf16_f32 v8, v9, v8")
    e("v_lshlrev_b32 v9, 16, v8")
    e(f"v_add_f32 v9, {fbits(1e-5)}, v9")
    e("v_cvt_pk_bf16_f32 v9, v9, v9")
    e("v_and_b32 v9, s43, v9")
    e("v_sqrt_f32 v9, v9")
    e("v_and_b32 v8, s43, v8")
    e("v_cvt_pk_bf16_f32 v13, v9, v8")
    e("v_lshlrev_b32 v9, 16, v13")
    e("v_rcp_f32 v9, v9")
    e("v_fma_f32 v12, -v8, v123, v18")
    e("v_mul_f32 v12, v12, v9")
    e("v_add_f32 v14, 1.0, v9")
    e("v_cvt_pk_bf16_f32 v12, v12, v12")
    e("v_mul_f32 v15, -v8, v9")
    e("v_ashrrev_i32 v11, 31, v12")
    e("ds_write_b64 v122, v[14:15]")
    e("v_or_b32 v11, 0x80000000, v11")
    e("v_xor_b32 v12, v12, v11")
    e("v_and_or_b32 v12, v12, s43, v121")
    e("v_cndmask_b32 v12, v13, v12, s[40:41]")
    e("s_mov_b32 exec_hi, 0")
    e("buffer_store_dword v12, v124, s[24:27], s53 offen sc1")
    e("s_mov_b32 exec_hi, -1")
    e("s_waitcnt lgkmcnt(0)")
    e("L_p2_k:")
    stamp(e, 5)
    e("s_barrier")
    hreads()
    e("ds_read_b64 v[14:15], v120")
    e("s_waitcnt lgkmcnt(0)")
    for j in range(8):
        e(f"v_pk_fma_f32 {vr(H+2*j,2)}, {vr(H+2*j,2)}, v[14:15], v[14:15] op_sel:[0,0,1] op_sel_hi:[1,0,1]")
        if j % 2 == 1:
            e(f"v_cvt_pk_bf16_f32 v{48+j-1}, v{H+2*j-2}, v{H+2*j-1}")
            e(f"v_cvt_pk_bf16_f32 v{48+j}, v{H+2*j}, v{H+2*j+1}")
        if j == 3:
            e(f"buffer_store_dwordx4 v[48:51], v10, s[44:47], s35 offen sc1")
    e(f"buffer_store_dwordx4 v[52:55], v10, s[44:47], s35 offen offset:448 sc1")
    e("s_waitcnt vmcnt(0)")
    stamp(e, 6)
    e("s_barrier")
    e("s_cmp_lg_u32 s28, 0")
    e("s_cbranch_scc1 L_p2_end")
    e("s_mov_b64 exec, 1")
    e("v_mov_b32 v12, 1")
    e(f"s_add_u32 s53, s53, {WS_FLAG - WS_KEY}")
    e(f"buffer_store_dword v12, off, s[24:27], s53 sc1")
    e("L_p2_end:")
    stamp_flush(e, 1, 24, 7, 28)
    e("s_endpgm")

def ffn(e):
    XS, ONES, ACT, MISC, GB = 0, 7168, 14336, 15360, 16384
    DB = GB + 57344
    A, AD_, ACC = 64, 36, 32
    K = 64
    e("s_sub_u32 s29, s2, 128")
    e("s_and_b32 s37, s29, 7")
    e("s_lshr_b32 s38, s29, 3")
    e("s_mul_i32 s39, s37, 7")
    e("s_add_u32 s39, s39, s38")
    e("s_cmp_eq_u32 s28, 7")
    e("s_cbranch_scc1 L_f_poll")
    e("s_cmp_lt_u32 s28, 4")
    e("s_cbranch_scc1 L_f_comp")
    e("v_lshrrev_b32 v5, 2, v1")
    e("v_and_b32 v6, 3, v1")
    e("v_lshrrev_b32 v7, 4, v1")
    e("v_and_b32 v7, 2, v7")
    e("v_xor_b32 v6, v6, v7")
    e("s_cmp_eq_u32 s28, 5")
    e("s_cselect_b32 s40, 1, 0")
    e("v_xor_b32 v6, s40, v6")
    e("s_cmp_eq_u32 s28, 6")
    e("s_movk_i32 s41, 896")
    e("s_cselect_b32 s41, s41, 3584")
    e("s_cselect_b32 s42, 64, 114688")
    e("s_cselect_b32 s43, 28672, 64")
    e("v_mul_u32_u24 v5, s41, v5")
    e("v_lshl_add_u32 v5, v6, 4, v5")
    e("s_lshl_b32 s44, s41, 4")
    e("v_add_u32 v6, s44, v5")
    e("s_mul_i32 s43, s43, s39")
    e("s_sub_u32 s44, s28, 4")
    e("s_mul_i32 s44, s44, 28672")
    e(f"s_add_u32 s44, s44, {GB}")
    e("s_waitcnt lgkmcnt(0)")
    stamp(e, 1)
    e("s_cmp_eq_u32 s28, 5")
    e("s_cselect_b32 s48, s12, s10")
    e("s_cselect_b32 s49, s13, s11")
    e("s_cmp_eq_u32 s28, 6")
    e("s_cselect_b32 s48, s14, s48")
    e("s_cselect_b32 s49, s15, s49")
    e(f"s_mov_b32 s50, {WBYTES:#x}")
    e("s_mov_b32 s51, 0x20000")
    e("s_add_u32 s45, s44, 28672")
    e("s_barrier")
    if OPT.get("seq", 0):
        e(f"v_mov_b32 v8, {MISC}")
        e("s_sub_u32 s46, s28, 4")
        e("L_f_turn:")
        e("ds_read_b32 v9, v8")
        e("s_waitcnt lgkmcnt(0)")
        e("v_cmp_le_u32 vcc, s46, v9")
        e("s_cbranch_vccnz L_f_dma")
        e("s_sleep 2")
        e("s_branch L_f_turn")
    e("L_f_dma:")
    e("s_mov_b32 m0, s44")
    e("s_add_u32 s44, s44, 2048")
    e("buffer_load_dwordx4 v5, s[48:51], s43 offen lds")
    e("s_add_u32 m0, m0, 1024")
    e("s_nop 0")
    e("buffer_load_dwordx4 v6, s[48:51], s43 offen lds")
    e("s_add_u32 s43, s43, s42")
    e("s_cmp_lt_u32 s44, s45")
    e("s_cbranch_scc1 L_f_dma")
    stamp(e, 2)
    e(f"v_mov_b32 v5, {MISC}")
    e("v_mov_b32 v6, 1")
    e("s_mov_b64 exec, 1")
    e("s_waitcnt vmcnt(0)")
    e("ds_add_u32 v5, v6")
    e("s_waitcnt lgkmcnt(0)")
    if DIAG:
        srd(e, 24, 20, WS_SIZE)
        stamp_flush(e, 1, 24, 3, 28)
    e("s_endpgm")

    e("L_f_comp:")
    e("v_mov_b32 v8, 0x3f803f80")
    e("v_mov_b32 v9, v8")
    e("v_mov_b32 v10, v8")
    e("v_mov_b32 v11, v8")
    e("v_lshlrev_b32 v5, 4, v0")
    e(f"ds_write_b128 v5, v[8:11] offset:{ONES}")
    e(f"ds_write_b128 v5, v[8:11] offset:{ONES+3072}")
    e("v_mov_b32 v6, 0")
    e(f"v_mov_b32 v7, {MISC}")
    e("ds_write_b32 v7, v6")
    e("s_waitcnt lgkmcnt(0)")
    stamp(e, 1)
    e("s_barrier")
    srd(e, 24, 20, WS_SIZE)
    e("v_lshrrev_b32 v8, 2, v2")
    e("v_bfe_u32 v9, v2, 1, 1")
    e("v_and_b32 v10, 1, v3")
    e("v_and_b32 v13, 1, v2")
    e("v_lshlrev_b32 v13, 3, v13")
    e("v_lshl_add_u32 v11, v10, 1, v9")
    e("v_xor_b32 v11, s28, v11")
    e("v_lshl_add_u32 v14, v3, 3, v8")
    e("v_lshl_add_u32 v14, v14, 6, v13")
    e("v_lshl_add_u32 v14, v11, 4, v14")
    e("v_mul_u32_u24 v11, 28672, v9")
    e(f"s_movk_i32 s42, {GB}")
    e("v_add3_u32 v14, v14, v11, s42")
    e("v_lshl_add_u32 v8, v10, 3, v8")
    e("v_lshl_add_u32 v15, v8, 6, v13")
    e("s_and_b32 s42, s28, 1")
    e("v_xor_b32 v10, s42, v10")
    e("v_lshl_add_u32 v10, v10, 1, v9")
    e("v_lshl_add_u32 v15, v10, 4, v15")
    e("v_lshrrev_b32 v10, 1, v3")
    e("v_lshl_add_u32 v15, v10, 10, v15")
    e("s_lshr_b32 s42, s28, 1")
    e("s_lshl_b32 s42, s42, 11")
    e(f"s_add_u32 s42, s42, {DB}")
    e("v_add_u32 v15, s42, v15")
    e("v_and_b32 v8, 7, v2")
    e("v_and_b32 v9, 6, v2")
    e("v_xor_b32 v9, v9, v3")
    e("v_lshlrev_b32 v8, 7, v8")
    e("v_lshl_add_u32 v12, v9, 4, v8")
    e("v_cmp_gt_u32 vcc, 8, v2")
    e(f"v_mov_b32 v8, {ONES}")
    e("v_lshlrev_b32 v6, 4, v2")
    e("v_cndmask_b32 v12, v8, v12, vcc")
    e("v_xor_b32 v13, 64, v12")
    e("v_lshl_add_u32 v6, v3, 7, v6")
    e("v_mov_b32 v8, 0x7ff00000")
    e("v_cndmask_b32 v6, v8, v6, vcc")
    e("s_lshl_b32 s42, s28, 8")
    e(f"s_add_u32 s42, s42, {ACT}")
    e("v_lshl_add_u32 v5, v2, 4, s42")
    e("v_lshl_add_u32 v5, v3, 3, v5")
    e("s_mul_i32 s44, s39, 14336")
    e("s_lshl_b32 s42, s28, 9")
    e("s_add_u32 s44, s44, s42")
    e(f"s_add_u32 s44, s44, {WS_PART}")
    for j in range(1, 4):
        e(f"s_add_u32 s{44+j}, s44, {4096*j}")
    e(f"s_mov_b32 s42, {fbits(-1.4426950408889634)}")
    e("v_and_b32 v11, 7, v2")
    e("v_lshlrev_b32 v11, 2, v11")
    e("L_f_wait:")
    e("s_sleep 2")
    e("ds_read_b32 v8, v7")
    e("s_waitcnt lgkmcnt(0)")
    e("v_cmp_ne_u32 vcc, 3, v8")
    e("s_cbranch_vccnz L_f_wait")
    stamp(e, 2)
    for k in range(14):
        for io in range(2):
            e(f"ds_read_b64_tr_b16 {vr(A+4*k+2*io,2)}, v14 offset:{k*2048+io*256}")
    for i in range(7):
        for io in range(2):
            e(f"ds_read_b64_tr_b16 {vr(AD_+4*i+2*io,2)}, v15 offset:{i*4096+io*256}")
    e("s_waitcnt lgkmcnt(0)")
    stamp(e, 3)
    e("s_barrier")
    stamp(e, 4)
    BR = [16, 20, 24, 28, 120, 124]
    def rdx(k):
        e(f"ds_read_b128 {vr(BR[k%6],4)}, v{12 + (k&1)} offset:{XS + (k>>1)*1024}")
    for k in range(5): rdx(k)
    e(f"ds_read_b32 v10, v11 offset:{MISC+64}")
    for k in range(14):
        if k + 5 < 14:
            rdx(k + 5)
        n_after = min(k + 5, 13) - k + (1 if k < 5 else 0)
        e(f"s_waitcnt lgkmcnt({n_after})")
        c = "0" if k == 0 else vr(ACC, 4)
        e(f"v_mfma_f32_16x16x32_bf16 {vr(ACC,4)}, {vr(A+4*k,4)}, {vr(BR[k%6],4)}, {c}")
        if k == 6:
            e("v_lshlrev_b32 v9, 16, v10")
            e("v_add_f32 v9, 1.0, v9")
        if k == 8:
            e("v_and_b32 v10, 0xffff0000, v10")
            e("v_rcp_f32 v9, v9")
    e("s_nop 7")
    for r in range(4):
        e(f"v_mov_b32_dpp v{16+r}, v{ACC+r} row_newbcast:8 row_mask:0xf bank_mask:0xf")
    for r in range(4):
        e(f"v_fma_f32 v{ACC+r}, -v10, v{16+r}, v{ACC+r}")
    for r in range(4):
        e(f"v_mul_f32 v{ACC+r}, v{ACC+r}, v9")
    e("s_nop 0")
    for r in range(4):
        e(f"v_permlane32_swap_b32 v{ACC+r}, v{20+r}")
    for r in range(4):
        e(f"v_mul_f32 v{16+r}, s42, v{ACC+r}")
    for r in range(4):
        e(f"v_exp_f32 v{16+r}, v{16+r}")
    for r in range(4):
        e(f"v_mul_f32 v{ACC+r}, v{ACC+r}, v{20+r}")
    for r in range(4):
        e(f"v_add_f32 v{16+r}, 1.0, v{16+r}")
    for r in range(4):
        e(f"v_rcp_f32 v{16+r}, v{16+r}")
    e("s_mov_b32 exec_hi, 0")
    for r in range(4):
        e(f"v_mul_f32 v{ACC+r}, v{ACC+r}, v{16+r}")
    e(f"v_cvt_pk_bf16_f32 v16, v{ACC}, v{ACC+1}")
    e(f"v_cvt_pk_bf16_f32 v17, v{ACC+2}, v{ACC+3}")
    e("ds_write_b64 v5, v[16:17]")
    e("s_mov_b32 exec_hi, -1")
    e("s_waitcnt lgkmcnt(0)")
    stamp(e, 5)
    e("s_barrier")
    e(f"ds_read_b128 v[16:19], v4 offset:{ACT}")
    e("s_waitcnt lgkmcnt(0)")
    for i in range(7):
        e(f"v_mfma_f32_16x16x32_bf16 {vr(A+4*i,4)}, {vr(AD_+4*i,4)}, v[16:19], 0")
    e("s_nop 1")
    for i in range(7):
        e(f"buffer_store_dwordx4 {vr(A+4*i,4)}, v6, s[24:27], s{44+(i>>1)} offen offset:{2048*(i&1)} sc1")
    stamp(e, 6)
    B4 = OPT.get("b4", 4)
    if B4 >= 0:
        e(f"s_waitcnt vmcnt({B4})")
        e("s_barrier")
    stamp_flush(e, 1, 24, 7, 28)
    e("s_endpgm")

    e("L_f_poll:")
    PFL = ["sc1", "sc0 sc1"][OPT.get("pfl", 0)]
    e("s_setprio 3")
    e("v_lshrrev_b32 v4, 2, v1")
    e("v_lshlrev_b32 v4, 7, v4")
    e("v_and_b32 v5, 3, v1")
    e("v_lshl_add_u32 v4, v5, 4, v4")
    e("s_mov_b32 s46, 0")
    e("s_mov_b32 s47, 0")
    e("v_lshrrev_b32 v5, 3, v1")
    e("v_and_b32 v6, 7, v1")
    e("v_lshlrev_b32 v13, 2, v6")
    e("v_and_b32 v7, 6, v5")
    e("v_xor_b32 v6, v6, v7")
    e("v_lshlrev_b32 v6, 4, v6")
    e("v_lshlrev_b32 v5, 2, v5")
    e("v_bfe_u32 v14, v1, 3, 1")
    e("s_lshl_b32 s42, s39, 4")
    e("v_lshl_add_u32 v14, v14, 3, s42")
    e("v_mul_u32_u24 v24, 14336, v3")
    e("v_lshl_add_u32 v24, v2, 4, v24")
    e("v_add_u32 v25, 57344, v24")
    e("v_add_u32 v26, 57344, v25")
    e("v_add_u32 v27, 57344, v26")
    e("s_lshl_b32 s52, s39, 8")
    e(f"s_add_u32 s52, s52, {WS_PART}")
    for j in range(1, 4):
        e(f"s_add_u32 s{52+j}, s52, {4*57344*j}")
    e("v_mov_b32 v8, 0")
    e("v_mov_b32 v9, 0")
    e("v_mov_b32 v10, 0")
    e("v_lshlrev_b32 v7, 12, v1")
    e("v_lshlrev_b32 v19, 7, v1")
    e("s_movk_i32 s44, 896")
    e("s_mov_b32 s45, 0xffff0000")
    e("s_waitcnt lgkmcnt(0)")
    stamp(e, 1)
    srd(e, 24, 20, WS_SIZE)
    srd(e, 48, 16, XBYTES)
    if not OPT.get("b0late", 1): e("s_barrier")
    if OPT.get("sall", 0):
        sync_all(e)
    else:
        e(f"s_mov_b32 s62, {WS_FL1:#x}")
        sync1(e, "f", 8, "s62")
        if OPT.get("fl2", 0):
            e("s_lshl_b32 s62, s37, 6")
            e(f"s_add_u32 s62, s62, {WS_FL1 + 0x4000}")
            sync1(e, "g", 1, "s62")
    if OPT.get("b0late", 1): e("s_barrier")
    for j in range(4):
        e(f"s_mov_b32 s{58+j}, {WS_KEY+4096*j:#x}")
    e(f"s_mov_b32 s56, {WS_FLAG:#x}")
    e(f"s_mov_b32 s57, {WS_FLAG+8192:#x}")
    e("s_mov_b64 exec, 0xf")
    e("L_f_p0:")
    e("s_sleep 2")
    e("buffer_load_dword v11, v7, s[24:27], s58 offen offset:3968 " + PFL)
    e("s_add_u32 s47, s47, 1")
    e("s_waitcnt vmcnt(0)")
    e("v_cmp_ne_u32 vcc, 0, v11")
    e("s_cbranch_vccnz L_f_p1")
    e("s_cmp_lt_u32 s47, 0x40000")
    e("s_cbranch_scc1 L_f_p0")
    e("L_f_p1:")
    e("s_mov_b64 exec, -1")
    e("L_f_pk:")
    for i in range(8):
        e(f"buffer_load_dwordx4 {vr(K+4*i,4)}, v4, s[24:27], s{58+(i>>1)} offen offset:{(i&1)*2048} " + PFL)
    e("s_add_u32 s47, s47, 1")
    e(".p2align 3")
    for i in range(8):
        e(f"s_waitcnt vmcnt({7-i})")
        e("s_nop 0")
        k0 = K + 4*i
        if i == 0:
            e(f"v_max3_u32 v8, v{k0}, v{k0+1}, v{k0+2}")
            e(f"v_med3_u32 v9, v{k0}, v{k0+1}, v{k0+2}")
            e(f"v_min3_u32 v10, v{k0}, v{k0+1}, v{k0+2}")
            e(f"v_min3_u32 v11, v10, v{k0+3}, v{k0+3}")
            rest = [k0+3]
        else:
            e(f"v_min3_u32 v11, v11, v{k0}, v{k0+1}")
            e(f"v_min3_u32 v11, v11, v{k0+2}, v{k0+3}")
            rest = [k0, k0+1, k0+2, k0+3]
        for k in rest:
            e(f"v_med3_u32 v10, v9, v10, v{k}")
            e(f"v_med3_u32 v9, v8, v9, v{k}")
            e(f"v_max_u32_e64 v8, v8, v{k}")
    e("v_cmp_eq_u32 vcc, 0, v11")
    e("s_cbranch_vccz L_f_keys")
    e("s_cmp_lt_u32 s47, 0x40000")
    e("s_cbranch_scc1 L_f_pk")
    e("L_f_keys:")
    stamp(e, 2)
    FR = OPT.get("fr", 2)
    def flagloads():
        e("buffer_load_dword v28, v19, s[24:27], s56 offen sc1")
        e("buffer_load_dword v29, v19, s[24:27], s57 offen sc1")
    side = []
    WARM = OPT.get("warm", 0)
    flagloads()
    if WARM:
        side += ["v_max_u32_dpp v21, v8, v8 quad_perm:[1,0,3,2] row_mask:0xf bank_mask:0xf\nv_not_b32 v22, v8",
                 "v_max_u32_dpp v21, v21, v21 quad_perm:[2,3,0,1] row_mask:0xf bank_mask:0xf\nv_not_b32 v23, v9",
                 "v_max_u32_dpp v21, v21, v21 row_half_mirror row_mask:0xf bank_mask:0xf\nv_and_b32 v22, 0x7ff, v22",
                 "v_min_u32_dpp v21, v21, v21 row_mirror row_mask:0xf bank_mask:0xf\nv_and_b32 v23, 0x7ff, v23",
                 "v_min_u32_dpp v21, v21, v21 row_bcast:15 row_mask:0xa bank_mask:0xf\nv_mul_u32_u24 v22, s44, v22",
                 "v_min_u32_dpp v21, v21, v21 row_bcast:31 row_mask:0xc bank_mask:0xf\nv_mul_u32_u24 v23, s44, v23",
                 "v_readlane_b32 s43, v21, 63\nv_mov_b32 v20, 0x7ff00000",
                 "v_cmp_le_u32 s[62:63], s43, v30\nv_cmp_le_u32 s[40:41], s43, v31",
                 "s_nop 0\nv_cndmask_b32 v22, v20, v22, s[62:63]",
                 "v_cndmask_b32 v23, v20, v23, s[40:41]\nbuffer_load_dword v17, v22, s[48:51], 0 offen sc1"]
        tl = [f"buffer_load_dword v17, v22, s[48:51], 0 offen offset:{128*j} sc1" for j in range(1, 7)] + \
             [f"buffer_load_dword v16, v23, s[48:51], 0 offen offset:{128*j} sc1" for j in range(7)]
        while tl:
            side.append("\n".join(tl[:3])); tl = tl[3:]
        e("v_mov_b32 v30, v8")
        e("v_mov_b32 v31, v9")
    for rd in range(8):
        for si, st in enumerate(DPP6):
            if si == 0:
                e(f"v_max_u32_dpp v11, v8, v8 {st} bank_mask:0xf bound_ctrl:0")
            else:
                e(f"v_max_u32_dpp v11, v11, v11 {st} bank_mask:0xf")
            if si < 5:
                if side:
                    x = side.pop(0)
                    e(x)
                    if "\n" not in x: e("s_nop 0")
                else:
                    e("s_nop 1")
        e("s_nop 0")
        e("v_readlane_b32 s42, v11, 63")
        e("s_nop 1")
        e("v_cmp_eq_u32 vcc, s42, v8")
        e(f"v_writelane_b32 v12, s42, {rd}")
        e("s_nop 0")
        e("v_cndmask_b32 v8, v8, v9, vcc")
        e("v_cndmask_b32 v9, v9, v10, vcc")
        e("v_cndmask_b32 v10, v10, 0, vcc")
    e("v_cmp_eq_u32 vcc, 0, v8")
    e("s_cbranch_vccz L_f_topdone")
    e("s_mov_b32 m0, 0")
    e("s_mov_b32 s42, -1")
    e("L_f_slow:")
    e(f"v_sub_u32 v8, s42, v{K}")
    e(f"v_sub_u32 v9, s42, v{K+1}")
    e("v_min_u32 v8, v8, v9")
    for i in range(2, 32, 2):
        e(f"v_sub_u32 v9, s42, v{K+i}")
        e(f"v_sub_u32 v10, s42, v{K+i+1}")
        e("v_min3_u32 v8, v8, v9, v10")
    for st in DPP6:
        e("s_nop 1")
        e(f"v_min_u32_dpp v8, v8, v8 {st} bank_mask:0xf")
    e("s_nop 0")
    e("v_readlane_b32 s47, v8, 63")
    e("s_nop 3")
    e("s_sub_u32 s42, s42, s47")
    e("v_writelane_b32 v12, s42, m0")
    e("s_sub_u32 s42, s42, 1")
    e("s_add_u32 m0, m0, 1")
    e("s_cmp_lt_u32 m0, 8")
    e("s_cbranch_scc1 L_f_slow")
    e("L_f_topdone:")
    stamp(e, 3)
    e("ds_bpermute_b32 v8, v5, v12")
    e("ds_bpermute_b32 v15, v13, v12")
    e("s_mov_b32 s47, 0")
    e("s_waitcnt lgkmcnt(1)")
    e("v_not_b32 v8, v8")
    e("v_and_b32 v8, 0x7ff, v8")
    e("v_mad_u32_u24 v31, v8, s44, v6")
    e(f"s_waitcnt vmcnt({14 if WARM else 0})")
    e("L_f_gather:")
    e(f"s_mov_b32 m0, {XS}")
    e("v_mov_b32 v8, v31")
    for j in range(7):
        e(f"buffer_load_dwordx4 v8, s[48:51], 0 offen sc1 lds")
        if j < 6:
            e(f"s_mov_b32 m0, {XS + 1024*(j+1)}")
            e("v_add_u32 v8, 128, v8")
    e("s_waitcnt lgkmcnt(0)")
    e("v_not_b32 v9, v15")
    e("v_and_b32 v9, 0x7ff, v9")
    e("v_mad_u32_u24 v20, v9, s44, v14")
    e("v_and_b32 v21, 63, v9")
    e("v_and_b32 v22, 31, v9")
    e("v_lshrrev_b32 v23, 10, v9")
    e("v_lshl_add_u32 v22, v23, 5, v22")
    e("v_lshrrev_b32 v23, 5, v21")
    e("v_lshl_add_u32 v10, v23, 6, v22")
    e("v_bfe_u32 v23, v9, 6, 4")
    e("v_lshlrev_b32 v10, 7, v10")
    e("v_lshl_add_u32 v10, v23, 2, v10")
    e("buffer_load_dword v11, v10, s[24:27], s58 offen offset:64 sc1")
    e("buffer_load_dwordx2 v[16:17], v20, s[48:51], 0 offen sc1")
    e("v_lshlrev_b32 v22, 2, v22")
    e("ds_bpermute_b32 v23, v22, v28")
    e("ds_bpermute_b32 v22, v22, v29")
    e("v_cmp_gt_u32 vcc, 32, v21")
    e("s_add_u32 s47, s47, 1")
    e("s_waitcnt lgkmcnt(0)")
    e("v_cndmask_b32 v22, v22, v23, vcc")
    e("v_cmp_eq_u32 vcc, 0, v22")
    e("s_cbranch_vccz L_f_flagok")
    flagloads()
    e("s_waitcnt vmcnt(0)")
    e("s_cmp_lt_u32 s47, 0x40000")
    e("s_cbranch_scc1 L_f_gather")
    e("L_f_flagok:")
    e("v_lshlrev_b32 v30, 2, v1")
    e("s_waitcnt vmcnt(1)")
    e("s_mov_b64 exec, 0xff")
    e(f"ds_write_b32 v30, v11 offset:{MISC+64}")
    e("s_mov_b64 exec, -1")
    e("s_waitcnt lgkmcnt(0)")
    stamp(e, 4)
    e("s_barrier")
    e("v_ashrrev_i32 v9, 31, v15")
    e("v_not_b32 v9, v9")
    e("v_or_b32 v9, 0x80000000, v9")
    e("v_xor_b32 v15, v15, v9")
    e("v_and_b32 v15, s45, v15")
    e(f"v_mul_f32 v18, {fbits(-1.4426950408889634)}, v15")
    e("v_exp_f32 v18, v18")
    e("v_mov_b32 v10, 1.0")
    e("v_add_f32 v18, 1.0, v18")
    e("v_rcp_f32 v18, v18")
    e("s_mov_b32 s47, 0")
    e("v_cvt_pk_bf16_f32 v18, v18, v18")
    e("v_and_b32 v18, s45, v18")
    e("v_mov_b32 v14, v20")
    e("s_waitcnt vmcnt(0)")
    e("v_lshlrev_b32 v20, 16, v16")
    e("v_and_b32 v21, s45, v16")
    e("v_lshlrev_b32 v22, 16, v17")
    e("v_and_b32 v23, s45, v17")
    e("s_barrier")
    if B4 >= 0:
        e("s_barrier")
    stamp(e, 5)
    P = 64
    e("L_f_pp:")
    for i in range(14):
        e(f"buffer_load_dwordx4 {vr(P+4*i,4)}, v{24+(i&3)}, s[24:27], s{52+(i>>2)} offen sc1")
    e("s_add_u32 s47, s47, 1")
    e("s_waitcnt vmcnt(12)")
    e(f"v_pk_add_f32 v[28:29], {vr(P,2)}, {vr(P+4,2)}")
    e(f"v_pk_add_f32 v[30:31], {vr(P+2,2)}, {vr(P+6,2)}")
    for i in range(2, 14):
        e(f"s_waitcnt vmcnt({13-i})")
        e(f"v_pk_add_f32 v[28:29], v[28:29], {vr(P+4*i,2)}")
        e(f"v_pk_add_f32 v[30:31], v[30:31], {vr(P+4*i+2,2)}")
    e("v_add_f32 v8, v28, v29")
    e("v_add_f32 v9, v30, v31")
    e("v_cmp_u_f32 vcc, v8, v9")
    e("s_cbranch_vccz L_f_got")
    e(f"v_max3_u32 v8, v{P}, v{P+1}, v{P+2}")
    for i in range(3, 55, 2):
        e(f"v_max3_u32 v8, v8, v{P+i}, v{P+i+1}")
    e(f"v_max_u32 v8, v8, v{P+55}")
    e("v_cmp_eq_u32 vcc, -1, v8")
    e("s_cbranch_vccz L_f_got")
    e("s_cmp_lt_u32 s47, 0x40000")
    e("s_cbranch_scc1 L_f_pp")
    e("L_f_got:")
    stamp(e, 6)
    for r in range(4):
        e(f"v_mfma_f32_16x16x4_f32 {vr(32+4*r,4)}, v10, v{28+r}, 0")
    e("s_nop 7")
    e("s_nop 0")
    e("v_cvt_pk_bf16_f32 v16, v32, v36")
    e("v_cvt_pk_bf16_f32 v17, v40, v44")
    e("v_lshlrev_b32 v24, 16, v16")
    e("v_and_b32 v25, s45, v16")
    e("v_lshlrev_b32 v26, 16, v17")
    e("v_and_b32 v27, s45, v17")
    for r in range(4):
        e(f"v_mul_f32 v{24+r}, v{24+r}, v18")
    e("v_cvt_pk_bf16_f32 v16, v24, v25")
    e("v_cvt_pk_bf16_f32 v17, v26, v27")
    e("v_lshlrev_b32 v24, 16, v16")
    e("v_and_b32 v25, s45, v16")
    e("v_lshlrev_b32 v26, 16, v17")
    e("v_and_b32 v27, s45, v17")
    for r in range(4):
        e(f"v_add_f32 v{24+r}, v{24+r}, v{20+r}")
    e("v_cvt_pk_bf16_f32 v16, v24, v25")
    e("v_cvt_pk_bf16_f32 v17, v26, v27")
    e("s_mov_b64 exec, 0xffff")
    e("buffer_store_dwordx2 v[16:17], v14, s[48:51], 0 offen" + (" sc1" if OPT.get("fsc1", 1) else ""))
    stamp_flush(e, 1, 24, 7, 28)

if __name__ == "__main__":
    for a in sys.argv[2:]:
        if a == "diag":
            DIAG = True; gen.DIAG = True
        else:
            k, v = a.split("=")
            OPT[k] = int(v)
    VH = 28672 + OPT.get("vpad", 256); VS = 2*VH
    build([ka], sys.argv[1])
    if not OPT.get("aslist", 0):
        t = open(sys.argv[1]).read().replace("; @launch kernel=" + NAME + "_kernel grid", "; @launch grid")
        open(sys.argv[1], "w").write(t)
```

```python
import struct, sys
from gen import E, fbits, vr, ar, srd, header, build, NAME
import gen

WS_V    = 0x000000
WS_KEY  = 0x300000
WS_FLAG = 0x304000
WS_PART = 0x308000
WS_FL1  = 0x3E0000
WS_SIZE = 0x10000000
XBYTES  = 2048*896
WBYTES  = 448*1792*2
WS_DIAG = 0x800000
LDS_XROW = 140288
XRS = 1040
VH = 28672
VS = 57344
DIAG = False
OPT = {}
DPP6 = ["row_shr:1 row_mask:0xf", "row_shr:2 row_mask:0xf", "row_shr:4 row_mask:0xf", "row_shr:8 row_mask:0xf",
        "row_bcast:15 row_mask:0xa", "row_bcast:31 row_mask:0xc"]

def stamp(e, i):
    if DIAG:
        e(f"s_mem{'time' if OPT.get('cyc', 0) and i in (4, 5) else 'realtime'} s[{64+2*i}:{65+2*i}]")
        e("s_waitcnt lgkmcnt(0)")
def stamp_flush(e, kid, srdreg, nst, wavereg):
    if DIAG:
        e("s_mov_b64 exec, -1")
        e(f"s_memrealtime s[{64+2*nst}:{65+2*nst}]")
        e("s_waitcnt lgkmcnt(0)")
        for i in range(nst+1):
            e(f"v_writelane_b32 v230, s{64+2*i}, {i}")
        e(f"s_lshl_b32 s90, s2, 3")
        e(f"s_add_u32 s90, s90, s{wavereg}")
        e(f"s_lshl_b32 s90, s90, 6")
        e(f"s_add_u32 s90, s90, {WS_DIAG + kid*0x40000}")
        e("v_mbcnt_lo_u32_b32 v231, -1, 0")
        e("v_lshlrev_b32 v231, 2, v231")
        e("s_mov_b32 exec_lo, 0xffff")
        e("s_mov_b32 exec_hi, 0")
        e(f"buffer_store_dword v230, v231, s[{srdreg}:{srdreg+3}], s90 offen")
        e("s_mov_b64 exec, -1")

class Lds:
    def __init__(self, e):
        self.e = e; self.q = []
    def issue(self, tag, ins):
        self.e(ins); self.q.append(tag)
    def need(self, tag):
        if tag not in self.q: return
        last = max(i for i, t in enumerate(self.q) if t == tag)
        n = len(self.q) - 1 - last
        assert n <= 15, n
        self.e(f"s_waitcnt lgkmcnt({n})")
        self.q = self.q[last+1:]

def tagcheck(e, u):
    e("s_mov_b32 s63, 0")
    e(f"L_tag{u}:")
    e("v_cmp_ne_u32 vcc, 0, v224")
    e(f"s_cbranch_vccnz L_tagok{u}")
    if u != "a": srd(e, 56, 18, 256)
    e("buffer_load_dwordx2 v[224:225], off, s[56:59], 0 sc1")
    e("s_add_u32 s63, s63, 1")
    e("s_waitcnt vmcnt(0)")
    e("s_cmp_lt_u32 s63, 0x40000")
    e(f"s_cbranch_scc1 L_tag{u}")
    e(f"L_tagok{u}:")

def tables(e):
    import numpy as np
    def bf(x):
        u = np.ascontiguousarray(x, dtype=np.float32).view(np.uint32)
        return ((u + 0x7FFF + ((u >> 16) & 1)) >> 16).astype(np.uint32)
    d = np.arange(448)
    cs = np.zeros((7, 16, 4), np.float32)
    for sl in range(7):
        for i in range(16):
            for n in range(4):
                p = 64*sl + 32*(n >> 1) + 8*(i >> 2) + 4*(n & 1) + (i & 3)
                es = 16*(p >> 5) + (p & 15); kind = (p >> 4) & 1
                if p == 0: es = 224
                v = np.cos(2*np.pi*(((es*d) % 448)/448 + 0.25*kind))
                cs[sl, i, n] = (bf(v) << 16).view(np.float32).astype(np.float64).sum()
    R = np.zeros((4, 2, 64, 8), np.uint32)
    for w in range(4):
        for k2 in range(2):
            for l in range(64):
                j = 16*(w & 1) + (l & 15); ph = 0.25*(w >> 1)
                if w == 2 and j == 0: j, ph = 32, 0.0
                s1 = 32*k2 + 8*(l >> 4) + np.arange(8)
                R[w, k2, l] = bf(np.cos(2*np.pi*(((j*s1) % 64)/64 + ph)).round(12))
    Rw = (R[..., 0::2] | (R[..., 1::2] << 16)).reshape(-1)
    e(".p2align 7")
    e(".type fnet_tables,@object")
    e("fnet_tables:")
    words = list(Rw) + list(cs.reshape(-1).view(np.uint32))
    for i in range(0, len(words), 8):
        e(".long " + ", ".join("0x%08x" % int(x) for x in words[i:i+8]))
    e(f".size fnet_tables, {4*len(words)}")

def touch_setup(e, nch):
    e(f"s_cmp_lt_u32 s42, {nch}")
    e(f"s_cselect_b32 s38, {WBYTES:#x}, 0")
    e("s_cmp_ge_u32 s42, 196")
    e("s_cselect_b32 s36, s48, s46")
    e("s_cselect_b32 s37, s49, s47")
    e("s_cselect_b32 s34, 196, 0")
    e("s_cmp_ge_u32 s42, 392")
    e("s_cselect_b32 s36, s50, s36")
    e("s_cselect_b32 s37, s51, s37")
    e("s_cselect_b32 s34, 392, s34")
    e("s_sub_u32 s42, s42, s34")
    e("s_lshl_b32 s42, s42, 13")
    e("s_mov_b32 s39, 0x20000")
    e("v_lshlrev_b32 v216, 7, v1")
    e("v_add_u32 v216, s42, v216")

def xtouch(e, u, unit, gp, dst):
    e("s_and_b32 s30, s2, 7")
    e(f"s_cmp_ge_u32 s{unit}, 56")
    e(f"s_cbranch_scc1 L_xt_d{u}")
    e(f"s_cmp_ge_u32 s{unit}, 28")
    e("s_cselect_b32 s31, 28, 0")
    e(f"s_cselect_b32 s24, s{gp+2}, s{gp}")
    e(f"s_cselect_b32 s25, s{gp+3}, s{gp+1}")
    e(f"s_sub_u32 s29, s{unit}, s31")
    e("s_mul_i32 s29, s29, 57344")
    e("s_mul_i32 s30, s30, 448")
    e("s_and_b32 s30, s30, 0xffffff80")
    e("s_add_u32 s29, s29, s30")
    e("v_lshrrev_b32 v8, 2, v1")
    e("v_mul_u32_u24 v8, 3584, v8")
    e("v_and_b32 v9, 3, v1")
    e("v_lshl_add_u32 v8, v9, 7, v8")
    e(f"s_branch L_xt_go{u}")
    e(f"L_xt_d{u}:")
    e(f"s_mov_b32 s24, s{gp+4}")
    e(f"s_mov_b32 s25, s{gp+5}")
    e(f"s_sub_u32 s29, s{unit}, 56")
    e("s_lshl_b32 s29, s29, 13")
    e(f"s_mul_i32 s30, s30, {224*896}")
    e("s_add_u32 s29, s29, s30")
    e(f"s_cmp_ge_u32 s{unit}, 81")
    e("s_cselect_b32 s29, 0x7ff00000, s29")
    e("v_lshlrev_b32 v8, 7, v1")
    e(f"L_xt_go{u}:")
    e("v_add_u32 v8, s29, v8")
    e(f"s_mov_b32 s26, {WBYTES:#x}")
    e("s_mov_b32 s27, 0x20000")
    e(f"buffer_load_dword v{dst}, v8, s[24:27], 0 offen")

def ka(e):
    header(e, NAME + "_kernel")
    X, ACC, CUR, PRV, PK, RF, BB = 64, 32, 16, 24, 48, 56, 120
    SUM, GRM = 32, 36
    LDS_X, LDS_Z = 57344, 114688
    LDS_R = LDS_Z + 8192
    LDS_ST = LDS_R + 8192
    LDS_CS = LDS_ST + 512
    LDS_TB = LDS_CS + 512
    LDS_XR = LDS_XROW
    assert LDS_TB + 8192 == LDS_XROW
    e("s_cmp_ge_u32 s2, 256")
    e("s_cbranch_scc1 L_ka_end")
    stamp(e, 0)
    e("s_load_dwordx2 s[4:5], s[0:1], 0")
    e("s_getpc_b64 s[92:93]")
    e("L_ka_pc:")
    e(f"s_sub_u32 s92, s92, L_ka_pc-{NAME}_kernel")
    e("s_subb_u32 s93, s93, 0")
    e(f"s_mov_b32 s94, L_code_end-{NAME}_kernel")
    e("s_mov_b32 s95, 0x20000")
    e(f"s_cmp_ge_u32 s2, {OPT.get('cwn', 16)}")
    e("s_cbranch_scc1 L_ka_nocw")
    e("v_lshlrev_b32 v4, 7, v0")
    e("buffer_load_dword v227, v4, s[92:95], 0 offen")
    e("L_ka_nocw:")
    e("s_load_dwordx2 s[6:7], s[0:1], 96")
    e("s_load_dwordx8 s[44:51], s[0:1], 48")
    e("s_load_dwordx2 s[60:61], s[0:1], 88")
    e("v_lshrrev_b32 v1, 6, v0")
    e("v_and_b32 v2, 15, v0")
    e("v_readfirstlane_b32 s43, v1")
    e("v_bfe_u32 v3, v0, 4, 2")
    e("v_and_b32 v1, 63, v0")
    e("s_cmp_ge_u32 s2, 224")
    e("s_cbranch_scc1 L_ka_spare")
    e("s_and_b32 s16, s43, 3")
    e("s_and_b32 s20, s2, 31")
    e("s_lshr_b32 s19, s2, 5")
    e("s_lshr_b32 s21, s16, 1")
    e("s_and_b32 s22, s16, 1")
    e("s_mul_i32 s29, s16, 14336")
    e(f"s_add_u32 s41, s29, {LDS_X}")
    e("s_mov_b32 s28, 0x3f803f80")
    e("s_cmp_lt_u32 s43, 4")
    e("s_cbranch_scc1 L_ka_main")
    def common_addr():
        e("v_lshlrev_b32 v11, 4, v1")
        e("v_and_b32 v12, 6, v2")
        e("v_xor_b32 v12, v12, v3")
        e("v_and_b32 v14, 7, v2")
        e("v_lshlrev_b32 v14, 7, v14")
        e("v_lshl_add_u32 v14, v12, 4, v14")
        e("v_lshrrev_b32 v12, 3, v2")
        e("v_lshl_add_u32 v14, v12, 10, v14")
        e("v_add_u32 v14, s41, v14")
        e("v_xor_b32 v15, 64, v14")
        e("v_lshrrev_b32 v12, 2, v1")
        e("v_and_b32 v53, 3, v1")
        e("v_bfe_u32 v10, v1, 3, 2")
        e("v_xor_b32 v10, v10, v53")
        e("v_lshlrev_b32 v10, 4, v10")
        e("v_lshl_add_u32 v10, v12, 6, v10")
        e(f"v_mul_u32_u24 v12, {VS}, v12")
        e("v_lshl_add_u32 v53, v53, 4, v12")
        e("s_lshl_b32 s24, s43, 10")
        e(f"s_add_u32 s24, s24, {LDS_TB}")
        e("v_add_u32 v10, s24, v10")
        e("v_bfe_u32 v12, v2, 1, 2")
        e("v_xor_b32 v12, v12, v3")
        e("v_lshlrev_b32 v12, 4, v12")
        e("v_lshl_add_u32 v12, v2, 6, v12")
        e("v_add_u32 v8, s24, v12")
        e(f"s_mul_i32 s24, s22, {16*VS}")
        e(f"s_mul_i32 s25, s21, {VH}")
        e("s_add_u32 s24, s24, s25")
        e("s_lshl_b32 s25, s19, 7")
        e("s_add_u32 s24, s24, s25")
        e("s_mul_i32 s25, s20, 896")
        e("s_add_u32 s30, s24, s25")
        if OPT.get("vb", 0): e(f"s_add_u32 s30, s30, {OPT['vb']*0x100000}")
        e("s_lshl_b32 s24, s16, 11")
        e(f"s_add_u32 s24, s24, {LDS_R}")
        e("v_add_u32 v52, s24, v11")
    def gemm2(hh):
        e(f"v_add_u32 v54, {LDS_Z + hh*4096}, v11")
        e("s_barrier")
        for j in range(4):
            e(f"ds_read_b128 {vr(X+4*j,4)}, v54 offset:{j*1024}")
        for n in range(2):
            e(f"s_waitcnt lgkmcnt({2-2*n})")
            e(f"v_mfma_f32_16x16x32_bf16 {vr(40+4*n,4)}, {vr(X+8*n,4)}, {vr(RF,4)}, 0")
            e(f"v_mfma_f32_16x16x32_bf16 {vr(40+4*n,4)}, {vr(X+8*n+4,4)}, {vr(RF+4,4)}, {vr(40+4*n,4)}")
        e("s_nop 4")
        e("v_cvt_pk_bf16_f32 v16, v40, v41")
        e("v_cvt_pk_bf16_f32 v17, v42, v43")
        e("s_nop 0")
        e("v_cvt_pk_bf16_f32 v18, v44, v45")
        e("v_cvt_pk_bf16_f32 v19, v46, v47")
        e("ds_write_b128 v8, v[16:19]")
        e("s_waitcnt lgkmcnt(0)")
        e("ds_read_b128 v[20:23], v10")
        e("s_waitcnt lgkmcnt(0)")
        e(f"buffer_store_dwordx4 v[20:23], v53, s[12:15], s30 offen offset:{64*hh} sc1")
        stamp(e, 7)
        e("v_lshlrev_b32 v226, 6, v1")
        e("s_waitcnt vmcnt(0)")
        stamp(e, 8)
        e("s_barrier")
        if hh:
            e("s_cmp_lg_u32 s43, 4")
            e("s_cbranch_scc1 L_ka_noflag")
            tagcheck(e, "a")
            e("s_lshl_b32 s24, s2, 6")
            e(f"s_add_u32 s24, s24, {WS_FL1}")
            e("s_mov_b64 exec, 1")
            e("buffer_store_dwordx2 v[224:225], off, s[12:15], s24 sc1")
            e("s_mov_b64 exec, -1")
            e("L_ka_noflag:")
            if OPT.get("pfm", 3) == 2: e("buffer_load_dword v219, v216, s[36:39], 0 offen")
        stamp_flush(e, 0, 12, 9, 43)
        e("s_branch L_kb_entry")

    e("s_setprio 2")
    e("v_lshrrev_b32 v4, 3, v1")
    e("v_and_b32 v5, 7, v1")
    e("v_and_b32 v6, 6, v4")
    e("v_xor_b32 v5, v5, v6")
    e("v_lshrrev_b32 v6, 2, v4")
    e("v_and_b32 v4, 3, v4")
    e("v_lshl_add_u32 v6, v6, 3, v4")
    e("v_mul_u32_u24 v6, 28672, v6")
    e("v_lshl_add_u32 v6, v5, 4, v6")
    e(f"v_add_u32 v13, {16*28672}, v6")
    e("s_lshl_b32 s23, s21, 10")
    e("s_lshl_b32 s24, s22, 7")
    e("s_add_u32 s23, s23, s24")
    e("s_add_u32 s23, s23, s20")
    e("s_mul_i32 s23, s23, 896")
    e("s_lshl_b32 s31, s19, 7")
    e("s_add_u32 s32, s23, 896")
    e("s_add_u32 s31, s31, s23")
    e("s_waitcnt lgkmcnt(0)")
    stamp(e, 1)
    srd(e, 8, 4, XBYTES)
    XNT = " nt" if OPT.get("xnt", 1) else ""
    def xpair(c):
        e(f"s_add_u32 m0, s41, {c*2048}")
        e("s_add_u32 s33, s31, 128")
        e(f"buffer_load_dwordx4 v6, s[8:11], s31 offen{XNT} lds")
        e(f"s_add_u32 m0, s41, {c*2048+1024}")
        e("s_cmp_eq_u32 s33, s32")
        e(f"buffer_load_dwordx4 v13, s[8:11], s31 offen{XNT} lds")
        e("s_cselect_b32 s31, s23, s33")
    NF = OPT.get("nf", 3)
    for c in range(NF): xpair(c)
    def helper_rest():
        e("s_setprio 0")
        srd(e, 12, 6, WS_SIZE)
        e("s_cmp_ge_u32 s2, 8")
        e("s_cselect_b32 s34, -1, 0")
        e("s_lshl_b32 s35, s2, 12")
        e(f"s_add_u32 s35, s35, {WS_KEY - 4096}")
        e("s_cmp_ge_u32 s2, 204")
        e("s_cselect_b32 s36, 0x7ff00000, 0")
        e("v_lshl_add_u32 v12, v0, 4, s36")
        for j in range(4):
            e(f"v_mov_b32 v{200+j}, s34")
        e("v_mov_b32 v217, v12")
        e("s_mov_b32 s56, s60")
        e("s_mov_b32 s57, s61")
        e("s_movk_i32 s58, 256")
        e("s_mov_b32 s59, 0x20000")
        e("s_or_b32 s24, s2, s16")
        e("s_cmp_lg_u32 s24, 0")
        e("s_cbranch_scc1 L_ka_notag")
        e("s_memrealtime s[24:25]")
        e("s_waitcnt lgkmcnt(0)")
        e("s_or_b32 s24, s24, 1")
        e("v_mov_b32 v44, s24")
        e("v_mov_b32 v45, s25")
        e("s_mov_b64 exec, 1")
        e("buffer_store_dwordx2 v[44:45], off, s[56:59], 0 sc1")
        e("s_mov_b64 exec, -1")
        e("L_ka_notag:")
        common_addr()
        for j in range(4):
            e(f"v_mov_b32 v{48+j}, s28")
        e(f"s_mov_b32 s24, {fbits(1.0/448)}")
        e(f"s_mov_b32 s26, {fbits(1e-5)}")
        e(f"s_mov_b32 s27, 0xffff0000")
        vq = [c for c in range(NF) for h in range(2)]
        def vwait(c):
            last = max(i for i, t in enumerate(vq) if t == c)
            e(f"s_waitcnt vmcnt({len(vq)-1-last})")
            del vq[:last+1]
        PFM = OPT.get("pfm", 3)
        if PFM in (1, 2):
            e("s_mul_i32 s42, s16, 224")
            e("s_add_u32 s42, s42, s2")
            touch_setup(e, 392 if PFM == 1 else 588)
        e("s_bfe_u32 s17, s2, 0x10006")
        e("s_lshl_b32 s17, s17, 5")
        e("s_add_u32 s17, s17, s20")
        e("s_bfe_u32 s18, s2, 0x10005")
        e("s_lshl_b32 s18, s18, 10")
        e("s_add_u32 s18, s18, s17")
        e("s_lshl_b32 s17, s16, 8")
        e("s_add_u32 s18, s18, s17")
        e("s_mul_i32 s18, s18, 896")
        e(f"s_mul_i32 s17, s16, {4*XRS}")
        e(f"s_add_u32 s17, s17, {LDS_XR}")
        e("s_cmp_lt_u32 s2, 128")
        e("s_cselect_b32 s25, 56, 0")
        e("v_cmp_gt_u32 vcc, s25, v1")
        e("v_mov_b32 v218, 0x7ff00000")
        e("s_nop 0")
        e("v_cndmask_b32 v218, v218, v11, vcc")
        e("v_and_b32 v4, 3, v2")
        e("v_lshrrev_b32 v5, 2, v2")
        e("v_cmp_eq_u32 s[52:53], 1, v4")
        e("v_cmp_eq_u32 s[54:55], 2, v4")
        e("v_cmp_eq_u32 s[62:63], 3, v4")
        e("v_cmp_eq_u32 s[60:61], v5, v3")
        e("s_lshl_b32 s25, s16, 7")
        e(f"s_add_u32 s25, s25, {LDS_ST}")
        e("v_lshl_add_u32 v4, v2, 2, s25")
        e("s_lshl_b32 s40, s16, 11")
        stamp(e, 2)
        e(f"s_setprio {OPT.get('csp', 2)}")
        e("s_barrier")
        nx = [NF]
        def land(c):
            vwait(c)
            if nx[0] < 7:
                xpair(nx[0]); vq.extend([nx[0]]*2); nx[0] += 1
        def stat(k):
            c = "0" if k == 0 else vr(GRM, 4)
            e(f"v_mfma_f32_16x16x32_bf16 {vr(GRM,4)}, {vr(X+4*k,4)}, {vr(X+4*k,4)}, {c}")
            c = "0" if k == 0 else vr(SUM, 4)
            e(f"v_mfma_f32_16x16x32_bf16 {vr(SUM,4)}, {vr(X+4*k,4)}, v[48:51], {c}")
        def rdx(k0, k1):
            for k in range(k0, k1):
                e(f"ds_read_b128 {vr(X+4*k,4)}, v{14+(k&1)} offset:{(k>>1)*2048}")
        def stats(k0, k1, kend):
            for k in range(k0, k1):
                e(f"s_waitcnt lgkmcnt({kend-1-k})")
                stat(k)
        e(f"s_setprio {OPT.get('hp2', 2)}")
        land(0); land(1)
        rdx(0, 4)
        stamp(e, 3)
        e("s_barrier")
        stamp(e, 4)
        stats(0, 2, 4)
        land(2)
        stats(2, 4, 4)
        land(3)
        assert nx[0] == 7
        rdx(4, 8)
        e("s_barrier")
        e(f"s_add_u32 m0, s40, {LDS_R}")
        e(f"s_add_u32 s33, s40, fnet_tables-{NAME}_kernel")
        e("buffer_load_dwordx4 v11, s[92:95], s33 offen lds")
        e("buffer_load_dwordx4 v11, s[92:95], s33 offen offset:1024 lds")
        e("buffer_load_dwordx2 v[224:225], off, s[56:59], 0 sc1")
        for j in range(4):
            e(f"s_add_u32 m0, s17, {j*XRS}")
            e(f"s_add_u32 s33, s18, {j*64*896}")
            e(f"buffer_load_dwordx4 v218, s[8:11], s33 offen lds")
        e(f"s_mov_b32 m0, {LDS_XR + 16*XRS}")
        srd(e, 8, 44, 896)
        e(f"buffer_load_dwordx4 v11, s[8:11], 0 offen lds")
        stats(4, 8, 8)
        e("s_waitcnt vmcnt(8)")
        rdx(8, 14)
        e("buffer_store_dwordx4 v[200:203], v217, s[12:15], s35 offen sc1")
        if PFM == 1: e("buffer_load_dword v219, v216, s[36:39], 0 offen")
        if OPT.get("sb", 0): stamp(e, 2)
        BE = OPT.get("be", 0)
        if BE: e("s_barrier")
        stats(8, 14, 14)
        if not BE: e("s_barrier")
        e("s_nop 6")
        e(f"v_cndmask_b32 v20, v{GRM}, v{GRM+1}, s[52:53]")
        e(f"v_cndmask_b32 v16, v{SUM}, v{SUM+1}, s[52:53]")
        e(f"v_cndmask_b32 v20, v20, v{GRM+2}, s[54:55]")
        e(f"v_cndmask_b32 v16, v16, v{SUM+2}, s[54:55]")
        e(f"v_cndmask_b32 v20, v20, v{GRM+3}, s[62:63]")
        e(f"v_cndmask_b32 v16, v16, v{SUM+3}, s[62:63]")
        e("v_mul_f32 v20, s24, v20")
        e("v_mul_f32 v16, s24, v16")
        e("v_fma_f32 v20, -v16, v16, v20")
        e("v_max_f32 v20, 0, v20")
        e("v_cvt_pk_bf16_f32 v20, v20, v20")
        e("v_and_b32 v20, s27, v20")
        e("v_add_f32 v20, s26, v20")
        e("v_cvt_pk_bf16_f32 v20, v20, v20")
        e("v_and_b32 v20, s27, v20")
        e("v_sqrt_f32 v20, v20")
        e("s_mov_b64 exec, s[60:61]")
        e("v_cvt_pk_bf16_f32 v20, v20, v20")
        e("v_and_b32 v20, s27, v20")
        e("v_rcp_f32 v20, v20")
        e("s_nop 0")
        e("v_mul_f32 v16, -v16, v20")
        e("ds_write2_b32 v4, v16, v20 offset0:0 offset1:16")
        e("s_mov_b64 exec, -1")
        e("s_waitcnt lgkmcnt(0)")
        e("s_waitcnt vmcnt(7)")
        stamp(e, 5)
        e("s_barrier")
        e(f"ds_read_b128 {vr(RF,4)}, v52")
        e(f"ds_read_b128 {vr(RF+4,4)}, v52 offset:1024")
        stamp(e, 6)
        gemm2(1)
    SPLIT = OPT.get("split", 1)
    if SPLIT:
        e("s_branch L_ka_help2")
    else:
        helper_rest()
    MACC, AR, CS, MB = 16, 32, 44, 64
    FC, FP, FK = 64, 72, 80
    e("L_ka_main:")
    e("v_lshrrev_b32 v4, 2, v2")
    e("v_and_b32 v5, 3, v2")
    e("s_lshl_b32 s24, s19, 6")
    e("s_lshl_b32 s25, s21, 5")
    e("s_add_u32 s25, s24, s25")
    e("s_lshl_b32 s26, s22, 2")
    e("s_add_u32 s25, s25, s26")
    e("v_lshl_add_u32 v7, v4, 3, v5")
    e("v_add_u32 v7, s25, v7")
    e("v_lshrrev_b32 v8, 5, v7")
    e("v_and_b32 v9, 15, v7")
    e("v_lshl_add_u32 v8, v8, 4, v9")
    e("v_cmp_eq_u32 vcc, 0, v7")
    e("v_bfe_u32 v10, v7, 4, 1")
    e("v_mov_b32 v9, 224")
    e("v_cndmask_b32 v7, v8, v9, vcc")
    e("v_mul_u32_u24 v10, 0x3e80, v10")
    e("v_lshlrev_b32 v10, 16, v10")
    e("v_lshl_add_u32 v8, v3, 3, s24")
    e("v_mul_u32_u24 v8, v8, v7")
    e("v_cvt_f32_u32 v7, v7")
    e("v_cvt_f32_u32 v8, v8")
    e(f"s_mov_b32 s24, {fbits(1.0/448)}")
    e("v_mul_f32 v9, s24, v8")
    e("v_floor_f32 v9, v9")
    e(f"v_fmamk_f32 v8, v9, {fbits(-448.0)}, v8")
    e("v_mul_f32 v7, s24, v7")
    e("v_fma_f32 v8, v8, s24, v10")
    e("v_mul_f32 v9, 0x42000000, v7")
    e("v_cos_f32 v88, v9")
    for j in range(8):
        e(f"v_cos_f32 v{FC+j}, v8")
        e(f"v_sub_f32 v11, v8, v9")
        if j < 7:
            e(f"v_add_f32 v8, v8, v7")
        e(f"v_cos_f32 v{FP+j}, v11")
    e("v_add_f32 v88, v88, v88")
    e("v_lshl_add_u32 v91, v1, 4, s29")
    e("v_mov_b32 v89, v88")
    stamp(e, 1)
    if OPT.get("floop", 0):
        e("s_mov_b32 s24, 0")
        e(".p2align 3")
        e("L_ka_fgen:")
        for st in range(2):
            A, B = (FC, FP) if st % 2 == 0 else (FP, FC)
            P = FK + 4*(st % 2)
            for j in range(4):
                e(f"v_cvt_pk_bf16_f32 v{P+j}, v{A+2*j}, v{A+2*j+1}")
            e(f"ds_write_b128 v91, {vr(P,4)} offset:{st*1024}")
            for j in range(4):
                e(f"v_pk_fma_f32 {vr(B+2*j,2)}, v[88:89], {vr(A+2*j,2)}, {vr(B+2*j,2)} neg_lo:[0,0,1] neg_hi:[0,0,1]")
        e("v_add_u32 v91, 0x800, v91")
        e("s_add_u32 s24, s24, 1")
        e("s_cmp_lt_u32 s24, 7")
        e("s_cbranch_scc1 L_ka_fgen")
    else:
        e(".p2align 3")
        for st in range(14):
            A, B = (FC, FP) if st % 2 == 0 else (FP, FC)
            P = FK + 4*(st % 2)
            for j in range(4):
                e(f"v_cvt_pk_bf16_f32 v{P+j}, v{A+2*j}, v{A+2*j+1}")
            e(f"ds_write_b128 v91, {vr(P,4)} offset:{st*1024}")
            if st < 13:
                for j in range(4):
                    e(f"v_pk_fma_f32 {vr(B+2*j,2)}, v[88:89], {vr(A+2*j,2)}, {vr(B+2*j,2)} neg_lo:[0,0,1] neg_hi:[0,0,1]")
    e("v_lshlrev_b32 v11, 4, v1")
    e("s_waitcnt lgkmcnt(0)")
    stamp(e, 2)
    e("s_barrier")
    L = Lds(e)
    def rB(k, n):
        L.issue(("B", k), f"ds_read_b128 {vr(MB+32+((k+6)%8)*16+4*n,4)}, v11 offset:{(n*14+k)*1024}")
    def Breg(k, n): return vr(MB+32+((k+6)%8)*16+4*n, 4)
    PRE = OPT.get("pre", 4)
    for k in range(2):
        for n in range(4): rB(k, n)
    common_addr()
    e("s_lshl_b32 s24, s21, 10")
    e("s_lshl_b32 s25, s22, 3")
    e("s_add_u32 s24, s24, s25")
    e(f"s_add_u32 s24, s24, {LDS_Z}")
    e("v_add_u32 v55, s24, v11")
    e("v_lshlrev_b32 v12, 4, v2")
    e("s_lshl_b32 s26, s19, 8")
    e(f"s_add_u32 s26, s26, fnet_tables-{NAME}_kernel+8192")
    e("s_lshl_b32 s25, s16, 7")
    e(f"s_add_u32 s25, s25, {LDS_ST}")
    e("v_lshl_add_u32 v13, v3, 4, s25")
    srd(e, 12, 6, WS_SIZE)
    srd(e, 56, 60, 256)
    for k in range(2, PRE):
        for n in range(4): rB(k, n)
    stamp(e, 3)
    e("s_barrier")
    stamp(e, 4)
    if DIAG: L.q = []
    def rA(k):
        L.issue(("A", k), f"ds_read_b128 {vr(AR+4*(k%3),4)}, v{14+(k&1)} offset:{(k>>1)*2048}")
    L.q = L.q[-13:]
    rA(0); rA(1)
    ST, U = 64, 72
    CK = OPT.get("ck", 11)
    sh = []
    for k in range(14):
        if k == 2: e("s_barrier")
        if k == 6:
            e("s_barrier")
            e(f"buffer_load_dwordx4 {vr(CS,4)}, v12, s[92:95], s26 offen")
            e("buffer_load_dwordx2 v[224:225], off, s[56:59], 0 sc1")
        if k == CK:
            e("s_barrier")
            L.issue("st", f"ds_read_b128 {vr(ST,4)}, v13")
            L.issue("st", f"ds_read_b128 {vr(ST+4,4)}, v13 offset:64")
        if k == CK + 1:
            e("s_waitcnt vmcnt(1)")
            L.need("st")
            for n in range(4):
                for r in range(4): sh.append(f"v_mul_f32 v{U+4*n+r}, v{ST+r}, v{CS+n}")
        L.need(("A", k))
        L.need(("B", k))
        for n in range(4):
            c = "0" if k == 0 else vr(MACC+4*n, 4)
            e(f"v_mfma_f32_16x16x32_bf16 {vr(MACC+4*n,4)}, {vr(AR+4*(k%3),4)}, {Breg(k,n)}, {c}")
            if n == 0 and k + 2 < 14: rA(k + 2)
            if k + PRE < 14: rB(k + PRE, n)
            elif k == CK + 1 and n < 2: L.issue("R", f"ds_read_b128 {vr(RF+4*n,4)}, v52 offset:{1024*n}")
            for _ in range(3):
                if sh: e(sh.pop(0))
    if CK == 13:
        L.need("st")
        for n in range(4):
            for r in range(4): sh.append(f"v_mul_f32 v{U+4*n+r}, v{ST+r}, v{CS+n}")
    stamp(e, 5)
    nl = len(sh)
    while sh: e(sh.pop(0))
    if nl < 5: e(f"s_nop {4-nl}")
    for n in range(4):
        a = MACC + 4*n
        e(f"v_pk_fma_f32 {vr(a,2)}, {vr(a,2)}, {vr(ST+4,2)}, {vr(U+4*n,2)}")
        e(f"v_pk_fma_f32 {vr(a+2,2)}, {vr(a+2,2)}, {vr(ST+6,2)}, {vr(U+4*n+2,2)}")
        e(f"v_cvt_pk_bf16_f32 v{32+2*n}, v{a}, v{a+1}")
        e(f"v_cvt_pk_bf16_f32 v{33+2*n}, v{a+2}, v{a+3}")
        e(f"ds_write_b64 v55, {vr(32+2*n,2)} offset:{n*2048}")
    e("s_waitcnt lgkmcnt(0)")
    stamp(e, 6)
    gemm2(0)

    if SPLIT:
        e("L_ka_help2:")
        helper_rest()
    e("L_ka_spare:")
    if OPT.get("pfm", 3) == 3:
        e("s_sub_u32 s19, s2, 224")
        e("s_and_b32 s19, s19, 0xf8")
        e("s_add_u32 s19, s19, s43")
        e("v_lshlrev_b32 v8, 7, v0")
        e("s_waitcnt lgkmcnt(0)")
        srd(e, 24, 44, 896)
        e(f"buffer_load_dword v16, v8, s[24:27], 0 offen")
        if OPT.get("spw3", 0): e("s_waitcnt vmcnt(0)")
        xtouch(e, "a", 19, 46, 11)
        e("s_add_u32 s19, s19, 32")
        e(f"s_cmp_ge_u32 s19, {OPT.get('xsp', 56)}")
        e("s_cbranch_scc1 L_ka_end")
        xtouch(e, "b", 19, 46, 12)
        e("s_endpgm")
    e("s_sub_u32 s19, s2, 224")
    e("s_lshl_b32 s19, s19, 16")
    e("v_lshlrev_b32 v8, 7, v0")
    e("v_add_u32 v9, s19, v8")
    e(f"v_subrev_u32 v10, {WBYTES}, v9")
    e("s_waitcnt lgkmcnt(0)")
    srd(e, 24, 44, 896)
    e(f"buffer_load_dword v16, v8, s[24:27], 0 offen")
    srd(e, 28, 46, WBYTES)
    srd(e, 32, 48, WBYTES)
    e("s_waitcnt vmcnt(0)")
    for _ in range(OPT.get("spw", 0)):
        e(f"buffer_load_dword v16, off, s[28:31], s19")
        e("s_add_u32 s19, s19, 128")
        e("s_waitcnt vmcnt(0)")
    if OPT.get("pfm", 3) == 1:
        srd(e, 28, 50, WBYTES)
        e(f"buffer_load_dword v11, v9, s[28:31], 0 offen")
    else:
        e(f"buffer_load_dword v11, v9, s[28:31], 0 offen")
        e(f"buffer_load_dword v13, v10, s[32:35], 0 offen")
    e("L_ka_end:")
    e("s_endpgm")
    kb(e)
    return dict(name=NAME + "_kernel", vgpr=232, accum=232, sgpr=96, grid=256, block=512, lds=LDS_XROW+16*XRS+1024)

def sync1(e, u, nl, soff, pre=False):
    e("s_waitcnt vmcnt(0)")
    tagcheck(e, u)
    e("s_mov_b32 s63, 0")
    e(f"s_mov_b64 exec, {(1 << nl) - 1:#x}" if nl < 32 else "s_mov_b32 exec_hi, 0")
    if pre: e(f"s_branch L_s1c{u}")
    e(f"L_s1{u}:")
    if u in "fg": e("s_sleep 4")
    e(f"buffer_load_dwordx2 v[228:229], v226, s[24:27], {soff} offen sc1")
    e("s_add_u32 s63, s63, 1")
    e("s_waitcnt vmcnt(0)")
    e(f"L_s1c{u}:")
    e("v_cmpx_ne_u64 s[60:61], v[228:229], v[224:225]")
    e(f"s_cbranch_execz L_s1d{u}")
    e("s_cmp_lt_u32 s63, 0x40000")
    e(f"s_cbranch_scc1 L_s1{u}")
    e(f"L_s1d{u}:")
    e("s_mov_b64 exec, -1")

def sync_all(e):
    tagcheck(e, "f")
    e("v_lshlrev_b32 v80, 6, v1")
    e("v_mov_b32 v81, 0x7ff00000")
    e("v_cmp_gt_u32 vcc, 32, v1")
    for j in range(4):
        e(f"s_mov_b32 s{56+j}, {WS_FL1 + 4096*j:#x}")
    e("v_cndmask_b32 v81, v81, v80, vcc")
    e("s_mov_b32 s63, 0")
    e("L_sa:")
    e(f"s_sleep {OPT.get('sasl', 4)}")
    for j in range(4):
        e(f"buffer_load_dwordx2 {vr(82+2*j,2)}, v{81 if j == 3 else 80}, s[24:27], s{56+j} offen sc1")
    e("s_add_u32 s63, s63, 1")
    e("s_waitcnt vmcnt(0)")
    e("v_cndmask_b32 v88, v224, v88, vcc")
    e("v_cndmask_b32 v89, v225, v89, vcc")
    for j in range(4):
        e(f"v_xor_b32 v{82+2*j}, v{82+2*j}, v224")
        e(f"v_xor_b32 v{83+2*j}, v{83+2*j}, v225")
    e("v_or3_b32 v82, v82, v83, v84")
    e("v_or3_b32 v85, v85, v86, v87")
    e("v_or3_b32 v82, v82, v88, v89")
    e("v_or_b32 v82, v82, v85")
    e("v_cmpx_ne_u32 s[60:61], 0, v82")
    e("s_cbranch_execz L_sad")
    e("s_cmp_lt_u32 s63, 0x40000")
    e("s_cbranch_scc1 L_sa")
    e("L_sad:")
    e("s_mov_b64 exec, -1")

def kb(e):
    e("L_kb_entry:")
    e("s_cmp_ge_u32 s2, 184")
    e("s_cbranch_scc1 L_kb_warm")
    stamp(e, 0)
    e("s_setprio 0")
    e("s_load_dwordx2 s[20:21], s[0:1], 96")
    e("s_load_dwordx2 s[4:5], s[0:1], 0")
    e("s_load_dwordx8 s[8:15], s[0:1], 48")
    e("s_load_dwordx4 s[16:19], s[0:1], 80")
    e("s_mov_b32 s28, s43")
    e("v_lshlrev_b32 v4, 4, v1")
    e("s_cmp_ge_u32 s2, 128")
    e("s_cbranch_scc1 L_kb_ffn")
    p2(e)
    e("L_kb_ffn:")
    ffn(e)
    e("s_endpgm")
    e("L_kb_warm:")
    if OPT.get("pfm", 3) == 3:
        e("s_load_dwordx4 s[4:7], s[0:1], 56")
        e("s_load_dwordx2 s[8:9], s[0:1], 72")
        e("s_sub_u32 s19, s2, 184")
        e("s_and_b32 s19, s19, 0xf8")
        e("s_add_u32 s19, s19, s43")
        e("s_add_u32 s19, s19, 41")
        e("s_waitcnt lgkmcnt(0)")
        xtouch(e, "c", 19, 4, 11)
    if OPT.get("pfm", 3): e("s_endpgm")
    e("s_load_dwordx4 s[4:7], s[0:1], 64")
    e("s_sub_u32 s19, s2, 184")
    e("s_lshl_b32 s19, s19, 16")
    e("v_lshlrev_b32 v8, 7, v0")
    e("v_add_u32 v9, s19, v8")
    e(f"v_add_u32 v9, {32*65536 - WBYTES}, v9")
    e(f"v_subrev_u32 v10, {WBYTES}, v9")
    e(f"v_add_u32 v12, {40*65536}, v10")
    e("s_waitcnt lgkmcnt(0)")
    srd(e, 8, 4, WBYTES)
    srd(e, 12, 6, WBYTES)
    e(f"buffer_load_dword v11, v9, s[8:11], 0 offen")
    e(f"buffer_load_dword v13, v10, s[12:15], 0 offen")
    e(f"buffer_load_dword v14, v12, s[12:15], 0 offen")
    e("L_kb_end:")
    e("s_endpgm")
    tables(e)
    e("L_code_end:")

def p2(e):
    YB, RS = 57344, 1808
    PA, PAS = 86528, 464
    SC = PA + 16*PAS
    C, S, F1, F3 = 16, 20, 24, 28
    A, ACC = 64, 32
    XC, WC, SM = 144, 160, 176
    H = 96
    WRL = LDS_XROW + 16*XRS
    e("s_and_b32 s29, s2, 31")
    e("s_bfe_u32 s30, s2, 0x10005")
    e("s_lshr_b32 s31, s2, 6")
    e("s_lshl_b32 s32, s31, 5")
    e("s_add_u32 s32, s32, s29")
    e("s_sub_u32 s33, 32, s29")
    e("s_and_b32 s33, s33, 31")
    e("s_cmp_eq_u32 s31, 0")
    e("s_cselect_b32 s29, s29, s33")
    e("s_lshl_b32 s33, s30, 10")
    e("s_add_u32 s33, s33, s32")
    e("s_lshl_b32 s34, s28, 7")
    e("s_add_u32 s34, s34, s33")
    e("s_mul_i32 s35, s34, 896")
    e("v_and_b32 v5, 31, v1")
    e("v_lshrrev_b32 v6, 5, v1")
    e("v_cmp_gt_u32 vcc, 28, v5")
    e("v_lshlrev_b32 v9, 4, v5")
    e("v_mov_b32 v10, 0x7ff00000")
    e("v_mul_u32_u24 v11, 57344, v6")
    e("v_cndmask_b32 v10, v10, v9, vcc")
    e("v_add_u32 v10, v10, v11")
    e(f"s_mul_i32 s38, s28, {2*RS}")
    e(f"s_add_u32 s38, s38, {YB}")
    e(f"v_mul_u32_u24 v7, {RS}, v6")
    e("v_lshl_add_u32 v7, v5, 5, v7")
    e("v_add_u32 v7, s38, v7")
    e("s_lshl_b32 s38, s28, 4")
    e(f"s_add_u32 s38, s38, {SC}")
    e("v_lshl_add_u32 v120, v6, 3, s38")
    e("s_mov_b32 s43, 0xffff0000")
    e("s_lshl_b32 s53, s2, 7")
    e(f"s_add_u32 s53, s53, {WS_KEY}")
    e("s_waitcnt lgkmcnt(0)")
    srd(e, 44, 16, XBYTES)
    srd(e, 24, 20, WS_SIZE)
    e("s_cmp_eq_u32 s28, 7")
    e("s_cbranch_scc1 L_p2_w7")
    e(f"s_mul_i32 s36, s29, {VS}")
    e("s_lshl_b32 s37, s28, 7")
    e("s_add_u32 s36, s36, s37")
    if OPT.get("vb", 0): e(f"s_add_u32 s36, s36, {OPT['vb']*0x100000}")
    e("s_lshl_b32 s42, s28, 6")
    e("v_lshl_add_u32 v13, v3, 3, s42")
    e(f"v_mul_u32_u24 v14, {XRS}, v2")
    e(f"v_add_u32 v14, {LDS_XROW}, v14")
    e("v_add_u32 v121, v14, v13")
    e("v_sub_u32 v122, v14, v13")
    e(f"v_add_u32 v123, {WRL}, v13")
    e(f"v_sub_u32 v124, {WRL}, v13")
    T = 182
    for (ad, am, r0) in ((121, 122, T), (123, 124, T+10)):
        for mm in range(2):
            e(f"ds_read_b64 {vr(r0+2*mm,2)}, v{ad} offset:{32*mm}")
            e(f"ds_read_b64 {vr(r0+4+2*mm,2)}, v{am} offset:{888-32*mm}")
            e(f"ds_read_b32 v{r0+8+mm}, v{am} offset:{896-32*mm}")
    e(f"ds_read_u16 v{T+20}, v14 offset:448")
    e(f"v_mov_b32 v125, {WRL}")
    e(f"ds_read_u16 v{T+21}, v125 offset:448")
    e("v_cmp_eq_u32 s[40:41], 0, v13")
    e("s_lshl_b32 s37, s28, 13")
    e("v_lshl_add_u32 v9, v2, 6, s33")
    e("v_cvt_f32_u32 v9, v9")
    e(f"v_mul_f32 v9, {fbits(1.0/2048)}, v9")
    e("v_lshlrev_b32 v8, 3, v3")
    e("v_cvt_f32_u32 v8, v8")
    e("v_mul_f32 v8, v8, v9")
    for j in range(8):
        e(f"v_cos_f32 v{A+j}, v8")
        e(f"v_sin_f32 v{A+8+j}, v8")
        if j < 7:
            e("v_add_f32 v8, v8, v9")
    e("v_lshrrev_b32 v4, 3, v1")
    e("v_mul_u32_u24 v4, 896, v4")
    e("v_lshlrev_b32 v8, 1, v3")
    e("v_and_b32 v8, 2, v8")
    e("v_and_b32 v9, 7, v1")
    e("v_xor_b32 v8, v8, v9")
    e("v_lshl_add_u32 v4, v8, 4, v4")
    e("v_xor_b32 v11, 64, v4")
    for j in range(4):
        e(f"v_cvt_pk_bf16_f32 v{C+j}, v{A+2*j}, v{A+2*j+1}")
        e(f"v_cvt_pk_bf16_f32 v{S+j}, v{A+8+2*j}, v{A+8+2*j+1}")
    e("s_cmp_gt_u32 s32, 32")
    e("s_cselect_b32 s39, 0x80008000, 0")
    e("s_xor_b32 s42, s39, 0x80008000")
    for j in range(4):
        e(f"v_xor_b32 v{F1+j}, s39, v{S+j}")
        e(f"v_xor_b32 v{F3+j}, s42, v{C+j}")
    e("s_cmp_lg_u32 s29, 0")
    e("s_cbranch_scc1 L_p2_nospecial")
    e("s_cmp_eq_u32 s32, 0")
    e("s_cbranch_scc1 L_p2_t0")
    for j in range(4):
        e(f"v_mov_b32 v{F1+j}, v{C+j}")
        e(f"v_mov_b32 v{F3+j}, v{S+j}")
        e(f"v_mov_b32 v{C+j}, 0")
        e(f"v_mov_b32 v{S+j}, 0")
    e("s_branch L_p2_nospecial")
    e("L_p2_t0:")
    for j in range(4):
        e(f"v_mov_b32 v{F1+j}, 0")
        e(f"v_mov_b32 v{F3+j}, 0")
    e("L_p2_nospecial:")
    e("v_lshrrev_b32 v12, 2, v2")
    e("v_lshlrev_b32 v12, 7, v12")
    e("v_lshl_add_u32 v12, v3, 10, v12")
    e("v_bfe_u32 v13, v2, 1, 1")
    e("v_bfe_u32 v14, v2, 3, 1")
    e("v_lshl_add_u32 v13, v14, 1, v13")
    e("v_and_b32 v14, 1, v3")
    e("v_lshl_add_u32 v13, v14, 2, v13")
    e("v_lshl_add_u32 v12, v13, 4, v12")
    e("v_and_b32 v14, 1, v2")
    e("v_lshl_add_u32 v12, v14, 3, v12")
    e("v_add_u32 v12, s37, v12")
    e("v_xor_b32 v126, 32, v12")
    e("v_xor_b32 v118, 64, v12")
    e("v_xor_b32 v119, 0x60, v12")
    e("s_lshl_b32 s54, s28, 11")
    e(f"s_add_u32 s54, s54, {WS_FL1}")
    stamp(e, 1)
    sync1(e, "p", 32, "s54")
    if OPT.get("s1bar", 0): e("s_barrier")
    stamp(e, 2)
    for hf in range(2):
        for bb in range(4):
            e(f"s_add_u32 m0, s37, {(hf*4+bb)*1024}")
            e(f"s_add_u32 s54, s36, {hf*VH + bb*7168}")
            e(f"buffer_load_dwordx4 v{11 if bb & 1 else 4}, s[24:27], s54 offen sc1 lds")
    if OPT.get("fl2", 0):
        e("s_lshl_b32 s54, s28, 3")
        e("s_or_b32 s54, s54, s2")
        e("s_cmp_ge_u32 s54, 8")
        e(f"s_cselect_b32 s55, 0x7ff00000, 0")
        e("s_lshl_b32 s54, s54, 6")
        e(f"s_add_u32 s54, s54, {WS_FL1 + 0x4000}")
        e("v_mov_b32 v8, s55")
        e("s_mov_b64 exec, 1")
        e("buffer_store_dwordx2 v[224:225], v8, s[24:27], s54 offen sc1")
        e("s_mov_b64 exec, -1")
    e("s_lshl_b32 s42, s28, 7")
    e("v_lshl_add_u32 v13, v3, 4, s42")
    e(f"v_mul_u32_u24 v14, {RS}, v2")
    e(f"v_add_u32 v14, {YB}, v14")
    e("v_sub_u32 v15, v14, v13")
    e(f"v_add_u32 v15, {(448-19)*4}, v15")
    e("v_add_u32 v13, v13, v14")
    e(f"v_add_u32 v9, {19*4}, v15")
    e(f"v_add_u32 v8, {224*4}, v14")
    e("v_cndmask_b32 v14, v9, v8, s[40:41]")
    e("s_lshl_b32 s42, s28, 6")
    e(f"s_add_u32 s42, s42, {PA}")
    e(f"v_mul_u32_u24 v127, {PAS}, v2")
    e("v_lshl_add_u32 v127, v3, 4, v127")
    e("v_add_u32 v127, s42, v127")
    e("s_waitcnt lgkmcnt(0)")
    for (dst, r0, sp) in ((XC, T, T+20), (WC, T+10, T+21)):
        for mm in range(2):
            d = dst + 8*mm
            e(f"v_lshlrev_b32 v{d}, 16, v{r0+2*mm}")
            e(f"v_and_b32 v{d+1}, s43, v{r0+2*mm}")
            e(f"v_lshlrev_b32 v{d+2}, 16, v{r0+2*mm+1}")
            e(f"v_and_b32 v{d+3}, s43, v{r0+2*mm+1}")
            if mm == 0:
                e(f"v_cndmask_b32 v{r0+8}, v{r0+8}, v{sp}, s[40:41]")
            e(f"v_lshlrev_b32 v{d+4}, 16, v{r0+8+mm}")
            e(f"v_and_b32 v{d+5}, s43, v{r0+4+2*mm+1}")
            e(f"v_lshlrev_b32 v{d+6}, 16, v{r0+4+2*mm+1}")
            e(f"v_and_b32 v{d+7}, s43, v{r0+4+2*mm}")
    e(f"v_mov_b32 v125, v{XC}")
    for mm in range(2):
        for r in range(4):
            d, m_ = XC+8*mm+r, XC+8*mm+4+r
            e(f"v_add_f32 v{T}, v{d}, v{m_}")
            e(f"v_sub_f32 v{m_}, v{d}, v{m_}")
            e(f"v_mul_f32 v{d}, 0.5, v{T}")
            e(f"v_mul_f32 v{m_}, 0.5, v{m_}")
    wrs = []
    tb = {(0, 0): 12, (0, 1): 126, (1, 0): 118, (1, 1): 119}
    for hf in range(2):
        e(f"s_waitcnt vmcnt({4-4*hf + (1 if OPT.get('fl2', 0) else 0)})")
        if hf == 1: stamp(e, 3)
        order = [(0, 0), (0, 1), (1, 0), (1, 1)]
        for i, (mm, kd) in enumerate(order):
            for io in range(2):
                e(f"ds_read_b64_tr_b16 {vr(A+(hf*4+i)*4+2*io,2)}, v{tb[(mm,kd)]} offset:{hf*4096+io*512}")
        for i, (mm, kd) in enumerate(order):
            e(f"s_waitcnt lgkmcnt({6-2*i})")
            acc = ACC + 8*mm + 4*kd
            c = vr(XC+8*mm+4*kd, 4) if hf == 0 else vr(acc, 4)
            fr = [[C, S], [F1, F3]][hf][kd]
            e(f"v_mfma_f32_16x16x32_bf16 {vr(acc,4)}, {vr(A+(hf*4+i)*4,4)}, {vr(fr,4)}, {c}")
    for mm in range(2):
        E_, O_ = ACC + 8*mm, ACC + 8*mm + 4
        D_ = 128 + 8*mm
        if mm == 0: e("s_nop 3")
        for r in range(4):
            e(f"v_add_f32 v{D_+r}, v{E_+r}, v{O_+r}")
        for r in range(4):
            e(f"v_sub_f32 v{D_+4+r}, v{E_+r}, v{O_+r}")
        if mm == 0:
            e(f"v_cndmask_b32 v{D_}, v{D_}, v125, s[40:41]")
        def wr(mm=mm, D_=D_):
            e(f"ds_write_b128 v13, {vr(D_,4)} offset:{64*mm}")
            o = 16*(1-mm)
            if mm == 0:
                e(f"ds_write_b32 v14, v{D_+4}")
                e(f"ds_write_b32 v15, v{D_+5} offset:{(o+2)*4}")
            else:
                e(f"ds_write2_b32 v15, v{D_+4}, v{D_+5} offset0:{o+3} offset1:{o+2}")
            e(f"ds_write2_b32 v15, v{D_+6}, v{D_+7} offset0:{o+1} offset1:{o}")
        wrs.append(wr)
        for j in range(4):
            h_ = vr(D_+2*j, 2); w_ = vr(WC+8*mm+2*j, 2)
            if mm == 0 and j == 0:
                e(f"v_pk_mul_f32 {vr(SM+2,2)}, {h_}, {h_}")
                e(f"v_pk_mul_f32 {vr(SM+4,2)}, {h_}, {w_}")
            else:
                if mm == 0 and j == 1:
                    e(f"v_pk_add_f32 {vr(SM,2)}, {vr(D_,2)}, {h_}")
                else:
                    e(f"v_pk_add_f32 {vr(SM,2)}, {vr(SM,2)}, {h_}")
                e(f"v_pk_fma_f32 {vr(SM+2,2)}, {h_}, {h_}, {vr(SM+2,2)}")
                e(f"v_pk_fma_f32 {vr(SM+4,2)}, {h_}, {w_}, {vr(SM+4,2)}")
        if mm == 1:
            e(f"v_add_f32 v{T}, v{SM}, v{SM+1}")
            e(f"v_add_f32 v{T+1}, v{SM+2}, v{SM+3}")
            e(f"v_add_f32 v{T+2}, v{SM+4}, v{SM+5}")
            e(f"ds_write_b128 v127, {vr(T,4)}")
    e("s_waitcnt lgkmcnt(0)")
    stamp(e, 4)
    e("s_barrier")
    for w_ in wrs: w_()
    e("s_waitcnt lgkmcnt(0)")
    def hreads():
        for j, o in enumerate((0, 16, 896, 912)):
            e(f"ds_read_b128 {vr(H+4*j,4)}, v7 offset:{o}")
    e("s_branch L_p2_k")

    e("L_p2_w7:")
    e("s_setprio 3")
    e("v_lshlrev_b32 v9, 4, v1")
    e(f"v_add_u32 v9, {WRL}, v9")
    e("ds_read_b128 v[16:19], v9")
    e("s_mov_b32 s52, 0x3f803f80")
    e("v_mov_b32 v123, 0")
    e(f"v_mul_u32_u24 v127, {PAS}, v2")
    e("v_mul_u32_u24 v9, 112, v3")
    e(f"v_add3_u32 v127, v127, v9, 0")
    e(f"v_add_u32 v127, {PA}, v127")
    e("v_lshl_add_u32 v11, v2, 6, s33")
    e("v_sub_u32 v121, 0xfff, v11")
    e("v_lshlrev_b32 v122, 3, v2")
    e(f"v_add_u32 v122, {SC}, v122")
    e("v_lshlrev_b32 v124, 2, v1")
    e(f"s_mov_b32 s38, {fbits(1.0/448)}")
    e("v_cmp_gt_u32 s[40:41], 16, v1")
    e("s_waitcnt lgkmcnt(0)")
    for j in range(4):
        e(f"v_dot2c_f32_bf16 v123, s52, v{16+j}")
    e("s_nop 2")
    for ror in (8, 4, 2, 1):
        e(f"v_add_f32_dpp v123, v123, v123 row_ror:{ror} row_mask:0xf bank_mask:0xf")
        e("s_nop 1")
    for sw in ("16", "32"):
        e("v_mov_b32 v9, v123")
        e("s_nop 1")
        e(f"v_permlane{sw}_swap_b32 v123, v9")
        e("v_add_f32 v123, v123, v9")
    if OPT.get("s1bar", 0): e("s_barrier")
    stamp(e, 4)
    e("s_barrier")
    for i in range(7):
        e(f"ds_read_b128 {vr(16+4*i,4)}, v127 offset:{16*i}")
    for i in range(1, 7):
        e(f"s_waitcnt lgkmcnt({6-i})")
        e(f"v_pk_add_f32 v[16:17], v[16:17], {vr(16+4*i,2)}")
        e(f"v_add_f32 v18, v18, v{18+4*i}")
    for sw in ("16", "32"):
        e("v_mov_b32 v20, v16")
        e("v_mov_b32 v21, v17")
        e("v_mov_b32 v22, v18")
        e(f"v_permlane{sw}_swap_b32 v16, v20")
        e(f"v_permlane{sw}_swap_b32 v17, v21")
        e(f"v_permlane{sw}_swap_b32 v18, v22")
        e("v_pk_add_f32 v[16:17], v[16:17], v[20:21]")
        e("v_add_f32 v18, v18, v22")
    e("v_mul_f32 v8, s38, v16")
    e("v_mul_f32 v9, s38, v17")
    e("v_fma_f32 v9, -v8, v8, v9")
    e("v_max_f32 v9, 0, v9")
    e("v_cvt_pk_bf16_f32 v8, v9, v8")
    e("v_lshlrev_b32 v9, 16, v8")
    e(f"v_add_f32 v9, {fbits(1e-5)}, v9")
    e("v_cvt_pk_bf16_f32 v9, v9, v9")
    e("v_and_b32 v9, s43, v9")
    e("v_sqrt_f32 v9, v9")
    e("v_and_b32 v8, s43, v8")
    e("v_cvt_pk_bf16_f32 v13, v9, v8")
    e("v_lshlrev_b32 v9, 16, v13")
    e("v_rcp_f32 v9, v9")
    e("v_fma_f32 v12, -v8, v123, v18")
    e("v_mul_f32 v12, v12, v9")
    e("v_add_f32 v14, 1.0, v9")
    e("v_cvt_pk_bf16_f32 v12, v12, v12")
    e("v_mul_f32 v15, -v8, v9")
    e("v_ashrrev_i32 v11, 31, v12")
    e("ds_write_b64 v122, v[14:15]")
    e("v_or_b32 v11, 0x80000000, v11")
    e("v_xor_b32 v12, v12, v11")
    e("v_and_or_b32 v12, v12, s43, v121")
    e("v_cndmask_b32 v12, v13, v12, s[40:41]")
    e("s_mov_b32 exec_hi, 0")
    e("buffer_store_dword v12, v124, s[24:27], s53 offen sc1")
    e("s_mov_b32 exec_hi, -1")
    e("s_waitcnt lgkmcnt(0)")
    e("L_p2_k:")
    stamp(e, 5)
    e("s_barrier")
    hreads()
    e("ds_read_b64 v[14:15], v120")
    e("s_waitcnt lgkmcnt(0)")
    for j in range(8):
        e(f"v_pk_fma_f32 {vr(H+2*j,2)}, {vr(H+2*j,2)}, v[14:15], v[14:15] op_sel:[0,0,1] op_sel_hi:[1,0,1]")
        if j % 2 == 1:
            e(f"v_cvt_pk_bf16_f32 v{48+j-1}, v{H+2*j-2}, v{H+2*j-1}")
            e(f"v_cvt_pk_bf16_f32 v{48+j}, v{H+2*j}, v{H+2*j+1}")
        if j == 3:
            e(f"buffer_store_dwordx4 v[48:51], v10, s[44:47], s35 offen sc1")
    e(f"buffer_store_dwordx4 v[52:55], v10, s[44:47], s35 offen offset:448 sc1")
    e("s_waitcnt vmcnt(0)")
    stamp(e, 6)
    e("s_barrier")
    e("s_cmp_lg_u32 s28, 0")
    e("s_cbranch_scc1 L_p2_end")
    e("s_mov_b64 exec, 1")
    e("v_mov_b32 v12, 1")
    e(f"s_add_u32 s53, s53, {WS_FLAG - WS_KEY}")
    e(f"buffer_store_dword v12, off, s[24:27], s53 sc1")
    e("L_p2_end:")
    stamp_flush(e, 1, 24, 7, 28)
    e("s_endpgm")

def ffn(e):
    XS, ONES, ACT, MISC, GB = 0, 7168, 14336, 15360, 16384
    DB = GB + 57344
    A, AD_, ACC = 64, 36, 32
    K = 64
    e("s_sub_u32 s29, s2, 128")
    e("s_and_b32 s37, s29, 7")
    e("s_lshr_b32 s38, s29, 3")
    e("s_mul_i32 s39, s37, 7")
    e("s_add_u32 s39, s39, s38")
    e("s_cmp_eq_u32 s28, 7")
    e("s_cbranch_scc1 L_f_poll")
    e("s_cmp_lt_u32 s28, 4")
    e("s_cbranch_scc1 L_f_comp")
    e("v_lshrrev_b32 v5, 2, v1")
    e("v_and_b32 v6, 3, v1")
    e("v_lshrrev_b32 v7, 4, v1")
    e("v_and_b32 v7, 2, v7")
    e("v_xor_b32 v6, v6, v7")
    e("s_cmp_eq_u32 s28, 5")
    e("s_cselect_b32 s40, 1, 0")
    e("v_xor_b32 v6, s40, v6")
    e("s_cmp_eq_u32 s28, 6")
    e("s_movk_i32 s41, 896")
    e("s_cselect_b32 s41, s41, 3584")
    e("s_cselect_b32 s42, 64, 114688")
    e("s_cselect_b32 s43, 28672, 64")
    e("v_mul_u32_u24 v5, s41, v5")
    e("v_lshl_add_u32 v5, v6, 4, v5")
    e("s_lshl_b32 s44, s41, 4")
    e("v_add_u32 v6, s44, v5")
    e("s_mul_i32 s43, s43, s39")
    e("s_sub_u32 s44, s28, 4")
    e("s_mul_i32 s44, s44, 28672")
    e(f"s_add_u32 s44, s44, {GB}")
    e("s_waitcnt lgkmcnt(0)")
    stamp(e, 1)
    e("s_cmp_eq_u32 s28, 5")
    e("s_cselect_b32 s48, s12, s10")
    e("s_cselect_b32 s49, s13, s11")
    e("s_cmp_eq_u32 s28, 6")
    e("s_cselect_b32 s48, s14, s48")
    e("s_cselect_b32 s49, s15, s49")
    e(f"s_mov_b32 s50, {WBYTES:#x}")
    e("s_mov_b32 s51, 0x20000")
    e("s_add_u32 s45, s44, 28672")
    e("s_barrier")
    if OPT.get("seq", 0):
        e(f"v_mov_b32 v8, {MISC}")
        e("s_sub_u32 s46, s28, 4")
        e("L_f_turn:")
        e("ds_read_b32 v9, v8")
        e("s_waitcnt lgkmcnt(0)")
        e("v_cmp_le_u32 vcc, s46, v9")
        e("s_cbranch_vccnz L_f_dma")
        e("s_sleep 2")
        e("s_branch L_f_turn")
    e("L_f_dma:")
    e("s_mov_b32 m0, s44")
    e("s_add_u32 s44, s44, 2048")
    e("buffer_load_dwordx4 v5, s[48:51], s43 offen lds")
    e("s_add_u32 m0, m0, 1024")
    e("s_nop 0")
    e("buffer_load_dwordx4 v6, s[48:51], s43 offen lds")
    e("s_add_u32 s43, s43, s42")
    e("s_cmp_lt_u32 s44, s45")
    e("s_cbranch_scc1 L_f_dma")
    stamp(e, 2)
    e(f"v_mov_b32 v5, {MISC}")
    e("v_mov_b32 v6, 1")
    e("s_mov_b64 exec, 1")
    e("s_waitcnt vmcnt(0)")
    e("ds_add_u32 v5, v6")
    e("s_waitcnt lgkmcnt(0)")
    if DIAG:
        srd(e, 24, 20, WS_SIZE)
        stamp_flush(e, 1, 24, 3, 28)
    e("s_endpgm")

    e("L_f_comp:")
    e("v_mov_b32 v8, 0x3f803f80")
    e("v_mov_b32 v9, v8")
    e("v_mov_b32 v10, v8")
    e("v_mov_b32 v11, v8")
    e("v_lshlrev_b32 v5, 4, v0")
    e(f"ds_write_b128 v5, v[8:11] offset:{ONES}")
    e(f"ds_write_b128 v5, v[8:11] offset:{ONES+3072}")
    e("v_mov_b32 v6, 0")
    e(f"v_mov_b32 v7, {MISC}")
    e("ds_write_b32 v7, v6")
    e("s_waitcnt lgkmcnt(0)")
    stamp(e, 1)
    e("s_barrier")
    srd(e, 24, 20, WS_SIZE)
    e("v_lshrrev_b32 v8, 2, v2")
    e("v_bfe_u32 v9, v2, 1, 1")
    e("v_and_b32 v10, 1, v3")
    e("v_and_b32 v13, 1, v2")
    e("v_lshlrev_b32 v13, 3, v13")
    e("v_lshl_add_u32 v11, v10, 1, v9")
    e("v_xor_b32 v11, s28, v11")
    e("v_lshl_add_u32 v14, v3, 3, v8")
    e("v_lshl_add_u32 v14, v14, 6, v13")
    e("v_lshl_add_u32 v14, v11, 4, v14")
    e("v_mul_u32_u24 v11, 28672, v9")
    e(f"s_movk_i32 s42, {GB}")
    e("v_add3_u32 v14, v14, v11, s42")
    e("v_lshl_add_u32 v8, v10, 3, v8")
    e("v_lshl_add_u32 v15, v8, 6, v13")
    e("s_and_b32 s42, s28, 1")
    e("v_xor_b32 v10, s42, v10")
    e("v_lshl_add_u32 v10, v10, 1, v9")
    e("v_lshl_add_u32 v15, v10, 4, v15")
    e("v_lshrrev_b32 v10, 1, v3")
    e("v_lshl_add_u32 v15, v10, 10, v15")
    e("s_lshr_b32 s42, s28, 1")
    e("s_lshl_b32 s42, s42, 11")
    e(f"s_add_u32 s42, s42, {DB}")
    e("v_add_u32 v15, s42, v15")
    e("v_and_b32 v8, 7, v2")
    e("v_and_b32 v9, 6, v2")
    e("v_xor_b32 v9, v9, v3")
    e("v_lshlrev_b32 v8, 7, v8")
    e("v_lshl_add_u32 v12, v9, 4, v8")
    e("v_cmp_gt_u32 vcc, 8, v2")
    e(f"v_mov_b32 v8, {ONES}")
    e("v_lshlrev_b32 v6, 4, v2")
    e("v_cndmask_b32 v12, v8, v12, vcc")
    e("v_xor_b32 v13, 64, v12")
    e("v_lshl_add_u32 v6, v3, 7, v6")
    e("v_mov_b32 v8, 0x7ff00000")
    e("v_cndmask_b32 v6, v8, v6, vcc")
    e("s_lshl_b32 s42, s28, 8")
    e(f"s_add_u32 s42, s42, {ACT}")
    e("v_lshl_add_u32 v5, v2, 4, s42")
    e("v_lshl_add_u32 v5, v3, 3, v5")
    e("s_mul_i32 s44, s39, 14336")
    e("s_lshl_b32 s42, s28, 9")
    e("s_add_u32 s44, s44, s42")
    e(f"s_add_u32 s44, s44, {WS_PART}")
    for j in range(1, 4):
        e(f"s_add_u32 s{44+j}, s44, {4096*j}")
    e(f"s_mov_b32 s42, {fbits(-1.4426950408889634)}")
    e("v_and_b32 v11, 7, v2")
    e("v_lshlrev_b32 v11, 2, v11")
    e("L_f_wait:")
    e("s_sleep 2")
    e("ds_read_b32 v8, v7")
    e("s_waitcnt lgkmcnt(0)")
    e("v_cmp_ne_u32 vcc, 3, v8")
    e("s_cbranch_vccnz L_f_wait")
    stamp(e, 2)
    for k in range(14):
        for io in range(2):
            e(f"ds_read_b64_tr_b16 {vr(A+4*k+2*io,2)}, v14 offset:{k*2048+io*256}")
    for i in range(7):
        for io in range(2):
            e(f"ds_read_b64_tr_b16 {vr(AD_+4*i+2*io,2)}, v15 offset:{i*4096+io*256}")
    e("s_waitcnt lgkmcnt(0)")
    stamp(e, 3)
    e("s_barrier")
    stamp(e, 4)
    BR = [16, 20, 24, 28, 120, 124]
    def rdx(k):
        e(f"ds_read_b128 {vr(BR[k%6],4)}, v{12 + (k&1)} offset:{XS + (k>>1)*1024}")
    for k in range(5): rdx(k)
    e(f"ds_read_b32 v10, v11 offset:{MISC+64}")
    for k in range(14):
        if k + 5 < 14:
            rdx(k + 5)
        n_after = min(k + 5, 13) - k + (1 if k < 5 else 0)
        e(f"s_waitcnt lgkmcnt({n_after})")
        c = "0" if k == 0 else vr(ACC, 4)
        e(f"v_mfma_f32_16x16x32_bf16 {vr(ACC,4)}, {vr(A+4*k,4)}, {vr(BR[k%6],4)}, {c}")
        if k == 6:
            e("v_lshlrev_b32 v9, 16, v10")
            e("v_add_f32 v9, 1.0, v9")
        if k == 8:
            e("v_and_b32 v10, 0xffff0000, v10")
            e("v_rcp_f32 v9, v9")
    e("s_nop 7")
    for r in range(4):
        e(f"v_mov_b32_dpp v{16+r}, v{ACC+r} row_newbcast:8 row_mask:0xf bank_mask:0xf")
    for r in range(4):
        e(f"v_fma_f32 v{ACC+r}, -v10, v{16+r}, v{ACC+r}")
    for r in range(4):
        e(f"v_mul_f32 v{ACC+r}, v{ACC+r}, v9")
    e("s_nop 0")
    for r in range(4):
        e(f"v_permlane32_swap_b32 v{ACC+r}, v{20+r}")
    for r in range(4):
        e(f"v_mul_f32 v{16+r}, s42, v{ACC+r}")
    for r in range(4):
        e(f"v_exp_f32 v{16+r}, v{16+r}")
    for r in range(4):
        e(f"v_mul_f32 v{ACC+r}, v{ACC+r}, v{20+r}")
    for r in range(4):
        e(f"v_add_f32 v{16+r}, 1.0, v{16+r}")
    for r in range(4):
        e(f"v_rcp_f32 v{16+r}, v{16+r}")
    e("s_mov_b32 exec_hi, 0")
    for r in range(4):
        e(f"v_mul_f32 v{ACC+r}, v{ACC+r}, v{16+r}")
    e(f"v_cvt_pk_bf16_f32 v16, v{ACC}, v{ACC+1}")
    e(f"v_cvt_pk_bf16_f32 v17, v{ACC+2}, v{ACC+3}")
    e("ds_write_b64 v5, v[16:17]")
    e("s_mov_b32 exec_hi, -1")
    e("s_waitcnt lgkmcnt(0)")
    stamp(e, 5)
    e("s_barrier")
    e(f"ds_read_b128 v[16:19], v4 offset:{ACT}")
    e("s_waitcnt lgkmcnt(0)")
    for i in range(7):
        e(f"v_mfma_f32_16x16x32_bf16 {vr(A+4*i,4)}, {vr(AD_+4*i,4)}, v[16:19], 0")
    e("s_nop 1")
    for i in range(7):
        e(f"buffer_store_dwordx4 {vr(A+4*i,4)}, v6, s[24:27], s{44+(i>>1)} offen offset:{2048*(i&1)} sc1")
    stamp(e, 6)
    B4 = OPT.get("b4", 4)
    if B4 >= 0:
        e(f"s_waitcnt vmcnt({B4})")
        e("s_barrier")
    stamp_flush(e, 1, 24, 7, 28)
    e("s_endpgm")

    e("L_f_poll:")
    PFL = ["sc1", "sc0 sc1"][OPT.get("pfl", 0)]
    e("s_setprio 3")
    e("v_lshrrev_b32 v4, 2, v1")
    e("v_lshlrev_b32 v4, 7, v4")
    e("v_and_b32 v5, 3, v1")
    e("v_lshl_add_u32 v4, v5, 4, v4")
    e("s_mov_b32 s46, 0")
    e("s_mov_b32 s47, 0")
    e("v_lshrrev_b32 v5, 3, v1")
    e("v_and_b32 v6, 7, v1")
    e("v_lshlrev_b32 v13, 2, v6")
    e("v_and_b32 v7, 6, v5")
    e("v_xor_b32 v6, v6, v7")
    e("v_lshlrev_b32 v6, 4, v6")
    e("v_lshlrev_b32 v5, 2, v5")
    e("v_bfe_u32 v14, v1, 3, 1")
    e("s_lshl_b32 s42, s39, 4")
    e("v_lshl_add_u32 v14, v14, 3, s42")
    e("v_mul_u32_u24 v24, 14336, v3")
    e("v_lshl_add_u32 v24, v2, 4, v24")
    e("v_add_u32 v25, 57344, v24")
    e("v_add_u32 v26, 57344, v25")
    e("v_add_u32 v27, 57344, v26")
    e("s_lshl_b32 s52, s39, 8")
    e(f"s_add_u32 s52, s52, {WS_PART}")
    for j in range(1, 4):
        e(f"s_add_u32 s{52+j}, s52, {4*57344*j}")
    e("v_mov_b32 v8, 0")
    e("v_mov_b32 v9, 0")
    e("v_mov_b32 v10, 0")
    e("v_lshlrev_b32 v7, 12, v1")
    e("v_lshlrev_b32 v19, 7, v1")
    e("s_movk_i32 s44, 896")
    e("s_mov_b32 s45, 0xffff0000")
    e("s_waitcnt lgkmcnt(0)")
    stamp(e, 1)
    srd(e, 24, 20, WS_SIZE)
    srd(e, 48, 16, XBYTES)
    if not OPT.get("b0late", 0): e("s_barrier")
    if OPT.get("sall", 0):
        sync_all(e)
    else:
        e(f"s_mov_b32 s62, {WS_FL1:#x}")
        sync1(e, "f", 8, "s62")
        if OPT.get("fl2", 0):
            e("s_lshl_b32 s62, s37, 6")
            e(f"s_add_u32 s62, s62, {WS_FL1 + 0x4000}")
            sync1(e, "g", 1, "s62")
    if OPT.get("b0late", 0): e("s_barrier")
    for j in range(4):
        e(f"s_mov_b32 s{58+j}, {WS_KEY+4096*j:#x}")
    e(f"s_mov_b32 s56, {WS_FLAG:#x}")
    e(f"s_mov_b32 s57, {WS_FLAG+8192:#x}")
    e("s_mov_b64 exec, 0xf")
    e("L_f_p0:")
    e("s_sleep 2")
    e("buffer_load_dword v11, v7, s[24:27], s58 offen offset:3968 " + PFL)
    e("s_add_u32 s47, s47, 1")
    e("s_waitcnt vmcnt(0)")
    e("v_cmp_ne_u32 vcc, 0, v11")
    e("s_cbranch_vccnz L_f_p1")
    e("s_cmp_lt_u32 s47, 0x40000")
    e("s_cbranch_scc1 L_f_p0")
    e("L_f_p1:")
    e("s_mov_b64 exec, -1")
    e("L_f_pk:")
    for i in range(8):
        e(f"buffer_load_dwordx4 {vr(K+4*i,4)}, v4, s[24:27], s{58+(i>>1)} offen offset:{(i&1)*2048} " + PFL)
    e("s_add_u32 s47, s47, 1")
    e(".p2align 3")
    for i in range(8):
        e(f"s_waitcnt vmcnt({7-i})")
        e("s_nop 0")
        k0 = K + 4*i
        if i == 0:
            e(f"v_max3_u32 v8, v{k0}, v{k0+1}, v{k0+2}")
            e(f"v_med3_u32 v9, v{k0}, v{k0+1}, v{k0+2}")
            e(f"v_min3_u32 v10, v{k0}, v{k0+1}, v{k0+2}")
            e(f"v_min3_u32 v11, v10, v{k0+3}, v{k0+3}")
            rest = [k0+3]
        else:
            e(f"v_min3_u32 v11, v11, v{k0}, v{k0+1}")
            e(f"v_min3_u32 v11, v11, v{k0+2}, v{k0+3}")
            rest = [k0, k0+1, k0+2, k0+3]
        for k in rest:
            e(f"v_med3_u32 v10, v9, v10, v{k}")
            e(f"v_med3_u32 v9, v8, v9, v{k}")
            e(f"v_max_u32_e64 v8, v8, v{k}")
    e("v_cmp_eq_u32 vcc, 0, v11")
    e("s_cbranch_vccz L_f_keys")
    e("s_cmp_lt_u32 s47, 0x40000")
    e("s_cbranch_scc1 L_f_pk")
    e("L_f_keys:")
    stamp(e, 2)
    FR = OPT.get("fr", 2)
    def flagloads():
        e("buffer_load_dword v28, v19, s[24:27], s56 offen sc1")
        e("buffer_load_dword v29, v19, s[24:27], s57 offen sc1")
    side = []
    WARM = OPT.get("warm", 0)
    flagloads()
    if WARM:
        side += ["v_max_u32_dpp v21, v8, v8 quad_perm:[1,0,3,2] row_mask:0xf bank_mask:0xf\nv_not_b32 v22, v8",
                 "v_max_u32_dpp v21, v21, v21 quad_perm:[2,3,0,1] row_mask:0xf bank_mask:0xf\nv_not_b32 v23, v9",
                 "v_max_u32_dpp v21, v21, v21 row_half_mirror row_mask:0xf bank_mask:0xf\nv_and_b32 v22, 0x7ff, v22",
                 "v_min_u32_dpp v21, v21, v21 row_mirror row_mask:0xf bank_mask:0xf\nv_and_b32 v23, 0x7ff, v23",
                 "v_min_u32_dpp v21, v21, v21 row_bcast:15 row_mask:0xa bank_mask:0xf\nv_mul_u32_u24 v22, s44, v22",
                 "v_min_u32_dpp v21, v21, v21 row_bcast:31 row_mask:0xc bank_mask:0xf\nv_mul_u32_u24 v23, s44, v23",
                 "v_readlane_b32 s43, v21, 63\nv_mov_b32 v20, 0x7ff00000",
                 "v_cmp_le_u32 s[62:63], s43, v30\nv_cmp_le_u32 s[40:41], s43, v31",
                 "s_nop 0\nv_cndmask_b32 v22, v20, v22, s[62:63]",
                 "v_cndmask_b32 v23, v20, v23, s[40:41]\nbuffer_load_dword v17, v22, s[48:51], 0 offen sc1"]
        tl = [f"buffer_load_dword v17, v22, s[48:51], 0 offen offset:{128*j} sc1" for j in range(1, 7)] + \
             [f"buffer_load_dword v16, v23, s[48:51], 0 offen offset:{128*j} sc1" for j in range(7)]
        while tl:
            side.append("\n".join(tl[:3])); tl = tl[3:]
        e("v_mov_b32 v30, v8")
        e("v_mov_b32 v31, v9")
    for rd in range(8):
        for si, st in enumerate(DPP6):
            if si == 0:
                e(f"v_max_u32_dpp v11, v8, v8 {st} bank_mask:0xf bound_ctrl:0")
            else:
                e(f"v_max_u32_dpp v11, v11, v11 {st} bank_mask:0xf")
            if si < 5:
                if side:
                    x = side.pop(0)
                    e(x)
                    if "\n" not in x: e("s_nop 0")
                else:
                    e("s_nop 1")
        e("s_nop 0")
        e("v_readlane_b32 s42, v11, 63")
        e("s_nop 1")
        e("v_cmp_eq_u32 vcc, s42, v8")
        e(f"v_writelane_b32 v12, s42, {rd}")
        e("s_nop 0")
        e("v_cndmask_b32 v8, v8, v9, vcc")
        e("v_cndmask_b32 v9, v9, v10, vcc")
        e("v_cndmask_b32 v10, v10, 0, vcc")
    e("v_cmp_eq_u32 vcc, 0, v8")
    e("s_cbranch_vccz L_f_topdone")
    e("s_mov_b32 m0, 0")
    e("s_mov_b32 s42, -1")
    e("L_f_slow:")
    e(f"v_sub_u32 v8, s42, v{K}")
    e(f"v_sub_u32 v9, s42, v{K+1}")
    e("v_min_u32 v8, v8, v9")
    for i in range(2, 32, 2):
        e(f"v_sub_u32 v9, s42, v{K+i}")
        e(f"v_sub_u32 v10, s42, v{K+i+1}")
        e("v_min3_u32 v8, v8, v9, v10")
    for st in DPP6:
        e("s_nop 1")
        e(f"v_min_u32_dpp v8, v8, v8 {st} bank_mask:0xf")
    e("s_nop 0")
    e("v_readlane_b32 s47, v8, 63")
    e("s_nop 3")
    e("s_sub_u32 s42, s42, s47")
    e("v_writelane_b32 v12, s42, m0")
    e("s_sub_u32 s42, s42, 1")
    e("s_add_u32 m0, m0, 1")
    e("s_cmp_lt_u32 m0, 8")
    e("s_cbranch_scc1 L_f_slow")
    e("L_f_topdone:")
    stamp(e, 3)
    e("ds_bpermute_b32 v8, v5, v12")
    e("ds_bpermute_b32 v15, v13, v12")
    e("s_mov_b32 s47, 0")
    e("s_waitcnt lgkmcnt(1)")
    e("v_not_b32 v8, v8")
    e("v_and_b32 v8, 0x7ff, v8")
    e("v_mad_u32_u24 v31, v8, s44, v6")
    e(f"s_waitcnt vmcnt({14 if WARM else 0})")
    e("L_f_gather:")
    e(f"s_mov_b32 m0, {XS}")
    e("v_mov_b32 v8, v31")
    for j in range(7):
        e(f"buffer_load_dwordx4 v8, s[48:51], 0 offen sc1 lds")
        if j < 6:
            e(f"s_mov_b32 m0, {XS + 1024*(j+1)}")
            e("v_add_u32 v8, 128, v8")
    e("s_waitcnt lgkmcnt(0)")
    e("v_not_b32 v9, v15")
    e("v_and_b32 v9, 0x7ff, v9")
    e("v_mad_u32_u24 v20, v9, s44, v14")
    e("v_and_b32 v21, 63, v9")
    e("v_and_b32 v22, 31, v9")
    e("v_lshrrev_b32 v23, 10, v9")
    e("v_lshl_add_u32 v22, v23, 5, v22")
    e("v_lshrrev_b32 v23, 5, v21")
    e("v_lshl_add_u32 v10, v23, 6, v22")
    e("v_bfe_u32 v23, v9, 6, 4")
    e("v_lshlrev_b32 v10, 7, v10")
    e("v_lshl_add_u32 v10, v23, 2, v10")
    e("buffer_load_dword v11, v10, s[24:27], s58 offen offset:64 sc1")
    e("buffer_load_dwordx2 v[16:17], v20, s[48:51], 0 offen sc1")
    e("v_lshlrev_b32 v22, 2, v22")
    e("ds_bpermute_b32 v23, v22, v28")
    e("ds_bpermute_b32 v22, v22, v29")
    e("v_cmp_gt_u32 vcc, 32, v21")
    e("s_add_u32 s47, s47, 1")
    e("s_waitcnt lgkmcnt(0)")
    e("v_cndmask_b32 v22, v22, v23, vcc")
    e("v_cmp_eq_u32 vcc, 0, v22")
    e("s_cbranch_vccz L_f_flagok")
    flagloads()
    e("s_waitcnt vmcnt(0)")
    e("s_cmp_lt_u32 s47, 0x40000")
    e("s_cbranch_scc1 L_f_gather")
    e("L_f_flagok:")
    e("v_lshlrev_b32 v30, 2, v1")
    e("s_waitcnt vmcnt(1)")
    e("s_mov_b64 exec, 0xff")
    e(f"ds_write_b32 v30, v11 offset:{MISC+64}")
    e("s_mov_b64 exec, -1")
    e("s_waitcnt lgkmcnt(0)")
    stamp(e, 4)
    e("s_barrier")
    e("v_ashrrev_i32 v9, 31, v15")
    e("v_not_b32 v9, v9")
    e("v_or_b32 v9, 0x80000000, v9")
    e("v_xor_b32 v15, v15, v9")
    e("v_and_b32 v15, s45, v15")
    e(f"v_mul_f32 v18, {fbits(-1.4426950408889634)}, v15")
    e("v_exp_f32 v18, v18")
    e("v_mov_b32 v10, 1.0")
    e("v_add_f32 v18, 1.0, v18")
    e("v_rcp_f32 v18, v18")
    e("s_mov_b32 s47, 0")
    e("v_cvt_pk_bf16_f32 v18, v18, v18")
    e("v_and_b32 v18, s45, v18")
    e("v_mov_b32 v14, v20")
    e("s_waitcnt vmcnt(0)")
    e("v_lshlrev_b32 v20, 16, v16")
    e("v_and_b32 v21, s45, v16")
    e("v_lshlrev_b32 v22, 16, v17")
    e("v_and_b32 v23, s45, v17")
    e("s_barrier")
    if B4 >= 0:
        e("s_barrier")
    stamp(e, 5)
    P = 64
    e("L_f_pp:")
    for i in range(14):
        e(f"buffer_load_dwordx4 {vr(P+4*i,4)}, v{24+(i&3)}, s[24:27], s{52+(i>>2)} offen sc1")
    e("s_add_u32 s47, s47, 1")
    e("s_waitcnt vmcnt(12)")
    e(f"v_pk_add_f32 v[28:29], {vr(P,2)}, {vr(P+4,2)}")
    e(f"v_pk_add_f32 v[30:31], {vr(P+2,2)}, {vr(P+6,2)}")
    for i in range(2, 14):
        e(f"s_waitcnt vmcnt({13-i})")
        e(f"v_pk_add_f32 v[28:29], v[28:29], {vr(P+4*i,2)}")
        e(f"v_pk_add_f32 v[30:31], v[30:31], {vr(P+4*i+2,2)}")
    e("v_add_f32 v8, v28, v29")
    e("v_add_f32 v9, v30, v31")
    e("v_cmp_u_f32 vcc, v8, v9")
    e("s_cbranch_vccz L_f_got")
    e(f"v_max3_u32 v8, v{P}, v{P+1}, v{P+2}")
    for i in range(3, 55, 2):
        e(f"v_max3_u32 v8, v8, v{P+i}, v{P+i+1}")
    e(f"v_max_u32 v8, v8, v{P+55}")
    e("v_cmp_eq_u32 vcc, -1, v8")
    e("s_cbranch_vccz L_f_got")
    e("s_cmp_lt_u32 s47, 0x40000")
    e("s_cbranch_scc1 L_f_pp")
    e("L_f_got:")
    stamp(e, 6)
    for r in range(4):
        e(f"v_mfma_f32_16x16x4_f32 {vr(32+4*r,4)}, v10, v{28+r}, 0")
    e("s_nop 7")
    e("s_nop 0")
    e("v_cvt_pk_bf16_f32 v16, v32, v36")
    e("v_cvt_pk_bf16_f32 v17, v40, v44")
    e("v_lshlrev_b32 v24, 16, v16")
    e("v_and_b32 v25, s45, v16")
    e("v_lshlrev_b32 v26, 16, v17")
    e("v_and_b32 v27, s45, v17")
    for r in range(4):
        e(f"v_mul_f32 v{24+r}, v{24+r}, v18")
    e("v_cvt_pk_bf16_f32 v16, v24, v25")
    e("v_cvt_pk_bf16_f32 v17, v26, v27")
    e("v_lshlrev_b32 v24, 16, v16")
    e("v_and_b32 v25, s45, v16")
    e("v_lshlrev_b32 v26, 16, v17")
    e("v_and_b32 v27, s45, v17")
    for r in range(4):
        e(f"v_add_f32 v{24+r}, v{24+r}, v{20+r}")
    e("v_cvt_pk_bf16_f32 v16, v24, v25")
    e("v_cvt_pk_bf16_f32 v17, v26, v27")
    e("s_mov_b64 exec, 0xffff")
    e("buffer_store_dwordx2 v[16:17], v14, s[48:51], 0 offen" + (" sc1" if OPT.get("fsc1", 1) else ""))
    stamp_flush(e, 1, 24, 7, 28)

if __name__ == "__main__":
    for a in sys.argv[2:]:
        if a == "diag":
            DIAG = True; gen.DIAG = True
        else:
            k, v = a.split("=")
            OPT[k] = int(v)
    VH = 28672 + OPT.get("vpad", 256); VS = OPT.get("vs", 2*VH)
    build([ka], sys.argv[1])
    if not OPT.get("aslist", 0):
        t = open(sys.argv[1]).read().replace("; @launch kernel=" + NAME + "_kernel grid", "; @launch grid")
        open(sys.argv[1], "w").write(t)
```

```python
import struct, sys
from gen import E, fbits, vr, ar, srd, header, build, NAME
import gen

WS_V    = 0x000000
WS_KEY  = 0x300000
WS_FLAG = 0x304000
WS_PART = 0x308000
WS_FL1  = 0x3E0000
WS_SIZE = 0x10000000
XBYTES  = 2048*896
WBYTES  = 448*1792*2
WS_DIAG = 0x800000
LDS_XROW = 140288
XRS = 1040
VH = 28672
VS = 57344
DIAG = False
OPT = {}
DPP6 = ["row_shr:1 row_mask:0xf", "row_shr:2 row_mask:0xf", "row_shr:4 row_mask:0xf", "row_shr:8 row_mask:0xf",
        "row_bcast:15 row_mask:0xa", "row_bcast:31 row_mask:0xc"]

def stamp(e, i):
    if DIAG:
        e(f"s_mem{'time' if OPT.get('cyc', 0) and i in (4, 5) else 'realtime'} s[{64+2*i}:{65+2*i}]")
        e("s_waitcnt lgkmcnt(0)")
def stamp_flush(e, kid, srdreg, nst, wavereg):
    if DIAG:
        e("s_mov_b64 exec, -1")
        e(f"s_memrealtime s[{64+2*nst}:{65+2*nst}]")
        e("s_waitcnt lgkmcnt(0)")
        for i in range(nst+1):
            e(f"v_writelane_b32 v230, s{64+2*i}, {i}")
        e(f"s_lshl_b32 s90, s2, 3")
        e(f"s_add_u32 s90, s90, s{wavereg}")
        e(f"s_lshl_b32 s90, s90, 6")
        e(f"s_add_u32 s90, s90, {WS_DIAG + kid*0x40000}")
        e("v_mbcnt_lo_u32_b32 v231, -1, 0")
        e("v_lshlrev_b32 v231, 2, v231")
        e("s_mov_b32 exec_lo, 0xffff")
        e("s_mov_b32 exec_hi, 0")
        e(f"buffer_store_dword v230, v231, s[{srdreg}:{srdreg+3}], s90 offen")
        e("s_mov_b64 exec, -1")

class Lds:
    def __init__(self, e):
        self.e = e; self.q = []
    def issue(self, tag, ins):
        self.e(ins); self.q.append(tag)
    def need(self, tag):
        if tag not in self.q: return
        last = max(i for i, t in enumerate(self.q) if t == tag)
        n = len(self.q) - 1 - last
        assert n <= 15, n
        self.e(f"s_waitcnt lgkmcnt({n})")
        self.q = self.q[last+1:]

def tagcheck(e, u):
    e("s_mov_b32 s63, 0")
    e(f"L_tag{u}:")
    e("v_cmp_ne_u32 vcc, 0, v224")
    e(f"s_cbranch_vccnz L_tagok{u}")
    if u != "a": srd(e, 56, 18, 256)
    e("buffer_load_dwordx2 v[224:225], off, s[56:59], 0 sc1")
    e("s_add_u32 s63, s63, 1")
    e("s_waitcnt vmcnt(0)")
    e("s_cmp_lt_u32 s63, 0x40000")
    e(f"s_cbranch_scc1 L_tag{u}")
    e(f"L_tagok{u}:")

def tables(e):
    import numpy as np
    def bf(x):
        u = np.ascontiguousarray(x, dtype=np.float32).view(np.uint32)
        return ((u + 0x7FFF + ((u >> 16) & 1)) >> 16).astype(np.uint32)
    d = np.arange(448)
    cs = np.zeros((7, 16, 4), np.float32)
    for sl in range(7):
        for i in range(16):
            for n in range(4):
                p = 64*sl + 32*(n >> 1) + 8*(i >> 2) + 4*(n & 1) + (i & 3)
                es = 16*(p >> 5) + (p & 15); kind = (p >> 4) & 1
                if p == 0: es = 224
                v = np.cos(2*np.pi*(((es*d) % 448)/448 + 0.25*kind))
                cs[sl, i, n] = (bf(v) << 16).view(np.float32).astype(np.float64).sum()
    R = np.zeros((4, 2, 64, 8), np.uint32)
    for w in range(4):
        for k2 in range(2):
            for l in range(64):
                j = 16*(w & 1) + (l & 15); ph = 0.25*(w >> 1)
                if w == 2 and j == 0: j, ph = 32, 0.0
                s1 = 32*k2 + 8*(l >> 4) + np.arange(8)
                R[w, k2, l] = bf(np.cos(2*np.pi*(((j*s1) % 64)/64 + ph)).round(12))
    Rw = (R[..., 0::2] | (R[..., 1::2] << 16)).reshape(-1)
    e(".p2align 7")
    e(".type fnet_tables,@object")
    e("fnet_tables:")
    words = list(Rw) + list(cs.reshape(-1).view(np.uint32))
    for i in range(0, len(words), 8):
        e(".long " + ", ".join("0x%08x" % int(x) for x in words[i:i+8]))
    e(f".size fnet_tables, {4*len(words)}")

def touch_setup(e, nch):
    e(f"s_cmp_lt_u32 s42, {nch}")
    e(f"s_cselect_b32 s38, {WBYTES:#x}, 0")
    e("s_cmp_ge_u32 s42, 196")
    e("s_cselect_b32 s36, s48, s46")
    e("s_cselect_b32 s37, s49, s47")
    e("s_cselect_b32 s34, 196, 0")
    e("s_cmp_ge_u32 s42, 392")
    e("s_cselect_b32 s36, s50, s36")
    e("s_cselect_b32 s37, s51, s37")
    e("s_cselect_b32 s34, 392, s34")
    e("s_sub_u32 s42, s42, s34")
    e("s_lshl_b32 s42, s42, 13")
    e("s_mov_b32 s39, 0x20000")
    e("v_lshlrev_b32 v216, 7, v1")
    e("v_add_u32 v216, s42, v216")

def xtouch(e, u, unit, gp, dst):
    e("s_and_b32 s30, s2, 7")
    e(f"s_cmp_ge_u32 s{unit}, 56")
    e(f"s_cbranch_scc1 L_xt_d{u}")
    e(f"s_cmp_ge_u32 s{unit}, 28")
    e("s_cselect_b32 s31, 28, 0")
    e(f"s_cselect_b32 s24, s{gp+2}, s{gp}")
    e(f"s_cselect_b32 s25, s{gp+3}, s{gp+1}")
    e(f"s_sub_u32 s29, s{unit}, s31")
    e("s_mul_i32 s29, s29, 57344")
    e("s_mul_i32 s30, s30, 448")
    e("s_and_b32 s30, s30, 0xffffff80")
    e("s_add_u32 s29, s29, s30")
    e("v_lshrrev_b32 v8, 2, v1")
    e("v_mul_u32_u24 v8, 3584, v8")
    e("v_and_b32 v9, 3, v1")
    e("v_lshl_add_u32 v8, v9, 7, v8")
    e(f"s_branch L_xt_go{u}")
    e(f"L_xt_d{u}:")
    e(f"s_mov_b32 s24, s{gp+4}")
    e(f"s_mov_b32 s25, s{gp+5}")
    e(f"s_sub_u32 s29, s{unit}, 56")
    e("s_lshl_b32 s29, s29, 13")
    e(f"s_mul_i32 s30, s30, {224*896}")
    e("s_add_u32 s29, s29, s30")
    e(f"s_cmp_ge_u32 s{unit}, 81")
    e("s_cselect_b32 s29, 0x7ff00000, s29")
    e("v_lshlrev_b32 v8, 7, v1")
    e(f"L_xt_go{u}:")
    e("v_add_u32 v8, s29, v8")
    e(f"s_mov_b32 s26, {WBYTES:#x}")
    e("s_mov_b32 s27, 0x20000")
    e(f"buffer_load_dword v{dst}, v8, s[24:27], 0 offen")

def ka(e):
    header(e, NAME + "_kernel")
    X, ACC, CUR, PRV, PK, RF, BB = 64, 32, 16, 24, 48, 56, 120
    SUM, GRM = 32, 36
    LDS_X, LDS_Z = 57344, 114688
    LDS_R = LDS_Z + 8192
    LDS_ST = LDS_R + 8192
    LDS_CS = LDS_ST + 512
    LDS_TB = LDS_CS + 512
    LDS_XR = LDS_XROW
    assert LDS_TB + 8192 == LDS_XROW
    e("s_cmp_ge_u32 s2, 256")
    e("s_cbranch_scc1 L_ka_end")
    stamp(e, 0)
    e("s_load_dwordx2 s[4:5], s[0:1], 0")
    e("s_getpc_b64 s[92:93]")
    e("L_ka_pc:")
    e(f"s_sub_u32 s92, s92, L_ka_pc-{NAME}_kernel")
    e("s_subb_u32 s93, s93, 0")
    e(f"s_mov_b32 s94, L_code_end-{NAME}_kernel")
    e("s_mov_b32 s95, 0x20000")
    e(f"s_cmp_ge_u32 s2, {OPT.get('cwn', 16)}")
    e("s_cbranch_scc1 L_ka_nocw")
    e("v_lshlrev_b32 v4, 7, v0")
    e("buffer_load_dword v227, v4, s[92:95], 0 offen")
    e("L_ka_nocw:")
    e("s_load_dwordx2 s[6:7], s[0:1], 96")
    e("s_load_dwordx8 s[44:51], s[0:1], 48")
    e("s_load_dwordx2 s[60:61], s[0:1], 88")
    e("v_lshrrev_b32 v1, 6, v0")
    e("v_and_b32 v2, 15, v0")
    e("v_readfirstlane_b32 s43, v1")
    e("v_bfe_u32 v3, v0, 4, 2")
    e("v_and_b32 v1, 63, v0")
    e("s_cmp_ge_u32 s2, 224")
    e("s_cbranch_scc1 L_ka_spare")
    e("s_and_b32 s16, s43, 3")
    e("s_and_b32 s20, s2, 31")
    e("s_lshr_b32 s19, s2, 5")
    e("s_lshr_b32 s21, s16, 1")
    e("s_and_b32 s22, s16, 1")
    e("s_mul_i32 s29, s16, 14336")
    e(f"s_add_u32 s41, s29, {LDS_X}")
    e("s_mov_b32 s28, 0x3f803f80")
    e("s_cmp_lt_u32 s43, 4")
    e("s_cbranch_scc1 L_ka_main")
    def common_addr():
        e("v_lshlrev_b32 v11, 4, v1")
        e("v_and_b32 v12, 6, v2")
        e("v_xor_b32 v12, v12, v3")
        e("v_and_b32 v14, 7, v2")
        e("v_lshlrev_b32 v14, 7, v14")
        e("v_lshl_add_u32 v14, v12, 4, v14")
        e("v_lshrrev_b32 v12, 3, v2")
        e("v_lshl_add_u32 v14, v12, 10, v14")
        e("v_add_u32 v14, s41, v14")
        e("v_xor_b32 v15, 64, v14")
        e("v_lshrrev_b32 v12, 2, v1")
        e("v_and_b32 v53, 3, v1")
        e("v_bfe_u32 v10, v1, 3, 2")
        e("v_xor_b32 v10, v10, v53")
        e("v_lshlrev_b32 v10, 4, v10")
        e("v_lshl_add_u32 v10, v12, 6, v10")
        e(f"v_mul_u32_u24 v12, {VS}, v12")
        e("v_lshl_add_u32 v53, v53, 4, v12")
        e("s_lshl_b32 s24, s43, 10")
        e(f"s_add_u32 s24, s24, {LDS_TB}")
        e("v_add_u32 v10, s24, v10")
        e("v_bfe_u32 v12, v2, 1, 2")
        e("v_xor_b32 v12, v12, v3")
        e("v_lshlrev_b32 v12, 4, v12")
        e("v_lshl_add_u32 v12, v2, 6, v12")
        e("v_add_u32 v8, s24, v12")
        e(f"s_mul_i32 s24, s22, {16*VS}")
        e(f"s_mul_i32 s25, s21, {VH}")
        e("s_add_u32 s24, s24, s25")
        e("s_lshl_b32 s25, s19, 7")
        e("s_add_u32 s24, s24, s25")
        e("s_mul_i32 s25, s20, 896")
        e("s_add_u32 s30, s24, s25")
        if OPT.get("vb", 0): e(f"s_add_u32 s30, s30, {OPT['vb']*0x100000}")
        e("s_lshl_b32 s24, s16, 11")
        e(f"s_add_u32 s24, s24, {LDS_R}")
        e("v_add_u32 v52, s24, v11")
    def gemm2(hh):
        e(f"v_add_u32 v54, {LDS_Z + hh*4096}, v11")
        e("s_barrier")
        for j in range(4):
            e(f"ds_read_b128 {vr(X+4*j,4)}, v54 offset:{j*1024}")
        for n in range(2):
            e(f"s_waitcnt lgkmcnt({2-2*n})")
            e(f"v_mfma_f32_16x16x32_bf16 {vr(40+4*n,4)}, {vr(X+8*n,4)}, {vr(RF,4)}, 0")
            e(f"v_mfma_f32_16x16x32_bf16 {vr(40+4*n,4)}, {vr(X+8*n+4,4)}, {vr(RF+4,4)}, {vr(40+4*n,4)}")
        e("s_nop 4")
        e("v_cvt_pk_bf16_f32 v16, v40, v41")
        e("v_cvt_pk_bf16_f32 v17, v42, v43")
        e("s_nop 0")
        e("v_cvt_pk_bf16_f32 v18, v44, v45")
        e("v_cvt_pk_bf16_f32 v19, v46, v47")
        e("ds_write_b128 v8, v[16:19]")
        e("s_waitcnt lgkmcnt(0)")
        e("ds_read_b128 v[20:23], v10")
        e("s_waitcnt lgkmcnt(0)")
        e(f"buffer_store_dwordx4 v[20:23], v53, s[12:15], s30 offen offset:{64*hh} sc1")
        stamp(e, 7)
        e("v_lshlrev_b32 v226, 6, v1")
        e("s_waitcnt vmcnt(0)")
        stamp(e, 8)
        e("s_barrier")
        if hh:
            e("s_cmp_lg_u32 s43, 4")
            e("s_cbranch_scc1 L_ka_noflag")
            tagcheck(e, "a")
            e("s_lshl_b32 s24, s2, 6")
            e(f"s_add_u32 s24, s24, {WS_FL1}")
            e("s_mov_b64 exec, 1")
            e("buffer_store_dwordx2 v[224:225], off, s[12:15], s24 sc1")
            e("s_mov_b64 exec, -1")
            e("L_ka_noflag:")
            if OPT.get("pfm", 3) == 2: e("buffer_load_dword v219, v216, s[36:39], 0 offen")
        stamp_flush(e, 0, 12, 9, 43)
        e("s_branch L_kb_entry")

    e("s_setprio 2")
    e("v_lshrrev_b32 v4, 3, v1")
    e("v_and_b32 v5, 7, v1")
    e("v_and_b32 v6, 6, v4")
    e("v_xor_b32 v5, v5, v6")
    e("v_lshrrev_b32 v6, 2, v4")
    e("v_and_b32 v4, 3, v4")
    e("v_lshl_add_u32 v6, v6, 3, v4")
    e("v_mul_u32_u24 v6, 28672, v6")
    e("v_lshl_add_u32 v6, v5, 4, v6")
    e(f"v_add_u32 v13, {16*28672}, v6")
    e("s_lshl_b32 s23, s21, 10")
    e("s_lshl_b32 s24, s22, 7")
    e("s_add_u32 s23, s23, s24")
    e("s_add_u32 s23, s23, s20")
    e("s_mul_i32 s23, s23, 896")
    e("s_lshl_b32 s31, s19, 7")
    e("s_add_u32 s32, s23, 896")
    e("s_add_u32 s31, s31, s23")
    e("s_waitcnt lgkmcnt(0)")
    stamp(e, 1)
    srd(e, 8, 4, XBYTES)
    XNT = " nt" if OPT.get("xnt", 1) else ""
    def xpair(c):
        e(f"s_add_u32 m0, s41, {c*2048}")
        e("s_add_u32 s33, s31, 128")
        e(f"buffer_load_dwordx4 v6, s[8:11], s31 offen{XNT} lds")
        e(f"s_add_u32 m0, s41, {c*2048+1024}")
        e("s_cmp_eq_u32 s33, s32")
        e(f"buffer_load_dwordx4 v13, s[8:11], s31 offen{XNT} lds")
        e("s_cselect_b32 s31, s23, s33")
    NF = OPT.get("nf", 3)
    for c in range(NF): xpair(c)
    def helper_rest():
        e("s_setprio 0")
        srd(e, 12, 6, WS_SIZE)
        e("s_cmp_ge_u32 s2, 8")
        e("s_cselect_b32 s34, -1, 0")
        e("s_lshl_b32 s35, s2, 12")
        e(f"s_add_u32 s35, s35, {WS_KEY - 4096}")
        e("s_cmp_ge_u32 s2, 204")
        e("s_cselect_b32 s36, 0x7ff00000, 0")
        e("v_lshl_add_u32 v12, v0, 4, s36")
        for j in range(4):
            e(f"v_mov_b32 v{200+j}, s34")
        e("v_mov_b32 v217, v12")
        e("s_mov_b32 s56, s60")
        e("s_mov_b32 s57, s61")
        e("s_movk_i32 s58, 256")
        e("s_mov_b32 s59, 0x20000")
        e("s_or_b32 s24, s2, s16")
        e("s_cmp_lg_u32 s24, 0")
        e("s_cbranch_scc1 L_ka_notag")
        e("s_memrealtime s[24:25]")
        e("s_waitcnt lgkmcnt(0)")
        e("s_or_b32 s24, s24, 1")
        e("v_mov_b32 v44, s24")
        e("v_mov_b32 v45, s25")
        e("s_mov_b64 exec, 1")
        e("buffer_store_dwordx2 v[44:45], off, s[56:59], 0 sc1")
        e("s_mov_b64 exec, -1")
        e("L_ka_notag:")
        common_addr()
        for j in range(4):
            e(f"v_mov_b32 v{48+j}, s28")
        e(f"s_mov_b32 s24, {fbits(1.0/448)}")
        e(f"s_mov_b32 s26, {fbits(1e-5)}")
        e(f"s_mov_b32 s27, 0xffff0000")
        vq = [c for c in range(NF) for h in range(2)]
        def vwait(c):
            last = max(i for i, t in enumerate(vq) if t == c)
            e(f"s_waitcnt vmcnt({len(vq)-1-last})")
            del vq[:last+1]
        PFM = OPT.get("pfm", 3)
        if PFM in (1, 2):
            e("s_mul_i32 s42, s16, 224")
            e("s_add_u32 s42, s42, s2")
            touch_setup(e, 392 if PFM == 1 else 588)
        e("s_bfe_u32 s17, s2, 0x10006")
        e("s_lshl_b32 s17, s17, 5")
        e("s_add_u32 s17, s17, s20")
        e("s_bfe_u32 s18, s2, 0x10005")
        e("s_lshl_b32 s18, s18, 10")
        e("s_add_u32 s18, s18, s17")
        e("s_lshl_b32 s17, s16, 8")
        e("s_add_u32 s18, s18, s17")
        e("s_mul_i32 s18, s18, 896")
        e(f"s_mul_i32 s17, s16, {4*XRS}")
        e(f"s_add_u32 s17, s17, {LDS_XR}")
        e("s_cmp_lt_u32 s2, 128")
        e("s_cselect_b32 s25, 56, 0")
        e("v_cmp_gt_u32 vcc, s25, v1")
        e("v_mov_b32 v218, 0x7ff00000")
        e("s_nop 0")
        e("v_cndmask_b32 v218, v218, v11, vcc")
        e("v_and_b32 v4, 3, v2")
        e("v_lshrrev_b32 v5, 2, v2")
        e("v_cmp_eq_u32 s[52:53], 1, v4")
        e("v_cmp_eq_u32 s[54:55], 2, v4")
        e("v_cmp_eq_u32 s[62:63], 3, v4")
        e("v_cmp_eq_u32 s[60:61], v5, v3")
        e("s_lshl_b32 s25, s16, 7")
        e(f"s_add_u32 s25, s25, {LDS_ST}")
        e("v_lshl_add_u32 v4, v2, 2, s25")
        e("s_lshl_b32 s40, s16, 11")
        stamp(e, 2)
        e(f"s_setprio {OPT.get('csp', 2)}")
        e("s_barrier")
        nx = [NF]
        def land(c):
            vwait(c)
            if nx[0] < 7:
                xpair(nx[0]); vq.extend([nx[0]]*2); nx[0] += 1
        def stat(k):
            c = "0" if k == 0 else vr(GRM, 4)
            e(f"v_mfma_f32_16x16x32_bf16 {vr(GRM,4)}, {vr(X+4*k,4)}, {vr(X+4*k,4)}, {c}")
            c = "0" if k == 0 else vr(SUM, 4)
            e(f"v_mfma_f32_16x16x32_bf16 {vr(SUM,4)}, {vr(X+4*k,4)}, v[48:51], {c}")
        def rdx(k0, k1):
            for k in range(k0, k1):
                e(f"ds_read_b128 {vr(X+4*k,4)}, v{14+(k&1)} offset:{(k>>1)*2048}")
        def stats(k0, k1, kend):
            for k in range(k0, k1):
                e(f"s_waitcnt lgkmcnt({kend-1-k})")
                stat(k)
        e(f"s_setprio {OPT.get('hp2', 2)}")
        land(0); land(1)
        rdx(0, 4)
        stamp(e, 3)
        e("s_barrier")
        stamp(e, 4)
        stats(0, 2, 4)
        land(2)
        stats(2, 4, 4)
        land(3)
        assert nx[0] == 7
        rdx(4, 8)
        e("s_barrier")
        e(f"s_add_u32 m0, s40, {LDS_R}")
        e(f"s_add_u32 s33, s40, fnet_tables-{NAME}_kernel")
        e("buffer_load_dwordx4 v11, s[92:95], s33 offen lds")
        e("buffer_load_dwordx4 v11, s[92:95], s33 offen offset:1024 lds")
        e("buffer_load_dwordx2 v[224:225], off, s[56:59], 0 sc1")
        stats(4, 8, 8)
        e("s_waitcnt vmcnt(3)")
        rdx(8, 14)
        if PFM == 1: e("buffer_load_dword v219, v216, s[36:39], 0 offen")
        if OPT.get("sb", 0): stamp(e, 2)
        BE = OPT.get("be", 0)
        if BE: e("s_barrier")
        stats(8, 14, 14)
        if not BE: e("s_barrier")
        e("s_nop 6")
        e(f"v_cndmask_b32 v20, v{GRM}, v{GRM+1}, s[52:53]")
        e(f"v_cndmask_b32 v16, v{SUM}, v{SUM+1}, s[52:53]")
        e(f"v_cndmask_b32 v20, v20, v{GRM+2}, s[54:55]")
        e(f"v_cndmask_b32 v16, v16, v{SUM+2}, s[54:55]")
        e(f"v_cndmask_b32 v20, v20, v{GRM+3}, s[62:63]")
        e(f"v_cndmask_b32 v16, v16, v{SUM+3}, s[62:63]")
        e("v_mul_f32 v20, s24, v20")
        e("v_mul_f32 v16, s24, v16")
        e("v_fma_f32 v20, -v16, v16, v20")
        e("v_max_f32 v20, 0, v20")
        e("v_cvt_pk_bf16_f32 v20, v20, v20")
        e("v_and_b32 v20, s27, v20")
        e("v_add_f32 v20, s26, v20")
        e("v_cvt_pk_bf16_f32 v20, v20, v20")
        e("v_and_b32 v20, s27, v20")
        e("v_sqrt_f32 v20, v20")
        e("s_mov_b64 exec, s[60:61]")
        e("v_cvt_pk_bf16_f32 v20, v20, v20")
        e("v_and_b32 v20, s27, v20")
        e("v_rcp_f32 v20, v20")
        e("s_nop 0")
        e("v_mul_f32 v16, -v16, v20")
        e("ds_write2_b32 v4, v16, v20 offset0:0 offset1:16")
        e("s_mov_b64 exec, -1")
        e("s_waitcnt lgkmcnt(0)")
        e("s_waitcnt vmcnt(0)")
        stamp(e, 5)
        e("s_barrier")
        e(f"ds_read_b128 {vr(RF,4)}, v52")
        e(f"ds_read_b128 {vr(RF+4,4)}, v52 offset:1024")
        for j in range(4):
            e(f"s_add_u32 m0, s17, {j*XRS}")
            e(f"s_add_u32 s33, s18, {j*64*896}")
            e(f"buffer_load_dwordx4 v218, s[8:11], s33 offen lds")
        e(f"s_mov_b32 m0, {LDS_XR + 16*XRS}")
        srd(e, 8, 44, 896)
        e(f"buffer_load_dwordx4 v11, s[8:11], 0 offen lds")
        e("buffer_store_dwordx4 v[200:203], v217, s[12:15], s35 offen sc1")
        stamp(e, 6)
        gemm2(1)
    SPLIT = OPT.get("split", 1)
    if SPLIT:
        e("s_branch L_ka_help2")
    else:
        helper_rest()
    MACC, AR, CS, MB = 16, 32, 44, 64
    FC, FP, FK = 64, 72, 80
    e("L_ka_main:")
    e("v_lshrrev_b32 v4, 2, v2")
    e("v_and_b32 v5, 3, v2")
    e("s_lshl_b32 s24, s19, 6")
    e("s_lshl_b32 s25, s21, 5")
    e("s_add_u32 s25, s24, s25")
    e("s_lshl_b32 s26, s22, 2")
    e("s_add_u32 s25, s25, s26")
    e("v_lshl_add_u32 v7, v4, 3, v5")
    e("v_add_u32 v7, s25, v7")
    e("v_lshrrev_b32 v8, 5, v7")
    e("v_and_b32 v9, 15, v7")
    e("v_lshl_add_u32 v8, v8, 4, v9")
    e("v_cmp_eq_u32 vcc, 0, v7")
    e("v_bfe_u32 v10, v7, 4, 1")
    e("v_mov_b32 v9, 224")
    e("v_cndmask_b32 v7, v8, v9, vcc")
    e("v_mul_u32_u24 v10, 0x3e80, v10")
    e("v_lshlrev_b32 v10, 16, v10")
    e("v_lshl_add_u32 v8, v3, 3, s24")
    e("v_mul_u32_u24 v8, v8, v7")
    e("v_cvt_f32_u32 v7, v7")
    e("v_cvt_f32_u32 v8, v8")
    e(f"s_mov_b32 s24, {fbits(1.0/448)}")
    e("v_mul_f32 v9, s24, v8")
    e("v_floor_f32 v9, v9")
    e(f"v_fmamk_f32 v8, v9, {fbits(-448.0)}, v8")
    e("v_mul_f32 v7, s24, v7")
    e("v_fma_f32 v8, v8, s24, v10")
    e("v_mul_f32 v9, 0x42000000, v7")
    e("v_cos_f32 v88, v9")
    for j in range(8):
        e(f"v_cos_f32 v{FC+j}, v8")
        e(f"v_sub_f32 v11, v8, v9")
        if j < 7:
            e(f"v_add_f32 v8, v8, v7")
        e(f"v_cos_f32 v{FP+j}, v11")
    e("v_add_f32 v88, v88, v88")
    e("v_lshl_add_u32 v91, v1, 4, s29")
    e("v_mov_b32 v89, v88")
    stamp(e, 1)
    if OPT.get("floop", 0):
        e("s_mov_b32 s24, 0")
        e(".p2align 3")
        e("L_ka_fgen:")
        for st in range(2):
            A, B = (FC, FP) if st % 2 == 0 else (FP, FC)
            P = FK + 4*(st % 2)
            for j in range(4):
                e(f"v_cvt_pk_bf16_f32 v{P+j}, v{A+2*j}, v{A+2*j+1}")
            e(f"ds_write_b128 v91, {vr(P,4)} offset:{st*1024}")
            for j in range(4):
                e(f"v_pk_fma_f32 {vr(B+2*j,2)}, v[88:89], {vr(A+2*j,2)}, {vr(B+2*j,2)} neg_lo:[0,0,1] neg_hi:[0,0,1]")
        e("v_add_u32 v91, 0x800, v91")
        e("s_add_u32 s24, s24, 1")
        e("s_cmp_lt_u32 s24, 7")
        e("s_cbranch_scc1 L_ka_fgen")
    else:
        e(".p2align 3")
        for st in range(14):
            A, B = (FC, FP) if st % 2 == 0 else (FP, FC)
            P = FK + 4*(st % 2)
            for j in range(4):
                e(f"v_cvt_pk_bf16_f32 v{P+j}, v{A+2*j}, v{A+2*j+1}")
            e(f"ds_write_b128 v91, {vr(P,4)} offset:{st*1024}")
            if st < 13:
                for j in range(4):
                    e(f"v_pk_fma_f32 {vr(B+2*j,2)}, v[88:89], {vr(A+2*j,2)}, {vr(B+2*j,2)} neg_lo:[0,0,1] neg_hi:[0,0,1]")
    e("v_lshlrev_b32 v11, 4, v1")
    e("s_waitcnt lgkmcnt(0)")
    stamp(e, 2)
    e("s_barrier")
    L = Lds(e)
    def rB(k, n):
        L.issue(("B", k), f"ds_read_b128 {vr(MB+32+((k+6)%8)*16+4*n,4)}, v11 offset:{(n*14+k)*1024}")
    def Breg(k, n): return vr(MB+32+((k+6)%8)*16+4*n, 4)
    PRE = OPT.get("pre", 4)
    for k in range(2):
        for n in range(4): rB(k, n)
    common_addr()
    e("s_lshl_b32 s24, s21, 10")
    e("s_lshl_b32 s25, s22, 3")
    e("s_add_u32 s24, s24, s25")
    e(f"s_add_u32 s24, s24, {LDS_Z}")
    e("v_add_u32 v55, s24, v11")
    e("v_lshlrev_b32 v12, 4, v2")
    e("s_lshl_b32 s26, s19, 8")
    e(f"s_add_u32 s26, s26, fnet_tables-{NAME}_kernel+8192")
    e("s_lshl_b32 s25, s16, 7")
    e(f"s_add_u32 s25, s25, {LDS_ST}")
    e("v_lshl_add_u32 v13, v3, 4, s25")
    srd(e, 12, 6, WS_SIZE)
    srd(e, 56, 60, 256)
    for k in range(2, PRE):
        for n in range(4): rB(k, n)
    stamp(e, 3)
    e("s_barrier")
    stamp(e, 4)
    if DIAG: L.q = []
    def rA(k):
        L.issue(("A", k), f"ds_read_b128 {vr(AR+4*(k%3),4)}, v{14+(k&1)} offset:{(k>>1)*2048}")
    L.q = L.q[-13:]
    rA(0); rA(1)
    ST, U = 64, 72
    CK = OPT.get("ck", 11)
    sh = []
    for k in range(14):
        if k == 2: e("s_barrier")
        if k == 6:
            e("s_barrier")
            e(f"buffer_load_dwordx4 {vr(CS,4)}, v12, s[92:95], s26 offen")
            e("buffer_load_dwordx2 v[224:225], off, s[56:59], 0 sc1")
        if k == CK:
            e("s_barrier")
            L.issue("st", f"ds_read_b128 {vr(ST,4)}, v13")
            L.issue("st", f"ds_read_b128 {vr(ST+4,4)}, v13 offset:64")
        if k == CK + 1:
            e("s_waitcnt vmcnt(1)")
            L.need("st")
            for n in range(4):
                for r in range(4): sh.append(f"v_mul_f32 v{U+4*n+r}, v{ST+r}, v{CS+n}")
        L.need(("A", k))
        L.need(("B", k))
        for n in range(4):
            c = "0" if k == 0 else vr(MACC+4*n, 4)
            e(f"v_mfma_f32_16x16x32_bf16 {vr(MACC+4*n,4)}, {vr(AR+4*(k%3),4)}, {Breg(k,n)}, {c}")
            if n == 0 and k + 2 < 14: rA(k + 2)
            if k + PRE < 14: rB(k + PRE, n)
            elif k == CK + 1 and n < 2: L.issue("R", f"ds_read_b128 {vr(RF+4*n,4)}, v52 offset:{1024*n}")
            for _ in range(3):
                if sh: e(sh.pop(0))
    if CK == 13:
        L.need("st")
        for n in range(4):
            for r in range(4): sh.append(f"v_mul_f32 v{U+4*n+r}, v{ST+r}, v{CS+n}")
    stamp(e, 5)
    nl = len(sh)
    while sh: e(sh.pop(0))
    if nl < 5: e(f"s_nop {4-nl}")
    for n in range(4):
        a = MACC + 4*n
        e(f"v_pk_fma_f32 {vr(a,2)}, {vr(a,2)}, {vr(ST+4,2)}, {vr(U+4*n,2)}")
        e(f"v_pk_fma_f32 {vr(a+2,2)}, {vr(a+2,2)}, {vr(ST+6,2)}, {vr(U+4*n+2,2)}")
        e(f"v_cvt_pk_bf16_f32 v{32+2*n}, v{a}, v{a+1}")
        e(f"v_cvt_pk_bf16_f32 v{33+2*n}, v{a+2}, v{a+3}")
        e(f"ds_write_b64 v55, {vr(32+2*n,2)} offset:{n*2048}")
    e("s_waitcnt lgkmcnt(0)")
    stamp(e, 6)
    gemm2(0)

    if SPLIT:
        e("L_ka_help2:")
        helper_rest()
    e("L_ka_spare:")
    if OPT.get("pfm", 3) == 3:
        e("s_sub_u32 s19, s2, 224")
        e("s_and_b32 s19, s19, 0xf8")
        e("s_add_u32 s19, s19, s43")
        e("v_lshlrev_b32 v8, 7, v0")
        e("s_waitcnt lgkmcnt(0)")
        srd(e, 24, 44, 896)
        e(f"buffer_load_dword v16, v8, s[24:27], 0 offen")
        if OPT.get("spw3", 0): e("s_waitcnt vmcnt(0)")
        xtouch(e, "a", 19, 46, 11)
        e("s_add_u32 s19, s19, 32")
        e(f"s_cmp_ge_u32 s19, {OPT.get('xsp', 56)}")
        e("s_cbranch_scc1 L_ka_end")
        xtouch(e, "b", 19, 46, 12)
        e("s_endpgm")
    e("L_ka_end:")
    e("s_endpgm")
    kb(e)
    return dict(name=NAME + "_kernel", vgpr=232, accum=232, sgpr=96, grid=256, block=512, lds=LDS_XROW+16*XRS+1024)

def sync1(e, u, nl, soff, pre=False):
    e("s_waitcnt vmcnt(0)")
    tagcheck(e, u)
    e("s_mov_b32 s63, 0")
    e(f"s_mov_b64 exec, {(1 << nl) - 1:#x}" if nl < 32 else "s_mov_b32 exec_hi, 0")
    if pre: e(f"s_branch L_s1c{u}")
    e(f"L_s1{u}:")
    if u in "fg": e("s_sleep 4")
    e(f"buffer_load_dwordx2 v[228:229], v226, s[24:27], {soff} offen sc1")
    e("s_add_u32 s63, s63, 1")
    e("s_waitcnt vmcnt(0)")
    e(f"L_s1c{u}:")
    e("v_cmp_ne_u64 vcc, v[228:229], v[224:225]")
    e("s_and_b64 exec, exec, vcc")
    e(f"s_cbranch_scc0 L_s1d{u}")
    e("s_cmp_lt_u32 s63, 0x40000")
    e(f"s_cbranch_scc1 L_s1{u}")
    e(f"L_s1d{u}:")
    e("s_mov_b64 exec, -1")

def sync_all(e):
    tagcheck(e, "f")
    e("v_lshlrev_b32 v80, 6, v1")
    e("v_mov_b32 v81, 0x7ff00000")
    e("v_cmp_gt_u32 vcc, 32, v1")
    for j in range(4):
        e(f"s_mov_b32 s{56+j}, {WS_FL1 + 4096*j:#x}")
    e("v_cndmask_b32 v81, v81, v80, vcc")
    e("s_mov_b32 s63, 0")
    e("L_sa:")
    e(f"s_sleep {OPT.get('sasl', 4)}")
    for j in range(4):
        e(f"buffer_load_dwordx2 {vr(82+2*j,2)}, v{81 if j == 3 else 80}, s[24:27], s{56+j} offen sc1")
    e("s_add_u32 s63, s63, 1")
    e("s_waitcnt vmcnt(0)")
    e("v_cndmask_b32 v88, v224, v88, vcc")
    e("v_cndmask_b32 v89, v225, v89, vcc")
    for j in range(4):
        e(f"v_xor_b32 v{82+2*j}, v{82+2*j}, v224")
        e(f"v_xor_b32 v{83+2*j}, v{83+2*j}, v225")
    e("v_or3_b32 v82, v82, v83, v84")
    e("v_or3_b32 v85, v85, v86, v87")
    e("v_or3_b32 v82, v82, v88, v89")
    e("v_or_b32 v82, v82, v85")
    e("v_cmpx_ne_u32 s[60:61], 0, v82")
    e("s_cbranch_execz L_sad")
    e("s_cmp_lt_u32 s63, 0x40000")
    e("s_cbranch_scc1 L_sa")
    e("L_sad:")
    e("s_mov_b64 exec, -1")

def kb(e):
    e("L_kb_entry:")
    e("s_cmp_ge_u32 s2, 184")
    e("s_cbranch_scc1 L_kb_warm")
    stamp(e, 0)
    e("s_setprio 0")
    e("s_load_dwordx2 s[20:21], s[0:1], 96")
    e("s_load_dwordx2 s[4:5], s[0:1], 0")
    e("s_load_dwordx8 s[8:15], s[0:1], 48")
    e("s_load_dwordx4 s[16:19], s[0:1], 80")
    e("s_mov_b32 s28, s43")
    e("v_lshlrev_b32 v4, 4, v1")
    e("s_cmp_ge_u32 s2, 128")
    e("s_cbranch_scc1 L_kb_ffn")
    p2(e)
    e("L_kb_ffn:")
    ffn(e)
    e("s_endpgm")
    e("L_kb_warm:")
    if OPT.get("pfm", 3) == 3:
        e("s_load_dwordx4 s[4:7], s[0:1], 56")
        e("s_load_dwordx2 s[8:9], s[0:1], 72")
        e("s_sub_u32 s19, s2, 184")
        e("s_and_b32 s19, s19, 0xf8")
        e("s_add_u32 s19, s19, s43")
        e("s_add_u32 s19, s19, 41")
        e("s_waitcnt lgkmcnt(0)")
        xtouch(e, "c", 19, 4, 11)
    if OPT.get("pfm", 3): e("s_endpgm")
    e("L_kb_end:")
    e("s_endpgm")
    tables(e)
    e("L_code_end:")

def p2(e):
    YB, RS = 57344, 1808
    PA, PAS = 86528, 464
    SC = PA + 16*PAS
    C, S, F1, F3 = 16, 20, 24, 28
    A, ACC = 64, 32
    XC, WC, SM = 144, 160, 176
    H = 96
    WRL = LDS_XROW + 16*XRS
    e("s_and_b32 s29, s2, 31")
    e("s_bfe_u32 s30, s2, 0x10005")
    e("s_lshr_b32 s31, s2, 6")
    e("s_lshl_b32 s32, s31, 5")
    e("s_add_u32 s32, s32, s29")
    e("s_sub_u32 s33, 32, s29")
    e("s_and_b32 s33, s33, 31")
    e("s_cmp_eq_u32 s31, 0")
    e("s_cselect_b32 s29, s29, s33")
    e("s_lshl_b32 s33, s30, 10")
    e("s_add_u32 s33, s33, s32")
    e("s_lshl_b32 s34, s28, 7")
    e("s_add_u32 s34, s34, s33")
    e("s_mul_i32 s35, s34, 896")
    e("v_and_b32 v5, 31, v1")
    e("v_lshrrev_b32 v6, 5, v1")
    e("v_cmp_gt_u32 vcc, 28, v5")
    e("v_lshlrev_b32 v9, 4, v5")
    e("v_mov_b32 v10, 0x7ff00000")
    e("v_mul_u32_u24 v11, 57344, v6")
    e("v_cndmask_b32 v10, v10, v9, vcc")
    e("v_add_u32 v10, v10, v11")
    e(f"s_mul_i32 s38, s28, {2*RS}")
    e(f"s_add_u32 s38, s38, {YB}")
    e(f"v_mul_u32_u24 v7, {RS}, v6")
    e("v_lshl_add_u32 v7, v5, 5, v7")
    e("v_add_u32 v7, s38, v7")
    e("s_lshl_b32 s38, s28, 4")
    e(f"s_add_u32 s38, s38, {SC}")
    e("v_lshl_add_u32 v120, v6, 3, s38")
    e("s_mov_b32 s43, 0xffff0000")
    e("s_lshl_b32 s53, s2, 7")
    e(f"s_add_u32 s53, s53, {WS_KEY}")
    e("s_waitcnt lgkmcnt(0)")
    srd(e, 44, 16, XBYTES)
    srd(e, 24, 20, WS_SIZE)
    e("s_cmp_eq_u32 s28, 7")
    e("s_cbranch_scc1 L_p2_w7")
    e(f"s_mul_i32 s36, s29, {VS}")
    e("s_lshl_b32 s37, s28, 7")
    e("s_add_u32 s36, s36, s37")
    if OPT.get("vb", 0): e(f"s_add_u32 s36, s36, {OPT['vb']*0x100000}")
    e("s_lshl_b32 s42, s28, 6")
    e("v_lshl_add_u32 v13, v3, 3, s42")
    e(f"v_mul_u32_u24 v14, {XRS}, v2")
    e(f"v_add_u32 v14, {LDS_XROW}, v14")
    e("v_add_u32 v121, v14, v13")
    e("v_sub_u32 v122, v14, v13")
    e(f"v_add_u32 v123, {WRL}, v13")
    e(f"v_sub_u32 v124, {WRL}, v13")
    T = 182
    for (ad, am, r0) in ((121, 122, T), (123, 124, T+10)):
        for mm in range(2):
            e(f"ds_read_b64 {vr(r0+2*mm,2)}, v{ad} offset:{32*mm}")
            e(f"ds_read_b64 {vr(r0+4+2*mm,2)}, v{am} offset:{888-32*mm}")
            e(f"ds_read_b32 v{r0+8+mm}, v{am} offset:{896-32*mm}")
    e(f"ds_read_u16 v{T+20}, v14 offset:448")
    e(f"v_mov_b32 v125, {WRL}")
    e(f"ds_read_u16 v{T+21}, v125 offset:448")
    e("v_cmp_eq_u32 s[40:41], 0, v13")
    e("s_lshl_b32 s37, s28, 13")
    e("v_lshl_add_u32 v9, v2, 6, s33")
    e("v_cvt_f32_u32 v9, v9")
    e(f"v_mul_f32 v9, {fbits(1.0/2048)}, v9")
    e("v_lshlrev_b32 v8, 3, v3")
    e("v_cvt_f32_u32 v8, v8")
    e("v_mul_f32 v8, v8, v9")
    for j in range(8):
        e(f"v_cos_f32 v{A+j}, v8")
        e(f"v_sin_f32 v{A+8+j}, v8")
        if j < 7:
            e("v_add_f32 v8, v8, v9")
    e("v_lshrrev_b32 v4, 3, v1")
    e("v_mul_u32_u24 v4, 896, v4")
    e("v_lshlrev_b32 v8, 1, v3")
    e("v_and_b32 v8, 2, v8")
    e("v_and_b32 v9, 7, v1")
    e("v_xor_b32 v8, v8, v9")
    e("v_lshl_add_u32 v4, v8, 4, v4")
    e("v_xor_b32 v11, 64, v4")
    for j in range(4):
        e(f"v_cvt_pk_bf16_f32 v{C+j}, v{A+2*j}, v{A+2*j+1}")
        e(f"v_cvt_pk_bf16_f32 v{S+j}, v{A+8+2*j}, v{A+8+2*j+1}")
    e("s_cmp_gt_u32 s32, 32")
    e("s_cselect_b32 s39, 0x80008000, 0")
    e("s_xor_b32 s42, s39, 0x80008000")
    for j in range(4):
        e(f"v_xor_b32 v{F1+j}, s39, v{S+j}")
        e(f"v_xor_b32 v{F3+j}, s42, v{C+j}")
    e("s_cmp_lg_u32 s29, 0")
    e("s_cbranch_scc1 L_p2_nospecial")
    e("s_cmp_eq_u32 s32, 0")
    e("s_cbranch_scc1 L_p2_t0")
    for j in range(4):
        e(f"v_mov_b32 v{F1+j}, v{C+j}")
        e(f"v_mov_b32 v{F3+j}, v{S+j}")
        e(f"v_mov_b32 v{C+j}, 0")
        e(f"v_mov_b32 v{S+j}, 0")
    e("s_branch L_p2_nospecial")
    e("L_p2_t0:")
    for j in range(4):
        e(f"v_mov_b32 v{F1+j}, 0")
        e(f"v_mov_b32 v{F3+j}, 0")
    e("L_p2_nospecial:")
    e("v_lshrrev_b32 v12, 2, v2")
    e("v_lshlrev_b32 v12, 7, v12")
    e("v_lshl_add_u32 v12, v3, 10, v12")
    e("v_bfe_u32 v13, v2, 1, 1")
    e("v_bfe_u32 v14, v2, 3, 1")
    e("v_lshl_add_u32 v13, v14, 1, v13")
    e("v_and_b32 v14, 1, v3")
    e("v_lshl_add_u32 v13, v14, 2, v13")
    e("v_lshl_add_u32 v12, v13, 4, v12")
    e("v_and_b32 v14, 1, v2")
    e("v_lshl_add_u32 v12, v14, 3, v12")
    e("v_add_u32 v12, s37, v12")
    e("v_xor_b32 v126, 32, v12")
    e("v_xor_b32 v118, 64, v12")
    e("v_xor_b32 v119, 0x60, v12")
    e("s_lshl_b32 s54, s28, 11")
    e(f"s_add_u32 s54, s54, {WS_FL1}")
    stamp(e, 1)
    sync1(e, "p", 32, "s54")
    if OPT.get("s1bar", 0): e("s_barrier")
    stamp(e, 2)
    for hf in range(2):
        for bb in range(4):
            e(f"s_add_u32 m0, s37, {(hf*4+bb)*1024}")
            e(f"s_add_u32 s54, s36, {hf*VH + bb*7168}")
            e(f"buffer_load_dwordx4 v{11 if bb & 1 else 4}, s[24:27], s54 offen sc1 lds")
    if OPT.get("fl2", 0):
        e("s_lshl_b32 s54, s28, 3")
        e("s_or_b32 s54, s54, s2")
        e("s_cmp_ge_u32 s54, 8")
        e(f"s_cselect_b32 s55, 0x7ff00000, 0")
        e("s_lshl_b32 s54, s54, 6")
        e(f"s_add_u32 s54, s54, {WS_FL1 + 0x4000}")
        e("v_mov_b32 v8, s55")
        e("s_mov_b64 exec, 1")
        e("buffer_store_dwordx2 v[224:225], v8, s[24:27], s54 offen sc1")
        e("s_mov_b64 exec, -1")
    e("s_lshl_b32 s42, s28, 7")
    e("v_lshl_add_u32 v13, v3, 4, s42")
    e(f"v_mul_u32_u24 v14, {RS}, v2")
    e(f"v_add_u32 v14, {YB}, v14")
    e("v_sub_u32 v15, v14, v13")
    e(f"v_add_u32 v15, {(448-19)*4}, v15")
    e("v_add_u32 v13, v13, v14")
    e(f"v_add_u32 v9, {19*4}, v15")
    e(f"v_add_u32 v8, {224*4}, v14")
    e("v_cndmask_b32 v14, v9, v8, s[40:41]")
    e("s_lshl_b32 s42, s28, 6")
    e(f"s_add_u32 s42, s42, {PA}")
    e(f"v_mul_u32_u24 v127, {PAS}, v2")
    e("v_lshl_add_u32 v127, v3, 4, v127")
    e("v_add_u32 v127, s42, v127")
    e("s_waitcnt lgkmcnt(0)")
    for (dst, r0, sp) in ((XC, T, T+20), (WC, T+10, T+21)):
        for mm in range(2):
            d = dst + 8*mm
            e(f"v_lshlrev_b32 v{d}, 16, v{r0+2*mm}")
            e(f"v_and_b32 v{d+1}, s43, v{r0+2*mm}")
            e(f"v_lshlrev_b32 v{d+2}, 16, v{r0+2*mm+1}")
            e(f"v_and_b32 v{d+3}, s43, v{r0+2*mm+1}")
            if mm == 0:
                e(f"v_cndmask_b32 v{r0+8}, v{r0+8}, v{sp}, s[40:41]")
            e(f"v_lshlrev_b32 v{d+4}, 16, v{r0+8+mm}")
            e(f"v_and_b32 v{d+5}, s43, v{r0+4+2*mm+1}")
            e(f"v_lshlrev_b32 v{d+6}, 16, v{r0+4+2*mm+1}")
            e(f"v_and_b32 v{d+7}, s43, v{r0+4+2*mm}")
    e(f"v_mov_b32 v125, v{XC}")
    for mm in range(2):
        for r in range(4):
            d, m_ = XC+8*mm+r, XC+8*mm+4+r
            e(f"v_add_f32 v{T}, v{d}, v{m_}")
            e(f"v_sub_f32 v{m_}, v{d}, v{m_}")
            e(f"v_mul_f32 v{d}, 0.5, v{T}")
            e(f"v_mul_f32 v{m_}, 0.5, v{m_}")
    wrs = []
    tb = {(0, 0): 12, (0, 1): 126, (1, 0): 118, (1, 1): 119}
    for hf in range(2):
        e(f"s_waitcnt vmcnt({4-4*hf + (1 if OPT.get('fl2', 0) else 0)})")
        if hf == 1: stamp(e, 3)
        order = [(0, 0), (0, 1), (1, 0), (1, 1)]
        for i, (mm, kd) in enumerate(order):
            for io in range(2):
                e(f"ds_read_b64_tr_b16 {vr(A+(hf*4+i)*4+2*io,2)}, v{tb[(mm,kd)]} offset:{hf*4096+io*512}")
        for i, (mm, kd) in enumerate(order):
            e(f"s_waitcnt lgkmcnt({6-2*i})")
            acc = ACC + 8*mm + 4*kd
            c = vr(XC+8*mm+4*kd, 4) if hf == 0 else vr(acc, 4)
            fr = [[C, S], [F1, F3]][hf][kd]
            e(f"v_mfma_f32_16x16x32_bf16 {vr(acc,4)}, {vr(A+(hf*4+i)*4,4)}, {vr(fr,4)}, {c}")
    for mm in range(2):
        E_, O_ = ACC + 8*mm, ACC + 8*mm + 4
        D_ = 128 + 8*mm
        if mm == 0: e("s_nop 3")
        for r in range(4):
            e(f"v_add_f32 v{D_+r}, v{E_+r}, v{O_+r}")
        for r in range(4):
            e(f"v_sub_f32 v{D_+4+r}, v{E_+r}, v{O_+r}")
        if mm == 0:
            e(f"v_cndmask_b32 v{D_}, v{D_}, v125, s[40:41]")
        def wr(mm=mm, D_=D_):
            e(f"ds_write_b128 v13, {vr(D_,4)} offset:{64*mm}")
            o = 16*(1-mm)
            if mm == 0:
                e(f"ds_write_b32 v14, v{D_+4}")
                e(f"ds_write_b32 v15, v{D_+5} offset:{(o+2)*4}")
            else:
                e(f"ds_write2_b32 v15, v{D_+4}, v{D_+5} offset0:{o+3} offset1:{o+2}")
            e(f"ds_write2_b32 v15, v{D_+6}, v{D_+7} offset0:{o+1} offset1:{o}")
        wrs.append(wr)
        for j in range(4):
            h_ = vr(D_+2*j, 2); w_ = vr(WC+8*mm+2*j, 2)
            if mm == 0 and j == 0:
                e(f"v_pk_mul_f32 {vr(SM+2,2)}, {h_}, {h_}")
                e(f"v_pk_mul_f32 {vr(SM+4,2)}, {h_}, {w_}")
            else:
                if mm == 0 and j == 1:
                    e(f"v_pk_add_f32 {vr(SM,2)}, {vr(D_,2)}, {h_}")
                else:
                    e(f"v_pk_add_f32 {vr(SM,2)}, {vr(SM,2)}, {h_}")
                e(f"v_pk_fma_f32 {vr(SM+2,2)}, {h_}, {h_}, {vr(SM+2,2)}")
                e(f"v_pk_fma_f32 {vr(SM+4,2)}, {h_}, {w_}, {vr(SM+4,2)}")
        if mm == 1:
            e(f"v_add_f32 v{T}, v{SM}, v{SM+1}")
            e(f"v_add_f32 v{T+1}, v{SM+2}, v{SM+3}")
            e(f"v_add_f32 v{T+2}, v{SM+4}, v{SM+5}")
            e(f"ds_write_b128 v127, {vr(T,4)}")
    e("s_waitcnt lgkmcnt(0)")
    stamp(e, 4)
    e("s_barrier")
    for w_ in wrs: w_()
    e("s_waitcnt lgkmcnt(0)")
    def hreads():
        for j, o in enumerate((0, 16, 896, 912)):
            e(f"ds_read_b128 {vr(H+4*j,4)}, v7 offset:{o}")
    e("s_branch L_p2_k")

    e("L_p2_w7:")
    e("s_setprio 3")
    e("v_lshlrev_b32 v9, 4, v1")
    e(f"v_add_u32 v9, {WRL}, v9")
    e("ds_read_b128 v[16:19], v9")
    e("s_mov_b32 s52, 0x3f803f80")
    e("v_mov_b32 v123, 0")
    e(f"v_mul_u32_u24 v127, {PAS}, v2")
    e("v_mul_u32_u24 v9, 112, v3")
    e(f"v_add3_u32 v127, v127, v9, 0")
    e(f"v_add_u32 v127, {PA}, v127")
    e("v_lshl_add_u32 v11, v2, 6, s33")
    e("v_sub_u32 v121, 0xfff, v11")
    e("v_lshlrev_b32 v122, 3, v2")
    e(f"v_add_u32 v122, {SC}, v122")
    e("v_lshlrev_b32 v124, 2, v1")
    e(f"s_mov_b32 s38, {fbits(1.0/448)}")
    e("v_cmp_gt_u32 s[40:41], 16, v1")
    e("s_waitcnt lgkmcnt(0)")
    for j in range(4):
        e(f"v_dot2c_f32_bf16 v123, s52, v{16+j}")
    e("s_nop 2")
    for ror in (8, 4, 2, 1):
        e(f"v_add_f32_dpp v123, v123, v123 row_ror:{ror} row_mask:0xf bank_mask:0xf")
        e("s_nop 1")
    for sw in ("16", "32"):
        e("v_mov_b32 v9, v123")
        e("s_nop 1")
        e(f"v_permlane{sw}_swap_b32 v123, v9")
        e("v_add_f32 v123, v123, v9")
    if OPT.get("s1bar", 0): e("s_barrier")
    stamp(e, 4)
    e("s_barrier")
    for i in range(7):
        e(f"ds_read_b128 {vr(16+4*i,4)}, v127 offset:{16*i}")
    for i in range(1, 7):
        e(f"s_waitcnt lgkmcnt({6-i})")
        e(f"v_pk_add_f32 v[16:17], v[16:17], {vr(16+4*i,2)}")
        e(f"v_add_f32 v18, v18, v{18+4*i}")
    for sw in ("16", "32"):
        e("v_mov_b32 v20, v16")
        e("v_mov_b32 v21, v17")
        e("v_mov_b32 v22, v18")
        e(f"v_permlane{sw}_swap_b32 v16, v20")
        e(f"v_permlane{sw}_swap_b32 v17, v21")
        e(f"v_permlane{sw}_swap_b32 v18, v22")
        e("v_pk_add_f32 v[16:17], v[16:17], v[20:21]")
        e("v_add_f32 v18, v18, v22")
    e("v_mul_f32 v8, s38, v16")
    e("v_mul_f32 v9, s38, v17")
    e("v_fma_f32 v9, -v8, v8, v9")
    e("v_max_f32 v9, 0, v9")
    e("v_cvt_pk_bf16_f32 v8, v9, v8")
    e("v_lshlrev_b32 v9, 16, v8")
    e(f"v_add_f32 v9, {fbits(1e-5)}, v9")
    e("v_cvt_pk_bf16_f32 v9, v9, v9")
    e("v_and_b32 v9, s43, v9")
    e("v_sqrt_f32 v9, v9")
    e("v_and_b32 v8, s43, v8")
    e("v_cvt_pk_bf16_f32 v13, v9, v8")
    e("v_lshlrev_b32 v9, 16, v13")
    e("v_rcp_f32 v9, v9")
    e("v_fma_f32 v12, -v8, v123, v18")
    e("v_mul_f32 v12, v12, v9")
    e("v_add_f32 v14, 1.0, v9")
    e("v_cvt_pk_bf16_f32 v12, v12, v12")
    e("v_mul_f32 v15, -v8, v9")
    e("v_ashrrev_i32 v11, 31, v12")
    e("ds_write_b64 v122, v[14:15]")
    e("v_or_b32 v11, 0x80000000, v11")
    e("v_xor_b32 v12, v12, v11")
    e("v_and_or_b32 v12, v12, s43, v121")
    e("v_cndmask_b32 v12, v13, v12, s[40:41]")
    e("s_mov_b32 exec_hi, 0")
    e("buffer_store_dword v12, v124, s[24:27], s53 offen sc1")
    e("s_mov_b32 exec_hi, -1")
    e("s_waitcnt lgkmcnt(0)")
    e("L_p2_k:")
    stamp(e, 5)
    e("s_barrier")
    hreads()
    e("ds_read_b64 v[14:15], v120")
    e("s_waitcnt lgkmcnt(0)")
    for j in range(8):
        e(f"v_pk_fma_f32 {vr(H+2*j,2)}, {vr(H+2*j,2)}, v[14:15], v[14:15] op_sel:[0,0,1] op_sel_hi:[1,0,1]")
        if j % 2 == 1:
            e(f"v_cvt_pk_bf16_f32 v{48+j-1}, v{H+2*j-2}, v{H+2*j-1}")
            e(f"v_cvt_pk_bf16_f32 v{48+j}, v{H+2*j}, v{H+2*j+1}")
        if j == 3:
            e(f"buffer_store_dwordx4 v[48:51], v10, s[44:47], s35 offen sc1")
    e(f"buffer_store_dwordx4 v[52:55], v10, s[44:47], s35 offen offset:448 sc1")
    e("s_waitcnt vmcnt(0)")
    stamp(e, 6)
    e("s_barrier")
    e("s_cmp_lg_u32 s28, 0")
    e("s_cbranch_scc1 L_p2_end")
    e("s_mov_b64 exec, 1")
    e("v_mov_b32 v12, 1")
    e(f"s_add_u32 s53, s53, {WS_FLAG - WS_KEY}")
    e(f"buffer_store_dword v12, off, s[24:27], s53 sc1")
    e("L_p2_end:")
    stamp_flush(e, 1, 24, 7, 28)
    e("s_endpgm")

def ffn(e):
    XS, XSS, ACT, MISC, GB = 0, 1056, 14336, 15360, 16384
    DB = GB + 57344
    A, AD_, ACC = 64, 36, 32
    K = 64
    e("s_sub_u32 s29, s2, 128")
    e("s_and_b32 s37, s29, 7")
    e("s_lshr_b32 s38, s29, 3")
    e("s_mul_i32 s39, s37, 7")
    e("s_add_u32 s39, s39, s38")
    e("s_cmp_eq_u32 s28, 7")
    e("s_cbranch_scc1 L_f_poll")
    e("s_cmp_lt_u32 s28, 4")
    e("s_cbranch_scc1 L_f_comp")
    e("v_lshrrev_b32 v5, 2, v1")
    e("v_and_b32 v6, 3, v1")
    e("v_lshrrev_b32 v7, 4, v1")
    e("v_and_b32 v7, 2, v7")
    e("v_xor_b32 v6, v6, v7")
    e("s_cmp_eq_u32 s28, 5")
    e("s_cselect_b32 s40, 1, 0")
    e("v_xor_b32 v6, s40, v6")
    e("s_cmp_eq_u32 s28, 6")
    e("s_movk_i32 s41, 896")
    e("s_cselect_b32 s41, s41, 3584")
    e("s_cselect_b32 s42, 64, 114688")
    e("s_cselect_b32 s43, 28672, 64")
    e("v_mul_u32_u24 v5, s41, v5")
    e("v_lshl_add_u32 v5, v6, 4, v5")
    e("s_lshl_b32 s44, s41, 4")
    e("v_add_u32 v6, s44, v5")
    e("s_mul_i32 s43, s43, s39")
    e("s_sub_u32 s44, s28, 4")
    e("s_mul_i32 s44, s44, 28672")
    e(f"s_add_u32 s44, s44, {GB}")
    e("s_waitcnt lgkmcnt(0)")
    stamp(e, 1)
    e("s_cmp_eq_u32 s28, 5")
    e("s_cselect_b32 s48, s12, s10")
    e("s_cselect_b32 s49, s13, s11")
    e("s_cmp_eq_u32 s28, 6")
    e("s_cselect_b32 s48, s14, s48")
    e("s_cselect_b32 s49, s15, s49")
    e(f"s_mov_b32 s50, {WBYTES:#x}")
    e("s_mov_b32 s51, 0x20000")
    e("s_add_u32 s45, s44, 28672")
    e("s_barrier")
    if OPT.get("seq", 0):
        e(f"v_mov_b32 v8, {MISC}")
        e("s_sub_u32 s46, s28, 4")
        e("L_f_turn:")
        e("ds_read_b32 v9, v8")
        e("s_waitcnt lgkmcnt(0)")
        e("v_cmp_le_u32 vcc, s46, v9")
        e("s_cbranch_vccnz L_f_dma")
        e("s_sleep 2")
        e("s_branch L_f_turn")
    e("L_f_dma:")
    e("s_mov_b32 m0, s44")
    e("s_add_u32 s44, s44, 2048")
    e("buffer_load_dwordx4 v5, s[48:51], s43 offen lds")
    e("s_add_u32 m0, m0, 1024")
    e("s_nop 0")
    e("buffer_load_dwordx4 v6, s[48:51], s43 offen lds")
    e("s_add_u32 s43, s43, s42")
    e("s_cmp_lt_u32 s44, s45")
    e("s_cbranch_scc1 L_f_dma")
    stamp(e, 2)
    e(f"v_mov_b32 v5, {MISC}")
    e("v_mov_b32 v6, 1")
    e("s_mov_b64 exec, 1")
    e("s_waitcnt vmcnt(0)")
    e("ds_add_u32 v5, v6")
    e("s_waitcnt lgkmcnt(0)")
    if DIAG:
        srd(e, 24, 20, WS_SIZE)
        stamp_flush(e, 1, 24, 3, 28)
    e("s_endpgm")

    e("L_f_comp:")
    e("v_mov_b32 v6, 0")
    e(f"v_mov_b32 v7, {MISC}")
    e("ds_write_b32 v7, v6")
    e("s_waitcnt lgkmcnt(0)")
    stamp(e, 1)
    e("s_barrier")
    srd(e, 24, 20, WS_SIZE)
    e("v_lshrrev_b32 v8, 2, v2")
    e("v_bfe_u32 v9, v2, 1, 1")
    e("v_and_b32 v10, 1, v3")
    e("v_and_b32 v13, 1, v2")
    e("v_lshlrev_b32 v13, 3, v13")
    e("v_lshl_add_u32 v11, v10, 1, v9")
    e("v_xor_b32 v11, s28, v11")
    e("v_lshl_add_u32 v14, v3, 3, v8")
    e("v_lshl_add_u32 v14, v14, 6, v13")
    e("v_lshl_add_u32 v14, v11, 4, v14")
    e("v_mul_u32_u24 v11, 28672, v9")
    e(f"s_movk_i32 s42, {GB}")
    e("v_add3_u32 v14, v14, v11, s42")
    e("v_lshl_add_u32 v8, v10, 3, v8")
    e("v_lshl_add_u32 v15, v8, 6, v13")
    e("s_and_b32 s42, s28, 1")
    e("v_xor_b32 v10, s42, v10")
    e("v_lshl_add_u32 v10, v10, 1, v9")
    e("v_lshl_add_u32 v15, v10, 4, v15")
    e("v_lshrrev_b32 v10, 1, v3")
    e("v_lshl_add_u32 v15, v10, 10, v15")
    e("s_lshr_b32 s42, s28, 1")
    e("s_lshl_b32 s42, s42, 11")
    e(f"s_add_u32 s42, s42, {DB}")
    e("v_add_u32 v15, s42, v15")
    e("v_and_b32 v8, 7, v2")
    e(f"v_mul_u32_u24 v8, {XSS}, v8")
    e("v_lshl_add_u32 v12, v3, 4, v8")
    e("v_cmp_gt_u32 vcc, 8, v2")
    e("v_lshlrev_b32 v6, 4, v2")
    e("v_lshl_add_u32 v6, v3, 7, v6")
    e("v_mov_b32 v8, 0x7ff00000")
    e("v_cndmask_b32 v6, v8, v6, vcc")
    e("s_lshl_b32 s42, s28, 8")
    e(f"s_add_u32 s42, s42, {ACT}")
    e("v_lshl_add_u32 v5, v2, 4, s42")
    e("v_lshl_add_u32 v5, v3, 3, v5")
    e("s_mul_i32 s44, s39, 14336")
    e("s_lshl_b32 s42, s28, 9")
    e("s_add_u32 s44, s44, s42")
    e(f"s_add_u32 s44, s44, {WS_PART}")
    for j in range(1, 4):
        e(f"s_add_u32 s{44+j}, s44, {4096*j}")
    e(f"s_mov_b32 s42, {fbits(-1.4426950408889634)}")
    e("v_and_b32 v11, 7, v2")
    e("v_lshlrev_b32 v11, 2, v11")
    e("L_f_wait:")
    e("s_sleep 2")
    e("ds_read_b32 v8, v7")
    e("s_waitcnt lgkmcnt(0)")
    e("v_cmp_ne_u32 vcc, 3, v8")
    e("s_cbranch_vccnz L_f_wait")
    stamp(e, 2)
    for k in range(14):
        for io in range(2):
            e(f"ds_read_b64_tr_b16 {vr(A+4*k+2*io,2)}, v14 offset:{k*2048+io*256}")
    for i in range(7):
        for io in range(2):
            e(f"ds_read_b64_tr_b16 {vr(AD_+4*i+2*io,2)}, v15 offset:{i*4096+io*256}")
    for r in range(4):
        e(f"v_mov_b32 v{16+r}, 0x3f803f80")
    e("s_waitcnt lgkmcnt(0)")
    for k in range(14):
        e(f"v_mfma_f32_16x16x32_bf16 v[128:131], {vr(A+4*k,4)}, v[16:19], {'0' if k == 0 else 'v[128:131]'}")
    stamp(e, 3)
    e("s_barrier")
    stamp(e, 4)
    BR = [16, 20, 24, 28, 120, 124]
    def rdx(k):
        e(f"ds_read_b128 {vr(BR[k%6],4)}, v12 offset:{XS + k*64}")
    e(f"ds_read_b32 v10, v11 offset:{MISC+64}")
    for k in range(5): rdx(k)
    e("s_waitcnt lgkmcnt(5)")
    e("v_lshlrev_b32 v9, 16, v10")
    e("v_and_b32 v10, 0xffff0000, v10")
    e("v_add_f32 v9, 1.0, v9")
    for r in range(4):
        e(f"v_mul_f32 v{132+r}, -v10, v{128+r}")
    e("v_rcp_f32 v9, v9")
    for k in range(14):
        if k + 5 < 14:
            rdx(k + 5)
        e(f"s_waitcnt lgkmcnt({min(k + 5, 13) - k})")
        c = "v[132:135]" if k == 0 else vr(ACC, 4)
        e(f"v_mfma_f32_16x16x32_bf16 {vr(ACC,4)}, {vr(A+4*k,4)}, {vr(BR[k%6],4)}, {c}")
        if k == 4:
            e("v_mul_f32 v8, s42, v9")
            e("v_mul_f32 v9, v9, v9")
    e("s_nop 7")
    for r in range(4):
        e(f"v_permlane32_swap_b32 v{ACC+r}, v{20+r}")
    for r in range(4):
        e(f"v_mul_f32 v{16+r}, v8, v{ACC+r}")
    for r in range(4):
        e(f"v_exp_f32 v{16+r}, v{16+r}")
    for r in range(4):
        e(f"v_mul_f32 v{ACC+r}, v{ACC+r}, v{20+r}")
    for r in range(4):
        e(f"v_add_f32 v{16+r}, 1.0, v{16+r}")
    for r in range(4):
        e(f"v_rcp_f32 v{16+r}, v{16+r}")
    for r in range(4):
        e(f"v_mul_f32 v{ACC+r}, v{ACC+r}, v9")
    e("s_mov_b32 exec_hi, 0")
    for r in range(4):
        e(f"v_mul_f32 v{ACC+r}, v{ACC+r}, v{16+r}")
    e(f"v_cvt_pk_bf16_f32 v16, v{ACC}, v{ACC+1}")
    e(f"v_cvt_pk_bf16_f32 v17, v{ACC+2}, v{ACC+3}")
    e("ds_write_b64 v5, v[16:17]")
    e("s_mov_b32 exec_hi, -1")
    e("s_waitcnt lgkmcnt(0)")
    stamp(e, 5)
    e("s_barrier")
    e(f"ds_read_b128 v[16:19], v4 offset:{ACT}")
    e("s_waitcnt lgkmcnt(0)")
    for i in range(7):
        e(f"v_mfma_f32_16x16x32_bf16 {vr(A+4*i,4)}, {vr(AD_+4*i,4)}, v[16:19], 0")
    e("s_nop 1")
    for i in range(7):
        e(f"buffer_store_dwordx4 {vr(A+4*i,4)}, v6, s[24:27], s{44+(i>>1)} offen offset:{2048*(i&1)} sc1")
    stamp(e, 6)
    B4 = OPT.get("b4", 4)
    if B4 >= 0:
        e(f"s_waitcnt vmcnt({B4})")
        e("s_barrier")
    stamp_flush(e, 1, 24, 7, 28)
    e("s_endpgm")

    e("L_f_poll:")
    PFL = ["sc1", "sc0 sc1"][OPT.get("pfl", 0)]
    e("s_setprio 3")
    e("v_lshrrev_b32 v4, 2, v1")
    e("v_lshlrev_b32 v4, 7, v4")
    e("v_and_b32 v5, 3, v1")
    e("v_lshl_add_u32 v4, v5, 4, v4")
    e("s_mov_b32 s46, 0")
    e("s_mov_b32 s47, 0")
    e("v_and_b32 v6, 7, v1")
    e("v_lshlrev_b32 v13, 2, v6")
    e("v_cmp_gt_u32 vcc, 56, v1")
    e("v_lshlrev_b32 v5, 4, v1")
    e("v_mov_b32 v6, 0x7ff00000")
    e("v_cndmask_b32 v6, v6, v5, vcc")
    e("v_bfe_u32 v14, v1, 3, 1")
    e("s_lshl_b32 s42, s39, 4")
    e("v_lshl_add_u32 v14, v14, 3, s42")
    e("v_mul_u32_u24 v24, 14336, v3")
    e("v_lshl_add_u32 v24, v2, 4, v24")
    e("v_add_u32 v25, 57344, v24")
    e("v_add_u32 v26, 57344, v25")
    e("v_add_u32 v27, 57344, v26")
    e("s_lshl_b32 s52, s39, 8")
    e(f"s_add_u32 s52, s52, {WS_PART}")
    for j in range(1, 4):
        e(f"s_add_u32 s{52+j}, s52, {4*57344*j}")
    e("v_mov_b32 v8, 0")
    e("v_mov_b32 v9, 0")
    e("v_mov_b32 v10, 0")
    e("v_lshlrev_b32 v7, 12, v1")
    e("v_lshlrev_b32 v19, 7, v1")
    e("s_movk_i32 s44, 896")
    e("s_mov_b32 s45, 0xffff0000")
    e("s_waitcnt lgkmcnt(0)")
    stamp(e, 1)
    srd(e, 24, 20, WS_SIZE)
    srd(e, 48, 16, XBYTES)
    if not OPT.get("b0late", 0): e("s_barrier")
    if OPT.get("sall", 0):
        sync_all(e)
    else:
        e(f"s_mov_b32 s62, {WS_FL1:#x}")
        sync1(e, "f", 8, "s62")
        if OPT.get("fl2", 0):
            e("s_lshl_b32 s62, s37, 6")
            e(f"s_add_u32 s62, s62, {WS_FL1 + 0x4000}")
            sync1(e, "g", 1, "s62")
    if OPT.get("b0late", 0): e("s_barrier")
    for j in range(4):
        e(f"s_mov_b32 s{58+j}, {WS_KEY+4096*j:#x}")
    e(f"s_mov_b32 s56, {WS_FLAG:#x}")
    e(f"s_mov_b32 s57, {WS_FLAG+8192:#x}")
    e("s_mov_b64 exec, 0xf")
    e("L_f_p0:")
    e("s_sleep 2")
    e("buffer_load_dword v11, v7, s[24:27], s58 offen offset:3968 " + PFL)
    e("s_add_u32 s47, s47, 1")
    e("s_waitcnt vmcnt(0)")
    e("v_cmp_ne_u32 vcc, 0, v11")
    e("s_cbranch_vccnz L_f_p1")
    e("s_cmp_lt_u32 s47, 0x40000")
    e("s_cbranch_scc1 L_f_p0")
    e("L_f_p1:")
    e("s_mov_b64 exec, -1")
    e("L_f_pk:")
    for i in range(8):
        e(f"buffer_load_dwordx4 {vr(K+4*i,4)}, v4, s[24:27], s{58+(i>>1)} offen offset:{(i&1)*2048} " + PFL)
    e("s_add_u32 s47, s47, 1")
    e(".p2align 3")
    for i in range(8):
        e(f"s_waitcnt vmcnt({7-i})")
        e("s_nop 0")
        k0 = K + 4*i
        if i == 0:
            e(f"v_max3_u32 v8, v{k0}, v{k0+1}, v{k0+2}")
            e(f"v_med3_u32 v9, v{k0}, v{k0+1}, v{k0+2}")
            e(f"v_min3_u32 v10, v{k0}, v{k0+1}, v{k0+2}")
            e(f"v_min3_u32 v11, v10, v{k0+3}, v{k0+3}")
            rest = [k0+3]
        else:
            e(f"v_min3_u32 v11, v11, v{k0}, v{k0+1}")
            e(f"v_min3_u32 v11, v11, v{k0+2}, v{k0+3}")
            rest = [k0, k0+1, k0+2, k0+3]
        for k in rest:
            e(f"v_med3_u32 v10, v9, v10, v{k}")
            e(f"v_med3_u32 v9, v8, v9, v{k}")
            e(f"v_max_u32_e64 v8, v8, v{k}")
    e("v_cmp_eq_u32 vcc, 0, v11")
    e("s_cbranch_vccz L_f_keys")
    e("s_cmp_lt_u32 s47, 0x40000")
    e("s_cbranch_scc1 L_f_pk")
    e("L_f_keys:")
    stamp(e, 2)
    FR = OPT.get("fr", 2)
    def flagloads():
        e("buffer_load_dword v28, v19, s[24:27], s56 offen sc1")
        e("buffer_load_dword v29, v19, s[24:27], s57 offen sc1")
    side = []
    WARM = OPT.get("warm", 0)
    flagloads()
    if WARM:
        side += ["v_max_u32_dpp v21, v8, v8 quad_perm:[1,0,3,2] row_mask:0xf bank_mask:0xf\nv_not_b32 v22, v8",
                 "v_max_u32_dpp v21, v21, v21 quad_perm:[2,3,0,1] row_mask:0xf bank_mask:0xf\nv_not_b32 v23, v9",
                 "v_max_u32_dpp v21, v21, v21 row_half_mirror row_mask:0xf bank_mask:0xf\nv_and_b32 v22, 0x7ff, v22",
                 "v_min_u32_dpp v21, v21, v21 row_mirror row_mask:0xf bank_mask:0xf\nv_and_b32 v23, 0x7ff, v23",
                 "v_min_u32_dpp v21, v21, v21 row_bcast:15 row_mask:0xa bank_mask:0xf\nv_mul_u32_u24 v22, s44, v22",
                 "v_min_u32_dpp v21, v21, v21 row_bcast:31 row_mask:0xc bank_mask:0xf\nv_mul_u32_u24 v23, s44, v23",
                 "v_readlane_b32 s43, v21, 63\nv_mov_b32 v20, 0x7ff00000",
                 "v_cmp_le_u32 s[62:63], s43, v30\nv_cmp_le_u32 s[40:41], s43, v31",
                 "s_nop 0\nv_cndmask_b32 v22, v20, v22, s[62:63]",
                 "v_cndmask_b32 v23, v20, v23, s[40:41]\nbuffer_load_dword v17, v22, s[48:51], 0 offen sc1"]
        tl = [f"buffer_load_dword v17, v22, s[48:51], 0 offen offset:{128*j} sc1" for j in range(1, 7)] + \
             [f"buffer_load_dword v16, v23, s[48:51], 0 offen offset:{128*j} sc1" for j in range(7)]
        while tl:
            side.append("\n".join(tl[:3])); tl = tl[3:]
        e("v_mov_b32 v30, v8")
        e("v_mov_b32 v31, v9")
    for rd in range(8):
        for si, st in enumerate(DPP6):
            if si == 0:
                e(f"v_max_u32_dpp v11, v8, v8 {st} bank_mask:0xf bound_ctrl:0")
            else:
                e(f"v_max_u32_dpp v11, v11, v11 {st} bank_mask:0xf")
            if si < 5:
                if side:
                    x = side.pop(0)
                    e(x)
                    if "\n" not in x: e("s_nop 0")
                elif si == 0 and rd > 0:
                    e(f"s_andn2_b32 s{83+rd}, 0x7ff, s42")
                    e(f"s_mul_i32 s{83+rd}, s{83+rd}, 896")
                else:
                    e("s_nop 1")
        e("s_nop 0")
        e("v_readlane_b32 s42, v11, 63")
        e("s_nop 1")
        e("v_cmp_eq_u32 vcc, s42, v8")
        e(f"v_writelane_b32 v12, s42, {rd}")
        e("s_nop 0")
        e("v_cndmask_b32 v8, v8, v9, vcc")
        e("v_cndmask_b32 v9, v9, v10, vcc")
        e("v_cndmask_b32 v10, v10, 0, vcc")
    e("v_cmp_eq_u32 vcc, 0, v8")
    e("s_andn2_b32 s91, 0x7ff, s42")
    e("s_mul_i32 s91, s91, 896")
    e("s_cbranch_vccz L_f_topdone")
    e("s_mov_b32 m0, 0")
    e("s_mov_b32 s42, -1")
    e("L_f_slow:")
    e(f"v_sub_u32 v8, s42, v{K}")
    e(f"v_sub_u32 v9, s42, v{K+1}")
    e("v_min_u32 v8, v8, v9")
    for i in range(2, 32, 2):
        e(f"v_sub_u32 v9, s42, v{K+i}")
        e(f"v_sub_u32 v10, s42, v{K+i+1}")
        e("v_min3_u32 v8, v8, v9, v10")
    for st in DPP6:
        e("s_nop 1")
        e(f"v_min_u32_dpp v8, v8, v8 {st} bank_mask:0xf")
    e("s_nop 0")
    e("v_readlane_b32 s47, v8, 63")
    e("s_nop 3")
    e("s_sub_u32 s42, s42, s47")
    e("v_writelane_b32 v12, s42, m0")
    e("s_sub_u32 s42, s42, 1")
    e("s_add_u32 m0, m0, 1")
    e("s_cmp_lt_u32 m0, 8")
    e("s_cbranch_scc1 L_f_slow")
    for j in range(8):
        e(f"v_readlane_b32 s{84+j}, v12, {j}")
    e("s_nop 3")
    for j in range(8):
        e(f"s_andn2_b32 s{84+j}, 0x7ff, s{84+j}")
        e(f"s_mul_i32 s{84+j}, s{84+j}, 896")
    e("L_f_topdone:")
    stamp(e, 3)
    e(f"s_mov_b32 m0, {XS}")
    e("ds_bpermute_b32 v15, v13, v12")
    e("s_mov_b32 s47, 0")
    e("s_waitcnt vmcnt(0)")
    e("L_f_gather:")
    fill = ["s_nop 0", "s_nop 0", "s_nop 0", "s_waitcnt lgkmcnt(0)\nv_not_b32 v9, v15\nv_and_b32 v9, 0x7ff, v9",
            "v_and_b32 v21, 63, v9\nv_and_b32 v22, 31, v9\nv_lshrrev_b32 v23, 10, v9",
            "v_lshl_add_u32 v22, v23, 5, v22\nv_lshrrev_b32 v23, 5, v21\nv_lshl_add_u32 v10, v23, 6, v22",
            "v_bfe_u32 v23, v9, 6, 4\nv_lshlrev_b32 v10, 7, v10\nv_lshl_add_u32 v10, v23, 2, v10"]
    for j in range(8):
        e(f"buffer_load_dwordx4 v6, s[48:51], s{84+j} offen sc1 lds")
        if j < 7:
            e(f"s_mov_b32 m0, {XS + XSS*(j+1)}")
            e(fill[j])
    e("buffer_load_dword v11, v10, s[24:27], s58 offen offset:64 sc1")
    e("v_mad_u32_u24 v20, v9, s44, v14")
    e("buffer_load_dwordx2 v[16:17], v20, s[48:51], 0 offen sc1")
    e("v_lshlrev_b32 v22, 2, v22")
    e("ds_bpermute_b32 v23, v22, v28")
    e("ds_bpermute_b32 v22, v22, v29")
    e("v_cmp_gt_u32 vcc, 32, v21")
    e("s_add_u32 s47, s47, 1")
    e("s_waitcnt lgkmcnt(0)")
    e("v_cndmask_b32 v22, v22, v23, vcc")
    e("v_cmp_eq_u32 vcc, 0, v22")
    e("s_cbranch_vccz L_f_flagok")
    flagloads()
    e(f"s_mov_b32 m0, {XS}")
    e("s_waitcnt vmcnt(0)")
    e("s_cmp_lt_u32 s47, 0x40000")
    e("s_cbranch_scc1 L_f_gather")
    e("L_f_flagok:")
    e("v_lshlrev_b32 v30, 2, v1")
    e("s_waitcnt vmcnt(1)")
    e("s_mov_b64 exec, 0xff")
    e(f"ds_write_b32 v30, v11 offset:{MISC+64}")
    e("s_mov_b64 exec, -1")
    e("s_waitcnt lgkmcnt(0)")
    stamp(e, 4)
    e("s_barrier")
    e("v_ashrrev_i32 v9, 31, v15")
    e("v_not_b32 v9, v9")
    e("v_or_b32 v9, 0x80000000, v9")
    e("v_xor_b32 v15, v15, v9")
    e("v_and_b32 v15, s45, v15")
    e(f"v_mul_f32 v18, {fbits(-1.4426950408889634)}, v15")
    e("v_exp_f32 v18, v18")
    e("v_mov_b32 v10, 1.0")
    e("v_add_f32 v18, 1.0, v18")
    e("v_rcp_f32 v18, v18")
    e("s_mov_b32 s47, 0")
    e("v_cvt_pk_bf16_f32 v18, v18, v18")
    e("v_and_b32 v18, s45, v18")
    e("v_mov_b32 v14, v20")
    e("s_waitcnt vmcnt(0)")
    e("v_lshlrev_b32 v20, 16, v16")
    e("v_and_b32 v21, s45, v16")
    e("v_lshlrev_b32 v22, 16, v17")
    e("v_and_b32 v23, s45, v17")
    e("s_barrier")
    if B4 >= 0:
        e("s_barrier")
    stamp(e, 5)
    P = 64
    e("L_f_pp:")
    for i in range(14):
        e(f"buffer_load_dwordx4 {vr(P+4*i,4)}, v{24+(i&3)}, s[24:27], s{52+(i>>2)} offen sc1")
    e("s_add_u32 s47, s47, 1")
    e("s_waitcnt vmcnt(12)")
    e(f"v_pk_add_f32 v[28:29], {vr(P,2)}, {vr(P+4,2)}")
    e(f"v_pk_add_f32 v[30:31], {vr(P+2,2)}, {vr(P+6,2)}")
    for i in range(2, 14):
        e(f"s_waitcnt vmcnt({13-i})")
        e(f"v_pk_add_f32 v[28:29], v[28:29], {vr(P+4*i,2)}")
        e(f"v_pk_add_f32 v[30:31], v[30:31], {vr(P+4*i+2,2)}")
    e("v_add_f32 v8, v28, v29")
    e("v_add_f32 v9, v30, v31")
    e("v_cmp_u_f32 vcc, v8, v9")
    e("s_cbranch_vccz L_f_got")
    e(f"v_max3_u32 v8, v{P}, v{P+1}, v{P+2}")
    for i in range(3, 55, 2):
        e(f"v_max3_u32 v8, v8, v{P+i}, v{P+i+1}")
    e(f"v_max_u32 v8, v8, v{P+55}")
    e("v_cmp_eq_u32 vcc, -1, v8")
    e("s_cbranch_vccz L_f_got")
    e("s_cmp_lt_u32 s47, 0x40000")
    e("s_cbranch_scc1 L_f_pp")
    e("L_f_got:")
    stamp(e, 6)
    for sw in ("16", "32"):
        for r in range(4):
            e(f"v_mov_b32 v{32+r}, v{28+r}")
        for r in range(4):
            e(f"v_permlane{sw}_swap_b32 v{28+r}, v{32+r}")
        e("v_pk_add_f32 v[28:29], v[28:29], v[32:33]")
        e("v_pk_add_f32 v[30:31], v[30:31], v[34:35]")
    for r in range(4):
        e(f"v_fma_f32 v{24+r}, v{28+r}, v18, v{20+r}")
    e("v_cvt_pk_bf16_f32 v16, v24, v25")
    e("v_cvt_pk_bf16_f32 v17, v26, v27")
    e("s_mov_b64 exec, 0xffff")
    e("buffer_store_dwordx2 v[16:17], v14, s[48:51], 0 offen" + (" sc1" if OPT.get("fsc1", 1) else ""))
    stamp_flush(e, 1, 24, 7, 28)

if __name__ == "__main__":
    for a in sys.argv[2:]:
        if a == "diag":
            DIAG = True; gen.DIAG = True
        else:
            k, v = a.split("=")
            OPT[k] = int(v)
    VH = 28672 + OPT.get("vpad", 256); VS = OPT.get("vs", 2*VH)
    build([ka], sys.argv[1])
    if not OPT.get("aslist", 0):
        t = open(sys.argv[1]).read().replace("; @launch kernel=" + NAME + "_kernel grid", "; @launch grid")
        open(sys.argv[1], "w").write(t)
```

```python
import struct, sys
from gen import E, fbits, vr, ar, srd, header, build, NAME
import gen

WS_V    = 0x000000
WS_KEY  = 0x300000
WS_FLAG = 0x304000
WS_PART = 0x308000
WS_FL1  = 0x3E0000
WS_SIZE = 0x10000000
XBYTES  = 2048*896
WBYTES  = 448*1792*2
WS_DIAG = 0x800000
LDS_XROW = 140288
XRS = 1040
VH = 28672
VS = 57344
DIAG = False
OPT = {}
DPP6 = ["row_shr:1 row_mask:0xf", "row_shr:2 row_mask:0xf", "row_shr:4 row_mask:0xf", "row_shr:8 row_mask:0xf",
        "row_bcast:15 row_mask:0xa", "row_bcast:31 row_mask:0xc"]

def stamp(e, i):
    if DIAG:
        e(f"s_mem{'time' if OPT.get('cyc', 0) and i in (4, 5) else 'realtime'} s[{64+2*i}:{65+2*i}]")
        e("s_waitcnt lgkmcnt(0)")
def stamp_flush(e, kid, srdreg, nst, wavereg):
    if DIAG:
        e("s_mov_b64 exec, -1")
        e(f"s_memrealtime s[{64+2*nst}:{65+2*nst}]")
        e("s_waitcnt lgkmcnt(0)")
        for i in range(nst+1):
            e(f"v_writelane_b32 v230, s{64+2*i}, {i}")
        e(f"s_lshl_b32 s90, s2, 3")
        e(f"s_add_u32 s90, s90, s{wavereg}")
        e(f"s_lshl_b32 s90, s90, 6")
        e(f"s_add_u32 s90, s90, {WS_DIAG + kid*0x40000}")
        e("v_mbcnt_lo_u32_b32 v231, -1, 0")
        e("v_lshlrev_b32 v231, 2, v231")
        e("s_mov_b32 exec_lo, 0xffff")
        e("s_mov_b32 exec_hi, 0")
        e(f"buffer_store_dword v230, v231, s[{srdreg}:{srdreg+3}], s90 offen")
        e("s_mov_b64 exec, -1")

class Lds:
    def __init__(self, e):
        self.e = e; self.q = []
    def issue(self, tag, ins):
        self.e(ins); self.q.append(tag)
    def need(self, tag):
        if tag not in self.q: return
        last = max(i for i, t in enumerate(self.q) if t == tag)
        n = len(self.q) - 1 - last
        assert n <= 15, n
        self.e(f"s_waitcnt lgkmcnt({n})")
        self.q = self.q[last+1:]

def tagcheck(e, u):
    e("s_mov_b32 s63, 0")
    e(f"L_tag{u}:")
    e("v_cmp_ne_u32 vcc, 0, v224")
    e(f"s_cbranch_vccnz L_tagok{u}")
    if u != "a": srd(e, 56, 18, 256)
    e("buffer_load_dwordx2 v[224:225], off, s[56:59], 0 sc1")
    e("s_add_u32 s63, s63, 1")
    e("s_waitcnt vmcnt(0)")
    e("s_cmp_lt_u32 s63, 0x40000")
    e(f"s_cbranch_scc1 L_tag{u}")
    e(f"L_tagok{u}:")

def tables(e):
    import numpy as np
    def bf(x):
        u = np.ascontiguousarray(x, dtype=np.float32).view(np.uint32)
        return ((u + 0x7FFF + ((u >> 16) & 1)) >> 16).astype(np.uint32)
    d = np.arange(448)
    cs = np.zeros((7, 16, 4), np.float32)
    for sl in range(7):
        for i in range(16):
            for n in range(4):
                p = 64*sl + 32*(n >> 1) + 8*(i >> 2) + 4*(n & 1) + (i & 3)
                es = 16*(p >> 5) + (p & 15); kind = (p >> 4) & 1
                if p == 0: es = 224
                v = np.cos(2*np.pi*(((es*d) % 448)/448 + 0.25*kind))
                cs[sl, i, n] = (bf(v) << 16).view(np.float32).astype(np.float64).sum()
    R = np.zeros((4, 2, 64, 8), np.uint32)
    for w in range(4):
        for k2 in range(2):
            for l in range(64):
                j = 16*(w & 1) + (l & 15); ph = 0.25*(w >> 1)
                if w == 2 and j == 0: j, ph = 32, 0.0
                s1 = 32*k2 + 8*(l >> 4) + np.arange(8)
                R[w, k2, l] = bf(np.cos(2*np.pi*(((j*s1) % 64)/64 + ph)).round(12))
    Rw = (R[..., 0::2] | (R[..., 1::2] << 16)).reshape(-1)
    e(".p2align 7")
    e(".type fnet_tables,@object")
    e("fnet_tables:")
    words = list(Rw) + list(cs.reshape(-1).view(np.uint32))
    for i in range(0, len(words), 8):
        e(".long " + ", ".join("0x%08x" % int(x) for x in words[i:i+8]))
    e(f".size fnet_tables, {4*len(words)}")

def touch_setup(e, nch):
    e(f"s_cmp_lt_u32 s42, {nch}")
    e(f"s_cselect_b32 s38, {WBYTES:#x}, 0")
    e("s_cmp_ge_u32 s42, 196")
    e("s_cselect_b32 s36, s48, s46")
    e("s_cselect_b32 s37, s49, s47")
    e("s_cselect_b32 s34, 196, 0")
    e("s_cmp_ge_u32 s42, 392")
    e("s_cselect_b32 s36, s50, s36")
    e("s_cselect_b32 s37, s51, s37")
    e("s_cselect_b32 s34, 392, s34")
    e("s_sub_u32 s42, s42, s34")
    e("s_lshl_b32 s42, s42, 13")
    e("s_mov_b32 s39, 0x20000")
    e("v_lshlrev_b32 v216, 7, v1")
    e("v_add_u32 v216, s42, v216")

def xtouch(e, u, unit, gp, dst):
    e("s_and_b32 s30, s2, 7")
    e(f"s_cmp_ge_u32 s{unit}, 56")
    e(f"s_cbranch_scc1 L_xt_d{u}")
    e(f"s_cmp_ge_u32 s{unit}, 28")
    e("s_cselect_b32 s31, 28, 0")
    e(f"s_cselect_b32 s24, s{gp+2}, s{gp}")
    e(f"s_cselect_b32 s25, s{gp+3}, s{gp+1}")
    e(f"s_sub_u32 s29, s{unit}, s31")
    e("s_mul_i32 s29, s29, 57344")
    e("s_mul_i32 s30, s30, 448")
    e("s_and_b32 s30, s30, 0xffffff80")
    e("s_add_u32 s29, s29, s30")
    e("v_lshrrev_b32 v8, 2, v1")
    e("v_mul_u32_u24 v8, 3584, v8")
    e("v_and_b32 v9, 3, v1")
    e("v_lshl_add_u32 v8, v9, 7, v8")
    e(f"s_branch L_xt_go{u}")
    e(f"L_xt_d{u}:")
    e(f"s_mov_b32 s24, s{gp+4}")
    e(f"s_mov_b32 s25, s{gp+5}")
    e(f"s_sub_u32 s29, s{unit}, 56")
    e("s_lshl_b32 s29, s29, 13")
    e(f"s_mul_i32 s30, s30, {224*896}")
    e("s_add_u32 s29, s29, s30")
    e(f"s_cmp_ge_u32 s{unit}, 81")
    e("s_cselect_b32 s29, 0x7ff00000, s29")
    e("v_lshlrev_b32 v8, 7, v1")
    e(f"L_xt_go{u}:")
    e("v_add_u32 v8, s29, v8")
    e(f"s_mov_b32 s26, {WBYTES:#x}")
    e("s_mov_b32 s27, 0x20000")
    e(f"buffer_load_dword v{dst}, v8, s[24:27], 0 offen")

def ka(e):
    header(e, NAME + "_kernel")
    X, ACC, CUR, PRV, PK, RF, BB = 64, 32, 16, 24, 48, 56, 120
    SUM, GRM = 32, 36
    LDS_X, LDS_Z = 57344, 114688
    LDS_R = LDS_Z + 8192
    LDS_ST = LDS_R + 8192
    LDS_CS = LDS_ST + 512
    LDS_TB = LDS_CS + 512
    LDS_XR = LDS_XROW
    assert LDS_TB + 8192 == LDS_XROW
    e("s_cmp_ge_u32 s2, 256")
    e("s_cbranch_scc1 L_ka_end")
    stamp(e, 0)
    e("s_load_dwordx2 s[4:5], s[0:1], 0")
    e("s_getpc_b64 s[92:93]")
    e("L_ka_pc:")
    e(f"s_sub_u32 s92, s92, L_ka_pc-{NAME}_kernel")
    e("s_subb_u32 s93, s93, 0")
    e(f"s_mov_b32 s94, L_code_end-{NAME}_kernel")
    e("s_mov_b32 s95, 0x20000")
    e(f"s_cmp_ge_u32 s2, {OPT.get('cwn', 16)}")
    e("s_cbranch_scc1 L_ka_nocw")
    e("v_lshlrev_b32 v4, 7, v0")
    e("buffer_load_dword v227, v4, s[92:95], 0 offen")
    e("L_ka_nocw:")
    e("s_load_dwordx2 s[6:7], s[0:1], 96")
    e("s_load_dwordx8 s[44:51], s[0:1], 48")
    e("s_load_dwordx2 s[60:61], s[0:1], 88")
    e("v_lshrrev_b32 v1, 6, v0")
    e("v_and_b32 v2, 15, v0")
    e("v_readfirstlane_b32 s43, v1")
    e("v_bfe_u32 v3, v0, 4, 2")
    e("v_and_b32 v1, 63, v0")
    e("s_cmp_ge_u32 s2, 224")
    e("s_cbranch_scc1 L_ka_spare")
    e("s_and_b32 s16, s43, 3")
    e("s_and_b32 s20, s2, 31")
    e("s_lshr_b32 s19, s2, 5")
    e("s_lshr_b32 s21, s16, 1")
    e("s_and_b32 s22, s16, 1")
    e("s_mul_i32 s29, s16, 14336")
    e(f"s_add_u32 s41, s29, {LDS_X}")
    e("s_mov_b32 s28, 0x3f803f80")
    e("s_cmp_lt_u32 s43, 4")
    e("s_cbranch_scc1 L_ka_main")
    def common_addr():
        e("v_lshlrev_b32 v11, 4, v1")
        e("v_and_b32 v12, 6, v2")
        e("v_xor_b32 v12, v12, v3")
        e("v_and_b32 v14, 7, v2")
        e("v_lshlrev_b32 v14, 7, v14")
        e("v_lshl_add_u32 v14, v12, 4, v14")
        e("v_lshrrev_b32 v12, 3, v2")
        e("v_lshl_add_u32 v14, v12, 10, v14")
        e("v_add_u32 v14, s41, v14")
        e("v_xor_b32 v15, 64, v14")
        e("v_lshrrev_b32 v12, 2, v1")
        e("v_and_b32 v8, 3, v1")
        e("v_bfe_u32 v10, v1, 3, 2")
        e("v_xor_b32 v10, v10, v8")
        e("v_lshlrev_b32 v10, 4, v10")
        e("v_lshl_add_u32 v10, v12, 6, v10")
        e("s_lshl_b32 s24, s43, 10")
        e(f"s_add_u32 s24, s24, {LDS_TB}")
        e("v_add_u32 v10, s24, v10")
        e("v_bfe_u32 v12, v2, 1, 2")
        e("v_xor_b32 v12, v12, v3")
        e("v_lshlrev_b32 v12, 4, v12")
        e("v_lshl_add_u32 v12, v2, 6, v12")
        e("v_add_u32 v8, s24, v12")
        e("s_lshl_b32 s24, s16, 11")
        e(f"s_add_u32 s24, s24, {LDS_R}")
        e("v_add_u32 v52, s24, v11")
    def vaddr():
        e("v_lshrrev_b32 v53, 2, v1")
        e(f"v_mul_u32_u24 v53, {VS}, v53")
        e("v_and_b32 v54, 3, v1")
        e("v_lshl_add_u32 v53, v54, 4, v53")
        e(f"s_mul_i32 s24, s22, {16*VS}")
        e(f"s_mul_i32 s25, s21, {VH}")
        e("s_add_u32 s24, s24, s25")
        e("s_lshl_b32 s25, s19, 7")
        e("s_add_u32 s24, s24, s25")
        e("s_mul_i32 s25, s20, 896")
        e("s_add_u32 s30, s24, s25")
    def pubflag():
        e("s_cmp_lg_u32 s43, 4")
        e("s_cbranch_scc1 L_ka_noflag")
        tagcheck(e, "a")
        e("s_lshl_b32 s24, s2, 6")
        e(f"s_add_u32 s24, s24, {WS_FL1}")
        e("s_mov_b64 exec, 1")
        e("buffer_store_dwordx2 v[224:225], off, s[12:15], s24 sc1")
        e("s_mov_b64 exec, -1")
        e("L_ka_noflag:")
        if OPT.get("pfm", 3) == 2: e("buffer_load_dword v219, v216, s[36:39], 0 offen")
    def gemm2(hh):
        e(f"v_add_u32 v54, {LDS_Z + hh*4096}, v11")
        if not OPT.get("flc", 0): e("s_waitcnt vmcnt(0)")
        e("s_barrier")
        for j in range(4):
            e(f"ds_read_b128 {vr(X+4*j,4)}, v54 offset:{j*1024}")
        if hh and not OPT.get("flc", 0): pubflag()
        for n in range(2):
            e(f"s_waitcnt lgkmcnt({2-2*n})")
            e(f"v_mfma_f32_16x16x32_bf16 {vr(40+4*n,4)}, {vr(X+8*n,4)}, {vr(RF,4)}, 0")
            e(f"v_mfma_f32_16x16x32_bf16 {vr(40+4*n,4)}, {vr(X+8*n+4,4)}, {vr(RF+4,4)}, {vr(40+4*n,4)}")
        e("s_nop 4")
        e("v_cvt_pk_bf16_f32 v16, v40, v41")
        e("v_cvt_pk_bf16_f32 v17, v42, v43")
        e("s_nop 0")
        e("v_cvt_pk_bf16_f32 v18, v44, v45")
        e("v_cvt_pk_bf16_f32 v19, v46, v47")
        e("ds_write_b128 v8, v[16:19]")
        e("s_waitcnt lgkmcnt(0)")
        e("ds_read_b128 v[20:23], v10")
        e("s_waitcnt lgkmcnt(0)")
        e(f"buffer_store_dwordx4 v[20:23], v53, s[12:15], s30 offen offset:{64*hh} sc1")
        stamp(e, 7)
        e("v_lshlrev_b32 v226, 6, v1")
        stamp(e, 8)
        e("s_barrier")
        stamp_flush(e, 0, 12, 9, 43)
        e("s_branch L_kb_entry")

    e("s_setprio 2")
    e("v_lshrrev_b32 v4, 3, v1")
    e("v_and_b32 v5, 7, v1")
    e("v_and_b32 v6, 6, v4")
    e("v_xor_b32 v5, v5, v6")
    e("v_lshrrev_b32 v6, 2, v4")
    e("v_and_b32 v4, 3, v4")
    e("v_lshl_add_u32 v6, v6, 3, v4")
    e("v_mul_u32_u24 v6, 28672, v6")
    e("v_lshl_add_u32 v6, v5, 4, v6")
    e(f"v_add_u32 v13, {16*28672}, v6")
    e("s_lshl_b32 s23, s21, 10")
    e("s_lshl_b32 s24, s22, 7")
    e("s_add_u32 s23, s23, s24")
    e("s_add_u32 s23, s23, s20")
    e("s_mul_i32 s23, s23, 896")
    e("s_lshl_b32 s31, s19, 7")
    e("s_add_u32 s32, s23, 896")
    e("s_add_u32 s31, s31, s23")
    e("s_waitcnt lgkmcnt(0)")
    stamp(e, 1)
    srd(e, 8, 4, XBYTES)
    XNT = " nt" if OPT.get("xnt", 1) else ""
    def xpair(c):
        e(f"s_add_u32 m0, s41, {c*2048}")
        e("s_add_u32 s33, s31, 128")
        e(f"buffer_load_dwordx4 v6, s[8:11], s31 offen{XNT} lds")
        e(f"s_add_u32 m0, s41, {c*2048+1024}")
        e("s_cmp_eq_u32 s33, s32")
        e(f"buffer_load_dwordx4 v13, s[8:11], s31 offen{XNT} lds")
        e("s_cselect_b32 s31, s23, s33")
    NF = OPT.get("nf", 4)
    for c in range(NF): xpair(c)
    def helper_rest():
        e("s_setprio 0")
        srd(e, 12, 6, WS_SIZE)
        e("s_mov_b32 s56, s60")
        e("s_mov_b32 s57, s61")
        e("s_movk_i32 s58, 256")
        e("s_mov_b32 s59, 0x20000")
        e("s_or_b32 s24, s2, s16")
        e("s_cmp_lg_u32 s24, 0")
        e("s_cbranch_scc1 L_ka_notag")
        e("s_memrealtime s[24:25]")
        e("s_waitcnt lgkmcnt(0)")
        e("s_or_b32 s24, s24, 1")
        e("v_mov_b32 v44, s24")
        e("v_mov_b32 v45, s25")
        e("s_mov_b64 exec, 1")
        e("buffer_store_dwordx2 v[44:45], off, s[56:59], 0 sc1")
        e("s_mov_b64 exec, -1")
        e("L_ka_notag:")
        common_addr()
        vaddr()
        for j in range(4):
            e(f"v_mov_b32 v{48+j}, s28")
        e(f"s_mov_b32 s24, {fbits(1.0/448)}")
        e(f"s_mov_b32 s26, {fbits(1e-5)}")
        e(f"s_mov_b32 s27, 0xffff0000")
        vq = [c for c in range(NF) for h in range(2)]
        def vwait(c):
            last = max(i for i, t in enumerate(vq) if t == c)
            e(f"s_waitcnt vmcnt({len(vq)-1-last})")
            del vq[:last+1]
        PFM = OPT.get("pfm", 3)
        if PFM in (1, 2):
            e("s_mul_i32 s42, s16, 224")
            e("s_add_u32 s42, s42, s2")
            touch_setup(e, 392 if PFM == 1 else 588)
        e("s_bfe_u32 s17, s2, 0x10006")
        e("s_lshl_b32 s17, s17, 5")
        e("s_add_u32 s17, s17, s20")
        e("s_bfe_u32 s18, s2, 0x10005")
        e("s_lshl_b32 s18, s18, 10")
        e("s_add_u32 s18, s18, s17")
        e("s_lshl_b32 s17, s16, 8")
        e("s_add_u32 s18, s18, s17")
        e("s_mul_i32 s18, s18, 896")
        e(f"s_mul_i32 s17, s16, {4*XRS}")
        e(f"s_add_u32 s17, s17, {LDS_XR}")
        e("v_cmp_gt_u32 vcc, 56, v1")
        e("v_mov_b32 v218, 0x7ff00000")
        e("s_nop 0")
        e("v_cndmask_b32 v218, v218, v11, vcc")
        e("v_and_b32 v4, 3, v2")
        e("v_lshrrev_b32 v5, 2, v2")
        e("v_cmp_eq_u32 s[52:53], 1, v4")
        e("v_cmp_eq_u32 s[54:55], 2, v4")
        e("v_cmp_eq_u32 s[62:63], 3, v4")
        e("v_cmp_eq_u32 s[60:61], v5, v3")
        e("s_lshl_b32 s25, s16, 7")
        e(f"s_add_u32 s25, s25, {LDS_ST}")
        e("v_lshl_add_u32 v4, v2, 2, s25")
        e("s_lshl_b32 s40, s16, 11")
        stamp(e, 2)
        e(f"s_setprio {OPT.get('csp', 2)}")
        e("s_barrier")
        nx = [NF]
        def land(c):
            vwait(c)
            if nx[0] < 7:
                xpair(nx[0]); vq.extend([nx[0]]*2); nx[0] += 1
        def stat(k):
            c = "0" if k == 0 else vr(GRM, 4)
            e(f"v_mfma_f32_16x16x32_bf16 {vr(GRM,4)}, {vr(X+4*k,4)}, {vr(X+4*k,4)}, {c}")
            c = "0" if k == 0 else vr(SUM, 4)
            e(f"v_mfma_f32_16x16x32_bf16 {vr(SUM,4)}, {vr(X+4*k,4)}, v[48:51], {c}")
        def rdx(k0, k1):
            for k in range(k0, k1):
                e(f"ds_read_b128 {vr(X+4*k,4)}, v{14+(k&1)} offset:{(k>>1)*2048}")
        def stats(k0, k1, kend):
            for k in range(k0, k1):
                e(f"s_waitcnt lgkmcnt({kend-1-k})")
                stat(k)
        e(f"s_setprio {OPT.get('hp2', 2)}")
        land(0); land(1)
        rdx(0, 4)
        stamp(e, 3)
        e("s_barrier")
        stamp(e, 4)
        stats(0, 2, 4)
        land(2)
        stats(2, 4, 4)
        land(3)
        assert nx[0] == 7
        rdx(4, 8)
        e("s_barrier")
        e(f"s_add_u32 m0, s40, {LDS_R}")
        e(f"s_add_u32 s33, s40, fnet_tables-{NAME}_kernel")
        e("buffer_load_dwordx4 v11, s[92:95], s33 offen lds")
        e("buffer_load_dwordx4 v11, s[92:95], s33 offen offset:1024 lds")
        e("buffer_load_dwordx2 v[224:225], off, s[56:59], 0 sc1")
        e("s_cmp_ge_u32 s2, 128")
        e("s_cbranch_scc1 L_ka_nostage")
        for j in range(4):
            e(f"s_add_u32 m0, s17, {j*XRS}")
            e(f"s_add_u32 s33, s18, {j*64*896}")
            e(f"buffer_load_dwordx4 v218, s[8:11], s33 offen lds")
        e(f"s_mov_b32 m0, {LDS_XR + 16*XRS}")
        srd(e, 8, 44, 896)
        e(f"buffer_load_dwordx4 v11, s[8:11], 0 offen lds")
        e("L_ka_nostage:")
        stats(4, 8, 8)
        e("s_cmp_ge_u32 s2, 128")
        e("s_cbranch_scc1 L_ka_w1")
        e("s_waitcnt vmcnt(6)")
        e("s_branch L_ka_w2")
        e("L_ka_w1:")
        e("s_waitcnt vmcnt(1)")
        e("L_ka_w2:")
        rdx(8, 14)
        if PFM == 1: e("buffer_load_dword v219, v216, s[36:39], 0 offen")
        if OPT.get("sb", 0): stamp(e, 2)
        BE = OPT.get("be", 0)
        if BE: e("s_barrier")
        stats(8, 14, 14)
        if not BE: e("s_barrier")
        e("s_nop 6")
        e(f"v_cndmask_b32 v20, v{GRM}, v{GRM+1}, s[52:53]")
        e(f"v_cndmask_b32 v16, v{SUM}, v{SUM+1}, s[52:53]")
        e(f"v_cndmask_b32 v20, v20, v{GRM+2}, s[54:55]")
        e(f"v_cndmask_b32 v16, v16, v{SUM+2}, s[54:55]")
        e(f"v_cndmask_b32 v20, v20, v{GRM+3}, s[62:63]")
        e(f"v_cndmask_b32 v16, v16, v{SUM+3}, s[62:63]")
        e("v_mul_f32 v20, s24, v20")
        e("v_mul_f32 v16, s24, v16")
        e("v_fma_f32 v20, -v16, v16, v20")
        e("v_max_f32 v20, 0, v20")
        e("v_cvt_pk_bf16_f32 v20, v20, v20")
        e("v_and_b32 v20, s27, v20")
        e("v_add_f32 v20, s26, v20")
        e("v_cvt_pk_bf16_f32 v20, v20, v20")
        e("v_and_b32 v20, s27, v20")
        e("v_sqrt_f32 v20, v20")
        e("s_mov_b64 exec, s[60:61]")
        e("v_cvt_pk_bf16_f32 v20, v20, v20")
        e("v_and_b32 v20, s27, v20")
        e("v_rcp_f32 v20, v20")
        e("s_nop 0")
        e("v_mul_f32 v16, -v16, v20")
        e("ds_write2_b32 v4, v16, v20 offset0:0 offset1:16")
        e("s_mov_b64 exec, -1")
        e("s_waitcnt lgkmcnt(0)")
        stamp(e, 5)
        e("s_barrier")
        e(f"ds_read_b128 {vr(RF,4)}, v52")
        e(f"ds_read_b128 {vr(RF+4,4)}, v52 offset:1024")
        if OPT.get("flc", 0):
            e("s_waitcnt vmcnt(0)")
            pubflag()
        stamp(e, 6)
        gemm2(1)
    SPLIT = OPT.get("split", 1)
    if SPLIT:
        e("s_branch L_ka_help2")
    else:
        helper_rest()
    MACC, AR, CS, MB = 16, 32, 44, 64
    FC, FP, FK = 64, 72, 80
    e("L_ka_main:")
    e("v_lshrrev_b32 v4, 2, v2")
    e("v_and_b32 v5, 3, v2")
    e("s_lshl_b32 s24, s19, 6")
    e("s_lshl_b32 s25, s21, 5")
    e("s_add_u32 s25, s24, s25")
    e("s_lshl_b32 s26, s22, 2")
    e("s_add_u32 s25, s25, s26")
    e("v_lshl_add_u32 v7, v4, 3, v5")
    e("v_add_u32 v7, s25, v7")
    e("v_lshrrev_b32 v8, 5, v7")
    e("v_and_b32 v9, 15, v7")
    e("v_lshl_add_u32 v8, v8, 4, v9")
    e("v_cmp_eq_u32 vcc, 0, v7")
    e("v_bfe_u32 v10, v7, 4, 1")
    e("v_mov_b32 v9, 224")
    e("v_cndmask_b32 v7, v8, v9, vcc")
    e("v_mul_u32_u24 v10, 0x3e80, v10")
    e("v_lshlrev_b32 v10, 16, v10")
    e("v_lshl_add_u32 v8, v3, 3, s24")
    e("v_mul_u32_u24 v8, v8, v7")
    e("v_cvt_f32_u32 v7, v7")
    e("v_cvt_f32_u32 v8, v8")
    e(f"s_mov_b32 s24, {fbits(1.0/448)}")
    e("v_mul_f32 v9, s24, v8")
    e("v_floor_f32 v9, v9")
    e(f"v_fmamk_f32 v8, v9, {fbits(-448.0)}, v8")
    e("v_mul_f32 v7, s24, v7")
    e("v_fma_f32 v8, v8, s24, v10")
    e("v_mul_f32 v9, 0x42000000, v7")
    e("v_cos_f32 v88, v9")
    for j in range(8):
        e(f"v_cos_f32 v{FC+j}, v8")
        e(f"v_sub_f32 v11, v8, v9")
        if j < 7:
            e(f"v_add_f32 v8, v8, v7")
        e(f"v_cos_f32 v{FP+j}, v11")
    e("v_add_f32 v88, v88, v88")
    e("v_lshl_add_u32 v91, v1, 4, s29")
    e("v_mov_b32 v89, v88")
    stamp(e, 1)
    if OPT.get("floop", 0):
        e("s_mov_b32 s24, 0")
        e(".p2align 3")
        e("L_ka_fgen:")
        for st in range(2):
            A, B = (FC, FP) if st % 2 == 0 else (FP, FC)
            P = FK + 4*(st % 2)
            for j in range(4):
                e(f"v_cvt_pk_bf16_f32 v{P+j}, v{A+2*j}, v{A+2*j+1}")
            e(f"ds_write_b128 v91, {vr(P,4)} offset:{st*1024}")
            for j in range(4):
                e(f"v_pk_fma_f32 {vr(B+2*j,2)}, v[88:89], {vr(A+2*j,2)}, {vr(B+2*j,2)} neg_lo:[0,0,1] neg_hi:[0,0,1]")
        e("v_add_u32 v91, 0x800, v91")
        e("s_add_u32 s24, s24, 1")
        e("s_cmp_lt_u32 s24, 7")
        e("s_cbranch_scc1 L_ka_fgen")
    else:
        e(".p2align 3")
        for st in range(14):
            A, B = (FC, FP) if st % 2 == 0 else (FP, FC)
            P = FK + 4*(st % 2)
            for j in range(4):
                e(f"v_cvt_pk_bf16_f32 v{P+j}, v{A+2*j}, v{A+2*j+1}")
            e(f"ds_write_b128 v91, {vr(P,4)} offset:{st*1024}")
            if st < 13:
                for j in range(4):
                    e(f"v_pk_fma_f32 {vr(B+2*j,2)}, v[88:89], {vr(A+2*j,2)}, {vr(B+2*j,2)} neg_lo:[0,0,1] neg_hi:[0,0,1]")
    e("v_lshlrev_b32 v11, 4, v1")
    e("s_waitcnt lgkmcnt(0)")
    stamp(e, 2)
    e("s_barrier")
    L = Lds(e)
    def rB(k, n):
        L.issue(("B", k), f"ds_read_b128 {vr(MB+32+((k+6)%8)*16+4*n,4)}, v11 offset:{(n*14+k)*1024}")
    def Breg(k, n): return vr(MB+32+((k+6)%8)*16+4*n, 4)
    PRE = OPT.get("pre", 4)
    for k in range(2):
        for n in range(4): rB(k, n)
    common_addr()
    e("s_lshl_b32 s24, s21, 10")
    e("s_lshl_b32 s25, s22, 3")
    e("s_add_u32 s24, s24, s25")
    e(f"s_add_u32 s24, s24, {LDS_Z}")
    e("v_add_u32 v55, s24, v11")
    e("v_lshlrev_b32 v12, 4, v2")
    e("s_lshl_b32 s26, s19, 8")
    e(f"s_add_u32 s26, s26, fnet_tables-{NAME}_kernel+8192")
    e("s_lshl_b32 s25, s16, 7")
    e(f"s_add_u32 s25, s25, {LDS_ST}")
    e("v_lshl_add_u32 v13, v3, 4, s25")
    e(f"buffer_load_dwordx4 {vr(CS,4)}, v12, s[92:95], s26 offen")
    srd(e, 12, 6, WS_SIZE)
    srd(e, 56, 60, 256)
    for k in range(2, PRE):
        for n in range(4): rB(k, n)
    vaddr()
    e("s_cmp_ge_u32 s2, 8")
    e("s_cselect_b32 s34, -1, 0")
    e("s_lshl_b32 s35, s2, 12")
    e(f"s_add_u32 s35, s35, {WS_KEY}")
    e("s_cmp_ge_u32 s2, 204")
    e("s_cselect_b32 s36, 0x7ff00000, 0")
    e("v_lshl_add_u32 v54, v0, 4, s36")
    for j in range(4):
        e(f"v_mov_b32 v{56+j}, -1")
        e(f"v_mov_b32 v{60+j}, s34")
    def fills():
        e("s_waitcnt vmcnt(0)")
        e("buffer_store_dwordx4 v[56:59], v53, s[12:15], s30 offen sc1")
        e("buffer_store_dwordx4 v[56:59], v53, s[12:15], s30 offen offset:64 sc1")
        e("buffer_store_dwordx4 v[60:63], v54, s[12:15], s35 offen sc1")
    FK_ = OPT.get("fk", 6)
    if FK_ < 0: fills()
    stamp(e, 3)
    e("s_barrier")
    stamp(e, 4)
    if DIAG: L.q = []
    def rA(k):
        L.issue(("A", k), f"ds_read_b128 {vr(AR+4*(k%3),4)}, v{14+(k&1)} offset:{(k>>1)*2048}")
    L.q = L.q[-13:]
    rA(0); rA(1)
    ST, U = 64, 72
    CK = OPT.get("ck", 11)
    sh = []
    for k in range(14):
        if k == 2: e("s_barrier")
        if k == FK_: fills()
        if k == 6:
            e("s_barrier")
            e("buffer_load_dwordx2 v[224:225], off, s[56:59], 0 sc1")
        if k == CK:
            if OPT.get("flc", 0): e("s_waitcnt vmcnt(0)")
            e("s_barrier")
            L.issue("st", f"ds_read_b128 {vr(ST,4)}, v13")
            L.issue("st", f"ds_read_b128 {vr(ST+4,4)}, v13 offset:64")
        if k == CK + 1:
            L.need("st")
            for n in range(4):
                for r in range(4): sh.append(f"v_mul_f32 v{U+4*n+r}, v{ST+r}, v{CS+n}")
        L.need(("A", k))
        L.need(("B", k))
        for n in range(4):
            c = "0" if k == 0 else vr(MACC+4*n, 4)
            e(f"v_mfma_f32_16x16x32_bf16 {vr(MACC+4*n,4)}, {vr(AR+4*(k%3),4)}, {Breg(k,n)}, {c}")
            if n == 0 and k + 2 < 14: rA(k + 2)
            if k + PRE < 14: rB(k + PRE, n)
            elif k == CK + 1 and n < 2: L.issue("R", f"ds_read_b128 {vr(RF+4*n,4)}, v52 offset:{1024*n}")
            for _ in range(3):
                if sh: e(sh.pop(0))
    if CK == 13:
        L.need("st")
        for n in range(4):
            for r in range(4): sh.append(f"v_mul_f32 v{U+4*n+r}, v{ST+r}, v{CS+n}")
    stamp(e, 5)
    nl = len(sh)
    while sh: e(sh.pop(0))
    if nl < 5: e(f"s_nop {4-nl}")
    for n in range(4):
        a = MACC + 4*n
        e(f"v_pk_fma_f32 {vr(a,2)}, {vr(a,2)}, {vr(ST+4,2)}, {vr(U+4*n,2)}")
        e(f"v_pk_fma_f32 {vr(a+2,2)}, {vr(a+2,2)}, {vr(ST+6,2)}, {vr(U+4*n+2,2)}")
        e(f"v_cvt_pk_bf16_f32 v{32+2*n}, v{a}, v{a+1}")
        e(f"v_cvt_pk_bf16_f32 v{33+2*n}, v{a+2}, v{a+3}")
        e(f"ds_write_b64 v55, {vr(32+2*n,2)} offset:{n*2048}")
    e("s_waitcnt lgkmcnt(0)")
    stamp(e, 6)
    gemm2(0)

    if SPLIT:
        e("L_ka_help2:")
        helper_rest()
    e("L_ka_spare:")
    if OPT.get("pfm", 3) == 3:
        e("s_sub_u32 s19, s2, 224")
        e("s_and_b32 s19, s19, 0xf8")
        e("s_add_u32 s19, s19, s43")
        e("v_lshlrev_b32 v8, 7, v0")
        e("s_waitcnt lgkmcnt(0)")
        srd(e, 24, 44, 896)
        e(f"buffer_load_dword v16, v8, s[24:27], 0 offen")
        if OPT.get("spw3", 0): e("s_waitcnt vmcnt(0)")
        if OPT.get("spw3", 0) > 1:
            srd(e, 24, 50, WBYTES)
            e("s_lshl_b32 s20, s2, 7")
            e("buffer_load_dword v16, off, s[24:27], s20")
            e("s_waitcnt vmcnt(0)")
        xtouch(e, "a", 19, 46, 11)
        e("s_add_u32 s19, s19, 32")
        e(f"s_cmp_ge_u32 s19, {OPT.get('xsp', 56)}")
        e("s_cbranch_scc1 L_ka_end")
        xtouch(e, "b", 19, 46, 12)
        e("s_endpgm")
    e("L_ka_end:")
    e("s_endpgm")
    kb(e)
    return dict(name=NAME + "_kernel", vgpr=232, accum=232, sgpr=96, grid=256, block=512, lds=LDS_XROW+16*XRS+1024)

def sync1(e, u, nl, soff, pre=False):
    e("s_waitcnt vmcnt(0)")
    tagcheck(e, u)
    e("s_mov_b32 s63, 0")
    e(f"s_mov_b64 exec, {(1 << nl) - 1:#x}" if nl < 32 else "s_mov_b32 exec_hi, 0")
    if pre: e(f"s_branch L_s1c{u}")
    e(f"L_s1{u}:")
    if u in "fg": e("s_sleep 4")
    e(f"buffer_load_dwordx2 v[228:229], v226, s[24:27], {soff} offen sc1")
    e("s_add_u32 s63, s63, 1")
    e("s_waitcnt vmcnt(0)")
    e(f"L_s1c{u}:")
    e("v_cmp_ne_u64 vcc, v[228:229], v[224:225]")
    e("s_and_b64 exec, exec, vcc")
    e(f"s_cbranch_scc0 L_s1d{u}")
    e("s_cmp_lt_u32 s63, 0x40000")
    e(f"s_cbranch_scc1 L_s1{u}")
    e(f"L_s1d{u}:")
    e("s_mov_b64 exec, -1")

def sync_all(e):
    tagcheck(e, "f")
    e("v_lshlrev_b32 v80, 6, v1")
    e("v_mov_b32 v81, 0x7ff00000")
    e("v_cmp_gt_u32 vcc, 32, v1")
    for j in range(4):
        e(f"s_mov_b32 s{56+j}, {WS_FL1 + 4096*j:#x}")
    e("v_cndmask_b32 v81, v81, v80, vcc")
    e("s_mov_b32 s63, 0")
    e("L_sa:")
    e(f"s_sleep {OPT.get('sasl', 4)}")
    for j in range(4):
        e(f"buffer_load_dwordx2 {vr(82+2*j,2)}, v{81 if j == 3 else 80}, s[24:27], s{56+j} offen sc1")
    e("s_add_u32 s63, s63, 1")
    e("s_waitcnt vmcnt(0)")
    e("v_cndmask_b32 v88, v224, v88, vcc")
    e("v_cndmask_b32 v89, v225, v89, vcc")
    for j in range(4):
        e(f"v_xor_b32 v{82+2*j}, v{82+2*j}, v224")
        e(f"v_xor_b32 v{83+2*j}, v{83+2*j}, v225")
    e("v_or3_b32 v82, v82, v83, v84")
    e("v_or3_b32 v85, v85, v86, v87")
    e("v_or3_b32 v82, v82, v88, v89")
    e("v_or_b32 v82, v82, v85")
    e("v_cmpx_ne_u32 s[60:61], 0, v82")
    e("s_cbranch_execz L_sad")
    e("s_cmp_lt_u32 s63, 0x40000")
    e("s_cbranch_scc1 L_sa")
    e("L_sad:")
    e("s_mov_b64 exec, -1")

def kb(e):
    e("L_kb_entry:")
    e("s_cmp_ge_u32 s2, 184")
    e("s_cbranch_scc1 L_kb_warm")
    stamp(e, 0)
    e("s_setprio 0")
    e("s_load_dwordx2 s[20:21], s[0:1], 96")
    e("s_load_dwordx2 s[4:5], s[0:1], 0")
    e("s_load_dwordx8 s[8:15], s[0:1], 48")
    e("s_load_dwordx4 s[16:19], s[0:1], 80")
    e("s_mov_b32 s28, s43")
    e("v_lshlrev_b32 v4, 4, v1")
    e("s_cmp_ge_u32 s2, 128")
    e("s_cbranch_scc1 L_kb_ffn")
    p2(e)
    e("L_kb_ffn:")
    ffn(e)
    e("s_endpgm")
    e("L_kb_warm:")
    if OPT.get("pfm", 3) == 3:
        e("s_load_dwordx4 s[4:7], s[0:1], 56")
        e("s_load_dwordx2 s[8:9], s[0:1], 72")
        e("s_sub_u32 s19, s2, 184")
        e("s_and_b32 s19, s19, 0xf8")
        e("s_add_u32 s19, s19, s43")
        e("s_add_u32 s19, s19, 41")
        e("s_waitcnt lgkmcnt(0)")
        xtouch(e, "c", 19, 4, 11)
    if OPT.get("pfm", 3): e("s_endpgm")
    e("L_kb_end:")
    e("s_endpgm")
    tables(e)
    e("L_code_end:")

def p2(e):
    YB, RS = 57344, 1808
    PA, PAS = 86528, 464
    SC = PA + 16*PAS
    C, S, F1, F3 = 16, 20, 24, 28
    A, ACC = 64, 32
    XC, WC, SM = 144, 160, 176
    H = 96
    WRL = LDS_XROW + 16*XRS
    e("s_and_b32 s29, s2, 31")
    e("s_bfe_u32 s30, s2, 0x10005")
    e("s_lshr_b32 s31, s2, 6")
    e("s_lshl_b32 s32, s31, 5")
    e("s_add_u32 s32, s32, s29")
    e("s_sub_u32 s33, 32, s29")
    e("s_and_b32 s33, s33, 31")
    e("s_cmp_eq_u32 s31, 0")
    e("s_cselect_b32 s29, s29, s33")
    e("s_lshl_b32 s33, s30, 10")
    e("s_add_u32 s33, s33, s32")
    e("s_lshl_b32 s34, s28, 7")
    e("s_add_u32 s34, s34, s33")
    e("s_mul_i32 s35, s34, 896")
    e("v_and_b32 v5, 31, v1")
    e("v_lshrrev_b32 v6, 5, v1")
    e("v_cmp_gt_u32 vcc, 28, v5")
    e("v_lshlrev_b32 v9, 4, v5")
    e("v_mov_b32 v10, 0x7ff00000")
    e("v_mul_u32_u24 v11, 57344, v6")
    e("v_cndmask_b32 v10, v10, v9, vcc")
    e("v_add_u32 v10, v10, v11")
    e(f"s_mul_i32 s38, s28, {2*RS}")
    e(f"s_add_u32 s38, s38, {YB}")
    e(f"v_mul_u32_u24 v7, {RS}, v6")
    e("v_lshl_add_u32 v7, v5, 5, v7")
    e("v_add_u32 v7, s38, v7")
    e("s_lshl_b32 s38, s28, 4")
    e(f"s_add_u32 s38, s38, {SC}")
    e("v_lshl_add_u32 v120, v6, 3, s38")
    e("s_mov_b32 s43, 0xffff0000")
    e("s_lshl_b32 s53, s2, 7")
    e(f"s_add_u32 s53, s53, {WS_KEY}")
    e("s_waitcnt lgkmcnt(0)")
    srd(e, 44, 16, XBYTES)
    srd(e, 24, 20, WS_SIZE)
    e("s_cmp_eq_u32 s28, 7")
    e("s_cbranch_scc1 L_p2_w7")
    def freq():
        e("s_lshl_b32 s55, s28, 11")
        e(f"s_add_u32 s55, s55, {WS_FL1}")
        e("s_mov_b32 exec_hi, 0")
        e("buffer_load_dwordx2 v[228:229], v226, s[24:27], s55 offen sc1")
        e("s_mov_b32 exec_hi, -1")
    FQ = OPT.get("fq", 1)
    if FQ == 0: freq()
    e(f"s_mul_i32 s36, s29, {VS}")
    e("s_lshl_b32 s37, s28, 7")
    e("s_add_u32 s36, s36, s37")
    if OPT.get("vb", 0): e(f"s_add_u32 s36, s36, {OPT['vb']*0x100000}")
    e("s_lshl_b32 s42, s28, 6")
    e("v_lshl_add_u32 v13, v3, 3, s42")
    e(f"v_mul_u32_u24 v14, {XRS}, v2")
    e(f"v_add_u32 v14, {LDS_XROW}, v14")
    e("v_add_u32 v121, v14, v13")
    e("v_sub_u32 v122, v14, v13")
    e(f"v_add_u32 v123, {WRL}, v13")
    e(f"v_sub_u32 v124, {WRL}, v13")
    T = 182
    for (ad, am, r0) in ((121, 122, T), (123, 124, T+10)):
        for mm in range(2):
            e(f"ds_read_b64 {vr(r0+2*mm,2)}, v{ad} offset:{32*mm}")
            e(f"ds_read_b64 {vr(r0+4+2*mm,2)}, v{am} offset:{888-32*mm}")
            e(f"ds_read_b32 v{r0+8+mm}, v{am} offset:{896-32*mm}")
    e(f"ds_read_u16 v{T+20}, v14 offset:448")
    e(f"v_mov_b32 v125, {WRL}")
    e(f"ds_read_u16 v{T+21}, v125 offset:448")
    e("v_cmp_eq_u32 s[40:41], 0, v13")
    e("s_lshl_b32 s37, s28, 13")
    e("v_lshl_add_u32 v9, v2, 6, s33")
    e("v_cvt_f32_u32 v9, v9")
    e(f"v_mul_f32 v9, {fbits(1.0/2048)}, v9")
    e("v_lshlrev_b32 v8, 3, v3")
    e("v_cvt_f32_u32 v8, v8")
    e("v_mul_f32 v8, v8, v9")
    for j in range(8):
        e(f"v_cos_f32 v{A+j}, v8")
        e(f"v_sin_f32 v{A+8+j}, v8")
        if j < 7:
            e("v_add_f32 v8, v8, v9")
    if FQ == 1: freq()
    e("v_lshrrev_b32 v4, 3, v1")
    e("v_mul_u32_u24 v4, 896, v4")
    e("v_lshlrev_b32 v8, 1, v3")
    e("v_and_b32 v8, 2, v8")
    e("v_and_b32 v9, 7, v1")
    e("v_xor_b32 v8, v8, v9")
    e("v_lshl_add_u32 v4, v8, 4, v4")
    e("v_xor_b32 v11, 64, v4")
    for j in range(4):
        e(f"v_cvt_pk_bf16_f32 v{C+j}, v{A+2*j}, v{A+2*j+1}")
        e(f"v_cvt_pk_bf16_f32 v{S+j}, v{A+8+2*j}, v{A+8+2*j+1}")
    e("s_cmp_gt_u32 s32, 32")
    e("s_cselect_b32 s39, 0x80008000, 0")
    e("s_xor_b32 s42, s39, 0x80008000")
    for j in range(4):
        e(f"v_xor_b32 v{F1+j}, s39, v{S+j}")
        e(f"v_xor_b32 v{F3+j}, s42, v{C+j}")
    e("s_cmp_lg_u32 s29, 0")
    e("s_cbranch_scc1 L_p2_nospecial")
    e("s_cmp_eq_u32 s32, 0")
    e("s_cbranch_scc1 L_p2_t0")
    for j in range(4):
        e(f"v_mov_b32 v{F1+j}, v{C+j}")
        e(f"v_mov_b32 v{F3+j}, v{S+j}")
        e(f"v_mov_b32 v{C+j}, 0")
        e(f"v_mov_b32 v{S+j}, 0")
    e("s_branch L_p2_nospecial")
    e("L_p2_t0:")
    for j in range(4):
        e(f"v_mov_b32 v{F1+j}, 0")
        e(f"v_mov_b32 v{F3+j}, 0")
    e("L_p2_nospecial:")
    e("v_lshrrev_b32 v12, 2, v2")
    e("v_lshlrev_b32 v12, 7, v12")
    e("v_lshl_add_u32 v12, v3, 10, v12")
    e("v_bfe_u32 v13, v2, 1, 1")
    e("v_bfe_u32 v14, v2, 3, 1")
    e("v_lshl_add_u32 v13, v14, 1, v13")
    e("v_and_b32 v14, 1, v3")
    e("v_lshl_add_u32 v13, v14, 2, v13")
    e("v_lshl_add_u32 v12, v13, 4, v12")
    e("v_and_b32 v14, 1, v2")
    e("v_lshl_add_u32 v12, v14, 3, v12")
    e("v_add_u32 v12, s37, v12")
    e("v_xor_b32 v126, 32, v12")
    e("v_xor_b32 v118, 64, v12")
    e("v_xor_b32 v119, 0x60, v12")
    e("v_lshl_add_u32 v117, v1, 4, s37")
    def shadow_block():
        e("s_lshl_b32 s42, s28, 7")
        e("v_lshl_add_u32 v13, v3, 4, s42")
        e(f"v_mul_u32_u24 v14, {RS}, v2")
        e(f"v_add_u32 v14, {YB}, v14")
        e("v_sub_u32 v15, v14, v13")
        e(f"v_add_u32 v15, {(448-19)*4}, v15")
        e("v_add_u32 v13, v13, v14")
        e(f"v_add_u32 v9, {19*4}, v15")
        e(f"v_add_u32 v8, {224*4}, v14")
        e("v_cndmask_b32 v14, v9, v8, s[40:41]")
        e("s_lshl_b32 s42, s28, 6")
        e(f"s_add_u32 s42, s42, {PA}")
        e(f"v_mul_u32_u24 v127, {PAS}, v2")
        e("v_lshl_add_u32 v127, v3, 4, v127")
        e("v_add_u32 v127, s42, v127")
        e("s_waitcnt lgkmcnt(0)")
        for (dst, r0, sp) in ((XC, T, T+20), (WC, T+10, T+21)):
            for mm in range(2):
                d = dst + 8*mm
                e(f"v_lshlrev_b32 v{d}, 16, v{r0+2*mm}")
                e(f"v_and_b32 v{d+1}, s43, v{r0+2*mm}")
                e(f"v_lshlrev_b32 v{d+2}, 16, v{r0+2*mm+1}")
                e(f"v_and_b32 v{d+3}, s43, v{r0+2*mm+1}")
                if mm == 0:
                    e(f"v_cndmask_b32 v{r0+8}, v{r0+8}, v{sp}, s[40:41]")
                e(f"v_lshlrev_b32 v{d+4}, 16, v{r0+8+mm}")
                e(f"v_and_b32 v{d+5}, s43, v{r0+4+2*mm+1}")
                e(f"v_lshlrev_b32 v{d+6}, 16, v{r0+4+2*mm+1}")
                e(f"v_and_b32 v{d+7}, s43, v{r0+4+2*mm}")
        e(f"v_mov_b32 v125, v{XC}")
        for mm in range(2):
            for r in range(4):
                d, m_ = XC+8*mm+r, XC+8*mm+4+r
                e(f"v_add_f32 v{T}, v{d}, v{m_}")
                e(f"v_sub_f32 v{m_}, v{d}, v{m_}")
                e(f"v_mul_f32 v{d}, 0.5, v{T}")
                e(f"v_mul_f32 v{m_}, 0.5, v{m_}")
    if FQ >= 2: freq()
    if FQ == 3: shadow_block()
    sync1(e, "p", 32, "s55", True)
    stamp(e, 1)
    stamp(e, 2)
    def req(i):
        hf, bb = i >> 2, i & 3
        e(f"s_add_u32 m0, s37, {i*1024}")
        e(f"s_add_u32 s54, s36, {hf*VH + bb*7168}")
        e(f"buffer_load_dwordx4 v{11 if bb & 1 else 4}, s[24:27], s54 offen sc1 lds")
    for i in range(8): req(i)
    if OPT.get("fl2", 0):
        e("s_lshl_b32 s54, s28, 3")
        e("s_or_b32 s54, s54, s2")
        e("s_cmp_ge_u32 s54, 8")
        e(f"s_cselect_b32 s55, 0x7ff00000, 0")
        e("s_lshl_b32 s54, s54, 6")
        e(f"s_add_u32 s54, s54, {WS_FL1 + 0x4000}")
        e("v_mov_b32 v8, s55")
        e("s_mov_b64 exec, 1")
        e("buffer_store_dwordx2 v[224:225], v8, s[24:27], s54 offen sc1")
        e("s_mov_b64 exec, -1")
    if FQ != 3: shadow_block()
    e("s_mov_b32 s55, 0")
    e("L_p2_scan:")
    e("s_waitcnt vmcnt(0)")
    for i in range(8):
        e(f"ds_read_b32 v{A+i}, v117 offset:{i*1024}")
    e("s_add_u32 s55, s55, 1")
    e("s_waitcnt lgkmcnt(0)")
    e(f"v_max3_u32 v{A+8}, v{A}, v{A+1}, v{A+2}")
    e(f"v_max3_u32 v{A+9}, v{A+3}, v{A+4}, v{A+5}")
    e(f"v_max3_u32 v{A+8}, v{A+8}, v{A+6}, v{A+7}")
    e(f"v_max_u32 v{A+8}, v{A+8}, v{A+9}")
    e(f"v_cmp_eq_u32 vcc, -1, v{A+8}")
    e("s_cbranch_vccz L_p2_have")
    e("s_cmp_ge_u32 s55, 0x40000")
    e("s_cbranch_scc1 L_p2_have")
    for i in range(8):
        e(f"v_cmp_eq_u32 vcc, -1, v{A+i}")
        e("s_and_b64 exec, exec, vcc")
        e(f"s_cbranch_scc0 L_p2_sk{i}")
        req(i)
        e(f"L_p2_sk{i}:")
        e("s_mov_b64 exec, -1")
    e("s_branch L_p2_scan")
    e("L_p2_have:")
    if DIAG: e("s_mov_b32 s68, s55")
    wrs = []
    tb = {(0, 0): 12, (0, 1): 126, (1, 0): 118, (1, 1): 119}
    for hf in range(2):
        if hf == 0: stamp(e, 3)
        order = [(0, 0), (0, 1), (1, 0), (1, 1)]
        for i, (mm, kd) in enumerate(order):
            for io in range(2):
                e(f"ds_read_b64_tr_b16 {vr(A+(hf*4+i)*4+2*io,2)}, v{tb[(mm,kd)]} offset:{hf*4096+io*512}")
        for i, (mm, kd) in enumerate(order):
            e(f"s_waitcnt lgkmcnt({6-2*i})")
            acc = ACC + 8*mm + 4*kd
            c = vr(XC+8*mm+4*kd, 4) if hf == 0 else vr(acc, 4)
            fr = [[C, S], [F1, F3]][hf][kd]
            e(f"v_mfma_f32_16x16x32_bf16 {vr(acc,4)}, {vr(A+(hf*4+i)*4,4)}, {vr(fr,4)}, {c}")
    for mm in range(2):
        E_, O_ = ACC + 8*mm, ACC + 8*mm + 4
        D_ = 128 + 8*mm
        if mm == 0: e("s_nop 3")
        for r in range(4):
            e(f"v_add_f32 v{D_+r}, v{E_+r}, v{O_+r}")
        for r in range(4):
            e(f"v_sub_f32 v{D_+4+r}, v{E_+r}, v{O_+r}")
        if mm == 0:
            e(f"v_cndmask_b32 v{D_}, v{D_}, v125, s[40:41]")
        def wr(mm=mm, D_=D_):
            e(f"ds_write_b128 v13, {vr(D_,4)} offset:{64*mm}")
            o = 16*(1-mm)
            if mm == 0:
                e(f"ds_write_b32 v14, v{D_+4}")
                e(f"ds_write_b32 v15, v{D_+5} offset:{(o+2)*4}")
            else:
                e(f"ds_write2_b32 v15, v{D_+4}, v{D_+5} offset0:{o+3} offset1:{o+2}")
            e(f"ds_write2_b32 v15, v{D_+6}, v{D_+7} offset0:{o+1} offset1:{o}")
        wrs.append(wr)
        for j in range(4):
            h_ = vr(D_+2*j, 2); w_ = vr(WC+8*mm+2*j, 2)
            if mm == 0 and j == 0:
                e(f"v_pk_mul_f32 {vr(SM+2,2)}, {h_}, {h_}")
                e(f"v_pk_mul_f32 {vr(SM+4,2)}, {h_}, {w_}")
            else:
                if mm == 0 and j == 1:
                    e(f"v_pk_add_f32 {vr(SM,2)}, {vr(D_,2)}, {h_}")
                else:
                    e(f"v_pk_add_f32 {vr(SM,2)}, {vr(SM,2)}, {h_}")
                e(f"v_pk_fma_f32 {vr(SM+2,2)}, {h_}, {h_}, {vr(SM+2,2)}")
                e(f"v_pk_fma_f32 {vr(SM+4,2)}, {h_}, {w_}, {vr(SM+4,2)}")
        if mm == 1:
            e(f"v_add_f32 v{T}, v{SM}, v{SM+1}")
            e(f"v_add_f32 v{T+1}, v{SM+2}, v{SM+3}")
            e(f"v_add_f32 v{T+2}, v{SM+4}, v{SM+5}")
            e(f"ds_write_b128 v127, {vr(T,4)}")
            e(f"v_cmp_u_f32 vcc, v{T}, v{T+1}")
            e("s_cbranch_vccz L_p2_clean")
            e("s_add_u32 s54, s55, 0x1000")
            e("s_mov_b32 s55, s54")
            e("s_cmp_ge_u32 s55, 0x40000")
            e("s_cbranch_scc1 L_p2_clean")
            for i in range(8): req(i)
            e("s_branch L_p2_scan")
            e("L_p2_clean:")
    e("s_waitcnt lgkmcnt(0)")
    stamp(e, 4)
    e("s_barrier")
    for w_ in wrs: w_()
    e("s_waitcnt lgkmcnt(0)")
    def hreads():
        for j, o in enumerate((0, 16, 896, 912)):
            e(f"ds_read_b128 {vr(H+4*j,4)}, v7 offset:{o}")
    e("s_branch L_p2_k")

    e("L_p2_w7:")
    e("s_setprio 3")
    e("v_lshlrev_b32 v9, 4, v1")
    e(f"v_add_u32 v9, {WRL}, v9")
    e("ds_read_b128 v[16:19], v9")
    e("s_mov_b32 s52, 0x3f803f80")
    e("v_mov_b32 v123, 0")
    e(f"v_mul_u32_u24 v127, {PAS}, v2")
    e("v_mul_u32_u24 v9, 112, v3")
    e(f"v_add3_u32 v127, v127, v9, 0")
    e(f"v_add_u32 v127, {PA}, v127")
    e("v_lshl_add_u32 v11, v2, 6, s33")
    e("v_sub_u32 v121, 0xfff, v11")
    e("v_lshlrev_b32 v122, 3, v2")
    e(f"v_add_u32 v122, {SC}, v122")
    e("v_lshlrev_b32 v124, 2, v1")
    e(f"s_mov_b32 s38, {fbits(1.0/448)}")
    e("v_cmp_gt_u32 s[40:41], 16, v1")
    e("s_waitcnt lgkmcnt(0)")
    for j in range(4):
        e(f"v_dot2c_f32_bf16 v123, s52, v{16+j}")
    e("s_nop 2")
    for ror in (8, 4, 2, 1):
        e(f"v_add_f32_dpp v123, v123, v123 row_ror:{ror} row_mask:0xf bank_mask:0xf")
        e("s_nop 1")
    for sw in ("16", "32"):
        e("v_mov_b32 v9, v123")
        e("s_nop 1")
        e(f"v_permlane{sw}_swap_b32 v123, v9")
        e("v_add_f32 v123, v123, v9")
    if OPT.get("s1bar", 0): e("s_barrier")
    stamp(e, 4)
    e("s_barrier")
    for i in range(7):
        e(f"ds_read_b128 {vr(16+4*i,4)}, v127 offset:{16*i}")
    for i in range(1, 7):
        e(f"s_waitcnt lgkmcnt({6-i})")
        e(f"v_pk_add_f32 v[16:17], v[16:17], {vr(16+4*i,2)}")
        e(f"v_add_f32 v18, v18, v{18+4*i}")
    for sw in ("16", "32"):
        e("v_mov_b32 v20, v16")
        e("v_mov_b32 v21, v17")
        e("v_mov_b32 v22, v18")
        e(f"v_permlane{sw}_swap_b32 v16, v20")
        e(f"v_permlane{sw}_swap_b32 v17, v21")
        e(f"v_permlane{sw}_swap_b32 v18, v22")
        e("v_pk_add_f32 v[16:17], v[16:17], v[20:21]")
        e("v_add_f32 v18, v18, v22")
    e("v_mul_f32 v8, s38, v16")
    e("v_mul_f32 v9, s38, v17")
    e("v_fma_f32 v9, -v8, v8, v9")
    e("v_max_f32 v9, 0, v9")
    e("v_cvt_pk_bf16_f32 v8, v9, v8")
    e("v_lshlrev_b32 v9, 16, v8")
    e(f"v_add_f32 v9, {fbits(1e-5)}, v9")
    e("v_cvt_pk_bf16_f32 v9, v9, v9")
    e("v_and_b32 v9, s43, v9")
    e("v_sqrt_f32 v9, v9")
    e("v_and_b32 v8, s43, v8")
    e("v_cvt_pk_bf16_f32 v13, v9, v8")
    e("v_lshlrev_b32 v9, 16, v13")
    e("v_rcp_f32 v9, v9")
    e("v_fma_f32 v12, -v8, v123, v18")
    e("v_mul_f32 v12, v12, v9")
    e("v_add_f32 v14, 1.0, v9")
    e("v_cvt_pk_bf16_f32 v12, v12, v12")
    e("v_mul_f32 v15, -v8, v9")
    e("v_ashrrev_i32 v11, 31, v12")
    e("ds_write_b64 v122, v[14:15]")
    e("v_or_b32 v11, 0x80000000, v11")
    e("v_xor_b32 v12, v12, v11")
    e("v_and_or_b32 v12, v12, s43, v121")
    e("v_cndmask_b32 v12, v13, v12, s[40:41]")
    e("s_mov_b32 exec_hi, 0")
    e("buffer_store_dword v12, v124, s[24:27], s53 offen sc1")
    e("s_mov_b32 exec_hi, -1")
    e("s_waitcnt lgkmcnt(0)")
    e("L_p2_k:")
    stamp(e, 5)
    e("s_barrier")
    hreads()
    e("ds_read_b64 v[14:15], v120")
    e("s_waitcnt lgkmcnt(0)")
    for j in range(8):
        e(f"v_pk_fma_f32 {vr(H+2*j,2)}, {vr(H+2*j,2)}, v[14:15], v[14:15] op_sel:[0,0,1] op_sel_hi:[1,0,1]")
        if j % 2 == 1:
            e(f"v_cvt_pk_bf16_f32 v{48+j-1}, v{H+2*j-2}, v{H+2*j-1}")
            e(f"v_cvt_pk_bf16_f32 v{48+j}, v{H+2*j}, v{H+2*j+1}")
        if j == 3:
            e(f"buffer_store_dwordx4 v[48:51], v10, s[44:47], s35 offen sc1")
    e(f"buffer_store_dwordx4 v[52:55], v10, s[44:47], s35 offen offset:448 sc1")
    e("s_waitcnt vmcnt(0)")
    stamp(e, 6)
    e("s_barrier")
    e("s_cmp_lg_u32 s28, 0")
    e("s_cbranch_scc1 L_p2_end")
    e("s_mov_b64 exec, 1")
    e("v_mov_b32 v12, 1")
    e(f"s_add_u32 s53, s53, {WS_FLAG - WS_KEY}")
    e(f"buffer_store_dword v12, off, s[24:27], s53 sc1")
    e("L_p2_end:")
    stamp_flush(e, 1, 24, 7, 28)
    e("s_endpgm")

def ffn(e):
    XS, XSS, ACT, MISC, GB = 0, 1056, 14336, 15360, 16384
    DB = GB + 57344
    A, AD_, ACC = 64, 36, 32
    K = 64
    e("s_sub_u32 s29, s2, 128")
    e("s_and_b32 s37, s29, 7")
    e("s_lshr_b32 s38, s29, 3")
    e("s_mul_i32 s39, s37, 7")
    e("s_add_u32 s39, s39, s38")
    e("s_cmp_eq_u32 s28, 7")
    e("s_cbranch_scc1 L_f_poll")
    e("s_cmp_lt_u32 s28, 4")
    e("s_cbranch_scc1 L_f_comp")
    e("v_lshrrev_b32 v5, 2, v1")
    e("v_and_b32 v6, 3, v1")
    e("v_lshrrev_b32 v7, 4, v1")
    e("v_and_b32 v7, 2, v7")
    e("v_xor_b32 v6, v6, v7")
    e("s_cmp_eq_u32 s28, 5")
    e("s_cselect_b32 s40, 1, 0")
    e("v_xor_b32 v6, s40, v6")
    e("s_cmp_eq_u32 s28, 6")
    e("s_movk_i32 s41, 896")
    e("s_cselect_b32 s41, s41, 3584")
    e("s_cselect_b32 s42, 64, 114688")
    e("s_cselect_b32 s43, 28672, 64")
    e("v_mul_u32_u24 v5, s41, v5")
    e("v_lshl_add_u32 v5, v6, 4, v5")
    e("s_lshl_b32 s44, s41, 4")
    e("v_add_u32 v6, s44, v5")
    e("s_mul_i32 s43, s43, s39")
    e("s_sub_u32 s44, s28, 4")
    e("s_mul_i32 s44, s44, 28672")
    e(f"s_add_u32 s44, s44, {GB}")
    e("s_waitcnt lgkmcnt(0)")
    stamp(e, 1)
    e("s_cmp_eq_u32 s28, 5")
    e("s_cselect_b32 s48, s12, s10")
    e("s_cselect_b32 s49, s13, s11")
    e("s_cmp_eq_u32 s28, 6")
    e("s_cselect_b32 s48, s14, s48")
    e("s_cselect_b32 s49, s15, s49")
    e(f"s_mov_b32 s50, {WBYTES:#x}")
    e("s_mov_b32 s51, 0x20000")
    e("s_add_u32 s45, s44, 28672")
    e("s_barrier")
    if OPT.get("seq", 0):
        e(f"v_mov_b32 v8, {MISC}")
        e("s_sub_u32 s46, s28, 4")
        e("L_f_turn:")
        e("ds_read_b32 v9, v8")
        e("s_waitcnt lgkmcnt(0)")
        e("v_cmp_le_u32 vcc, s46, v9")
        e("s_cbranch_vccnz L_f_dma")
        e("s_sleep 2")
        e("s_branch L_f_turn")
    e("L_f_dma:")
    e("s_mov_b32 m0, s44")
    e("s_add_u32 s44, s44, 2048")
    e("buffer_load_dwordx4 v5, s[48:51], s43 offen lds")
    e("s_add_u32 m0, m0, 1024")
    e("s_nop 0")
    e("buffer_load_dwordx4 v6, s[48:51], s43 offen lds")
    e("s_add_u32 s43, s43, s42")
    e("s_cmp_lt_u32 s44, s45")
    e("s_cbranch_scc1 L_f_dma")
    stamp(e, 2)
    e(f"v_mov_b32 v5, {MISC}")
    e("v_mov_b32 v6, 1")
    e("s_mov_b64 exec, 1")
    e("s_waitcnt vmcnt(0)")
    e("ds_add_u32 v5, v6")
    e("s_waitcnt lgkmcnt(0)")
    if DIAG:
        srd(e, 24, 20, WS_SIZE)
        stamp_flush(e, 1, 24, 3, 28)
    e("s_endpgm")

    e("L_f_comp:")
    e("v_mov_b32 v6, 0")
    e(f"v_mov_b32 v7, {MISC}")
    e("ds_write_b32 v7, v6")
    e("s_waitcnt lgkmcnt(0)")
    stamp(e, 1)
    e("s_barrier")
    srd(e, 24, 20, WS_SIZE)
    e("v_lshrrev_b32 v8, 2, v2")
    e("v_bfe_u32 v9, v2, 1, 1")
    e("v_and_b32 v10, 1, v3")
    e("v_and_b32 v13, 1, v2")
    e("v_lshlrev_b32 v13, 3, v13")
    e("v_lshl_add_u32 v11, v10, 1, v9")
    e("v_xor_b32 v11, s28, v11")
    e("v_lshl_add_u32 v14, v3, 3, v8")
    e("v_lshl_add_u32 v14, v14, 6, v13")
    e("v_lshl_add_u32 v14, v11, 4, v14")
    e("v_mul_u32_u24 v11, 28672, v9")
    e(f"s_movk_i32 s42, {GB}")
    e("v_add3_u32 v14, v14, v11, s42")
    e("v_lshl_add_u32 v8, v10, 3, v8")
    e("v_lshl_add_u32 v15, v8, 6, v13")
    e("s_and_b32 s42, s28, 1")
    e("v_xor_b32 v10, s42, v10")
    e("v_lshl_add_u32 v10, v10, 1, v9")
    e("v_lshl_add_u32 v15, v10, 4, v15")
    e("v_lshrrev_b32 v10, 1, v3")
    e("v_lshl_add_u32 v15, v10, 10, v15")
    e("s_lshr_b32 s42, s28, 1")
    e("s_lshl_b32 s42, s42, 11")
    e(f"s_add_u32 s42, s42, {DB}")
    e("v_add_u32 v15, s42, v15")
    e("v_and_b32 v8, 7, v2")
    e(f"v_mul_u32_u24 v8, {XSS}, v8")
    e("v_lshl_add_u32 v12, v3, 4, v8")
    e("v_cmp_gt_u32 vcc, 8, v2")
    e("v_lshlrev_b32 v6, 4, v2")
    e("v_lshl_add_u32 v6, v3, 7, v6")
    e("v_mov_b32 v8, 0x7ff00000")
    e("v_cndmask_b32 v6, v8, v6, vcc")
    e("s_lshl_b32 s42, s28, 8")
    e(f"s_add_u32 s42, s42, {ACT}")
    e("v_lshl_add_u32 v5, v2, 4, s42")
    e("v_lshl_add_u32 v5, v3, 3, v5")
    e("s_mul_i32 s44, s39, 14336")
    e("s_lshl_b32 s42, s28, 9")
    e("s_add_u32 s44, s44, s42")
    e(f"s_add_u32 s44, s44, {WS_PART}")
    for j in range(1, 4):
        e(f"s_add_u32 s{44+j}, s44, {4096*j}")
    e(f"s_mov_b32 s42, {fbits(-1.4426950408889634)}")
    e("v_and_b32 v11, 7, v2")
    e("v_lshlrev_b32 v11, 2, v11")
    e("L_f_wait:")
    e("s_sleep 2")
    e("ds_read_b32 v8, v7")
    e("s_waitcnt lgkmcnt(0)")
    e("v_cmp_ne_u32 vcc, 3, v8")
    e("s_cbranch_vccnz L_f_wait")
    stamp(e, 2)
    for k in range(14):
        for io in range(2):
            e(f"ds_read_b64_tr_b16 {vr(A+4*k+2*io,2)}, v14 offset:{k*2048+io*256}")
    for i in range(7):
        for io in range(2):
            e(f"ds_read_b64_tr_b16 {vr(AD_+4*i+2*io,2)}, v15 offset:{i*4096+io*256}")
    for r in range(4):
        e(f"v_mov_b32 v{16+r}, 0x3f803f80")
    e("s_waitcnt lgkmcnt(0)")
    for k in range(14):
        e(f"v_mfma_f32_16x16x32_bf16 v[128:131], {vr(A+4*k,4)}, v[16:19], {'0' if k == 0 else 'v[128:131]'}")
    stamp(e, 3)
    e("s_barrier")
    stamp(e, 4)
    BR = [16, 20, 24, 28, 120, 124]
    def rdx(k):
        e(f"ds_read_b128 {vr(BR[k%6],4)}, v12 offset:{XS + k*64}")
    e(f"ds_read_b32 v10, v11 offset:{MISC+64}")
    for k in range(5): rdx(k)
    e("s_waitcnt lgkmcnt(5)")
    e("v_lshlrev_b32 v9, 16, v10")
    e("v_and_b32 v10, 0xffff0000, v10")
    e("v_add_f32 v9, 1.0, v9")
    for r in range(4):
        e(f"v_mul_f32 v{132+r}, -v10, v{128+r}")
    e("v_rcp_f32 v9, v9")
    for k in range(14):
        if k + 5 < 14:
            rdx(k + 5)
        e(f"s_waitcnt lgkmcnt({min(k + 5, 13) - k})")
        c = "v[132:135]" if k == 0 else vr(ACC, 4)
        e(f"v_mfma_f32_16x16x32_bf16 {vr(ACC,4)}, {vr(A+4*k,4)}, {vr(BR[k%6],4)}, {c}")
        if k == 4:
            e("v_mul_f32 v8, s42, v9")
            e("v_mul_f32 v9, v9, v9")
    e("s_nop 7")
    for r in range(4):
        e(f"v_permlane32_swap_b32 v{ACC+r}, v{20+r}")
    for r in range(4):
        e(f"v_mul_f32 v{16+r}, v8, v{ACC+r}")
    for r in range(4):
        e(f"v_exp_f32 v{16+r}, v{16+r}")
    for r in range(4):
        e(f"v_mul_f32 v{ACC+r}, v{ACC+r}, v{20+r}")
    for r in range(4):
        e(f"v_add_f32 v{16+r}, 1.0, v{16+r}")
    for r in range(4):
        e(f"v_rcp_f32 v{16+r}, v{16+r}")
    for r in range(4):
        e(f"v_mul_f32 v{ACC+r}, v{ACC+r}, v9")
    e("s_mov_b32 exec_hi, 0")
    for r in range(4):
        e(f"v_mul_f32 v{ACC+r}, v{ACC+r}, v{16+r}")
    e(f"v_cvt_pk_bf16_f32 v16, v{ACC}, v{ACC+1}")
    e(f"v_cvt_pk_bf16_f32 v17, v{ACC+2}, v{ACC+3}")
    e("ds_write_b64 v5, v[16:17]")
    e("s_mov_b32 exec_hi, -1")
    e("s_waitcnt lgkmcnt(0)")
    stamp(e, 5)
    e("s_barrier")
    e(f"ds_read_b128 v[16:19], v4 offset:{ACT}")
    e("s_waitcnt lgkmcnt(0)")
    for i in range(7):
        e(f"v_mfma_f32_16x16x32_bf16 {vr(A+4*i,4)}, {vr(AD_+4*i,4)}, v[16:19], 0")
    e("s_nop 1")
    for i in range(7):
        e(f"buffer_store_dwordx4 {vr(A+4*i,4)}, v6, s[24:27], s{44+(i>>1)} offen offset:{2048*(i&1)} sc1")
    stamp(e, 6)
    B4 = OPT.get("b4", 4)
    if B4 >= 0:
        e(f"s_waitcnt vmcnt({B4})")
        e("s_barrier")
    stamp_flush(e, 1, 24, 7, 28)
    e("s_endpgm")

    e("L_f_poll:")
    PFL = ["sc1", "sc0 sc1"][OPT.get("pfl", 0)]
    e("s_setprio 3")
    e("v_lshrrev_b32 v4, 2, v1")
    e("v_lshlrev_b32 v4, 7, v4")
    e("v_and_b32 v5, 3, v1")
    e("v_lshl_add_u32 v4, v5, 4, v4")
    e("s_mov_b32 s46, 0")
    e("s_mov_b32 s47, 0")
    e("v_and_b32 v6, 7, v1")
    e("v_lshlrev_b32 v13, 2, v6")
    e("v_cmp_gt_u32 vcc, 56, v1")
    e("v_lshlrev_b32 v5, 4, v1")
    e("v_mov_b32 v6, 0x7ff00000")
    e("v_cndmask_b32 v6, v6, v5, vcc")
    e("v_bfe_u32 v14, v1, 3, 1")
    e("s_lshl_b32 s42, s39, 4")
    e("v_lshl_add_u32 v14, v14, 3, s42")
    e("v_mul_u32_u24 v24, 14336, v3")
    e("v_lshl_add_u32 v24, v2, 4, v24")
    e("v_add_u32 v25, 57344, v24")
    e("v_add_u32 v26, 57344, v25")
    e("v_add_u32 v27, 57344, v26")
    e("s_lshl_b32 s52, s39, 8")
    e(f"s_add_u32 s52, s52, {WS_PART}")
    for j in range(1, 4):
        e(f"s_add_u32 s{52+j}, s52, {4*57344*j}")
    e("v_mov_b32 v8, 0")
    e("v_mov_b32 v9, 0")
    e("v_mov_b32 v10, 0")
    e("v_lshlrev_b32 v7, 12, v1")
    e("v_lshlrev_b32 v19, 7, v1")
    e("s_movk_i32 s44, 896")
    e("s_mov_b32 s45, 0xffff0000")
    e("s_waitcnt lgkmcnt(0)")
    stamp(e, 1)
    srd(e, 24, 20, WS_SIZE)
    srd(e, 48, 16, XBYTES)
    if not OPT.get("b0late", 0): e("s_barrier")
    if OPT.get("sall", 0):
        sync_all(e)
    else:
        e(f"s_mov_b32 s62, {WS_FL1:#x}")
        sync1(e, "f", 8, "s62")
        if OPT.get("fl2", 0):
            e("s_lshl_b32 s62, s37, 6")
            e(f"s_add_u32 s62, s62, {WS_FL1 + 0x4000}")
            sync1(e, "g", 1, "s62")
    if OPT.get("b0late", 0): e("s_barrier")
    for j in range(4):
        e(f"s_mov_b32 s{58+j}, {WS_KEY+4096*j:#x}")
    e(f"s_mov_b32 s56, {WS_FLAG:#x}")
    e(f"s_mov_b32 s57, {WS_FLAG+8192:#x}")
    e("s_mov_b64 exec, 0xf")
    e("L_f_p0:")
    e("s_sleep 2")
    e("buffer_load_dword v11, v7, s[24:27], s58 offen offset:3968 " + PFL)
    e("s_add_u32 s47, s47, 1")
    e("s_waitcnt vmcnt(0)")
    e("v_cmp_ne_u32 vcc, 0, v11")
    e("s_cbranch_vccnz L_f_p1")
    e("s_cmp_lt_u32 s47, 0x40000")
    e("s_cbranch_scc1 L_f_p0")
    e("L_f_p1:")
    e("s_mov_b64 exec, -1")
    e("L_f_pk:")
    for i in range(8):
        e(f"buffer_load_dwordx4 {vr(K+4*i,4)}, v4, s[24:27], s{58+(i>>1)} offen offset:{(i&1)*2048} " + PFL)
    e("s_add_u32 s47, s47, 1")
    e(".p2align 3")
    for i in range(8):
        e(f"s_waitcnt vmcnt({7-i})")
        e("s_nop 0")
        k0 = K + 4*i
        if i == 0:
            e(f"v_max3_u32 v8, v{k0}, v{k0+1}, v{k0+2}")
            e(f"v_med3_u32 v9, v{k0}, v{k0+1}, v{k0+2}")
            e(f"v_min3_u32 v10, v{k0}, v{k0+1}, v{k0+2}")
            e(f"v_min3_u32 v11, v10, v{k0+3}, v{k0+3}")
            rest = [k0+3]
        else:
            e(f"v_min3_u32 v11, v11, v{k0}, v{k0+1}")
            e(f"v_min3_u32 v11, v11, v{k0+2}, v{k0+3}")
            rest = [k0, k0+1, k0+2, k0+3]
        for k in rest:
            e(f"v_med3_u32 v10, v9, v10, v{k}")
            e(f"v_med3_u32 v9, v8, v9, v{k}")
            e(f"v_max_u32_e64 v8, v8, v{k}")
    e("v_cmp_eq_u32 vcc, 0, v11")
    e("s_cbranch_vccz L_f_keys")
    e("s_cmp_lt_u32 s47, 0x40000")
    e("s_cbranch_scc1 L_f_pk")
    e("L_f_keys:")
    stamp(e, 2)
    FR = OPT.get("fr", 2)
    def flagloads():
        e("buffer_load_dword v28, v19, s[24:27], s56 offen sc1")
        e("buffer_load_dword v29, v19, s[24:27], s57 offen sc1")
    side = []
    WARM = OPT.get("warm", 0)
    flagloads()
    if WARM:
        side += ["v_max_u32_dpp v21, v8, v8 quad_perm:[1,0,3,2] row_mask:0xf bank_mask:0xf\nv_not_b32 v22, v8",
                 "v_max_u32_dpp v21, v21, v21 quad_perm:[2,3,0,1] row_mask:0xf bank_mask:0xf\nv_not_b32 v23, v9",
                 "v_max_u32_dpp v21, v21, v21 row_half_mirror row_mask:0xf bank_mask:0xf\nv_and_b32 v22, 0x7ff, v22",
                 "v_min_u32_dpp v21, v21, v21 row_mirror row_mask:0xf bank_mask:0xf\nv_and_b32 v23, 0x7ff, v23",
                 "v_min_u32_dpp v21, v21, v21 row_bcast:15 row_mask:0xa bank_mask:0xf\nv_mul_u32_u24 v22, s44, v22",
                 "v_min_u32_dpp v21, v21, v21 row_bcast:31 row_mask:0xc bank_mask:0xf\nv_mul_u32_u24 v23, s44, v23",
                 "v_readlane_b32 s43, v21, 63\nv_mov_b32 v20, 0x7ff00000",
                 "v_cmp_le_u32 s[62:63], s43, v30\nv_cmp_le_u32 s[40:41], s43, v31",
                 "s_nop 0\nv_cndmask_b32 v22, v20, v22, s[62:63]",
                 "v_cndmask_b32 v23, v20, v23, s[40:41]\nbuffer_load_dword v17, v22, s[48:51], 0 offen sc1"]
        tl = [f"buffer_load_dword v17, v22, s[48:51], 0 offen offset:{128*j} sc1" for j in range(1, 7)] + \
             [f"buffer_load_dword v16, v23, s[48:51], 0 offen offset:{128*j} sc1" for j in range(7)]
        while tl:
            side.append("\n".join(tl[:3])); tl = tl[3:]
        e("v_mov_b32 v30, v8")
        e("v_mov_b32 v31, v9")
    for rd in range(8):
        for si, st in enumerate(DPP6):
            if si == 0:
                e(f"v_max_u32_dpp v11, v8, v8 {st} bank_mask:0xf bound_ctrl:0")
            else:
                e(f"v_max_u32_dpp v11, v11, v11 {st} bank_mask:0xf")
            if si < 5:
                if side:
                    x = side.pop(0)
                    e(x)
                    if "\n" not in x: e("s_nop 0")
                elif si == 0 and rd > 0:
                    e(f"s_andn2_b32 s{83+rd}, 0x7ff, s42")
                    e(f"s_mul_i32 s{83+rd}, s{83+rd}, 896")
                else:
                    e("s_nop 1")
        e("s_nop 0")
        e("v_readlane_b32 s42, v11, 63")
        e("s_nop 1")
        e("v_cmp_eq_u32 vcc, s42, v8")
        e(f"v_writelane_b32 v12, s42, {rd}")
        e("s_nop 0")
        e("v_cndmask_b32 v8, v8, v9, vcc")
        e("v_cndmask_b32 v9, v9, v10, vcc")
        e("v_cndmask_b32 v10, v10, 0, vcc")
    e("v_cmp_eq_u32 vcc, 0, v8")
    e("s_andn2_b32 s91, 0x7ff, s42")
    e("s_mul_i32 s91, s91, 896")
    e("s_cbranch_vccz L_f_topdone")
    e("s_mov_b32 m0, 0")
    e("s_mov_b32 s42, -1")
    e("L_f_slow:")
    e(f"v_sub_u32 v8, s42, v{K}")
    e(f"v_sub_u32 v9, s42, v{K+1}")
    e("v_min_u32 v8, v8, v9")
    for i in range(2, 32, 2):
        e(f"v_sub_u32 v9, s42, v{K+i}")
        e(f"v_sub_u32 v10, s42, v{K+i+1}")
        e("v_min3_u32 v8, v8, v9, v10")
    for st in DPP6:
        e("s_nop 1")
        e(f"v_min_u32_dpp v8, v8, v8 {st} bank_mask:0xf")
    e("s_nop 0")
    e("v_readlane_b32 s47, v8, 63")
    e("s_nop 3")
    e("s_sub_u32 s42, s42, s47")
    e("v_writelane_b32 v12, s42, m0")
    e("s_sub_u32 s42, s42, 1")
    e("s_add_u32 m0, m0, 1")
    e("s_cmp_lt_u32 m0, 8")
    e("s_cbranch_scc1 L_f_slow")
    for j in range(8):
        e(f"v_readlane_b32 s{84+j}, v12, {j}")
    e("s_nop 3")
    for j in range(8):
        e(f"s_andn2_b32 s{84+j}, 0x7ff, s{84+j}")
        e(f"s_mul_i32 s{84+j}, s{84+j}, 896")
    e("L_f_topdone:")
    stamp(e, 3)
    e(f"s_mov_b32 m0, {XS}")
    e("ds_bpermute_b32 v15, v13, v12")
    e("s_mov_b32 s47, 0")
    e("s_waitcnt vmcnt(0)")
    e("L_f_gather:")
    fill = ["s_nop 0", "s_nop 0", "s_nop 0", "s_waitcnt lgkmcnt(0)\nv_not_b32 v9, v15\nv_and_b32 v9, 0x7ff, v9",
            "v_and_b32 v21, 63, v9\nv_and_b32 v22, 31, v9\nv_lshrrev_b32 v23, 10, v9",
            "v_lshl_add_u32 v22, v23, 5, v22\nv_lshrrev_b32 v23, 5, v21\nv_lshl_add_u32 v10, v23, 6, v22",
            "v_bfe_u32 v23, v9, 6, 4\nv_lshlrev_b32 v10, 7, v10\nv_lshl_add_u32 v10, v23, 2, v10"]
    for j in range(8):
        e(f"buffer_load_dwordx4 v6, s[48:51], s{84+j} offen sc1 lds")
        if j < 7:
            e(f"s_mov_b32 m0, {XS + XSS*(j+1)}")
            e(fill[j])
    e("buffer_load_dword v11, v10, s[24:27], s58 offen offset:64 sc1")
    e("v_mad_u32_u24 v20, v9, s44, v14")
    e("buffer_load_dwordx2 v[16:17], v20, s[48:51], 0 offen sc1")
    e("v_lshlrev_b32 v22, 2, v22")
    e("ds_bpermute_b32 v23, v22, v28")
    e("ds_bpermute_b32 v22, v22, v29")
    e("v_cmp_gt_u32 vcc, 32, v21")
    e("s_add_u32 s47, s47, 1")
    e("s_waitcnt lgkmcnt(0)")
    e("v_cndmask_b32 v22, v22, v23, vcc")
    e("v_cmp_eq_u32 vcc, 0, v22")
    e("s_cbranch_vccz L_f_flagok")
    flagloads()
    e(f"s_mov_b32 m0, {XS}")
    e("s_waitcnt vmcnt(0)")
    e("s_cmp_lt_u32 s47, 0x40000")
    e("s_cbranch_scc1 L_f_gather")
    e("L_f_flagok:")
    e("v_lshlrev_b32 v30, 2, v1")
    e("s_waitcnt vmcnt(1)")
    e("s_mov_b64 exec, 0xff")
    e(f"ds_write_b32 v30, v11 offset:{MISC+64}")
    e("s_mov_b64 exec, -1")
    e("s_waitcnt lgkmcnt(0)")
    stamp(e, 4)
    e("s_barrier")
    e("v_ashrrev_i32 v9, 31, v15")
    e("v_not_b32 v9, v9")
    e("v_or_b32 v9, 0x80000000, v9")
    e("v_xor_b32 v15, v15, v9")
    e("v_and_b32 v15, s45, v15")
    e(f"v_mul_f32 v18, {fbits(-1.4426950408889634)}, v15")
    e("v_exp_f32 v18, v18")
    e("v_mov_b32 v10, 1.0")
    e("v_add_f32 v18, 1.0, v18")
    e("v_rcp_f32 v18, v18")
    e("s_mov_b32 s47, 0")
    e("v_cvt_pk_bf16_f32 v18, v18, v18")
    e("v_and_b32 v18, s45, v18")
    e("v_mov_b32 v14, v20")
    e("s_waitcnt vmcnt(0)")
    e("v_lshlrev_b32 v20, 16, v16")
    e("v_and_b32 v21, s45, v16")
    e("v_lshlrev_b32 v22, 16, v17")
    e("v_and_b32 v23, s45, v17")
    e("s_barrier")
    if B4 >= 0:
        e("s_barrier")
    stamp(e, 5)
    P = 64
    e("L_f_pp:")
    for i in range(14):
        e(f"buffer_load_dwordx4 {vr(P+4*i,4)}, v{24+(i&3)}, s[24:27], s{52+(i>>2)} offen sc1")
    e("s_add_u32 s47, s47, 1")
    e("s_waitcnt vmcnt(12)")
    e(f"v_pk_add_f32 v[28:29], {vr(P,2)}, {vr(P+4,2)}")
    e(f"v_pk_add_f32 v[30:31], {vr(P+2,2)}, {vr(P+6,2)}")
    for i in range(2, 14):
        e(f"s_waitcnt vmcnt({13-i})")
        e(f"v_pk_add_f32 v[28:29], v[28:29], {vr(P+4*i,2)}")
        e(f"v_pk_add_f32 v[30:31], v[30:31], {vr(P+4*i+2,2)}")
    e("v_add_f32 v8, v28, v29")
    e("v_add_f32 v9, v30, v31")
    e("v_cmp_u_f32 vcc, v8, v9")
    e("s_cbranch_vccz L_f_got")
    e(f"v_max3_u32 v8, v{P}, v{P+1}, v{P+2}")
    for i in range(3, 55, 2):
        e(f"v_max3_u32 v8, v8, v{P+i}, v{P+i+1}")
    e(f"v_max_u32 v8, v8, v{P+55}")
    e("v_cmp_eq_u32 vcc, -1, v8")
    e("s_cbranch_vccz L_f_got")
    e("s_cmp_lt_u32 s47, 0x40000")
    e("s_cbranch_scc1 L_f_pp")
    e("L_f_got:")
    stamp(e, 6)
    for sw in ("16", "32"):
        for r in range(4):
            e(f"v_mov_b32 v{32+r}, v{28+r}")
        for r in range(4):
            e(f"v_permlane{sw}_swap_b32 v{28+r}, v{32+r}")
        e("v_pk_add_f32 v[28:29], v[28:29], v[32:33]")
        e("v_pk_add_f32 v[30:31], v[30:31], v[34:35]")
    for r in range(4):
        e(f"v_fma_f32 v{24+r}, v{28+r}, v18, v{20+r}")
    e("v_cvt_pk_bf16_f32 v16, v24, v25")
    e("v_cvt_pk_bf16_f32 v17, v26, v27")
    e("s_mov_b64 exec, 0xffff")
    e("buffer_store_dwordx2 v[16:17], v14, s[48:51], 0 offen" + (" sc1" if OPT.get("fsc1", 1) else ""))
    stamp_flush(e, 1, 24, 7, 28)

if __name__ == "__main__":
    for a in sys.argv[2:]:
        if a == "diag":
            DIAG = True; gen.DIAG = True
        else:
            k, v = a.split("=")
            OPT[k] = int(v)
    VH = 28672 + OPT.get("vpad", 256); VS = OPT.get("vs", 2*VH)
    build([ka], sys.argv[1])
    if not OPT.get("aslist", 0):
        t = open(sys.argv[1]).read().replace("; @launch kernel=" + NAME + "_kernel grid", "; @launch grid")
        open(sys.argv[1], "w").write(t)
```

```python
import sys, importlib; sys.path.insert(0, "work")
import gen
from gen import header, srd, build, vr
G = importlib.import_module(sys.argv[1])
gen.DIAG = True; G.DIAG = True
for a in sys.argv[3:]:
    k, v = a.split("="); G.OPT[k] = int(v)
DPP6 = G.DPP6
def probe(kid, st, lo, hi, w0, w1, mult=8):
    def f(e):
        header(e, "fnet_pr_kernel")
        e("s_cmp_ge_u32 s2, 1")
        e("s_cbranch_scc1 L_pr_end")
        e("s_load_dwordx2 s[4:5], s[0:1], 96")
        e("s_load_dwordx2 s[14:15], s[0:1], 88")
        e("s_waitcnt lgkmcnt(0)")
        srd(e, 8, 4, G.WS_SIZE)
        e("v_lshlrev_b32 v1, 9, v0")
        e(f"s_mov_b32 s12, {G.WS_DIAG}")
        e("buffer_load_dword v2, off, s[8:11], s12")
        e("v_mov_b32 v10, 0")
        for j in range(4):
            e(f"s_mov_b32 s13, {G.WS_DIAG + j*64*512}")
            e(f"buffer_load_dword v{3+j}, v1, s[8:11], s13 offen")
        e("s_waitcnt vmcnt(0)")
        for j in range(4):
            e(f"v_sub_u32 v{3+j}, v2, v{3+j}")
            e(f"v_cmp_gt_u32 vcc, 1000, v{3+j}")
            e("s_nop 1")
            e(f"v_cndmask_b32 v{3+j}, 0, v{3+j}, vcc")
            if j < 3 or True:
                e(f"v_max_u32 v10, v10, v{3+j}")
        for s in DPP6:
            e("s_nop 1"); e(f"v_max_u32_dpp v10, v10, v10 {s} bank_mask:0xf")
        e("s_nop 1")
        e("v_readlane_b32 s17, v10, 63")
        e("s_nop 3")
        e("v_subrev_u32 v2, s17, v2")
        e("v_mov_b32 v10, 0")
        for w in range(w0, w1):
            for j in range(4):
                e(f"s_mov_b32 s13, {G.WS_DIAG + kid*0x40000 + j*64*512 + w*64 + st*4}")
                e(f"buffer_load_dword v{3+j}, v1, s[8:11], s13 offen")
            e("s_waitcnt vmcnt(0)")
            for j in range(4):
                e(f"v_add_u32 v8, {64*j}, v0")
                e(f"v_sub_u32 v{3+j}, v{3+j}, v2")
                e(f"v_cmp_gt_u32 vcc, 0xbb8, v{3+j}")
                e(f"s_movk_i32 s18, {lo}"); e(f"s_movk_i32 s19, {hi}")
                e(f"v_cmp_le_u32 s[20:21], s18, v8")
                e(f"v_cmp_gt_u32 s[22:23], s19, v8")
                e("s_nop 1")
                e("s_and_b64 vcc, vcc, s[20:21]"); e("s_and_b64 vcc, vcc, s[22:23]")
                e("s_nop 1")
                e(f"v_cndmask_b32 v{3+j}, 0, v{3+j}, vcc")
                e(f"v_max_u32 v10, v10, v{3+j}")
        for s in DPP6:
            e("s_nop 1"); e(f"v_max_u32_dpp v10, v10, v10 {s} bank_mask:0xf")
        e("s_nop 1")
        e("v_readlane_b32 s16, v10, 63")
        e("s_nop 3")
        e("v_mov_b32 v1, s16")
        srd(e, 8, 14, 256)
        e("buffer_store_dword v1, off, s[8:11], 0")
        e(f"s_mul_i32 s16, s16, {mult}")
        e("s_memrealtime s[20:21]")
        e("s_waitcnt lgkmcnt(0)")
        e("L_pr_spin:")
        e("s_memrealtime s[22:23]")
        e("s_waitcnt lgkmcnt(0)")
        e("s_sub_u32 s24, s22, s20")
        e("s_cmp_lt_u32 s24, s16")
        e("s_cbranch_scc1 L_pr_spin")
        e("L_pr_end:")
        e("s_endpgm")
        return dict(name="fnet_pr_kernel", vgpr=16, accum=16, sgpr=32, grid=1, block=64, lds=0)
    return f
G.VH = 28672 + G.OPT.get("vpad", 256); G.VS = G.OPT.get("vs", 2*G.VH)
sets = eval(sys.argv[2])
for i, a in enumerate(sets):
    build([G.ka, probe(*a)], f"pq{i}.s")
```
